```python
import torch

def _softmax(x, axis=-1):
    return torch.softmax(x, dim=axis)
def _gelu(x):
    return torch.nn.functional.gelu(x, approximate="tanh")
def _silu(x):
    return torch.nn.functional.silu(x)
def _sigmoid(x):
    return torch.sigmoid(x)
def _layernorm(x, axis=-1, eps=1e-5):
    m = x.mean(dim=axis, keepdim=True)
    v = x.var(dim=axis, keepdim=True, unbiased=False)
    return (x - m) / torch.sqrt(v + eps)
def _scatter_add(tgt, idx, src, axis=0):
    return tgt.clone().index_add_(axis, idx, src)
def _segment_sum(src, seg, n):
    out = torch.zeros((n,) + src.shape[1:], dtype=src.dtype)
    return out.index_add_(0, seg, src)
def _pad(x, pw):
    flat = tuple(v for pair in reversed(pw) for v in pair)
    return torch.nn.functional.pad(x, flat)

kernel_name = 'gated_mix__spectral_fnet__geglu_ffn__prompt'

def setup_inputs():

    _w = (lambda a: (lambda t: t.to(torch.bfloat16) if t.is_floating_point() else t)(torch.as_tensor(a)))
    def _A_setup():
        B, S, D = 1, 2048, 512
        ns = torch.arange(S)[:, None] * torch.arange(S)[None, :]
        nd = torch.arange(D)[:, None] * torch.arange(D)[None, :]
        Ws_re = torch.cos(-2.0 * torch.pi * ns / S).to(float)
        Ws_im = torch.sin(-2.0 * torch.pi * ns / S).to(float)
        Wd_re = torch.cos(-2.0 * torch.pi * nd / D).to(float)
        Wd_im = torch.sin(-2.0 * torch.pi * nd / D).to(float)
        return {
            "x": _w((lambda *s: torch.randn(*s, dtype=torch.bfloat16) * 0.05)(B, S, D)),
            "dft_seq_re": _w(Ws_re),
            "dft_seq_im": _w(Ws_im),
            "dft_hid_re": _w(Wd_re),
            "dft_hid_im": _w(Wd_im),
        }
    _A_in = _A_setup()

    def _B_setup():
        B, S, D, F = 1, 2048, 512, 1376
        return {
            "x": _w((lambda *s: torch.randn(*s, dtype=torch.bfloat16) * 0.05)(B, S, D)),
            "w_gate": _w((lambda *s: torch.randn(*s, dtype=torch.bfloat16) * 0.8)(D, F)),
            "w_up": _w((lambda *s: torch.randn(*s, dtype=torch.bfloat16) * 0.8)(D, F)),
            "w_down": _w((lambda *s: torch.randn(*s, dtype=torch.bfloat16) * 0.8)(F, D)),
        }
    _B_in = _B_setup()

    return {
        "A_x": _A_in["x"],
        "A_dft_seq_re": _A_in["dft_seq_re"],
        "A_dft_seq_im": _A_in["dft_seq_im"],
        "A_dft_hid_re": _A_in["dft_hid_re"],
        "A_dft_hid_im": _A_in["dft_hid_im"],
        "B_x": _B_in["x"],
        "B_w_gate": _B_in["w_gate"],
        "B_w_up": _B_in["w_up"],
        "B_w_down": _B_in["w_down"],
        "gate_w": _w((lambda *s: torch.randn(*s, dtype=torch.bfloat16) * 0.05)(512) * 16.0),
    }

def reference(A_x, A_dft_seq_re, A_dft_seq_im, A_dft_hid_re, A_dft_hid_im, B_x, B_w_gate, B_w_up, B_w_down, gate_w):
    def _A_ref(x, dft_seq_re, dft_seq_im, dft_hid_re, dft_hid_im):
        a = torch.einsum("bsd,ed->bse", x, dft_hid_re)
        b = torch.einsum("bsd,ed->bse", x, dft_hid_im)
        y = torch.einsum("ts,bse->bte", dft_seq_re, a) - torch.einsum("ts,bse->bte", dft_seq_im, b)
        return y

    def _B_ref(x, w_gate, w_up, w_down):
        return (_gelu(x @ w_gate) * (x @ w_up)) @ w_down

    x = A_x
    g = _sigmoid((x * gate_w).sum(-1, keepdims=True))
    a = _A_ref(x, A_dft_seq_re, A_dft_seq_im, A_dft_hid_re, A_dft_hid_im)
    b = _B_ref(x, B_w_gate, B_w_up, B_w_down)
    return g * a + (1 - g) * b
```

```python
import struct, sys, argparse

NAME = "gated_mix__spectral_fnet__geglu_ffn__prompt"
H_OFF = 0
H_SIZE = 64 * 86 * 1024
Z_OFF = 0x600000
EP = 288
Z_SIZE = 32 * 64 * EP * 4
G_OFF = 0x900000
G_SIZE = 2048 * 8
T_OFF = 0xA00000


def f2u(f):
    return struct.unpack("<I", struct.pack("<f", f))[0]


class Asm:
    def __init__(self):
        self.l = []

    def __call__(self, s):
        self.l.append("    " + s)

    def label(self, s):
        self.l.append(s + ":")

    def c(self, s):
        self.l.append("    ; " + s)

    def text(self):
        return "\n".join(self.l) + "\n"


def vr(b, n):
    return f"v[{b}:{b+n-1}]"


def ar(b, n):
    return f"a[{b}:{b+n-1}]"


def srd(a, d, lo, hi, size, add=0):
    if add:
        a(f"s_add_u32 s{d}, s{lo}, {add:#x}")
        a(f"s_addc_u32 s{d+1}, s{hi}, 0")
    else:
        a(f"s_mov_b32 s{d}, s{lo}")
        a(f"s_mov_b32 s{d+1}, s{hi}")
    a(f"s_mov_b32 s{d+2}, {size:#x}")
    a(f"s_mov_b32 s{d+3}, 0x20000")


def stamp(a, opt, idx, wsreg, kern):
    if not opt.stamps:
        return
    a(f"s_memrealtime s[{90 - 2*0}:{91}]")
    a("s_waitcnt lgkmcnt(0)")
    a(f"v_writelane_b32 v255, s90, {idx}")


def stamp_flush(a, opt, wsreg, kern, wavereg):
    if not opt.stamps:
        return
    srd(a, 92, wsreg, wsreg + 1, 0x100000, T_OFF)
    a(f"s_lshl_b32 s96, s2, 2")
    a(f"s_add_u32 s96, s96, s{wavereg}")
    a(f"s_lshl_b32 s96, s96, 8")
    a(f"s_add_u32 s96, s96, {kern * 0x40000:#x}")
    a("v_mbcnt_lo_u32_b32 v254, -1, 0")
    a("v_mbcnt_hi_u32_b32 v254, -1, v254")
    a("v_lshlrev_b32 v254, 2, v254")
    a("buffer_store_dword v255, v254, s[92:95], s96 offen")


V_LANE, V_XOFF, V_DMA, V_TR, V_ST, V_T0 = 1, 2, 3, 10, 15, 16
FRAG, NFRAG = 32, 8
ACC = 64
C1 = -2.0 * 0.7978845608028654 * 1.4426950408889634
C2 = C1 * 0.044715


def k1_path(a, opt, kind):
    st = opt.store_flags
    if kind == "ffn7":
        CH, gp, T, NB = 14, 2752, 7, 5
        moff = 64 * CH * 16 + 128
        stage_sz = 2 * 64 * CH * 16 + 128
    elif kind == "spec":
        CH, gp, T, NB = 12, 1024, 6, 5
        moff = 64 * CH * 16
        stage_sz = 2 * moff
    else:
        CH, gp, T, NB = 4, 2752, 3, 8
        moff = 64 * CH * 16 + 32
        stage_sz = 2 * 64 * CH * 16 + 64
    pitch = CH * 16
    ND = 32 * CH // 64
    GW_LDS = 8 * stage_sz
    a.label(f"L1_{kind}")
    a("s_cmp_ge_u32 s20, 2")
    if kind == "spec":
        a("s_cselect_b64 s[28:29], s[10:11], s[8:9]")
        a(f"s_mov_b32 s30, {512*1024:#x}")
        a("s_sub_u32 s42, s22, 13")
        a("s_mul_i32 s42, s42, 192")
    else:
        a("s_cselect_b64 s[28:29], s[14:15], s[12:13]")
        a(f"s_mov_b32 s30, {512*2752:#x}")
        a("s_mul_i32 s42, s22, 224")
    a("s_mov_b32 s31, 0x20000")
    a("s_and_b32 s43, s20, 1")
    a(f"s_mul_i32 s44, s43, {32*gp}")
    a("s_add_u32 s42, s42, s44")
    a("s_lshr_b32 s44, s20, 1")
    a(f"s_mul_i32 s41, s44, {moff}")
    a(f"s_mul_i32 s44, s43, {32*pitch}")
    a("s_add_u32 s41, s41, s44")
    magic = (65536 + CH - 1) // CH
    for q in range(ND):
        d = V_DMA + q
        a(f"v_add_u32 v{V_T0}, {64*q}, v{V_LANE}")
        if CH == 4:
            a(f"v_lshrrev_b32 v{V_T0+1}, 2, v{V_T0}")
        else:
            a(f"v_mul_u32_u24 v{V_T0+1}, {magic}, v{V_T0}")
            a(f"v_lshrrev_b32 v{V_T0+1}, 16, v{V_T0+1}")
        a(f"v_mul_u32_u24 v{V_T0+2}, {CH}, v{V_T0+1}")
        a(f"v_sub_u32 v{V_T0}, v{V_T0}, v{V_T0+2}")
        a(f"v_mul_u32_u24 v{V_T0+1}, {gp}, v{V_T0+1}")
        a(f"v_lshl_add_u32 v{d}, v{V_T0}, 4, v{V_T0+1}")
        a(f"v_add_u32 v{d}, s42, v{d}")
    a("s_mov_b32 s40, 0")

    def group(s):
        ins = []
        slot = s % NB
        for q in range(ND):
            chunk = []
            chunk.append(f"s_add_u32 m0, s41, {slot*stage_sz + q*1024}")
            if q == 0:
                chunk.append(f"s_mov_b32 s40, {s*64*gp}")
            else:
                chunk.append("s_nop 0")
            chunk.append(f"buffer_load_dwordx4 v{V_DMA+q}, s[28:31], s40 offen lds")
            ins.append(chunk)
        for kk in range(4 * s, 4 * s + 4):
            ins.append([f"buffer_load_dwordx4 {ar(4*kk,4)}, v{V_XOFF}, s[24:27], 0 offen offset:{kk*32}"])
        return ins

    GL = ND + 4
    npro = min(NB, 8)
    if kind == "ffn2g":
        srd(a, 36, 16, 17, 1024)
        a("s_lshl_b32 s44, s20, 10")
        a(f"s_add_u32 m0, s44, {GW_LDS}")
        a(f"v_lshlrev_b32 v{V_T0}, 4, v{V_LANE}")
        a(f"buffer_load_dwordx4 v{V_T0}, s[36:39], 0 offen lds")
    for s in range(npro):
        for ch in group(s):
            for i in ch:
                a(i)
    stamp(a, opt, 1, 18, 0)
    t0, t1, t2 = V_T0, V_T0 + 1, V_T0 + 2
    a(f"v_lshrrev_b32 v{t0}, 5, v{V_LANE}")
    a(f"v_lshlrev_b32 v{t0}, 3, v{t0}")
    a(f"v_bfe_u32 v{t1}, v{V_LANE}, 2, 2")
    a(f"v_add_u32 v{t0}, v{t0}, v{t1}")
    a(f"v_mul_u32_u24 v{t0}, {pitch}, v{t0}")
    a(f"v_bfe_u32 v{t1}, v{V_LANE}, 4, 1")
    if kind == "spec":
        a(f"v_lshl_add_u32 v{t0}, v{t1}, 5, v{t0}")
        a(f"v_and_b32 v{t1}, 3, v{V_LANE}")
        a(f"v_lshl_add_u32 v{V_TR}, v{t1}, 3, v{t0}")
    else:
        a(f"v_mul_u32_u24 v{t1}, {moff}, v{t1}")
        a(f"v_add_u32 v{t0}, v{t0}, v{t1}")
        a(f"v_and_b32 v{t1}, 1, v{V_LANE}")
        a(f"v_lshl_add_u32 v{t0}, v{t1}, 4, v{t0}")
        a(f"v_bfe_u32 v{t1}, v{V_LANE}, 1, 1")
        a(f"v_lshl_add_u32 v{V_TR}, v{t1}, 3, v{t0}")
    if kind == "ffn2g":
        nbase = 2
        a(f"v_add_u32 v{V_TR+1}, {4*stage_sz}, v{V_TR}")
        a(f"v_lshrrev_b32 v{t0}, 5, v{V_LANE}")
        a(f"v_lshlrev_b32 v{t0}, 4, v{t0}")
        a(f"v_add_u32 v{t0}, s44, v{t0}")
        a(f"v_add_u32 v{V_TR+2}, {GW_LDS}, v{t0}")
    else:
        for sl in range(1, NB):
            a(f"v_add_u32 v{V_TR+sl}, {sl*stage_sz}, v{V_TR}")
    if kind == "spec":
        CF, SF, NF = 176, 184, 192
        a(f"v_and_b32 v{t0}, 31, v{V_LANE}")
        a(f"v_lshrrev_b32 v{t1}, 5, v{V_LANE}")
        a(f"v_lshlrev_b32 v{t1}, 2, v{t1}")
        a(f"v_mul_u32_u24 v{t1}, v{t0}, v{t1}")
        tc, ts = 200, 216
        for ks in range(2):
            for sg in range(8):
                s1c = 16 * ks + 8 * (sg >> 2) + (sg & 3)
                i = 8 * ks + sg
                a(f"v_mad_u32_u24 v{tc+i}, v{t0}, {s1c}, v{t1}")
        for i in range(16):
            a(f"v_and_b32 v{tc+i}, 31, v{tc+i}")
        for i in range(16):
            a(f"v_cvt_f32_u32 v{tc+i}, v{tc+i}")
        for i in range(16):
            a(f"v_mul_f32 v{tc+i}, {f2u(1.0/32):#x}, v{tc+i}")
        for i in range(16):
            a(f"v_sin_f32 v{ts+i}, v{tc+i}")
        for i in range(16):
            a(f"v_cos_f32 v{tc+i}, v{tc+i}")
        a("s_nop 0")
        for i in range(8):
            a(f"v_cvt_pk_bf16_f32 v{CF+i}, v{tc+2*i}, v{tc+2*i+1}")
            a(f"v_cvt_pk_bf16_f32 v{SF+i}, v{ts+2*i}, v{ts+2*i+1}")
        for i in range(8):
            a(f"v_xor_b32 v{NF+i}, 0x80008000, v{CF+i}")
        a(f"v_lshrrev_b32 v{t1}, 5, v{V_LANE}")
        a(f"v_mul_u32_u24 v{t1}, {4*64*EP*4}, v{t1}")
        a(f"v_lshl_add_u32 v{V_ST}, v{t0}, 2, v{t1}")
        srd(a, 32, 18, 19, Z_SIZE, Z_OFF)
    else:
        a(f"v_mov_b32 v{V_T0+3}, {f2u(C2):#x}")
        a(f"v_lshlrev_b32 v{V_ST}, 4, v{V_LANE}")
        srd(a, 32, 18, 19, H_SIZE, H_OFF)

    D = opt.look
    slots = [(s, kk, p) for s in range(8) for kk in range(4) for p in range(T)]
    N = len(slots)

    def reads(n):
        s, kk, p = slots[n]
        f = FRAG + 4 * (n % NFRAG)
        if kind == "ffn2g":
            if p == 2:
                return [f"ds_read_b128 {vr(f,4)}, v{V_TR+2} offset:{(4*s+kk)*32}"]
            base = V_TR + s // 4
            off = (s % 4) * stage_sz + kk * 16 * pitch + p * 32
        elif kind == "ffn7":
            base = V_TR + s % NB
            off = kk * 16 * pitch + p * 32
        else:
            base = V_TR + s % NB
            m, u = p & 1, p >> 1
            off = m * moff + kk * 16 * pitch + u * 64
        return [f"ds_read_b64_tr_b16 {vr(f,2)}, v{base} offset:{off}",
                f"ds_read_b64_tr_b16 {vr(f+2,2)}, v{base} offset:{off + 4*pitch}"]

    nreads = [len(reads(n)) for n in range(N)]
    issued_groups = npro
    pending = []

    def stage_sync(s):
        nonlocal issued_groups, pending
        for ch in pending:
            for i in ch:
                a(i)
        pending = []
        cnt = (issued_groups - 1 - s) * GL
        a(f"s_waitcnt vmcnt({cnt})")
        a("s_barrier")
        if s == 0:
            stamp(a, opt, 2, 18, 0)
        if s >= 2 and issued_groups < 8:
            pending = group(issued_groups)
            issued_groups += 1

    def issue_reads(n):
        if n % (4 * T) == 0:
            stage_sync(slots[n][0])
        for r in reads(n):
            a(r)

    for n in range(min(D, N)):
        issue_reads(n)
    for n in range(N):
        s, kk, p = slots[n]
        if n + D < N:
            issue_reads(n + D)
        out = sum(nreads[n + 1:min(n + D + 1, N)])
        a(f"s_waitcnt lgkmcnt({out})")
        f = FRAG + 4 * (n % NFRAG)
        acc = vr(ACC + 16 * p, 16)
        xk = ar(4 * (4 * s + kk), 4)
        srcc = "0" if (s == 0 and kk == 0) else acc
        if kind == "spec":
            a(f"v_mfma_f32_32x32x16_bf16 {acc}, {xk}, {vr(f,4)}, {srcc}")
        else:
            a(f"v_mfma_f32_32x32x16_bf16 {acc}, {vr(f,4)}, {xk}, {srcc}")
        if pending:
            for i in pending.pop(0):
                a(i)
    a("s_nop 7")
    a("s_nop 7")
    stamp(a, opt, 3, 18, 0)
    if kind == "spec":
        PA = 200
        for u in range(3):
            for m in range(2):
                A = ACC + 16 * (2 * u + m)
                for i in range(8):
                    a(f"v_cvt_pk_bf16_f32 v{PA+16*u+8*m+i}, v{A+2*i}, v{A+2*i+1}")
        a("s_nop 1")
        for u in range(3):
            zr, zm = vr(ACC + 32 * u, 16), vr(ACC + 32 * u + 16, 16)
            pa, pb = PA + 16 * u, PA + 16 * u + 8
            a(f"v_mfma_f32_32x32x16_bf16 {zr}, {vr(CF,4)}, {vr(pa,4)}, 0")
            a(f"v_mfma_f32_32x32x16_bf16 {zm}, {vr(SF,4)}, {vr(pa,4)}, 0")
            a(f"v_mfma_f32_32x32x16_bf16 {zr}, {vr(CF+4,4)}, {vr(pa+4,4)}, {zr}")
            a(f"v_mfma_f32_32x32x16_bf16 {zm}, {vr(SF+4,4)}, {vr(pa+4,4)}, {zm}")
            a(f"v_mfma_f32_32x32x16_bf16 {zr}, {vr(SF,4)}, {vr(pb,4)}, {zr}")
            a(f"v_mfma_f32_32x32x16_bf16 {zm}, {vr(NF,4)}, {vr(pb,4)}, {zm}")
            a(f"v_mfma_f32_32x32x16_bf16 {zr}, {vr(SF+4,4)}, {vr(pb+4,4)}, {zr}")
            a(f"v_mfma_f32_32x32x16_bf16 {zm}, {vr(NF+4,4)}, {vr(pb+4,4)}, {zm}")
        a("s_sub_u32 s42, s22, 13")
        a("s_mul_i32 s42, s42, 96")
        a(f"s_mul_i32 s43, s23, {EP}")
        a("s_add_u32 s42, s42, s43")
        a("s_lshl_b32 s42, s42, 2")
        a("s_nop 7")
        a("s_nop 7")
        for u in range(3):
            for rg in range(16):
                rr = 8 * (rg >> 2) + (rg & 3)
                zr, zm = ACC + 32 * u + rg, ACC + 32 * u + 16 + rg
                a(f"s_add_u32 s43, s42, {rr*64*EP*4}")
                a(f"v_cvt_pk_bf16_f32 v{zr}, v{zr}, v{zm}")
                a(f"buffer_store_dword v{zr}, v{V_ST}, s[32:35], s43 offen offset:{128*u}{st}")
    else:
        np_ = 7 if kind == "ffn7" else 2
        TT = 176
        a("s_mul_i32 s42, s23, 86")
        a("s_mul_i32 s43, s22, 7")
        a("s_add_u32 s42, s42, s43")
        a("s_lshl_b32 s42, s42, 10")
        a("s_add_u32 s43, s42, 4096")
        for p in range(np_):
            A = ACC + 16 * p
            for v in range(8):
                a(f"v_mul_f32 v{TT+v}, v{A+v}, v{A+v}")
            for v in range(8):
                a(f"v_fmaak_f32 v{TT+v}, v{TT+v}, v{V_T0+3}, {f2u(C1):#x}")
            for v in range(8):
                a(f"v_mul_f32 v{TT+v}, v{TT+v}, v{A+v}")
            for v in range(8):
                a(f"v_exp_f32 v{TT+v}, v{TT+v}")
            for v in range(8):
                a(f"v_mul_f32 v{A+8+v}, v{A+v}, v{A+8+v}")
            for v in range(8):
                a(f"v_add_f32 v{TT+v}, 1.0, v{TT+v}")
            for v in range(8):
                a(f"v_rcp_f32 v{TT+v}, v{TT+v}")
            a("s_nop 0")
            for v in range(8):
                a(f"v_mul_f32 v{A+8+v}, v{A+8+v}, v{TT+v}")
            for i in range(4):
                a(f"v_cvt_pk_bf16_f32 v{A+i}, v{A+8+2*i}, v{A+8+2*i+1}")
            so = "s42" if p < 4 else "s43"
            a(f"buffer_store_dwordx4 {vr(A,4)}, v{V_ST}, s[32:35], {so} offen offset:{(p%4)*1024}{st}")
        if kind == "ffn2g":
            A = ACC + 32
            srd(a, 36, 18, 19, G_SIZE, G_OFF)
            a(f"v_cvt_pk_bf16_f32 v{A}, v{A}, v{A}")
            a(f"v_and_b32 v{A}, 0xffff0000, v{A}")
            a(f"v_mul_f32 v{A}, {f2u(-1.4426950408889634):#x}, v{A}")
            a(f"v_exp_f32 v{A}, v{A}")
            a("s_nop 0")
            a(f"v_add_f32 v{A}, 1.0, v{A}")
            a(f"v_rcp_f32 v{A}, v{A}")
            a("s_nop 0")
            a(f"v_cvt_pk_bf16_f32 v{A}, v{A}, v{A}")
            a(f"v_and_b32 v{A}, 0xffff0000, v{A}")
            a(f"v_sub_f32 v{A+1}, 1.0, v{A}")
            a(f"v_cvt_pk_bf16_f32 v{A+1}, v{A+1}, v{A+1}")
            a(f"v_and_b32 v{A+1}, 0xffff0000, v{A+1}")
            a(f"v_and_b32 v{V_T0}, 31, v{V_LANE}")
            a(f"v_lshlrev_b32 v{V_T0}, 3, v{V_T0}")
            a("s_lshl_b32 s42, s23, 8")
            a(f"buffer_store_dwordx2 {vr(A,2)}, v{V_T0}, s[36:39], s42 offen{st}")
    stamp(a, opt, 4, 18, 0)
    if opt.stamps:
        a("s_waitcnt vmcnt(0)")
        stamp(a, opt, 5, 18, 0)
        stamp_flush(a, opt, 18, 0, 20)
    a("s_endpgm")


def k1(a, opt):
    a.label("k1_kernel")
    a("s_cmp_ge_u32 s2, 256")
    a("s_cbranch_scc1 L1_exit")
    a("s_load_dwordx2 s[4:5], s[0:1], 0")
    a("s_load_dwordx4 s[8:11], s[0:1], 24")
    a("s_load_dwordx4 s[12:15], s[0:1], 48")
    a("s_load_dwordx2 s[16:17], s[0:1], 72")
    a("s_load_dwordx2 s[18:19], s[0:1], 96")
    if opt.stamps:
        a("v_mov_b32 v255, 0")
    a(f"v_lshrrev_b32 v{V_T0}, 6, v0")
    a(f"v_and_b32 v{V_LANE}, 63, v0")
    a(f"v_readfirstlane_b32 s20, v{V_T0}")
    a("s_and_b32 s42, s2, 1")
    a("s_lshl_b32 s42, s42, 3")
    a("s_bfe_u32 s43, s2, 0x30003")
    a("s_add_u32 s21, s42, s43")
    a("s_bfe_u32 s42, s2, 0x20001")
    a("s_lshl_b32 s42, s42, 2")
    a("s_lshr_b32 s43, s2, 6")
    a("s_add_u32 s22, s42, s43")
    a("s_lshl_b32 s23, s21, 2")
    a("s_add_u32 s23, s23, s20")
    a(f"v_and_b32 v{V_T0}, 31, v{V_LANE}")
    a(f"v_lshlrev_b32 v{V_T0}, 16, v{V_T0}")
    a(f"v_lshrrev_b32 v{V_T0+1}, 5, v{V_LANE}")
    a(f"v_lshl_add_u32 v{V_T0}, v{V_T0+1}, 4, v{V_T0}")
    a("s_lshl_b32 s42, s23, 10")
    a(f"v_add_u32 v{V_XOFF}, s42, v{V_T0}")
    a("s_waitcnt lgkmcnt(0)")
    stamp(a, opt, 0, 18, 0)
    srd(a, 24, 4, 5, 2048 * 1024)
    a("s_cmp_eq_u32 s22, 12")
    a("s_cbranch_scc1 L1_ffn2g")
    a("s_cmp_gt_u32 s22, 12")
    a("s_cbranch_scc1 L1_spec")
    k1_path(a, opt, "ffn7")
    k1_path(a, opt, "spec")
    k1_path(a, opt, "ffn2g")
    a.label("L1_exit")
    a("s_endpgm")


def k2(a, opt):
    NS = 22
    RING = 16
    AHEAD = opt.ahead
    ZF, CR, SR, BF, ACY, ACB, WF = 16, 48, 64, 80, 112, 128, 192
    a.label("k2_kernel")
    a("s_cmp_ge_u32 s2, 256")
    a("s_cbranch_scc1 L2_exit")
    a("s_load_dwordx4 s[4:7], s[0:1], 8")
    a("s_load_dwordx2 s[8:9], s[0:1], 64")
    a("s_load_dwordx2 s[10:11], s[0:1], 80")
    a("s_load_dwordx2 s[12:13], s[0:1], 96")
    if opt.stamps:
        a("v_mov_b32 v255, 0")
    a("v_lshrrev_b32 v12, 6, v0")
    a("v_and_b32 v1, 63, v0")
    a("v_readfirstlane_b32 s20, v12")
    a("s_bfe_u32 s14, s2, 0x20001")
    a("s_lshl_b32 s14, s14, 3")
    a("s_bfe_u32 s15, s2, 0x30003")
    a("s_add_u32 s21, s14, s15")
    a("s_and_b32 s14, s2, 1")
    a("s_lshl_b32 s14, s14, 2")
    a("s_lshr_b32 s15, s2, 6")
    a("s_add_u32 s22, s14, s15")
    a("s_and_b32 s23, s20, 1")
    a("s_lshr_b32 s24, s20, 1")
    a("v_lshlrev_b32 v2, 4, v1")
    a("s_mul_i32 s14, s20, 22")
    a("s_lshl_b32 s15, s23, 5")
    a("s_add_u32 s16, s21, s15")
    a("s_xor_b32 s17, s16, 32")
    a("s_mul_i32 s56, s16, 86")
    a("s_add_u32 s56, s56, s14")
    a("s_lshl_b32 s56, s56, 10")
    a("s_mul_i32 s57, s17, 86")
    a("s_add_u32 s57, s57, s14")
    a("s_lshl_b32 s57, s57, 10")
    a("s_lshl_b32 s58, s14, 14")
    a("s_lshl_b32 s15, s22, 7")
    a("s_add_u32 s58, s58, s15")
    a(f"s_mul_i32 s60, s20, {RING*2048}")
    a("v_bfe_u32 v12, v1, 4, 1")
    a("v_lshlrev_b32 v12, 2, v12")
    a("v_and_b32 v13, 7, v1")
    a("v_xor_b32 v12, v12, v13")
    a("v_lshrrev_b32 v13, 3, v1")
    a("v_lshlrev_b32 v13, 10, v13")
    a("v_lshl_add_u32 v3, v12, 4, v13")
    a("s_waitcnt lgkmcnt(0)")
    stamp(a, opt, 0, 12, 1)
    srd(a, 28, 12, 13, H_SIZE, H_OFF)
    srd(a, 32, 8, 9, 1376 * 1024)

    def loads(i):
        ins = []
        if i and i % 4 == 0:
            ins.append("s_add_u32 s56, s56, 4096")
            ins.append("s_add_u32 s57, s57, 4096")
        for d in range(2):
            ins.append(f"s_add_u32 m0, s60, {(i % RING)*2048 + d*1024}")
            ins.append("s_nop 0")
            ins.append("buffer_load_dwordx4 v3, s[32:35], s58 offen lds")
            ins.append("s_add_u32 s58, s58, 8192")
        ins.append(f"buffer_load_dwordx4 {ar(8*i,4)}, v2, s[28:31], s56 offen offset:{(i%4)*1024}")
        ins.append(f"buffer_load_dwordx4 {ar(8*i+4,4)}, v2, s[28:31], s57 offen offset:{(i%4)*1024}")
        return ins

    PRE = opt.pre
    for i in range(PRE):
        for s in loads(i):
            a(s)
    srd(a, 36, 12, 13, Z_SIZE, Z_OFF)
    srd(a, 40, 4, 5, 2048 * 4096)
    srd(a, 44, 6, 7, 2048 * 4096)
    srd(a, 48, 12, 13, G_SIZE, G_OFF)
    srd(a, 52, 10, 11, 2048 * 1024)
    a("v_bfe_u32 v12, v1, 2, 1")
    a("v_lshlrev_b32 v12, 4, v12")
    a("v_bfe_u32 v13, v1, 3, 2")
    a("v_lshl_add_u32 v12, v13, 2, v12")
    a("v_and_b32 v13, 3, v1")
    a("v_add_u32 v12, v12, v13")
    a("s_lshl_b32 s14, s22, 6")
    a("s_lshl_b32 s15, s24, 5")
    a("s_add_u32 s14, s14, s15")
    a("v_add_u32 v12, s14, v12")
    a("v_and_b32 v13, 31, v1")
    a("v_lshlrev_b32 v14, 3, v13")
    a("v_mov_b32 v8, v14")
    a("v_lshlrev_b32 v13, 6, v13")
    a("v_add_u32 v13, s16, v13")
    a("v_lshrrev_b32 v15, 5, v1")
    a("v_lshlrev_b32 v9, 10, v13")
    a("v_lshl_add_u32 v9, v15, 5, v9")
    a("s_lshl_b32 s15, s14, 1")
    a("v_add_u32 v9, s15, v9")
    a("s_mov_b32 s25, s21")
    a("s_cmp_lt_u32 s22, 4")
    a("s_cbranch_scc1 L2_nomirror")
    a("v_sub_u32 v12, 0x200, v12")
    a("v_sub_u32 v13, 0x800, v13")
    a("v_and_b32 v13, 0x7ff, v13")
    a("s_sub_u32 s25, 32, s21")
    a("s_and_b32 s25, s25, 31")
    a.label("L2_nomirror")
    a(f"v_mul_u32_u24 v6, {32*EP*4}, v15")
    a("v_lshl_add_u32 v6, v12, 2, v6")
    a(f"s_mul_i32 s59, s25, {64*EP*4}")
    a("v_lshlrev_b32 v7, 12, v13")
    a("v_lshl_add_u32 v7, v15, 6, v7")
    a("s_lshl_b32 s14, s16, 8")
    a("buffer_load_dwordx2 v[10:11], v8, s[48:51], s14 offen")
    for m in range(4):
        a(f"buffer_load_dwordx4 {vr(CR+4*m,4)}, v7, s[40:43], 0 offen offset:{16*m}")
        a(f"buffer_load_dwordx4 {vr(SR+4*m,4)}, v7, s[44:47], 0 offen offset:{16*m}")
    for ks in range(8):
        for q in range(4):
            a(f"buffer_load_dword v{ZF+4*ks+q}, v6, s[36:39], s59 offen offset:{q*EP*4}")
        if ks < 7:
            a(f"s_add_u32 s59, s59, {4*EP*4}")
    NSPEC = 41
    a("v_bfe_u32 v12, v1, 2, 2")
    a("v_lshl_add_u32 v12, v15, 3, v12")
    a("v_lshlrev_b32 v12, 7, v12")
    a("v_add_u32 v12, s60, v12")
    a("v_bfe_u32 v13, v1, 1, 1")
    a("v_lshl_add_u32 v12, v13, 3, v12")
    a("v_and_b32 v13, 1, v1")
    a("v_lshl_add_u32 v12, v13, 5, v12")
    a("v_bfe_u32 v13, v1, 4, 1")
    a("v_lshl_add_u32 v12, v13, 4, v12")
    a("v_bfe_u32 v13, v1, 3, 1")
    a("v_xor_b32 v13, s24, v13")
    a("v_lshl_add_u32 v4, v13, 6, v12")
    a("v_xor_b32 v5, 64, v4")
    a("s_mov_b32 s61, 0x05040100")
    a("s_mov_b32 s62, 0x07060302")
    issued = PRE
    def after(i):
        n = 4 * (issued - 1 - i)
        if i < PRE:
            n += NSPEC
        return n

    def wreads(i):
        f = WF + 8 * (i % 4)
        o = (i % RING) * 2048
        return [f"ds_read_b64_tr_b16 {vr(f,2)}, v4 offset:{o}",
                f"ds_read_b64_tr_b16 {vr(f+2,2)}, v4 offset:{o+512}",
                f"ds_read_b64_tr_b16 {vr(f+4,2)}, v5 offset:{o}",
                f"ds_read_b64_tr_b16 {vr(f+6,2)}, v5 offset:{o+512}"]

    spec_done = False

    def do_spec():
        for ks in range(8):
            m, hf = ks >> 1, ks & 1
            c0, s0 = CR + 4 * m + 2 * hf, SR + 4 * m + 2 * hf
            b = BF + 4 * ks
            a(f"v_perm_b32 v{b}, v{s0}, v{c0}, s61")
            a(f"v_perm_b32 v{b+1}, v{s0}, v{c0}, s62")
            a(f"v_perm_b32 v{b+2}, v{s0+1}, v{c0+1}, s61")
            a(f"v_perm_b32 v{b+3}, v{s0+1}, v{c0+1}, s62")
        a("s_nop 1")
        for ks in range(8):
            acc = vr(ACY, 16)
            a(f"v_mfma_f32_32x32x16_bf16 {acc}, {vr(ZF+4*ks,4)}, {vr(BF+4*ks,4)}, {'0' if ks == 0 else acc}")

    stamp(a, opt, 1, 12, 1)
    for i in range(NS + 1):
        while issued < NS and issued <= i + AHEAD and (4 * (issued - max(i - 1, 0) + 1) + (NSPEC if i - 1 < PRE else 0)) <= 63:
            if issued >= RING:
                if issued - RING > i - 2:
                    break
            for s in loads(issued):
                a(s)
            issued += 1
        if i < NS:
            a(f"s_waitcnt vmcnt({after(i)})")
            if i == 0:
                stamp(a, opt, 2, 12, 1)
            for r in wreads(i):
                a(r)
        if i == PRE and not spec_done:
            do_spec()
            spec_done = True
        if i >= 1:
            j = i - 1
            a(f"s_waitcnt lgkmcnt({4 if i < NS else 0})")
            f = WF + 8 * (j % 4)
            for L in range(4):
                lt, ln = L & 1, L >> 1
                acc = vr(ACB + 16 * L, 16)
                a(f"v_mfma_f32_32x32x16_bf16 {acc}, {vr(f+4*ln,4)}, {ar(8*j+4*lt,4)}, {'0' if j == 0 else acc}")
    assert issued == NS
    stamp(a, opt, 3, 12, 1)
    a("v_add_u32 v12, s60, v2")
    a("s_nop 7")
    a("s_nop 7")
    for L in (1, 2, 3):
        for qd in range(4):
            a(f"ds_write_b128 v12, {vr(ACB+16*L+4*qd,4)} offset:{(L-1)*4096 + qd*1024}")
    for L in (1, 2, 3):
        a(f"s_xor_b32 s14, s20, {L}")
        a(f"s_mul_i32 s14, s14, {RING*2048}")
        a(f"v_add_u32 v{12+L}, s14, v2")
    a("s_waitcnt lgkmcnt(0)")
    a("s_barrier")
    for L in (1, 2, 3):
        for qd in range(4):
            a(f"ds_read_b128 {vr(16*L+4*qd,4)}, v{12+L} offset:{(L-1)*4096 + qd*1024}")
    for rg in range(16):
        a(f"v_mul_f32 v{ACY+rg}, v10, v{ACY+rg}")
    for L in (1, 2, 3):
        a(f"s_waitcnt lgkmcnt({4*(3-L)})")
        for rg in range(16):
            a(f"v_add_f32 v{ACB+rg}, v{ACB+rg}, v{16*L+rg}")
    for rg in range(16):
        a(f"v_fmac_f32 v{ACY+rg}, v11, v{ACB+rg}")
    for i in range(8):
        a(f"v_cvt_pk_bf16_f32 v{16+i}, v{ACY+2*i}, v{ACY+2*i+1}")
    a("buffer_store_dwordx4 v[16:19], v9, s[52:55], 0 offen")
    a("buffer_store_dwordx4 v[20:23], v9, s[52:55], 0 offen offset:16")
    stamp(a, opt, 4, 12, 1)
    if opt.stamps:
        a("s_waitcnt vmcnt(0)")
        stamp(a, opt, 5, 12, 1)
        stamp_flush(a, opt, 12, 1, 20)
    a.label("L2_exit")
    a("s_endpgm")


def descriptor(name, vgpr, accum, sgpr=102):
    return f""".p2align 6
.amdhsa_kernel {name}
  .amdhsa_next_free_vgpr {vgpr}
  .amdhsa_next_free_sgpr {sgpr}
  .amdhsa_accum_offset {accum}
  .amdhsa_group_segment_fixed_size 0
  .amdhsa_kernarg_size 104
  .amdhsa_user_sgpr_count 2
  .amdhsa_user_sgpr_kernarg_segment_ptr 1
  .amdhsa_system_sgpr_workgroup_id_x 1
.end_amdhsa_kernel
"""


def main():
    ap = argparse.ArgumentParser()
    ap.add_argument("-o", default=f"cdna_kernels/{NAME}.s")
    ap.add_argument("--stamps", action="store_true")
    ap.add_argument("--look", type=int, default=6)
    ap.add_argument("--ahead", type=int, default=14)
    ap.add_argument("--pre", type=int, default=4)
    ap.add_argument("--store_flags", default="")
    opt = ap.parse_args()
    if opt.store_flags:
        opt.store_flags = " " + opt.store_flags
    hdr = open(f"cdna_kernels/{NAME}.s.ref").read().split("; Override launch")[0]
    out = hdr
    out += "; @launch kernel=k1_kernel grid=(256,1,1) block=(256,1,1) lds=147456\n"
    out += "; @launch kernel=k2_kernel grid=(256,1,1) block=(256,1,1) lds=131072\n"
    out += '.amdgcn_target "amdgcn-amd-amdhsa--gfx950"\n.text\n'
    for nm, fn in (("k1_kernel", k1), ("k2_kernel", k2)):
        a = Asm()
        fn(a, opt)
        out += f".globl {nm}\n.p2align 8\n.type {nm},@function\n" + a.text()
    out += '.section .rodata,"a"\n'
    out += descriptor("k1_kernel", 384, 256)
    out += descriptor("k2_kernel", 432, 256)
    open(opt.o, "w").write(out)


if __name__ == "__main__":
    main()
```

```python
import struct, sys, argparse

NAME = "gated_mix__spectral_fnet__geglu_ffn__prompt"
H_OFF = 0
H_SIZE = 64 * 86 * 1024
Z_OFF = 0x600000
EP = 288
Z_SIZE = 32 * 64 * EP * 4
G_OFF = 0x900000
G_SIZE = 2048 * 8
T_OFF = 0xA00000
MF16 = "v_mfma_f32_16x16x32_bf16"
MF32 = "v_mfma_f32_32x32x16_bf16"


def f2u(f):
    return struct.unpack("<I", struct.pack("<f", f))[0]


class Asm:
    def __init__(self):
        self.l = []
        self.ds = []

    def __call__(self, s):
        self.l.append("    " + s)

    def label(self, s):
        self.l.append(s + ":")

    def dsop(self, s, tag):
        self(s)
        self.ds.append(tag)

    def dswait(self, tag):
        idx = max(i for i, t in enumerate(self.ds) if t == tag)
        n = len(self.ds) - 1 - idx
        assert n <= 15, n
        self(f"s_waitcnt lgkmcnt({n})")

    def text(self):
        return "\n".join(self.l) + "\n"


def vr(b, n):
    return f"v[{b}:{b+n-1}]"


def ar(b, n):
    return f"a[{b}:{b+n-1}]"


def srd(a, d, lo, hi, size, add=0):
    if add:
        a(f"s_add_u32 s{d}, s{lo}, {add:#x}")
        a(f"s_addc_u32 s{d+1}, s{hi}, 0")
    else:
        a(f"s_mov_b32 s{d}, s{lo}")
        a(f"s_mov_b32 s{d+1}, s{hi}")
    a(f"s_mov_b32 s{d+2}, {size:#x}")
    a(f"s_mov_b32 s{d+3}, 0x20000")


def stamp(a, opt):
    if not opt.stamps:
        return
    a("s_memrealtime s[90:91]")
    a("s_memtime s[86:87]")
    a("s_waitcnt lgkmcnt(0)")
    a("s_mov_b32 m0, s89")
    a("s_add_u32 s89, s89, 1")
    a("v_writelane_b32 v255, s90, m0")
    a("v_writelane_b32 v253, s86, m0")


def stamp_init(a, opt):
    if opt.stamps:
        a("v_mov_b32 v255, 0")
        a("v_mov_b32 v253, 0")
        a("s_mov_b32 s89, 0")


def stamp_flush(a, opt, wsreg, kern, wavereg):
    if not opt.stamps:
        return
    a("s_waitcnt vmcnt(0)")
    stamp(a, opt)
    srd(a, 92, wsreg, wsreg + 1, 0x200000, T_OFF)
    a(f"s_lshl_b32 s96, s2, 3")
    a(f"s_add_u32 s96, s96, s{wavereg}")
    a(f"s_lshl_b32 s96, s96, 8")
    a(f"s_add_u32 s96, s96, {kern * 0x80000:#x}")
    a("v_mbcnt_lo_u32_b32 v254, -1, 0")
    a("v_mbcnt_hi_u32_b32 v254, -1, v254")
    a("v_lshlrev_b32 v254, 2, v254")
    a("buffer_store_dword v255, v254, s[92:95], s96 offen")
    a("s_add_u32 s96, s96, 0x100000")
    a("buffer_store_dword v253, v254, s[92:95], s96 offen")


C1 = -2.0 * 0.7978845608028654 * 1.4426950408889634
C2 = C1 * 0.044715
NB = 3
FLG = 3 * 45056
GW_LDS = FLG + 64
K1_LDS = GW_LDS + 1024


def cfg(kind):
    if kind == "ffn7":
        CH, gp, T, swz = 14, 2752, 7, False
    elif kind == "spec":
        CH, gp, T, swz = 12, 1024, 6, True
    else:
        CH, gp, T, swz = 4, 2752, 2, True
    pitch = CH * 16
    wsz = 2 * 64 * pitch
    return CH, gp, T, swz, pitch, wsz, wsz + 16384


def k1_loader(a, opt, kind):
    CH, gp, T, swz, pitch, wsz, ssz = cfg(kind)
    ND = CH // 2
    VD, VX, t0, t1, t2, VF, VA = 2, 10, 16, 17, 18, 20, 21
    a.label(f"L1L_{kind}")
    a("s_cmp_ge_u32 s45, 2")
    if kind == "spec":
        a("s_cselect_b64 s[28:29], s[10:11], s[8:9]")
        a(f"s_mov_b32 s30, {512*1024:#x}")
        a("s_sub_u32 s42, s22, 13")
        a("s_mul_i32 s42, s42, 192")
    else:
        a("s_cselect_b64 s[28:29], s[14:15], s[12:13]")
        a(f"s_mov_b32 s30, {512*2752:#x}")
        a("s_mul_i32 s42, s22, 224")
    a("s_mov_b32 s31, 0x20000")
    a("s_and_b32 s43, s45, 1")
    a("s_lshr_b32 s44, s45, 1")
    a(f"s_mul_i32 s41, s44, {64*pitch}")
    a("s_lshl_b32 s44, s43, 10")
    a("s_add_u32 s41, s41, s44")
    a("s_lshl_b32 s48, s45, 12")
    a(f"s_add_u32 s48, s48, {wsz}")
    a(f"v_lshrrev_b32 v{t0}, 3, v1")
    a(f"v_lshlrev_b32 v{t0}, 16, v{t0}")
    a("s_lshl_b32 s44, s23, 10")
    a(f"v_add_u32 v{t0}, s44, v{t0}")
    a(f"v_lshrrev_b32 v{t1}, 4, v1")
    a(f"v_and_b32 v{t2}, 7, v1")
    a(f"v_xor_b32 v{t1}, v{t1}, v{t2}")
    a(f"v_lshl_add_u32 v{VX}, v{t1}, 4, v{t0}")
    a(f"v_xor_b32 v{VX+1}, 64, v{VX}")
    a(f"v_add_u32 v{VX+1}, {8*65536}, v{VX+1}")
    a(f"v_add_u32 v{VX+2}, {16*65536}, v{VX}")
    a(f"v_add_u32 v{VX+3}, {16*65536}, v{VX+1}")
    magic = (65536 + CH - 1) // CH
    a("s_lshl_b32 s44, s43, 6")
    a(f"v_add_u32 v{VA}, s44, v1")

    def wsetup(i):
        d = VD + i
        a(f"v_add_u32 v{t0}, {128*i}, v{VA}")
        if CH == 4:
            a(f"v_lshrrev_b32 v{t1}, 2, v{t0}")
        else:
            a(f"v_mul_u32_u24 v{t1}, {magic}, v{t0}")
            a(f"v_lshrrev_b32 v{t1}, 16, v{t1}")
        a(f"v_mul_u32_u24 v{t2}, {CH}, v{t1}")
        a(f"v_sub_u32 v{t0}, v{t0}, v{t2}")
        if swz:
            a(f"v_bfe_u32 v{t2}, v{t1}, 2, 1")
            a(f"v_lshlrev_b32 v{t2}, 1, v{t2}")
            a(f"v_xor_b32 v{t0}, v{t0}, v{t2}")
        a(f"v_bfe_u32 v{t2}, v{t1}, 2, 2")
        a(f"v_lshlrev_b32 v{t2}, 3, v{t2}")
        a(f"v_and_or_b32 v{t2}, v{t1}, 35, v{t2}")
        a(f"v_bfe_u32 v{t1}, v{t1}, 4, 1")
        a(f"v_lshl_or_b32 v{t1}, v{t1}, 2, v{t2}")
        a(f"v_mul_u32_u24 v{t1}, {gp}, v{t1}")
        a(f"v_lshl_add_u32 v{d}, v{t0}, 4, v{t1}")
        a(f"v_add_u32 v{d}, s42, v{d}")

    GL = ND + 4
    Q = min(opt.q, GL)
    a(f"s_lshl_b32 s44, s45, 2")
    a(f"s_add_u32 s44, s44, {FLG}")
    extra0 = 0

    def signal(s):
        a(f"v_mov_b32 v{t0}, {s+1}")
        a(f"ds_write_b32 v{VF}, v{t0}")

    for s in range(8):
        slot = s % NB
        if s == 0:
            a("s_mov_b32 s49, s46")
        else:
            a("s_add_u32 s49, s49, 1")
            a("s_and_b32 s49, s49, 7")
        a(f"s_mul_i32 s40, s49, {64*gp}")
        a("s_lshl_b32 s47, s49, 7")
        if s >= NB:
            a.label(f"L1L_{kind}_free{s}")
            a(f"ds_read_b32 v{t0}, v{VA}")
            a("s_waitcnt lgkmcnt(0)")
            a(f"v_cmp_ge_u32 vcc, {s-NB}, v{t0}")
            a(f"s_cbranch_vccnz L1L_{kind}_free{s}")
        n = 0
        for i in range(GL):
            if i < 4:
                a(f"s_add_u32 m0, s48, {slot*ssz + i*1024}")
                a("s_nop 0")
                a(f"buffer_load_dwordx4 v{VX+i}, s[24:27], s47 offen lds")
            else:
                if s == 0:
                    wsetup(i - 4)
                a(f"s_add_u32 m0, s41, {slot*ssz + (i-4)*2048}")
                a("s_nop 0")
                a(f"buffer_load_dwordx4 v{VD+i-4}, s[28:31], s40 offen lds")
            n += 1
            if s > 0 and n == Q:
                a(f"s_waitcnt vmcnt({Q})")
                signal(s - 1)
                if opt.fine:
                    stamp(a, opt)
        if s == 0:
            if kind == "ffn2g":
                srd(a, 36, 16, 17, 1024)
                a(f"s_mov_b32 m0, {GW_LDS}")
                a(f"v_lshlrev_b32 v{t0}, 4, v1")
                a(f"buffer_load_dwordx4 v{t0}, s[36:39], 0 offen lds")
            a(f"v_mov_b32 v{VF}, s44")
            a(f"v_and_b32 v{VA}, 3, v1")
            a(f"v_lshlrev_b32 v{VA}, 2, v{VA}")
            a(f"v_add_u32 v{VA}, {FLG+16}, v{VA}")
            stamp(a, opt)
            a("s_barrier")
    a("s_waitcnt vmcnt(0)")
    signal(7)
    a("s_waitcnt lgkmcnt(0)")
    stamp_flush(a, opt, 18, 0, 20)
    a("s_endpgm")


def k1_compute(a, opt, kind):
    CH, gp, T, swz, pitch, wsz, ssz = cfg(kind)
    st = opt.store_flags
    a.ds = []
    VW, VXR, VFL, VFW, VST, VGW, VC2, VFD = 2, 8, 14, 15, 16, 17, 18, 19
    t0, t1, t2 = 20, 21, 22
    WF, XF, ACC = 32, 64, 96
    GF, GACC = 24, 128
    CF, SF, NF = 208, 216, 224
    a.label(f"L1C_{kind}")
    a(f"v_and_b32 v{t0}, 7, v1")
    a(f"v_lshlrev_b32 v{t0}, 2, v{t0}")
    a(f"v_add_u32 v{t0}, {FLG}, v{t0}")
    a(f"v_mov_b32 v{t1}, 0")
    a(f"ds_write_b32 v{t0}, v{t1}")
    a("s_waitcnt lgkmcnt(0)")
    a("s_barrier")
    a(f"v_lshrrev_b32 v{t0}, 2, v1")
    a(f"v_mul_u32_u24 v{t0}, {pitch}, v{t0}")
    a(f"v_and_b32 v{t1}, 3, v1")
    a(f"v_lshl_add_u32 v{t0}, v{t1}, 3, v{t0}")
    if swz:
        a(f"v_bfe_u32 v{t1}, v1, 4, 1")
        a(f"v_lshlrev_b32 v{t1}, 5, v{t1}")
        a(f"v_add_u32 v{VW}, v{t0}, v{t1}")
        a(f"v_sub_u32 v{VW+3}, v{t0}, v{t1}")
        a(f"v_add_u32 v{VW+3}, 32, v{VW+3}")
        for sl in range(1, NB):
            a(f"v_add_u32 v{VW+sl}, {sl*ssz}, v{VW}")
            a(f"v_add_u32 v{VW+3+sl}, {sl*ssz}, v{VW+3}")
    else:
        a(f"v_mov_b32 v{VW}, v{t0}")
        for sl in range(1, NB):
            a(f"v_add_u32 v{VW+sl}, {sl*ssz}, v{VW}")
    a(f"v_and_b32 v{t0}, 15, v1")
    a(f"v_lshrrev_b32 v{t1}, 1, v{t0}")
    a(f"v_lshrrev_b32 v{t2}, 4, v1")
    a(f"v_xor_b32 v{t1}, v{t1}, v{t2}")
    a(f"v_lshlrev_b32 v{t1}, 4, v{t1}")
    a(f"v_lshl_add_u32 v{t0}, v{t0}, 7, v{t1}")
    a("s_lshl_b32 s48, s45, 12")
    a(f"s_add_u32 s48, s48, {wsz}")
    for sl in range(NB):
        a(f"s_add_u32 s44, s48, {sl*ssz}")
        a(f"v_add_u32 v{VXR+2*sl}, s44, v{t0}")
        a(f"v_xor_b32 v{VXR+2*sl+1}, 64, v{VXR+2*sl}")
    assert ssz % 128 == 0 and wsz % 128 == 0
    a(f"v_and_b32 v{VFL}, 3, v1")
    a(f"v_lshlrev_b32 v{VFL}, 2, v{VFL}")
    a(f"v_add_u32 v{VFL}, {FLG}, v{VFL}")
    a("s_lshl_b32 s44, s45, 2")
    a(f"s_add_u32 s44, s44, {FLG+16}")
    a(f"v_mov_b32 v{VFW}, s44")
    if kind == "spec":
        tc, ts = 96, 112
        a(f"v_and_b32 v{t0}, 15, v1")
        a(f"v_lshrrev_b32 v{t1}, 4, v1")
        a(f"v_lshlrev_b32 v{t1}, 2, v{t1}")
        for rho in range(2):
            if rho:
                a(f"v_add_u32 v{t0}, 16, v{t0}")
            a(f"v_mul_u32_u24 v{t2}, v{t0}, v{t1}")
            for sg in range(8):
                s1c = 16 * (sg >> 2) + (sg & 3)
                a(f"v_mad_u32_u24 v{tc+8*rho+sg}, v{t0}, {s1c}, v{t2}")
        for i in range(16):
            a(f"v_and_b32 v{tc+i}, 31, v{tc+i}")
        for i in range(16):
            a(f"v_cvt_f32_u32 v{tc+i}, v{tc+i}")
        for i in range(16):
            a(f"v_mul_f32 v{tc+i}, {f2u(1.0/32):#x}, v{tc+i}")
        for i in range(16):
            a(f"v_sin_f32 v{ts+i}, v{tc+i}")
        for i in range(16):
            a(f"v_cos_f32 v{tc+i}, v{tc+i}")
        a("s_nop 0")
        for i in range(8):
            a(f"v_cvt_pk_bf16_f32 v{CF+i}, v{tc+2*i}, v{tc+2*i+1}")
            a(f"v_cvt_pk_bf16_f32 v{SF+i}, v{ts+2*i}, v{ts+2*i+1}")
        for i in range(8):
            a(f"v_xor_b32 v{NF+i}, 0x80008000, v{CF+i}")
        a(f"v_lshrrev_b32 v{t1}, 5, v1")
        a(f"v_mul_u32_u24 v{t1}, {8*64*EP*4}, v{t1}")
        a(f"v_and_b32 v{t0}, 31, v1")
        a(f"v_lshl_add_u32 v{VST}, v{t0}, 2, v{t1}")
        srd(a, 32, 18, 19, Z_SIZE, Z_OFF)
    else:
        a(f"v_mov_b32 v{VC2}, {f2u(C2):#x}")
        a(f"v_lshlrev_b32 v{VST}, 4, v1")
        srd(a, 32, 18, 19, H_SIZE, H_OFF)
        if kind == "ffn2g":
            a(f"v_lshrrev_b32 v{t0}, 4, v1")
            a(f"v_lshlrev_b32 v{t0}, 4, v{t0}")
            a(f"v_add_u32 v{t2}, {GW_LDS}, v{t0}")
            a("s_mov_b32 s49, s46")
    stamp(a, opt)

    NU = 2 * T + (1 if kind == "ffn2g" else 0)
    units = [(s, u) for s in range(8) for u in range(NU)]
    N = len(units)
    LA = 2

    def unit_reads(n):
        s, u = units[n]
        f = WF + 8 * (n % 4)
        sl = s % NB
        if u == 2 * T:
            return [f"ds_read_b128 {vr(f,4)}, v{VGW}", f"ds_read_b128 {vr(f+4,4)}, v{VGW} offset:64"]
        p, m = u >> 1, u & 1
        if swz and (p & 1):
            base, to = VW + 3 + sl, (p - 1) * 32
        else:
            base, to = VW + sl, p * 32
        r = []
        for ks in range(2):
            off = m * 64 * pitch + ks * 32 * pitch + to
            r.append(f"ds_read_b64_tr_b16 {vr(f+4*ks,2)}, v{base} offset:{off}")
            r.append(f"ds_read_b64_tr_b16 {vr(f+4*ks+2,2)}, v{base} offset:{off+16*pitch}")
        if opt.noreads:
            r = r[:1]
        return r

    def flag_read(s):
        a.dsop(f"ds_read_b32 v{VFD}, v{VFL}", ("flag", s))

    def stage_open(s):
        lab = f"L1C_{kind}_{s}"
        a.dswait(("flag", s))
        a(f"v_cmp_ge_u32 vcc, {s}, v{VFD}")
        a(f"s_cbranch_vccz {lab}_ok")
        a.label(f"{lab}_spin")
        a(f"ds_read_b32 v{VFD}, v{VFL}")
        a("s_waitcnt lgkmcnt(0)")
        a(f"v_cmp_ge_u32 vcc, {s}, v{VFD}")
        a(f"s_cbranch_vccnz {lab}_spin")
        a.label(f"{lab}_ok")
        if s == 0 or opt.fine:
            stamp(a, opt)
        sl = s % NB
        xb = XF + 16 * (s & 1)
        for rt in range(2):
            for ks in range(2):
                a.dsop(f"ds_read_b128 {vr(xb+8*rt+4*ks,4)}, v{VXR+2*sl+ks} offset:{rt*2048}", ("x", s))
        if kind == "ffn2g":
            a("s_lshl_b32 s44, s49, 7")
            a(f"v_add_u32 v{VGW}, s44, v{t2}")
            a("s_add_u32 s49, s49, 1")
            a("s_and_b32 s49, s49, 7")

    def pre_unit(n):
        s, u = units[n]
        if u == 0:
            if s > 0 and s - 1 + NB < 8:
                a(f"v_mov_b32 v{t0}, {s}")
                a.dsop(f"ds_write_b32 v{VFW}, v{t0}", "free")
            stage_open(s)

    flag_read(0)
    for n in range(LA):
        pre_unit(n)
        for r in unit_reads(n):
            a.dsop(r, ("u", n))
    for n in range(N):
        s, u = units[n]
        nxt = []
        if n + LA < N:
            pre_unit(n + LA)
            nxt = unit_reads(n + LA)
        if n + LA + 1 < N and units[n + LA + 1][1] == 0:
            flag_read(units[n + LA + 1][0])
        a.dswait(("u", n))
        f = WF + 8 * (n % 4)
        xb = XF + 16 * (s & 1)
        for j in range(4):
            rt, ks = j >> 1, j & 1
            if u == 2 * T:
                acc = vr(GACC + 4 * rt, 4)
            else:
                acc = vr(ACC + 16 * (u >> 1) + 8 * (u & 1) + 4 * rt, 4)
            w_, x_ = vr(f + 4 * ks, 4), vr(xb + 8 * rt + 4 * ks, 4)
            srcc = "0" if (s == 0 and ks == 0) else acc
            if opt.nomfma and s > 0:
                pass
            elif kind == "spec":
                a(f"{MF16} {acc}, {x_}, {w_}, {srcc}")
            else:
                a(f"{MF16} {acc}, {w_}, {x_}, {srcc}")
            if j < len(nxt):
                a.dsop(nxt[j], ("u", n + LA))
    a("s_nop 7")
    stamp(a, opt)
    if kind == "spec":
        PA = 32
        for u in range(T):
            A = ACC + 16 * u
            for i in range(8):
                a(f"v_cvt_pk_bf16_f32 v{PA+8*u+i}, v{A+2*i}, v{A+2*i+1}")
        a("s_nop 1")
        for u in range(T):
            A = ACC + 16 * u
            pa, pb = vr(PA + 8 * u, 4), vr(PA + 8 * u + 4, 4)
            for rho in range(2):
                zr, zm = vr(A + 4 * rho, 4), vr(A + 8 + 4 * rho, 4)
                a(f"{MF16} {zr}, {vr(CF+4*rho,4)}, {pa}, 0")
                a(f"{MF16} {zr}, {vr(SF+4*rho,4)}, {pb}, {zr}")
                a(f"{MF16} {zm}, {vr(SF+4*rho,4)}, {pa}, 0")
                a(f"{MF16} {zm}, {vr(NF+4*rho,4)}, {pb}, {zm}")
        a("s_sub_u32 s42, s22, 13")
        a("s_mul_i32 s42, s42, 96")
        a(f"s_mul_i32 s43, s23, {EP}")
        a("s_add_u32 s42, s42, s43")
        a("s_lshl_b32 s42, s42, 2")
        a("s_nop 3")
        for up in range(T // 2):
            A, B = ACC + 32 * up, ACC + 32 * up + 16
            for rg in range(8):
                a(f"v_cvt_pk_bf16_f32 v{A+rg}, v{A+rg}, v{A+8+rg}")
                a(f"v_cvt_pk_bf16_f32 v{B+rg}, v{B+rg}, v{B+8+rg}")
            a("s_nop 0")
            for rg in range(8):
                a(f"v_permlane16_swap_b32 v{A+rg}, v{B+rg}")
            for rg in range(8):
                rr = 16 * (rg >> 2) + (rg & 3)
                a(f"s_add_u32 s43, s42, {rr*64*EP*4}")
                a(f"s_add_u32 s44, s42, {(rr+4)*64*EP*4}")
                a(f"buffer_store_dword v{A+rg}, v{VST}, s[32:35], s43 offen offset:{128*up}{st}")
                a(f"buffer_store_dword v{B+rg}, v{VST}, s[32:35], s44 offen offset:{128*up}{st}")
    else:
        TT = 32
        a("s_mul_i32 s42, s23, 86")
        a("s_mul_i32 s43, s22, 7")
        a("s_add_u32 s42, s42, s43")
        a("s_lshl_b32 s42, s42, 10")
        a("s_add_u32 s43, s42, 4096")
        for p in range(T):
            A = ACC + 16 * p
            if opt.pk:
                for v in range(0, 8, 2):
                    a(f"v_pk_mul_f32 {vr(TT+v,2)}, {vr(A+v,2)}, {vr(A+v,2)}")
                for v in range(8):
                    a(f"v_fmaak_f32 v{TT+v}, v{TT+v}, v{VC2}, {f2u(C1):#x}")
                for v in range(0, 8, 2):
                    a(f"v_pk_mul_f32 {vr(TT+v,2)}, {vr(TT+v,2)}, {vr(A+v,2)}")
                for v in range(8):
                    a(f"v_exp_f32 v{TT+v}, v{TT+v}")
                for v in range(0, 8, 2):
                    a(f"v_pk_mul_f32 {vr(A+8+v,2)}, {vr(A+v,2)}, {vr(A+8+v,2)}")
                for v in range(0, 8, 2):
                    a(f"v_pk_add_f32 {vr(TT+v,2)}, {vr(TT+v,2)}, 1.0 op_sel_hi:[1,0]")
                for v in range(8):
                    a(f"v_rcp_f32 v{TT+v}, v{TT+v}")
                a("s_nop 0")
                for v in range(0, 8, 2):
                    a(f"v_pk_mul_f32 {vr(A+8+v,2)}, {vr(A+8+v,2)}, {vr(TT+v,2)}")
            else:
                for v in range(8):
                    a(f"v_mul_f32 v{TT+v}, v{A+v}, v{A+v}")
                for v in range(8):
                    a(f"v_fmaak_f32 v{TT+v}, v{TT+v}, v{VC2}, {f2u(C1):#x}")
                for v in range(8):
                    a(f"v_mul_f32 v{TT+v}, v{TT+v}, v{A+v}")
                for v in range(8):
                    a(f"v_exp_f32 v{TT+v}, v{TT+v}")
                for v in range(8):
                    a(f"v_mul_f32 v{A+8+v}, v{A+v}, v{A+8+v}")
                for v in range(8):
                    a(f"v_add_f32 v{TT+v}, 1.0, v{TT+v}")
                for v in range(8):
                    a(f"v_rcp_f32 v{TT+v}, v{TT+v}")
                a("s_nop 0")
                for v in range(8):
                    a(f"v_mul_f32 v{A+8+v}, v{A+8+v}, v{TT+v}")
            for i in range(4):
                a(f"v_cvt_pk_bf16_f32 v{A+i}, v{A+8+2*i}, v{A+8+2*i+1}")
            a("s_nop 1")
            a(f"v_permlane16_swap_b32 v{A}, v{A+2}")
            a(f"v_permlane16_swap_b32 v{A+1}, v{A+3}")
            so = "s42" if p < 4 else "s43"
            a(f"buffer_store_dwordx4 {vr(A,4)}, v{VST}, s[32:35], {so} offen offset:{(p%4)*1024}{st}")
        if kind == "ffn2g":
            srd(a, 36, 18, 19, G_SIZE, G_OFF)
            A = GACC
            a(f"v_and_b32 v{t0}, 16, v1")
            a(f"v_cmp_ne_u32 vcc, 0, v{t0}")
            a("s_nop 1")
            a(f"v_cndmask_b32 v{A}, v{A}, v{A+4}, vcc")
            a(f"v_cvt_pk_bf16_f32 v{A}, v{A}, v{A}")
            a(f"v_and_b32 v{A}, 0xffff0000, v{A}")
            a(f"v_mul_f32 v{A}, {f2u(-1.4426950408889634):#x}, v{A}")
            a(f"v_exp_f32 v{A}, v{A}")
            a("s_nop 0")
            a(f"v_add_f32 v{A}, 1.0, v{A}")
            a(f"v_rcp_f32 v{A}, v{A}")
            a("s_nop 0")
            a(f"v_cvt_pk_bf16_f32 v{A}, v{A}, v{A}")
            a(f"v_and_b32 v{A}, 0xffff0000, v{A}")
            a(f"v_sub_f32 v{A+1}, 1.0, v{A}")
            a(f"v_cvt_pk_bf16_f32 v{A+1}, v{A+1}, v{A+1}")
            a(f"v_and_b32 v{A+1}, 0xffff0000, v{A+1}")
            a(f"v_and_b32 v{t0}, 31, v1")
            a(f"v_lshlrev_b32 v{t0}, 3, v{t0}")
            a("s_lshl_b32 s42, s23, 8")
            a(f"buffer_store_dwordx2 {vr(A,2)}, v{t0}, s[36:39], s42 offen{st}")
    stamp(a, opt)
    stamp_flush(a, opt, 18, 0, 20)
    a("s_endpgm")


def k1(a, opt):
    a.label("k1_kernel")
    a("s_cmp_ge_u32 s2, 256")
    a("s_cbranch_scc1 L1_exit")
    a("s_load_dwordx2 s[4:5], s[0:1], 0")
    a("s_load_dwordx4 s[8:11], s[0:1], 24")
    a("s_load_dwordx4 s[12:15], s[0:1], 48")
    a("s_load_dwordx2 s[16:17], s[0:1], 72")
    a("s_load_dwordx2 s[18:19], s[0:1], 96")
    stamp_init(a, opt)
    a("v_lshrrev_b32 v2, 6, v0")
    a("v_and_b32 v1, 63, v0")
    a("v_readfirstlane_b32 s20, v2")
    a("s_and_b32 s42, s2, 1")
    a("s_lshl_b32 s42, s42, 3")
    a("s_bfe_u32 s43, s2, 0x30003")
    a("s_add_u32 s21, s42, s43")
    a("s_bfe_u32 s42, s2, 0x20001")
    a("s_lshl_b32 s42, s42, 2")
    a("s_lshr_b32 s44, s2, 6")
    a("s_add_u32 s22, s42, s44")
    a("s_lshl_b32 s44, s44, 1")
    a("s_add_u32 s46, s43, s44")
    a(f"s_and_b32 s46, s46, {opt.rotmask}")
    a("s_and_b32 s45, s20, 3")
    a("s_lshl_b32 s23, s21, 2")
    a("s_add_u32 s23, s23, s45")
    a("s_waitcnt lgkmcnt(0)")
    stamp(a, opt)
    srd(a, 24, 4, 5, 2048 * 1024)
    a("s_cmp_lt_u32 s20, 4")
    a("s_cbranch_scc1 L1_comp")
    a("s_cmp_eq_u32 s22, 12")
    a("s_cbranch_scc1 L1L_ffn2g")
    a("s_cmp_gt_u32 s22, 12")
    a("s_cbranch_scc1 L1L_spec")
    k1_loader(a, opt, "ffn7")
    k1_loader(a, opt, "spec")
    k1_loader(a, opt, "ffn2g")
    a.label("L1_comp")
    a("s_cmp_eq_u32 s22, 12")
    a("s_cbranch_scc1 L1C_ffn2g")
    a("s_cmp_gt_u32 s22, 12")
    a("s_cbranch_scc1 L1C_spec")
    k1_compute(a, opt, "ffn7")
    k1_compute(a, opt, "spec")
    k1_compute(a, opt, "ffn2g")
    a.label("L1_exit")
    a("s_endpgm")


def k2(a, opt):
    NS = 22
    RING = 16
    AHEAD = opt.ahead
    ZF, BF, ACY, ACB, WF = 16, 80, 112, 128, 192
    a.label("k2_kernel")
    a("s_cmp_ge_u32 s2, 256")
    a("s_cbranch_scc1 L2_exit")
    a("s_load_dwordx2 s[8:9], s[0:1], 64")
    a("s_load_dwordx2 s[10:11], s[0:1], 80")
    a("s_load_dwordx2 s[12:13], s[0:1], 96")
    stamp_init(a, opt)
    a("v_lshrrev_b32 v12, 6, v0")
    a("v_and_b32 v1, 63, v0")
    a("v_readfirstlane_b32 s20, v12")
    if opt.map2 == 0:
        a("s_bfe_u32 s14, s2, 0x20001")
        a("s_lshl_b32 s14, s14, 3")
        a("s_bfe_u32 s15, s2, 0x30003")
        a("s_add_u32 s21, s14, s15")
        a("s_and_b32 s14, s2, 1")
        a("s_lshl_b32 s14, s14, 2")
        a("s_lshr_b32 s18, s2, 6")
        a("s_add_u32 s22, s14, s18")
        a("s_lshl_b32 s18, s18, 1")
        a("s_add_u32 s18, s18, s15")
    else:
        a("s_and_b32 s14, s2, 7")
        a("s_lshl_b32 s14, s14, 2")
        a("s_lshr_b32 s18, s2, 6")
        a("s_add_u32 s21, s14, s18")
        a("s_bfe_u32 s22, s2, 0x30003")
        a("s_lshl_b32 s18, s18, 1")
        a("s_add_u32 s18, s18, s22")
    a(f"s_and_b32 s18, s18, {opt.rotmask2}")
    a("s_mul_i32 s18, s18, 11")
    a("s_lshr_b32 s18, s18, 2")
    a("s_and_b32 s23, s20, 1")
    a("s_lshr_b32 s24, s20, 1")
    a("v_lshlrev_b32 v2, 4, v1")
    a("s_mul_i32 s14, s20, 22")
    a("s_add_u32 s19, s14, s18")
    a("s_lshl_b32 s15, s23, 5")
    a("s_add_u32 s16, s21, s15")
    a("s_xor_b32 s17, s16, 32")
    a(f"s_mul_i32 s56, s16, {86*1024}")
    a(f"s_mul_i32 s57, s17, {86*1024}")
    a("s_lshl_b32 s58, s22, 7")
    a(f"s_mul_i32 s60, s20, {RING*2048}")
    a("v_bfe_u32 v12, v1, 4, 1")
    a("v_lshlrev_b32 v12, 2, v12")
    a("v_and_b32 v13, 7, v1")
    a("v_xor_b32 v12, v12, v13")
    a("v_lshrrev_b32 v13, 3, v1")
    a("v_lshlrev_b32 v13, 10, v13")
    a("v_lshl_add_u32 v3, v12, 4, v13")
    a("v_add_u32 v3, s58, v3")
    a("v_add_u32 v7, 0x2000, v3")
    a("v_add_u32 v14, s56, v2")
    a("v_add_u32 v8, s57, v2")
    a("s_waitcnt lgkmcnt(0)")
    stamp(a, opt)
    srd(a, 28, 12, 13, H_SIZE, H_OFF)
    srd(a, 32, 8, 9, 1376 * 1024)

    vm = []

    def vmwait(tag):
        idx = max(i for i, t in enumerate(vm) if t == tag)
        n = len(vm) - 1 - idx
        assert n <= 63
        a(f"s_waitcnt vmcnt({n})")

    def loads(i):
        a("s_lshl_b32 s58, s19, 14")
        a("s_lshl_b32 s56, s19, 10")
        a(f"s_add_u32 m0, s60, {(i % RING)*2048}")
        a("s_add_u32 s19, s19, 1")
        a("buffer_load_dwordx4 v3, s[32:35], s58 offen lds")
        a(f"s_add_u32 m0, s60, {(i % RING)*2048 + 1024}")
        a("s_cmp_lt_u32 s19, 88")
        a("buffer_load_dwordx4 v7, s[32:35], s58 offen lds")
        a("s_cselect_b32 s19, s19, 0")
        a(f"buffer_load_dwordx4 {ar(8*i,4)}, v14, s[28:31], s56 offen")
        a(f"buffer_load_dwordx4 {ar(8*i+4,4)}, v8, s[28:31], s56 offen")
        vm.extend([("s", i)] * 4)

    PRE = opt.pre
    for i in range(PRE):
        loads(i)
    srd(a, 36, 12, 13, Z_SIZE, Z_OFF)
    srd(a, 48, 12, 13, G_SIZE, G_OFF)
    srd(a, 52, 10, 11, 2048 * 1024)
    a("v_bfe_u32 v12, v1, 2, 1")
    a("v_lshlrev_b32 v12, 4, v12")
    a("v_bfe_u32 v13, v1, 3, 2")
    a("v_lshl_add_u32 v12, v13, 2, v12")
    a("v_and_b32 v13, 3, v1")
    a("v_add_u32 v12, v12, v13")
    a("s_lshl_b32 s14, s22, 6")
    a("s_lshl_b32 s15, s24, 5")
    a("s_add_u32 s14, s14, s15")
    a("v_add_u32 v12, s14, v12")
    a("v_and_b32 v13, 31, v1")
    a("v_lshlrev_b32 v48, 3, v13")
    a("v_lshlrev_b32 v13, 6, v13")
    a("v_add_u32 v13, s16, v13")
    a("v_lshrrev_b32 v15, 5, v1")
    a("v_lshlrev_b32 v9, 10, v13")
    a("v_lshl_add_u32 v9, v15, 5, v9")
    a("s_lshl_b32 s15, s14, 1")
    a("v_add_u32 v9, s15, v9")
    a("s_mov_b32 s25, s21")
    a("s_cmp_lt_u32 s22, 4")
    a("s_cbranch_scc1 L2_nomirror")
    a("v_sub_u32 v12, 0x200, v12")
    a("v_sub_u32 v13, 0x800, v13")
    a("v_and_b32 v13, 0x7ff, v13")
    a("s_sub_u32 s25, 32, s21")
    a("s_and_b32 s25, s25, 31")
    a.label("L2_nomirror")
    a(f"v_mul_u32_u24 v6, {32*EP*4}, v15")
    a("v_lshl_add_u32 v6, v12, 2, v6")
    a(f"s_mul_i32 s59, s25, {64*EP*4}")
    a("s_lshl_b32 s26, s16, 8")
    a("v_cvt_f32_u32 v49, v13")
    a(f"v_mul_f32 v49, {f2u(-1.0/2048):#x}, v49")
    a("v_cvt_f32_u32 v50, v15")
    a(f"v_mul_f32 v50, {f2u(32.0):#x}, v50")
    a("v_mul_f32 v50, v49, v50")
    a("v_bfe_u32 v12, v1, 2, 2")
    a("v_lshl_add_u32 v12, v15, 3, v12")
    a("v_lshlrev_b32 v12, 7, v12")
    a("v_add_u32 v12, s60, v12")
    a("v_bfe_u32 v13, v1, 1, 1")
    a("v_lshl_add_u32 v12, v13, 3, v12")
    a("v_and_b32 v13, 1, v1")
    a("v_lshl_add_u32 v12, v13, 5, v12")
    a("v_bfe_u32 v13, v1, 4, 1")
    a("v_lshl_add_u32 v12, v13, 4, v12")
    a("v_bfe_u32 v13, v1, 3, 1")
    a("v_xor_b32 v13, s24, v13")
    a("v_lshl_add_u32 v4, v13, 6, v12")
    a("v_xor_b32 v5, 64, v4")

    def trig(ks):
        for q in range(4):
            a(f"v_fmamk_f32 v{52+q}, v49, {f2u(float(4*ks+q)):#x}, v50")
        for q in range(4):
            a(f"v_fract_f32 v{52+q}, v{52+q}")
        for q in range(4):
            a(f"v_sin_f32 v{56+q}, v{52+q}")
        for q in range(4):
            a(f"v_cos_f32 v{52+q}, v{52+q}")
        a("s_nop 0")
        for q in range(4):
            a(f"v_cvt_pk_bf16_f32 v{BF+4*ks+q}, v{52+q}, v{56+q}")

    def zloads(ks):
        if ks == 0:
            a("buffer_load_dwordx2 v[10:11], v48, s[48:51], s26 offen")
            vm.append("z")
        for q in range(4):
            a(f"buffer_load_dword v{ZF+4*ks+q}, v6, s[36:39], s59 offen offset:{q*EP*4}")
            vm.append("z")
        a(f"s_add_u32 s59, s59, {4*EP*4}")

    def wreads(i):
        f = WF + 8 * (i % 4)
        o = (i % RING) * 2048
        return [f"ds_read_b64_tr_b16 {vr(f,2)}, v4 offset:{o}",
                f"ds_read_b64_tr_b16 {vr(f+2,2)}, v4 offset:{o+512}",
                f"ds_read_b64_tr_b16 {vr(f+4,2)}, v5 offset:{o}",
                f"ds_read_b64_tr_b16 {vr(f+6,2)}, v5 offset:{o+512}"]

    for ks in range(8):
        trig(ks)
    stamp(a, opt)
    issued = PRE
    zi = 0
    Z0 = opt.z0
    for i in range(NS + 1):
        while issued < NS and issued <= i + AHEAD and (issued < RING or issued - RING <= i - 2):
            loads(issued)
            if issued >= Z0 and zi < 8:
                zloads(zi)
                zi += 1
            issued += 1
        if i < NS:
            vmwait(("s", i))
            if i == 0:
                stamp(a, opt)
            for r in wreads(i):
                a(r)
        if i >= 1:
            j = i - 1
            a(f"s_waitcnt lgkmcnt({4 if i < NS else 0})")
            f = WF + 8 * (j % 4)
            for L in range(4):
                lt, ln = L & 1, L >> 1
                acc = vr(ACB + 16 * L, 16)
                a(f"{MF32} {acc}, {vr(f+4*ln,4)}, {ar(8*j+4*lt,4)}, {'0' if j == 0 else acc}")
        if i == min(Z0 + 9, NS - 1):
            assert zi == 8
            vmwait("z")
            for ks in range(8):
                acc = vr(ACY, 16)
                a(f"{MF32} {acc}, {vr(ZF+4*ks,4)}, {vr(BF+4*ks,4)}, {'0' if ks == 0 else acc}")
    assert issued == NS
    stamp(a, opt)
    a("v_add_u32 v12, s60, v2")
    for L in (1, 2, 3):
        a(f"s_xor_b32 s14, s20, {L}")
        a(f"s_mul_i32 s14, s14, {RING*2048}")
        a(f"v_add_u32 v{12+L}, s14, v2")
    a("s_nop 3")
    for L in (1, 2, 3):
        for qd in range(4):
            a(f"ds_write_b128 v12, {vr(ACB+16*L+4*qd,4)} offset:{(L-1)*4096 + qd*1024}")
    for rg in range(16):
        a(f"v_mul_f32 v{ACY+rg}, v10, v{ACY+rg}")
    a("s_waitcnt lgkmcnt(0)")
    a("s_barrier")
    for L in (1, 2, 3):
        for qd in range(4):
            a(f"ds_read_b128 {vr(16*L+4*qd,4)}, v{12+L} offset:{(L-1)*4096 + qd*1024}")
    for L in (1, 2, 3):
        a(f"s_waitcnt lgkmcnt({4*(3-L)})")
        for rg in range(16):
            a(f"v_add_f32 v{ACB+rg}, v{ACB+rg}, v{16*L+rg}")
    for rg in range(16):
        a(f"v_fmac_f32 v{ACY+rg}, v11, v{ACB+rg}")
    for i in range(8):
        a(f"v_cvt_pk_bf16_f32 v{16+i}, v{ACY+2*i}, v{ACY+2*i+1}")
    a("buffer_store_dwordx4 v[16:19], v9, s[52:55], 0 offen")
    a("buffer_store_dwordx4 v[20:23], v9, s[52:55], 0 offen offset:16")
    stamp(a, opt)
    stamp_flush(a, opt, 12, 1, 20)
    a.label("L2_exit")
    a("s_endpgm")


def descriptor(name, vgpr, accum, sgpr=102):
    return f""".p2align 6
.amdhsa_kernel {name}
  .amdhsa_next_free_vgpr {vgpr}
  .amdhsa_next_free_sgpr {sgpr}
  .amdhsa_accum_offset {accum}
  .amdhsa_group_segment_fixed_size 0
  .amdhsa_kernarg_size 104
  .amdhsa_user_sgpr_count 2
  .amdhsa_user_sgpr_kernarg_segment_ptr 1
  .amdhsa_system_sgpr_workgroup_id_x 1
.end_amdhsa_kernel
"""


def main():
    ap = argparse.ArgumentParser()
    ap.add_argument("-o", default=f"cdna_kernels/{NAME}.s")
    ap.add_argument("--stamps", action="store_true")
    ap.add_argument("--fine", action="store_true")
    ap.add_argument("--q", type=int, default=6)
    ap.add_argument("--rotmask", type=int, default=7)
    ap.add_argument("--rotmask2", type=int, default=7)
    ap.add_argument("--map2", type=int, default=0)
    ap.add_argument("--ahead", type=int, default=4)
    ap.add_argument("--pre", type=int, default=3)
    ap.add_argument("--z0", type=int, default=6)
    ap.add_argument("--pk", action="store_true")
    ap.add_argument("--noreads", action="store_true")
    ap.add_argument("--nomfma", action="store_true")
    ap.add_argument("--store_flags", default="")
    opt = ap.parse_args()
    if opt.store_flags:
        opt.store_flags = " " + opt.store_flags
    hdr = open(f"cdna_kernels/{NAME}.s.ref").read().split("; Override launch")[0]
    out = hdr
    out += f"; @launch kernel=k1_kernel grid=(256,1,1) block=(512,1,1) lds={K1_LDS}\n"
    out += "; @launch kernel=k2_kernel grid=(256,1,1) block=(256,1,1) lds=131072\n"
    out += '.amdgcn_target "amdgcn-amd-amdhsa--gfx950"\n.text\n'
    for nm, fn in (("k1_kernel", k1), ("k2_kernel", k2)):
        a = Asm()
        fn(a, opt)
        out += f".globl {nm}\n.p2align 8\n.type {nm},@function\n" + a.text()
    out += '.section .rodata,"a"\n'
    out += descriptor("k1_kernel", 256, 256)
    out += descriptor("k2_kernel", 432, 256)
    open(opt.o, "w").write(out)


if __name__ == "__main__":
    main()
```

```python
import struct, sys, argparse

NAME = "gated_mix__spectral_fnet__geglu_ffn__prompt"
H_OFF = 0
H_SIZE = 64 * 86 * 1024
Z_OFF = 0x600000
EP = 288
Z_SIZE = 32 * 64 * EP * 4
G_OFF = 0x900000
G_SIZE = 2048 * 8
F_OFF = 0x980000
F_SIZE = 4096
T_OFF = 0xA00000
MF16 = "v_mfma_f32_16x16x32_bf16"
MF32 = "v_mfma_f32_32x32x16_bf16"


def f2u(f):
    return struct.unpack("<I", struct.pack("<f", f))[0]


class Asm:
    def __init__(self):
        self.l = []
        self.ds = []
        self.vm = []

    def __call__(self, s):
        self.l.append("    " + s)

    def label(self, s):
        self.l.append(s + ":")

    def dsop(self, s, tag):
        self(s)
        self.ds.append(tag)

    def dswait(self, tag):
        idx = max(i for i, t in enumerate(self.ds) if t == tag)
        n = len(self.ds) - 1 - idx
        assert n <= 15, n
        self(f"s_waitcnt lgkmcnt({n})")

    def vmop(self, s, tag):
        self(s)
        self.vm.append(tag)

    def vmwait(self, tag):
        idx = max(i for i, t in enumerate(self.vm) if t == tag)
        n = len(self.vm) - 1 - idx
        assert n <= 63, n
        self(f"s_waitcnt vmcnt({n})")

    def text(self):
        return "\n".join(self.l) + "\n"


def vr(b, n):
    return f"v[{b}:{b+n-1}]"


def srd(a, d, lo, hi, size, add=0):
    if add:
        a(f"s_add_u32 s{d}, s{lo}, {add:#x}")
        a(f"s_addc_u32 s{d+1}, s{hi}, 0")
    else:
        a(f"s_mov_b32 s{d}, s{lo}")
        a(f"s_mov_b32 s{d+1}, s{hi}")
    a(f"s_mov_b32 s{d+2}, {size:#x}")
    a(f"s_mov_b32 s{d+3}, 0x20000")


def stamp(a, opt):
    if not opt.stamps:
        return
    a("s_memrealtime s[90:91]")
    a("s_memtime s[86:87]")
    a("s_waitcnt lgkmcnt(0)")
    a("s_mov_b32 m0, s89")
    a("s_add_u32 s89, s89, 1")
    a("v_writelane_b32 v255, s90, m0")
    a("v_writelane_b32 v253, s86, m0")


def stamp_flush(a, opt, role):
    if not opt.stamps:
        return
    a("s_waitcnt vmcnt(0)")
    stamp(a, opt)
    srd(a, 92, 18, 19, 0x200000, T_OFF)
    a("s_lshl_b32 s96, s2, 3")
    a("s_add_u32 s96, s96, s20")
    a("s_lshl_b32 s96, s96, 8")
    a("v_lshlrev_b32 v254, 2, v1")
    a("buffer_store_dword v255, v254, s[92:95], s96 offen")
    a("s_add_u32 s96, s96, 0x100000")
    a("buffer_store_dword v253, v254, s[92:95], s96 offen")
    if opt.dbg and role == opt.dbg:
        srd(a, 92, 52, 53, 64)
        a("v_add_u32 v254, 8, v254")
        a("buffer_atomic_umax v255, v254, s[92:95], 0 offen")
        a("v_not_b32 v253, v255")
        a("v_mov_b32 v254, 4")
        a("s_mov_b64 exec, 1")
        a("buffer_atomic_umax v253, v254, s[92:95], 0 offen")


C1 = -2.0 * 0.7978845608028654 * 1.4426950408889634
C2 = C1 * 0.044715
NB = 3
SSZ = 45056
CLA = 3 * SSZ
FLG = CLA + 12 * 2048
GW_LDS = FLG + 64
LDS_SIZE = 163840
assert GW_LDS + 1024 <= LDS_SIZE


def cfg(kind):
    if kind == "ffn7":
        CH, gp, T, swz = 14, 2752, 7, False
    elif kind == "spec":
        CH, gp, T, swz = 12, 1024, 6, True
    else:
        CH, gp, T, swz = 4, 2752, 2, True
    pitch = CH * 16
    return CH, gp, T, swz, pitch, 2 * 64 * pitch


L_VD, L_VX, L_T0, L_T1, L_T2, L_VF, L_VA = 2, 10, 16, 17, 18, 20, 21


def free_wait(a, lab, val):
    a.label(lab)
    a(f"ds_read_b32 v{L_T0}, v{L_VA}")
    a("s_waitcnt lgkmcnt(0)")
    a(f"v_cmp_ge_u32 vcc, {val}, v{L_T0}")
    a(f"s_cbranch_vccnz {lab}")


def l_signal(a, s):
    a(f"v_mov_b32 v{L_T0}, {s+1}")
    a(f"ds_write_b32 v{L_VF}, v{L_T0}")


def p1_loader(a, opt, kind):
    CH, gp, T, swz, pitch, wsz = cfg(kind)
    ND = CH // 2
    VD, VX, t0, t1, t2, VF, VA = L_VD, L_VX, L_T0, L_T1, L_T2, L_VF, L_VA
    a.label(f"L1L_{kind}")
    a("s_cmp_ge_u32 s45, 2")
    if kind == "spec":
        a("s_cselect_b64 s[28:29], s[10:11], s[8:9]")
        a(f"s_mov_b32 s30, {512*1024:#x}")
        a("s_sub_u32 s42, s22, 13")
        a("s_mul_i32 s42, s42, 192")
    else:
        a("s_cselect_b64 s[28:29], s[14:15], s[12:13]")
        a(f"s_mov_b32 s30, {512*2752:#x}")
        a("s_mul_i32 s42, s22, 224")
    a("s_mov_b32 s31, 0x20000")
    a("s_and_b32 s43, s45, 1")
    a("s_lshr_b32 s44, s45, 1")
    a(f"s_mul_i32 s41, s44, {64*pitch}")
    a("s_lshl_b32 s44, s43, 10")
    a("s_add_u32 s41, s41, s44")
    magic = (65536 + CH - 1) // CH
    a("s_lshl_b32 s44, s43, 6")
    a(f"v_add_u32 v{VA}, s44, v1")

    def wsetup(i):
        d = VD + i
        a(f"v_add_u32 v{t0}, {128*i}, v{VA}")
        if CH == 4:
            a(f"v_lshrrev_b32 v{t1}, 2, v{t0}")
        else:
            a(f"v_mul_u32_u24 v{t1}, {magic}, v{t0}")
            a(f"v_lshrrev_b32 v{t1}, 16, v{t1}")
        a(f"v_mul_u32_u24 v{t2}, {CH}, v{t1}")
        a(f"v_sub_u32 v{t0}, v{t0}, v{t2}")
        if swz:
            a(f"v_bfe_u32 v{t2}, v{t1}, 2, 1")
            a(f"v_lshlrev_b32 v{t2}, 1, v{t2}")
            a(f"v_xor_b32 v{t0}, v{t0}, v{t2}")
        a(f"v_bfe_u32 v{t2}, v{t1}, 2, 2")
        a(f"v_lshlrev_b32 v{t2}, 3, v{t2}")
        a(f"v_and_or_b32 v{t2}, v{t1}, 35, v{t2}")
        a(f"v_bfe_u32 v{t1}, v{t1}, 4, 1")
        a(f"v_lshl_or_b32 v{t1}, v{t1}, 2, v{t2}")
        a(f"v_mul_u32_u24 v{t1}, {gp}, v{t1}")
        a(f"v_lshl_add_u32 v{d}, v{t0}, 4, v{t1}")
        a(f"v_add_u32 v{d}, s42, v{d}")

    GL = ND + 4
    Q = min(opt.q, GL)
    for s in range(8):
        slot = s % NB
        if s > 0:
            a("s_add_u32 s49, s49, 1")
            a("s_and_b32 s49, s49, 7")
            a("s_lshl_b32 s47, s49, 7")
        a(f"s_mul_i32 s40, s49, {64*gp}")
        if s >= NB:
            free_wait(a, f"L1L_{kind}_free{s}", s - NB)
        if s == 6:
            srd(a, 68, 52, 53, 256)
            a("v_mov_b32 v15, 0")
            a("buffer_load_dword v14, v15, s[68:71], 0 offen")
        n = 0
        for i in range(GL):
            if i < 4:
                if s > 0:
                    a(f"s_add_u32 m0, s48, {slot*SSZ + i*1024}")
                    a("s_nop 0")
                    a(f"buffer_load_dwordx4 v{VX+i}, s[24:27], s47 offen lds")
            else:
                if s == 0:
                    wsetup(i - 4)
                a(f"s_add_u32 m0, s41, {slot*SSZ + (i-4)*2048}")
                a("s_nop 0")
                a(f"buffer_load_dwordx4 v{VD+i-4}, s[28:31], s40 offen lds")
            n += 1
            if s > 0 and n == Q:
                a(f"s_waitcnt vmcnt({Q})")
                l_signal(a, s - 1)
                if opt.fine:
                    stamp(a, opt)
        if s == 0:
            if kind == "ffn2g":
                srd(a, 36, 16, 17, 1024)
                a(f"s_mov_b32 m0, {GW_LDS}")
                a(f"v_lshlrev_b32 v{t0}, 4, v1")
                a(f"buffer_load_dwordx4 v{t0}, s[36:39], 0 offen lds")
            a("s_lshl_b32 s44, s45, 2")
            a(f"s_add_u32 s44, s44, {FLG}")
            a(f"v_mov_b32 v{VF}, s44")
            a(f"v_and_b32 v{VA}, 3, v1")
            a(f"v_lshlrev_b32 v{VA}, 2, v{VA}")
            a(f"v_add_u32 v{VA}, {FLG+16}, v{VA}")
            stamp(a, opt)
            a("s_barrier")
    a("s_branch L2W")


def p2_worker(a, opt):
    NS = 22
    HR = opt.hr
    t0, t1, t2 = L_T0, L_T1, L_T2
    VW0, VW1 = 2, 3
    VH0, VH1 = 4, 5
    VR = 22
    VP = 6
    VRD = 7
    WF, ACB, HF = 32, 64, 128
    WR = 4
    assert HF + 8 * HR <= 252
    a.vm, a.ds = [], []
    a.label("L2W")
    srd(a, 28, 50, 51, 1376 * 1024)
    a(f"v_bfe_u32 v{t0}, v1, 4, 1")
    a(f"v_lshlrev_b32 v{t0}, 2, v{t0}")
    a(f"v_and_b32 v{t1}, 7, v1")
    a(f"v_xor_b32 v{t0}, v{t0}, v{t1}")
    a(f"v_lshrrev_b32 v{t1}, 3, v1")
    a(f"v_lshlrev_b32 v{t1}, 10, v{t1}")
    a(f"v_lshl_add_u32 v{VW0}, v{t0}, 4, v{t1}")
    a("s_lshl_b32 s42, s55, 7")
    a(f"v_add_u32 v{VW0}, s42, v{VW0}")
    a(f"v_add_u32 v{VW1}, 0x2000, v{VW0}")
    a("s_mul_i32 s57, s45, 22")
    a("s_add_u32 s57, s57, s56")
    a("s_mov_b32 s58, s57")
    a("s_lshl_b32 s59, s45, 11")
    a("s_and_b32 s60, s45, 1")
    a("s_lshl_b32 s60, s60, 11")
    a("s_cmp_lt_u32 s45, 2")
    a(f"s_cselect_b32 s61, {2*SSZ}, 0")
    a("s_add_u32 s60, s60, s61")
    a(f"s_add_u32 s60, s60, {20*2048}")
    cls_base = {"A": CLA, "B": 2 * SSZ, "C": 0, "D": SSZ}
    cls_idx = {"A": 0, "B": 1, "C": 2, "D": 3, "L": 4}
    smap = [("A", i) for i in range(3)] + [("B", i) for i in range(5)] + [("A", i) for i in range(3)] + \
           [("C", i) for i in range(5)] + [("L", 0)] + [("D", i) for i in range(5)]
    assert len(smap) == NS

    def wload(i):
        c, k = smap[i]
        a("s_lshl_b32 s40, s58, 14")
        if c == "L":
            a("s_mov_b32 m0, s60")
        else:
            a(f"s_add_u32 m0, s59, {cls_base[c] + k*8192}")
        a("s_add_u32 s58, s58, 1")
        a.vmop(f"buffer_load_dwordx4 v{VW0}, s[28:31], s40 offen lds", ("w", i))
        a("s_add_u32 m0, m0, 1024")
        a("s_cmp_lt_u32 s58, 88")
        a.vmop(f"buffer_load_dwordx4 v{VW1}, s[28:31], s40 offen lds", ("w", i))
        a("s_cselect_b32 s58, s58, 0")

    def wreads(i):
        c, k = smap[i]
        f = WF + 8 * (i % WR)
        b = VR + 2 * cls_idx[c]
        o = k * 8192
        for ln in range(2):
            a.dsop(f"ds_read_b64_tr_b16 {vr(f+4*ln,2)}, v{b+ln} offset:{o}", ("r", i))
            a.dsop(f"ds_read_b64_tr_b16 {vr(f+4*ln+2,2)}, v{b+ln} offset:{o+512}", ("r", i))

    for i in range(3):
        wload(i)
    a("s_waitcnt vmcnt(6)")
    a("v_cmp_ne_u32 vcc, 0, v14")
    a("s_cbranch_vccnz L2W_gook")
    a.label("L2W_go")
    a("buffer_load_dword v14, v15, s[68:71], 0 offen sc1")
    a("s_waitcnt vmcnt(0)")
    a("v_cmp_eq_u32 vcc, 0, v14")
    a("s_cbranch_vccnz L2W_go")
    a.label("L2W_gook")
    l_signal(a, 7)
    stamp(a, opt)
    a(f"v_lshrrev_b32 v{t2}, 5, v1")
    a(f"v_bfe_u32 v{t0}, v1, 2, 2")
    a(f"v_lshl_add_u32 v{t0}, v{t2}, 3, v{t0}")
    a(f"v_lshlrev_b32 v{t0}, 7, v{t0}")
    a(f"v_bfe_u32 v{t1}, v1, 1, 1")
    a(f"v_lshl_add_u32 v{t0}, v{t1}, 3, v{t0}")
    a(f"v_and_b32 v{t1}, 1, v1")
    a(f"v_lshl_add_u32 v{t0}, v{t1}, 5, v{t0}")
    a(f"v_bfe_u32 v{t1}, v1, 4, 1")
    a(f"v_lshl_add_u32 v{t0}, v{t1}, 4, v{t0}")
    a(f"v_bfe_u32 v{t1}, v1, 3, 1")
    a(f"v_lshl_add_u32 v{t2}, v{t1}, 6, v{t0}")
    for c in "ABCD":
        b = VR + 2 * cls_idx[c]
        a(f"s_add_u32 s42, s59, {cls_base[c]}")
        a(f"v_add_u32 v{b}, s42, v{t2}")
        a(f"v_xor_b32 v{b+1}, 64, v{b}")
    a(f"v_add_u32 v{VR+8}, s60, v{t2}")
    a(f"v_xor_b32 v{VR+9}, 64, v{VR+8}")
    a(f"v_lshlrev_b32 v{t0}, 4, v1")
    a(f"s_mul_i32 s42, s54, {86*1024}")
    a(f"v_add_u32 v{VH0}, s42, v{t0}")
    a(f"v_add_u32 v{VH1}, {32*86*1024}, v{VH0}")
    srd(a, 32, 18, 19, H_SIZE, H_OFF)
    a(f"v_mov_b32 v{VRD}, {FLG+36}")
    free_wait(a, "L2W_f5", 5)
    for i in range(3, 8):
        wload(i)
    a.vmwait(("w", 2))
    for i in range(3):
        wreads(i)
    a("s_waitcnt lgkmcnt(0)")
    for i in range(8, 11):
        wload(i)
    free_wait(a, "L2W_f6", 6)
    for i in range(11, 17):
        wload(i)
    free_wait(a, "L2W_f7", 7)
    for i in range(17, 22):
        wload(i)
    stamp(a, opt)
    a.label("L2W_waitlds")
    a(f"ds_read_b32 v{t0}, v{VRD}")
    a("s_waitcnt lgkmcnt(0)")
    a(f"v_cmp_ne_u32 vcc, 1, v{t0}")
    a("s_cbranch_vccnz L2W_waitlds")
    a.label("L2W_rdy")
    stamp(a, opt)

    def hload(i):
        h = HF + 8 * (i % HR)
        a("s_min_u32 s40, s57, 85")
        a("s_lshl_b32 s40, s40, 10")
        a("s_add_u32 s57, s57, 1")
        a.vmop(f"buffer_load_dwordx4 {vr(h,4)}, v{VH0}, s[32:35], s40 offen sc1", ("h", i))
        a("s_cmp_lt_u32 s57, 88")
        a.vmop(f"buffer_load_dwordx4 {vr(h+4,4)}, v{VH1}, s[32:35], s40 offen sc1", ("h", i))
        a("s_cselect_b32 s57, s57, 0")

    for i in range(HR):
        hload(i)
    for i in range(NS):
        a.vmwait(("h", i))
        if i == 0:
            stamp(a, opt)
        if i + 3 < NS:
            wreads(i + 3)
        if i >= 3:
            a.dswait(("r", i))
        f = WF + 8 * (i % WR)
        h = HF + 8 * (i % HR)
        for L in range(4):
            lt, ln = L & 1, L >> 1
            acc = vr(ACB + 16 * L, 16)
            a(f"{MF32} {acc}, {vr(f+4*ln,4)}, {vr(h+4*lt,4)}, {'0' if i == 0 else acc}")
        if i + HR < NS:
            hload(i + HR)
    stamp(a, opt)
    a(f"v_lshlrev_b32 v{t0}, 4, v1")
    a(f"v_add_u32 v{t0}, s59, v{t0}")
    a("s_nop 7")
    a("s_nop 3")
    for L in range(4):
        for q in range(4):
            a(f"ds_write_b128 v{t0}, {vr(ACB+16*L+4*q,4)} offset:{piece_off(4*L+q)}")
    a("s_waitcnt lgkmcnt(0)")
    a("s_barrier")
    stamp_flush(a, opt, "L")
    a("s_endpgm")


def piece_off(p):
    sl, hf = p >> 1, p & 1
    base = sl * 8192 if sl < 5 else SSZ + (sl - 5) * 8192
    return base + hf * 1024


C_BF = 216


def p1_compute(a, opt, kind):
    CH, gp, T, swz, pitch, wsz = cfg(kind)
    st = " sc1"
    a.ds = []
    VW, VXR, VFL, VFW, VST, VGW, VC2, VFD = 2, 8, 14, 15, 16, 17, 18, 19
    t0, t1, t2 = 20, 21, 22
    WF, XF, ACC = 32, 64, 96
    GACC = 128
    CF, SF, NF = 192, 200, 208
    a.label(f"L1C_{kind}")
    a(f"v_lshrrev_b32 v{t0}, 2, v1")
    a(f"v_mul_u32_u24 v{t0}, {pitch}, v{t0}")
    a(f"v_and_b32 v{t1}, 3, v1")
    a(f"v_lshl_add_u32 v{t0}, v{t1}, 3, v{t0}")
    if swz:
        a(f"v_bfe_u32 v{t1}, v1, 4, 1")
        a(f"v_lshlrev_b32 v{t1}, 5, v{t1}")
        a(f"v_add_u32 v{VW}, v{t0}, v{t1}")
        a(f"v_sub_u32 v{VW+3}, v{t0}, v{t1}")
        a(f"v_add_u32 v{VW+3}, 32, v{VW+3}")
        for sl in range(1, NB):
            a(f"v_add_u32 v{VW+sl}, {sl*SSZ}, v{VW}")
            a(f"v_add_u32 v{VW+3+sl}, {sl*SSZ}, v{VW+3}")
    else:
        a(f"v_mov_b32 v{VW}, v{t0}")
        for sl in range(1, NB):
            a(f"v_add_u32 v{VW+sl}, {sl*SSZ}, v{VW}")
    a(f"v_and_b32 v{t0}, 15, v1")
    a(f"v_lshrrev_b32 v{t1}, 1, v{t0}")
    a(f"v_lshrrev_b32 v{t2}, 4, v1")
    a(f"v_xor_b32 v{t1}, v{t1}, v{t2}")
    a(f"v_lshlrev_b32 v{t1}, 4, v{t1}")
    a(f"v_lshl_add_u32 v{t0}, v{t0}, 7, v{t1}")
    for sl in range(NB):
        a(f"s_add_u32 s44, s48, {sl*SSZ}")
        a(f"v_add_u32 v{VXR+2*sl}, s44, v{t0}")
        a(f"v_xor_b32 v{VXR+2*sl+1}, 64, v{VXR+2*sl}")
    a(f"v_and_b32 v{VFL}, 3, v1")
    a(f"v_lshlrev_b32 v{VFL}, 2, v{VFL}")
    a(f"v_add_u32 v{VFL}, {FLG}, v{VFL}")
    a("s_lshl_b32 s44, s45, 2")
    a(f"s_add_u32 s44, s44, {FLG+16}")
    a(f"v_mov_b32 v{VFW}, s44")
    if kind == "spec":
        tc, ts = 96, 112
        a(f"v_and_b32 v{t0}, 15, v1")
        a(f"v_lshrrev_b32 v{t1}, 4, v1")
        a(f"v_lshlrev_b32 v{t1}, 2, v{t1}")
        for rho in range(2):
            if rho:
                a(f"v_add_u32 v{t0}, 16, v{t0}")
            a(f"v_mul_u32_u24 v{t2}, v{t0}, v{t1}")
            for sg in range(8):
                s1c = 16 * (sg >> 2) + (sg & 3)
                a(f"v_mad_u32_u24 v{tc+8*rho+sg}, v{t0}, {s1c}, v{t2}")
        for i in range(16):
            a(f"v_and_b32 v{tc+i}, 31, v{tc+i}")
        for i in range(16):
            a(f"v_cvt_f32_u32 v{tc+i}, v{tc+i}")
        for i in range(16):
            a(f"v_mul_f32 v{tc+i}, {f2u(1.0/32):#x}, v{tc+i}")
        for i in range(16):
            a(f"v_sin_f32 v{ts+i}, v{tc+i}")
        for i in range(16):
            a(f"v_cos_f32 v{tc+i}, v{tc+i}")
        a("s_nop 0")
        for i in range(8):
            a(f"v_cvt_pk_bf16_f32 v{CF+i}, v{tc+2*i}, v{tc+2*i+1}")
            a(f"v_cvt_pk_bf16_f32 v{SF+i}, v{ts+2*i}, v{ts+2*i+1}")
        for i in range(8):
            a(f"v_xor_b32 v{NF+i}, 0x80008000, v{CF+i}")
        a(f"v_lshrrev_b32 v{t1}, 5, v1")
        a(f"v_mul_u32_u24 v{t1}, {8*64*EP*4}, v{t1}")
        a(f"v_and_b32 v{t0}, 31, v1")
        a(f"v_lshl_add_u32 v{VST}, v{t0}, 2, v{t1}")
        srd(a, 32, 18, 19, Z_SIZE, Z_OFF)
        a("s_sub_u32 s63, s22, 13")
        a("s_lshl_b32 s63, s63, 4")
        a("s_add_u32 s63, s63, s21")
        a("s_lshl_b32 s63, s63, 2")
        a("s_add_u32 s63, s63, 2048")
        a("s_mov_b32 s65, 0xff")
    else:
        a(f"v_mov_b32 v{VC2}, {f2u(C2):#x}")
        a(f"v_lshlrev_b32 v{VST}, 4, v1")
        srd(a, 32, 18, 19, H_SIZE, H_OFF)
        a("s_lshl_b32 s63, s21, 5")
        a("s_add_u32 s63, s63, s22")
        a("s_lshl_b32 s63, s63, 2")
        a("s_mov_b32 s65, 1")
        if kind == "ffn2g":
            a(f"v_lshrrev_b32 v{t0}, 4, v1")
            a(f"v_lshlrev_b32 v{t0}, 4, v{t0}")
            a(f"v_add_u32 v{t2}, {GW_LDS}, v{t0}")
    stamp(a, opt)

    NU = 2 * T + (1 if kind == "ffn2g" else 0)
    units = [(s, u) for s in range(8) for u in range(NU)]
    N = len(units)
    LA = 2

    def unit_reads(n):
        s, u = units[n]
        f = WF + 8 * (n % 4)
        sl = s % NB
        if u == 2 * T:
            return [f"ds_read_b128 {vr(f,4)}, v{VGW}", f"ds_read_b128 {vr(f+4,4)}, v{VGW} offset:64"]
        p, m = u >> 1, u & 1
        if swz and (p & 1):
            base, to = VW + 3 + sl, (p - 1) * 32
        else:
            base, to = VW + sl, p * 32
        r = []
        for ks in range(2):
            off = m * 64 * pitch + ks * 32 * pitch + to
            r.append(f"ds_read_b64_tr_b16 {vr(f+4*ks,2)}, v{base} offset:{off}")
            r.append(f"ds_read_b64_tr_b16 {vr(f+4*ks+2,2)}, v{base} offset:{off+16*pitch}")
        return r

    def flag_read(s):
        a.dsop(f"ds_read_b32 v{VFD}, v{VFL}", ("flag", s))

    def publish_free(s):
        a(f"v_mov_b32 v{t0}, {s+1}")
        a.dsop(f"ds_write_b32 v{VFW}, v{t0}", "free")

    def stage_open(s):
        lab = f"L1C_{kind}_{s}"
        a.dswait(("flag", s))
        a(f"v_cmp_ge_u32 vcc, {s}, v{VFD}")
        a(f"s_cbranch_vccz {lab}_ok")
        a.label(f"{lab}_spin")
        a(f"ds_read_b32 v{VFD}, v{VFL}")
        a("s_waitcnt lgkmcnt(0)")
        a(f"v_cmp_ge_u32 vcc, {s}, v{VFD}")
        a(f"s_cbranch_vccnz {lab}_spin")
        a.label(f"{lab}_ok")
        if s == 0 or opt.fine:
            stamp(a, opt)
        sl = s % NB
        xb = XF + 16 * (s & 1)
        for rt in range(2):
            for ks in range(2):
                a.dsop(f"ds_read_b128 {vr(xb+8*rt+4*ks,4)}, v{VXR+2*sl+ks} offset:{rt*2048}", ("x", s))
        if kind == "ffn2g":
            a("s_lshl_b32 s44, s49, 7")
            a(f"v_add_u32 v{VGW}, s44, v{t2}")
            a("s_add_u32 s49, s49, 1")
            a("s_and_b32 s49, s49, 7")

    def pre_unit(n):
        s, u = units[n]
        if u == 0:
            if s > 0:
                publish_free(s - 1)
            stage_open(s)

    flag_read(0)
    for n in range(LA):
        pre_unit(n)
        for r in unit_reads(n):
            a.dsop(r, ("u", n))
    for n in range(N):
        s, u = units[n]
        nxt = []
        if n + LA < N:
            pre_unit(n + LA)
            nxt = unit_reads(n + LA)
        elif n + LA == N:
            publish_free(7)
        if n + LA + 1 < N and units[n + LA + 1][1] == 0:
            flag_read(units[n + LA + 1][0])
        a.dswait(("u", n))
        f = WF + 8 * (n % 4)
        xb = XF + 16 * (s & 1)
        for j in range(4):
            rt, ks = j >> 1, j & 1
            if u == 2 * T:
                acc = vr(GACC + 4 * rt, 4)
            else:
                acc = vr(ACC + 16 * (u >> 1) + 8 * (u & 1) + 4 * rt, 4)
            w_, x_ = vr(f + 4 * ks, 4), vr(xb + 8 * rt + 4 * ks, 4)
            srcc = "0" if (s == 0 and ks == 0) else acc
            if kind == "spec":
                a(f"{MF16} {acc}, {x_}, {w_}, {srcc}")
            else:
                a(f"{MF16} {acc}, {w_}, {x_}, {srcc}")
            if j < len(nxt):
                a.dsop(nxt[j], ("u", n + LA))
    a("s_nop 7")
    stamp(a, opt)
    if kind == "spec":
        PA = 32
        for u in range(T):
            A = ACC + 16 * u
            for i in range(8):
                a(f"v_cvt_pk_bf16_f32 v{PA+8*u+i}, v{A+2*i}, v{A+2*i+1}")
        a("s_nop 1")
        for u in range(T):
            A = ACC + 16 * u
            pa, pb = vr(PA + 8 * u, 4), vr(PA + 8 * u + 4, 4)
            for rho in range(2):
                zr, zm = vr(A + 4 * rho, 4), vr(A + 8 + 4 * rho, 4)
                a(f"{MF16} {zr}, {vr(CF+4*rho,4)}, {pa}, 0")
                a(f"{MF16} {zr}, {vr(SF+4*rho,4)}, {pb}, {zr}")
                a(f"{MF16} {zm}, {vr(SF+4*rho,4)}, {pa}, 0")
                a(f"{MF16} {zm}, {vr(NF+4*rho,4)}, {pb}, {zm}")
        a("s_sub_u32 s42, s22, 13")
        a("s_mul_i32 s42, s42, 96")
        a(f"s_mul_i32 s43, s23, {EP}")
        a("s_add_u32 s42, s42, s43")
        a("s_lshl_b32 s42, s42, 2")
        a("s_nop 3")
        for up in range(T // 2):
            A, B = ACC + 32 * up, ACC + 32 * up + 16
            for rg in range(8):
                a(f"v_cvt_pk_bf16_f32 v{A+rg}, v{A+rg}, v{A+8+rg}")
                a(f"v_cvt_pk_bf16_f32 v{B+rg}, v{B+rg}, v{B+8+rg}")
            a("s_nop 0")
            for rg in range(8):
                a(f"v_permlane16_swap_b32 v{A+rg}, v{B+rg}")
            for rg in range(8):
                rr = 16 * (rg >> 2) + (rg & 3)
                a(f"s_add_u32 s43, s42, {rr*64*EP*4}")
                a(f"s_add_u32 s44, s42, {(rr+4)*64*EP*4}")
                a(f"buffer_store_dword v{A+rg}, v{VST}, s[32:35], s43 offen offset:{128*up}{st}")
                a(f"buffer_store_dword v{B+rg}, v{VST}, s[32:35], s44 offen offset:{128*up}{st}")
    else:
        TT = 32
        a("s_mul_i32 s42, s23, 86")
        a("s_mul_i32 s43, s22, 7")
        a("s_add_u32 s42, s42, s43")
        a("s_lshl_b32 s42, s42, 10")
        a("s_add_u32 s43, s42, 4096")
        for p in range(T):
            A = ACC + 16 * p
            for v in range(0, 8, 2):
                a(f"v_pk_mul_f32 {vr(TT+v,2)}, {vr(A+v,2)}, {vr(A+v,2)}")
            for v in range(8):
                a(f"v_fmaak_f32 v{TT+v}, v{TT+v}, v{VC2}, {f2u(C1):#x}")
            for v in range(0, 8, 2):
                a(f"v_pk_mul_f32 {vr(TT+v,2)}, {vr(TT+v,2)}, {vr(A+v,2)}")
            for v in range(8):
                a(f"v_exp_f32 v{TT+v}, v{TT+v}")
            for v in range(0, 8, 2):
                a(f"v_pk_mul_f32 {vr(A+8+v,2)}, {vr(A+v,2)}, {vr(A+8+v,2)}")
            for v in range(0, 8, 2):
                a(f"v_pk_add_f32 {vr(TT+v,2)}, {vr(TT+v,2)}, 1.0 op_sel_hi:[1,0]")
            for v in range(8):
                a(f"v_rcp_f32 v{TT+v}, v{TT+v}")
            a("s_nop 0")
            for v in range(0, 8, 2):
                a(f"v_pk_mul_f32 {vr(A+8+v,2)}, {vr(A+8+v,2)}, {vr(TT+v,2)}")
            for i in range(4):
                a(f"v_cvt_pk_bf16_f32 v{A+i}, v{A+8+2*i}, v{A+8+2*i+1}")
            a("s_nop 1")
            a(f"v_permlane16_swap_b32 v{A}, v{A+2}")
            a(f"v_permlane16_swap_b32 v{A+1}, v{A+3}")
            so = "s42" if p < 4 else "s43"
            a(f"buffer_store_dwordx4 {vr(A,4)}, v{VST}, s[32:35], {so} offen offset:{(p%4)*1024}{st}")
        if kind == "ffn2g":
            srd(a, 36, 18, 19, G_SIZE, G_OFF)
            A = GACC
            a(f"v_and_b32 v{t0}, 16, v1")
            a(f"v_cmp_ne_u32 vcc, 0, v{t0}")
            a("s_nop 1")
            a(f"v_cndmask_b32 v{A}, v{A}, v{A+4}, vcc")
            a(f"v_cvt_pk_bf16_f32 v{A}, v{A}, v{A}")
            a(f"v_and_b32 v{A}, 0xffff0000, v{A}")
            a(f"v_mul_f32 v{A}, {f2u(-1.4426950408889634):#x}, v{A}")
            a(f"v_exp_f32 v{A}, v{A}")
            a("s_nop 0")
            a(f"v_add_f32 v{A}, 1.0, v{A}")
            a(f"v_rcp_f32 v{A}, v{A}")
            a("s_nop 0")
            a(f"v_cvt_pk_bf16_f32 v{A}, v{A}, v{A}")
            a(f"v_and_b32 v{A}, 0xffff0000, v{A}")
            a(f"v_and_b32 v{t0}, 31, v1")
            a(f"v_lshlrev_b32 v{t0}, 2, v{t0}")
            a("s_lshl_b32 s42, s23, 7")
            a(f"buffer_store_dword v{A}, v{t0}, s[36:39], s42 offen{st}")
    stamp(a, opt)
    a("s_branch L2C")


def p2_combine(a, opt):
    VFD = 19
    t0, t1, t2 = 20, 21, 22
    VZ, VO, VG = 23, 24, 25
    ZF, ACY, PT = 32, 64, 96
    a.label("L2C")
    srd(a, 36, 18, 19, F_SIZE, F_OFF)
    a(f"v_mov_b32 v{t0}, {FLG+32}")
    a(f"v_mov_b32 v{t1}, 1")
    a("s_waitcnt vmcnt(0)")
    stamp(a, opt)
    a("s_mov_b64 exec, 1")
    a(f"ds_add_rtn_u32 v{t2}, v{t0}, v{t1}")
    a("s_waitcnt lgkmcnt(0)")
    a(f"v_readfirstlane_b32 s42, v{t2}")
    a("s_mov_b64 exec, -1")
    a(f"v_mov_b32 v{t2}, 0")
    a("s_cmp_lg_u32 s42, 3")
    a("s_cbranch_scc1 L2C_waitlds")
    a(f"v_lshlrev_b32 v{t2}, 8, v1")
    a("s_mov_b32 exec_lo, s65")
    a("s_mov_b32 exec_hi, 0")
    a(f"buffer_store_dword v{t1}, v{t2}, s[36:39], s63 offen sc1")
    a("s_mov_b64 exec, -1")
    a("s_lshr_b32 s42, s54, 1")
    a("s_lshl_b32 s42, s42, 7")
    a("s_and_b32 s43, s2, 7")
    a("s_lshl_b32 s43, s43, 8")
    a(f"s_add_u32 s43, s43, {2048-64}")
    a(f"v_min_u32 v{VFD}, 12, v1")
    a(f"v_lshl_add_u32 v{VFD}, v{VFD}, 2, s42")
    a(f"v_lshl_add_u32 v{t2}, v1, 2, s43")
    a(f"v_cmp_gt_u32 vcc, 16, v1")
    a("s_nop 1")
    a(f"v_cndmask_b32 v{t2}, v{t2}, v{VFD}, vcc")
    a.label("L2C_poll")
    if opt.psleep:
        a(f"s_sleep {opt.psleep}")
    a(f"buffer_load_dword v{VFD}, v{t2}, s[36:39], 0 offen sc1")
    a("s_waitcnt vmcnt(0)")
    a(f"v_cmp_ne_u32 vcc, 1, v{VFD}")
    a("s_and_b32 s42, vcc_lo, 0xffff")
    a("s_cbranch_scc1 L2C_poll")
    a(f"ds_write_b32 v{t0}, v{t1} offset:4")
    a("s_cbranch_vccnz L2C_poll")
    a(f"ds_write_b32 v{t0}, v{t1} offset:8")
    a("s_branch L2C_rdy")
    a.label("L2C_waitlds")
    a(f"ds_read_b32 v{VFD}, v{t0} offset:8")
    a("s_waitcnt lgkmcnt(0)")
    a(f"v_cmp_ne_u32 vcc, 1, v{VFD}")
    a("s_cbranch_vccnz L2C_waitlds")
    a.label("L2C_rdy")
    stamp(a, opt)
    srd(a, 32, 18, 19, Z_SIZE, Z_OFF)
    srd(a, 36, 18, 19, G_SIZE, G_OFF)
    srd(a, 28, 6, 7, 2048 * 1024)
    a(f"buffer_load_dword v10, v{VG}, s[36:39], 0 offen sc1")
    for ks in range(8):
        for q in range(4):
            a(f"buffer_load_dword v{ZF+4*ks+q}, v{VZ}, s[32:35], s64 offen offset:{q*EP*4} sc1")
        if ks < 7:
            a(f"s_add_u32 s64, s64, {4*EP*4}")
    a(f"v_lshlrev_b32 v{t0}, 4, v1")
    a("s_lshl_b32 s42, s45, 14")
    a("s_add_u32 s43, s42, 8192")
    a(f"s_add_u32 s44, s42, {SSZ - 5*8192}")
    a("s_cmp_eq_u32 s45, 3")
    a("s_cselect_b32 s42, s44, s42")
    a(f"s_add_u32 s44, s43, {SSZ - 5*8192}")
    a("s_cmp_ge_u32 s45, 2")
    a("s_cselect_b32 s43, s44, s43")
    a(f"v_add_u32 v{t1}, s43, v{t0}")
    a(f"v_add_u32 v{t0}, s42, v{t0}")
    for ks in range(8):
        a(f"s_waitcnt vmcnt({4*(7-ks)})")
        acc = vr(ACY, 16)
        a(f"{MF32} {acc}, {vr(ZF+4*ks,4)}, {vr(C_BF+4*ks,4)}, {'0' if ks == 0 else acc}")
    a("v_sub_f32 v11, 1.0, v10")
    a("v_cvt_pk_bf16_f32 v11, v11, v11")
    a("v_and_b32 v11, 0xffff0000, v11")
    a("s_nop 7")
    a("s_nop 1")
    for rg in range(16):
        a(f"v_mul_f32 v{ACY+rg}, v10, v{ACY+rg}")
    stamp(a, opt)
    a("s_barrier")
    for w in range(4):
        for q in range(4):
            a(f"ds_read_b128 {vr(PT+16*w+4*q,4)}, v{t0 if q < 2 else t1} offset:{w*2048 + (q&1)*1024}")
        if w == 2:
            a("s_waitcnt lgkmcnt(4)")
            for rg in range(0, 16, 2):
                a(f"v_pk_add_f32 {vr(PT+rg,2)}, {vr(PT+rg,2)}, {vr(PT+16+rg,2)}")
    a("s_waitcnt lgkmcnt(0)")
    for rg in range(0, 16, 2):
        a(f"v_pk_add_f32 {vr(PT+32+rg,2)}, {vr(PT+32+rg,2)}, {vr(PT+48+rg,2)}")
    for rg in range(0, 16, 2):
        a(f"v_pk_add_f32 {vr(PT+rg,2)}, {vr(PT+rg,2)}, {vr(PT+32+rg,2)}")
    for rg in range(16):
        a(f"v_fmac_f32 v{ACY+rg}, v11, v{PT+rg}")
    for i in range(8):
        a(f"v_cvt_pk_bf16_f32 v{32+i}, v{ACY+2*i}, v{ACY+2*i+1}")
    a(f"buffer_store_dwordx4 v[32:35], v{VO}, s[28:31], 0 offen")
    a(f"buffer_store_dwordx4 v[36:39], v{VO}, s[28:31], 0 offen offset:16")
    stamp(a, opt)
    stamp_flush(a, opt, "C")
    a("s_endpgm")


def compute_prologue(a, opt):
    t0, t1, t2 = 20, 21, 22
    VZ, VO, VG = 23, 24, 25
    a.label("L1_comp")
    a(f"v_and_b32 v{t0}, 15, v1")
    a(f"v_lshlrev_b32 v{t0}, 2, v{t0}")
    a(f"v_add_u32 v{t0}, {FLG}, v{t0}")
    a(f"v_mov_b32 v{t1}, 0")
    a(f"ds_write_b32 v{t0}, v{t1}")
    a("s_waitcnt lgkmcnt(0)")
    a("s_barrier")
    a("s_cmp_lg_u32 s2, 192")
    a("s_cbranch_scc1 L1_noinit")
    a("s_cmp_lg_u32 s45, 0")
    a("s_cbranch_scc1 L1_noinit")
    srd(a, 24, 52, 53, 256)
    srd(a, 36, 18, 19, F_SIZE, F_OFF)
    for i in range(4):
        a(f"v_mov_b32 v{32+i}, 0")
    a(f"v_lshlrev_b32 v{t0}, 4, v1")
    for i in range(4):
        a(f"buffer_store_dwordx4 v[32:35], v{t0}, s[36:39], 0 offen offset:{1024*i} sc1")
    a(f"v_mov_b32 v{t2}, 1")
    a("s_waitcnt vmcnt(0)")
    a("s_mov_b64 exec, 1")
    a(f"buffer_store_dword v{t2}, v{t1}, s[24:27], 0 offen sc1")
    a("s_mov_b64 exec, -1")
    a.label("L1_noinit")
    a("s_and_b32 s42, s45, 1")
    a("s_lshl_b32 s42, s42, 5")
    a("s_add_u32 s42, s42, s54")
    a("s_lshr_b32 s43, s45, 1")
    a("s_lshl_b32 s43, s43, 5")
    a("s_lshl_b32 s44, s55, 6")
    a("s_add_u32 s43, s43, s44")
    a(f"v_bfe_u32 v{t0}, v1, 2, 1")
    a(f"v_lshlrev_b32 v{t0}, 4, v{t0}")
    a(f"v_bfe_u32 v{t1}, v1, 3, 2")
    a(f"v_lshl_add_u32 v{t0}, v{t1}, 2, v{t0}")
    a(f"v_and_b32 v{t1}, 3, v1")
    a(f"v_add3_u32 v{t0}, v{t0}, v{t1}, s43")
    a(f"v_and_b32 v{t1}, 31, v1")
    a("s_lshl_b32 s44, s42, 7")
    a(f"v_lshl_add_u32 v{VG}, v{t1}, 2, s44")
    a(f"v_lshl_add_u32 v{t1}, v{t1}, 6, s42")
    a(f"v_lshrrev_b32 v{t2}, 5, v1")
    a(f"v_lshlrev_b32 v{VO}, 10, v{t1}")
    a(f"v_lshl_add_u32 v{VO}, v{t2}, 5, v{VO}")
    a("s_lshl_b32 s44, s43, 1")
    a(f"v_add_u32 v{VO}, s44, v{VO}")
    a("s_mov_b32 s64, s54")
    a("s_cmp_lt_u32 s55, 4")
    a("s_cbranch_scc1 L1_nomirror")
    a(f"v_sub_u32 v{t0}, 0x200, v{t0}")
    a(f"v_sub_u32 v{t1}, 0x800, v{t1}")
    a(f"v_and_b32 v{t1}, 0x7ff, v{t1}")
    a("s_sub_u32 s64, 32, s54")
    a("s_and_b32 s64, s64, 31")
    a.label("L1_nomirror")
    a(f"v_mul_u32_u24 v{VZ}, {32*EP*4}, v{t2}")
    a(f"v_lshl_add_u32 v{VZ}, v{t0}, 2, v{VZ}")
    a(f"s_mul_i32 s64, s64, {64*EP*4}")
    a(f"v_cvt_f32_u32 v{t1}, v{t1}")
    a(f"v_mul_f32 v{t1}, {f2u(-1.0/2048):#x}, v{t1}")
    a(f"v_cvt_f32_u32 v{t2}, v{t2}")
    a(f"v_mul_f32 v{t2}, {f2u(32.0):#x}, v{t2}")
    a(f"v_mul_f32 v{t2}, v{t1}, v{t2}")
    for hf in range(2):
        for q in range(16):
            a(f"v_fmamk_f32 v{32+q}, v{t1}, {f2u(float(16*hf+q)):#x}, v{t2}")
        for q in range(16):
            a(f"v_fract_f32 v{32+q}, v{32+q}")
        for q in range(16):
            a(f"v_sin_f32 v{48+q}, v{32+q}")
        for q in range(16):
            a(f"v_cos_f32 v{32+q}, v{32+q}")
        a("s_nop 0")
        for q in range(16):
            a(f"v_cvt_pk_bf16_f32 v{C_BF+16*hf+q}, v{32+q}, v{48+q}")
    a("s_cmp_eq_u32 s22, 12")
    a("s_cbranch_scc1 L1C_ffn2g")
    a("s_cmp_gt_u32 s22, 12")
    a("s_cbranch_scc1 L1C_spec")


def kernel(a, opt):
    a.label(NAME + "_kernel")
    a("s_cmp_ge_u32 s2, 256")
    a("s_cbranch_scc1 L_exit")
    a("s_load_dwordx2 s[4:5], s[0:1], 0")
    a("s_load_dwordx4 s[8:11], s[0:1], 24")
    a("s_load_dwordx4 s[12:15], s[0:1], 48")
    a("s_load_dwordx2 s[50:51], s[0:1], 64")
    a("s_load_dwordx2 s[16:17], s[0:1], 72")
    a("s_load_dwordx2 s[6:7], s[0:1], 80")
    a("s_load_dwordx2 s[52:53], s[0:1], 88")
    a("s_load_dwordx2 s[18:19], s[0:1], 96")
    if opt.stamps:
        a("v_mov_b32 v255, 0")
        a("v_mov_b32 v253, 0")
        a("s_mov_b32 s89, 0")
    a("v_lshrrev_b32 v2, 6, v0")
    a("v_and_b32 v1, 63, v0")
    a("v_readfirstlane_b32 s20, v2")
    a("s_and_b32 s42, s2, 1")
    a("s_lshl_b32 s42, s42, 3")
    a("s_bfe_u32 s55, s2, 0x30003")
    a("s_add_u32 s21, s42, s55")
    a("s_bfe_u32 s42, s2, 0x20001")
    a("s_lshr_b32 s44, s2, 6")
    a("s_mul_i32 s22, s42, 3")
    a("s_add_u32 s22, s22, s44")
    a("s_add_u32 s42, s42, 12")
    a("s_cmp_eq_u32 s44, 3")
    a("s_cselect_b32 s22, s42, s22")
    a("s_and_b32 s54, s2, 7")
    a("s_lshl_b32 s54, s54, 2")
    a("s_add_u32 s54, s54, s44")
    a("s_lshl_b32 s44, s44, 1")
    a("s_add_u32 s46, s55, s44")
    a("s_and_b32 s56, s46, 7")
    a(f"s_and_b32 s49, s46, {opt.rotmask}")
    a("s_mul_i32 s56, s56, 11")
    a("s_lshr_b32 s56, s56, 2")
    a("s_and_b32 s45, s20, 3")
    a("s_and_b32 s42, s45, 1")
    a("s_lshr_b32 s43, s45, 1")
    a("s_lshl_b32 s43, s43, 5")
    a("s_lshl_b32 s23, s21, 1")
    a("s_add_u32 s23, s23, s42")
    a("s_add_u32 s23, s23, s43")
    a("s_lshl_b32 s48, s45, 12")
    a(f"s_add_u32 s48, s48, {SSZ - 16384}")
    a("s_cmp_ge_u32 s20, 4")
    a("s_cbranch_scc1 L1_compw")
    t0, t1, t2, VX = L_T0, L_T1, L_T2, L_VX
    a(f"v_lshrrev_b32 v{t0}, 3, v1")
    a(f"v_lshlrev_b32 v{t0}, 16, v{t0}")
    a("s_lshl_b32 s44, s23, 10")
    a(f"v_add_u32 v{t0}, s44, v{t0}")
    a(f"v_lshrrev_b32 v{t1}, 4, v1")
    a(f"v_and_b32 v{t2}, 7, v1")
    a(f"v_xor_b32 v{t1}, v{t1}, v{t2}")
    a(f"v_lshl_add_u32 v{VX}, v{t1}, 4, v{t0}")
    a(f"v_xor_b32 v{VX+1}, 64, v{VX}")
    a(f"v_add_u32 v{VX+1}, {8*65536}, v{VX+1}")
    a(f"v_add_u32 v{VX+2}, {16*65536}, v{VX}")
    a(f"v_add_u32 v{VX+3}, {16*65536}, v{VX+1}")
    a("s_lshl_b32 s47, s49, 7")
    a("s_waitcnt lgkmcnt(0)")
    stamp(a, opt)
    srd(a, 24, 4, 5, 2048 * 1024)
    for i in range(4):
        a(f"s_add_u32 m0, s48, {i*1024}")
        a("s_nop 0")
        a(f"buffer_load_dwordx4 v{VX+i}, s[24:27], s47 offen lds")
    a("s_cmp_eq_u32 s22, 12")
    a("s_cbranch_scc1 L1L_ffn2g")
    a("s_cmp_gt_u32 s22, 12")
    a("s_cbranch_scc1 L1L_spec")
    p1_loader(a, opt, "ffn7")
    p1_loader(a, opt, "spec")
    p1_loader(a, opt, "ffn2g")
    p2_worker(a, opt)
    a.label("L1_compw")
    a("s_waitcnt lgkmcnt(0)")
    stamp(a, opt)
    compute_prologue(a, opt)
    p1_compute(a, opt, "ffn7")
    p1_compute(a, opt, "spec")
    p1_compute(a, opt, "ffn2g")
    p2_combine(a, opt)
    a.label("L_exit")
    a("s_endpgm")


def main():
    ap = argparse.ArgumentParser()
    ap.add_argument("-o", default=f"cdna_kernels/{NAME}.s")
    ap.add_argument("--stamps", action="store_true")
    ap.add_argument("--fine", action="store_true")
    ap.add_argument("--dbg", default="")
    ap.add_argument("--q", type=int, default=8)
    ap.add_argument("--rotmask", type=int, default=7)
    ap.add_argument("--hr", type=int, default=8)
    ap.add_argument("--psleep", type=int, default=0)
    opt = ap.parse_args()
    hdr = open(f"cdna_kernels/{NAME}.s.ref").read().split("; Override launch")[0]
    out = hdr
    out += f"; @launch grid=(256,1,1) block=(512,1,1) lds={LDS_SIZE}\n"
    out += '.amdgcn_target "amdgcn-amd-amdhsa--gfx950"\n.text\n'
    a = Asm()
    kernel(a, opt)
    nm = NAME + "_kernel"
    out += f".globl {nm}\n.p2align 8\n.type {nm},@function\n" + a.text()
    out += f""".section .rodata,"a"
.p2align 6
.amdhsa_kernel {nm}
  .amdhsa_next_free_vgpr 256
  .amdhsa_next_free_sgpr 102
  .amdhsa_accum_offset 256
  .amdhsa_group_segment_fixed_size 0
  .amdhsa_kernarg_size 104
  .amdhsa_user_sgpr_count 2
  .amdhsa_user_sgpr_kernarg_segment_ptr 1
  .amdhsa_system_sgpr_workgroup_id_x 1
.end_amdhsa_kernel
"""
    open(opt.o, "w").write(out)


if __name__ == "__main__":
    main()
```

```python
import struct, sys, argparse

NAME = "gated_mix__spectral_fnet__geglu_ffn__prompt"
H_OFF = 0
H_SIZE = 64 * 86 * 1024
Z_OFF = 0x600000
EP = 288
Z_SIZE = 32 * 64 * EP * 4
G_OFF = 0x900000
G_SIZE = 2048 * 8
F_OFF = 0x980000
F_SIZE = 4096
T_OFF = 0xA00000
MF16 = "v_mfma_f32_16x16x32_bf16"
MF32 = "v_mfma_f32_32x32x16_bf16"


def f2u(f):
    return struct.unpack("<I", struct.pack("<f", f))[0]


class Asm:
    def __init__(self):
        self.l = []
        self.ds = []
        self.vm = []

    def __call__(self, s):
        self.l.append("    " + s)

    def label(self, s):
        self.l.append(s + ":")

    def dsop(self, s, tag):
        self(s)
        self.ds.append(tag)

    def dswait(self, tag):
        idx = max(i for i, t in enumerate(self.ds) if t == tag)
        n = len(self.ds) - 1 - idx
        assert n <= 15, n
        self(f"s_waitcnt lgkmcnt({n})")

    def vmop(self, s, tag):
        self(s)
        self.vm.append(tag)

    def vmwait(self, tag):
        idx = max(i for i, t in enumerate(self.vm) if t == tag)
        n = len(self.vm) - 1 - idx
        assert n <= 63, n
        self(f"s_waitcnt vmcnt({n})")

    def text(self):
        return "\n".join(self.l) + "\n"


def vr(b, n):
    return f"v[{b}:{b+n-1}]"


def srd(a, d, lo, hi, size, add=0):
    if add:
        a(f"s_add_u32 s{d}, s{lo}, {add:#x}")
        a(f"s_addc_u32 s{d+1}, s{hi}, 0")
    else:
        a(f"s_mov_b32 s{d}, s{lo}")
        a(f"s_mov_b32 s{d+1}, s{hi}")
    a(f"s_mov_b32 s{d+2}, {size:#x}")
    a(f"s_mov_b32 s{d+3}, 0x20000")


def stamp(a, opt):
    if not opt.stamps:
        return
    a("s_memrealtime s[90:91]")
    a("s_memtime s[86:87]")
    a("s_waitcnt lgkmcnt(0)")
    a("s_mov_b32 m0, s89")
    a("s_add_u32 s89, s89, 1")
    a("v_writelane_b32 v255, s90, m0")
    a("v_writelane_b32 v253, s86, m0")


def stamp_flush(a, opt, role):
    if not opt.stamps:
        return
    if opt.pad >= 0:
        if role == opt.padrole:
            a("s_nop 4")
            a(f"v_readlane_b32 s92, v255, {opt.pad}")
            a("s_nop 4")
            a("s_add_u32 s92, s92, 4000")
            a.label("Lpad")
            a("s_memrealtime s[90:91]")
            a("s_waitcnt lgkmcnt(0)")
            a("s_sub_u32 s93, s92, s90")
            a("s_cmp_gt_i32 s93, 0")
            a("s_cbranch_scc1 Lpad")
        return
    a("s_waitcnt vmcnt(0)")
    stamp(a, opt)
    srd(a, 92, 18, 19, 0x200000, T_OFF)
    a("s_lshl_b32 s96, s2, 3")
    a("s_add_u32 s96, s96, s20")
    a("s_lshl_b32 s96, s96, 8")
    a("v_lshlrev_b32 v254, 2, v1")
    a("buffer_store_dword v255, v254, s[92:95], s96 offen")
    a("s_add_u32 s96, s96, 0x100000")
    a("buffer_store_dword v253, v254, s[92:95], s96 offen")
    if opt.dbg and role == opt.dbg:
        srd(a, 92, 52, 53, 64)
        a("v_add_u32 v254, 8, v254")
        a("buffer_atomic_umax v255, v254, s[92:95], 0 offen")
        a("v_not_b32 v253, v255")
        a("v_mov_b32 v254, 4")
        a("s_mov_b64 exec, 1")
        a("buffer_atomic_umax v253, v254, s[92:95], 0 offen")


C1 = -2.0 * 0.7978845608028654 * 1.4426950408889634
C2 = C1 * 0.044715
NB = 3
SSZ = 45056
CLA = 3 * SSZ
FLG = CLA + 12 * 2048
GW_LDS = FLG + 64
LDS_SIZE = 163840
assert GW_LDS + 1024 <= LDS_SIZE


def cfg(kind):
    if kind == "ffn7":
        CH, gp, T, swz = 14, 2752, 7, False
    elif kind == "spec":
        CH, gp, T, swz = 12, 1024, 6, True
    else:
        CH, gp, T, swz = 4, 2752, 2, True
    pitch = CH * 16
    return CH, gp, T, swz, pitch, 2 * 64 * pitch


L_VD, L_VX, L_T0, L_T1, L_T2, L_VF, L_VA = 2, 10, 16, 17, 18, 20, 21


def free_wait(a, lab, val):
    a.label(lab)
    a(f"ds_read_b32 v{L_T0}, v{L_VA}")
    a("s_waitcnt lgkmcnt(0)")
    a(f"v_cmp_ge_u32 vcc, {val}, v{L_T0}")
    a(f"s_cbranch_vccnz {lab}")


def l_signal(a, s):
    a(f"v_mov_b32 v{L_T0}, {s+1}")
    a(f"ds_write_b32 v{L_VF}, v{L_T0}")


def p1_loader(a, opt, kind):
    CH, gp, T, swz, pitch, wsz = cfg(kind)
    ND = CH // 2
    VD, VX, t0, t1, t2, VF, VA = L_VD, L_VX, L_T0, L_T1, L_T2, L_VF, L_VA
    a.label(f"L1L_{kind}")
    a("s_cmp_ge_u32 s45, 2")
    if kind == "spec":
        a("s_cselect_b64 s[28:29], s[10:11], s[8:9]")
        a(f"s_mov_b32 s30, {512*1024:#x}")
        a("s_sub_u32 s42, s22, 13")
        a("s_mul_i32 s42, s42, 192")
    else:
        a("s_cselect_b64 s[28:29], s[14:15], s[12:13]")
        a(f"s_mov_b32 s30, {512*2752:#x}")
        a("s_mul_i32 s42, s22, 224")
    a("s_mov_b32 s31, 0x20000")
    a("s_and_b32 s43, s45, 1")
    a("s_lshr_b32 s44, s45, 1")
    a(f"s_mul_i32 s41, s44, {64*pitch}")
    a("s_lshl_b32 s44, s43, 10")
    a("s_add_u32 s41, s41, s44")
    magic = (65536 + CH - 1) // CH
    a("s_lshl_b32 s44, s43, 6")
    a(f"v_add_u32 v{VA}, s44, v1")

    def wsetup(i):
        d = VD + i
        a(f"v_add_u32 v{t0}, {128*i}, v{VA}")
        if CH == 4:
            a(f"v_lshrrev_b32 v{t1}, 2, v{t0}")
        else:
            a(f"v_mul_u32_u24 v{t1}, {magic}, v{t0}")
            a(f"v_lshrrev_b32 v{t1}, 16, v{t1}")
        a(f"v_mul_u32_u24 v{t2}, {CH}, v{t1}")
        a(f"v_sub_u32 v{t0}, v{t0}, v{t2}")
        if swz:
            a(f"v_bfe_u32 v{t2}, v{t1}, 2, 1")
            a(f"v_lshlrev_b32 v{t2}, 1, v{t2}")
            a(f"v_xor_b32 v{t0}, v{t0}, v{t2}")
        a(f"v_bfe_u32 v{t2}, v{t1}, 2, 2")
        a(f"v_lshlrev_b32 v{t2}, 3, v{t2}")
        a(f"v_and_or_b32 v{t2}, v{t1}, 35, v{t2}")
        a(f"v_bfe_u32 v{t1}, v{t1}, 4, 1")
        a(f"v_lshl_or_b32 v{t1}, v{t1}, 2, v{t2}")
        a(f"v_mul_u32_u24 v{t1}, {gp}, v{t1}")
        a(f"v_lshl_add_u32 v{d}, v{t0}, 4, v{t1}")
        a(f"v_add_u32 v{d}, s42, v{d}")

    GL = ND + 4
    Q = min(opt.q, GL)
    for s in range(8):
        slot = s % NB
        if s > 0:
            a("s_add_u32 s49, s49, 1")
            a("s_and_b32 s49, s49, 7")
            a("s_lshl_b32 s47, s49, 7")
        a(f"s_mul_i32 s40, s49, {64*gp}")
        if s >= NB:
            free_wait(a, f"L1L_{kind}_free{s}", s - NB)
        if s == 6:
            srd(a, 68, 52, 53, 256)
            a("v_mov_b32 v15, 0")
            a("buffer_load_dword v14, v15, s[68:71], 0 offen")
        n = 0
        for i in range(GL):
            if i < 4:
                if s > 0:
                    a(f"s_add_u32 m0, s48, {slot*SSZ + i*1024}")
                    a("s_nop 0")
                    a(f"buffer_load_dwordx4 v{VX+i}, s[24:27], s47 offen lds")
            else:
                if s == 0:
                    wsetup(i - 4)
                a(f"s_add_u32 m0, s41, {slot*SSZ + (i-4)*2048}")
                a("s_nop 0")
                a(f"buffer_load_dwordx4 v{VD+i-4}, s[28:31], s40 offen lds")
            n += 1
            if s > 0 and n == Q:
                a(f"s_waitcnt vmcnt({Q})")
                l_signal(a, s - 1)
                if opt.fine:
                    stamp(a, opt)
        if s == 0:
            if kind == "ffn2g":
                srd(a, 36, 16, 17, 1024)
                a(f"s_mov_b32 m0, {GW_LDS}")
                a(f"v_lshlrev_b32 v{t0}, 4, v1")
                a(f"buffer_load_dwordx4 v{t0}, s[36:39], 0 offen lds")
            a("s_lshl_b32 s44, s45, 2")
            a(f"s_add_u32 s44, s44, {FLG}")
            a(f"v_mov_b32 v{VF}, s44")
            a(f"v_and_b32 v{VA}, 3, v1")
            a(f"v_lshlrev_b32 v{VA}, 2, v{VA}")
            a(f"v_add_u32 v{VA}, {FLG+16}, v{VA}")
            stamp(a, opt)
            a("s_barrier")
    a("s_branch L2W")


def p2_worker(a, opt):
    NS = 22
    HR = opt.hr
    t0, t1, t2 = L_T0, L_T1, L_T2
    VW0, VW1 = 2, 3
    VH0, VH1 = 4, 5
    VR = 22
    VP = 6
    VRD = 7
    WF, ACB, HF = 32, 64, 128
    WR = 4
    assert HF + 8 * HR <= 252
    a.vm, a.ds = [], []
    a.label("L2W")
    srd(a, 28, 50, 51, 1376 * 1024)
    a(f"v_bfe_u32 v{t0}, v1, 4, 1")
    a(f"v_lshlrev_b32 v{t0}, 2, v{t0}")
    a(f"v_and_b32 v{t1}, 7, v1")
    a(f"v_xor_b32 v{t0}, v{t0}, v{t1}")
    a(f"v_lshrrev_b32 v{t1}, 3, v1")
    a(f"v_lshlrev_b32 v{t1}, 10, v{t1}")
    a(f"v_lshl_add_u32 v{VW0}, v{t0}, 4, v{t1}")
    a("s_lshl_b32 s42, s55, 7")
    a(f"v_add_u32 v{VW0}, s42, v{VW0}")
    a(f"v_add_u32 v{VW1}, 0x2000, v{VW0}")
    a("s_mul_i32 s57, s45, 22")
    a("s_add_u32 s57, s57, s56")
    a("s_mov_b32 s58, s57")
    a("s_lshl_b32 s59, s45, 11")
    a("s_and_b32 s60, s45, 1")
    a("s_lshl_b32 s60, s60, 11")
    a("s_cmp_lt_u32 s45, 2")
    a(f"s_cselect_b32 s61, {2*SSZ}, 0")
    a("s_add_u32 s60, s60, s61")
    a(f"s_add_u32 s60, s60, {20*2048}")
    cls_base = {"A": CLA, "B": 2 * SSZ, "C": 0, "D": SSZ}
    cls_idx = {"A": 0, "B": 1, "C": 2, "D": 3, "L": 4}
    smap = [("A", i) for i in range(3)] + [("B", i) for i in range(5)] + [("A", i) for i in range(3)] + \
           [("C", i) for i in range(5)] + [("L", 0)] + [("D", i) for i in range(5)]
    assert len(smap) == NS

    def wload(i):
        c, k = smap[i]
        a("s_lshl_b32 s40, s58, 14")
        if c == "L":
            a("s_mov_b32 m0, s60")
        else:
            a(f"s_add_u32 m0, s59, {cls_base[c] + k*8192}")
        a("s_add_u32 s58, s58, 1")
        a.vmop(f"buffer_load_dwordx4 v{VW0}, s[28:31], s40 offen lds", ("w", i))
        a("s_add_u32 m0, m0, 1024")
        a("s_cmp_lt_u32 s58, 88")
        a.vmop(f"buffer_load_dwordx4 v{VW1}, s[28:31], s40 offen lds", ("w", i))
        a("s_cselect_b32 s58, s58, 0")

    def wreads(i):
        c, k = smap[i]
        f = WF + 8 * (i % WR)
        b = VR + 2 * cls_idx[c]
        o = k * 8192
        for ln in range(2):
            a.dsop(f"ds_read_b64_tr_b16 {vr(f+4*ln,2)}, v{b+ln} offset:{o}", ("r", i))
            a.dsop(f"ds_read_b64_tr_b16 {vr(f+4*ln+2,2)}, v{b+ln} offset:{o+512}", ("r", i))

    for i in range(3):
        wload(i)
    a("s_waitcnt vmcnt(6)")
    a("v_cmp_ne_u32 vcc, 0, v14")
    a("s_cbranch_vccnz L2W_gook")
    a.label("L2W_go")
    a("buffer_load_dword v14, v15, s[68:71], 0 offen sc1")
    a("s_waitcnt vmcnt(0)")
    a("v_cmp_eq_u32 vcc, 0, v14")
    a("s_cbranch_vccnz L2W_go")
    a.label("L2W_gook")
    l_signal(a, 7)
    stamp(a, opt)
    a(f"v_lshrrev_b32 v{t2}, 5, v1")
    a(f"v_bfe_u32 v{t0}, v1, 2, 2")
    a(f"v_lshl_add_u32 v{t0}, v{t2}, 3, v{t0}")
    a(f"v_lshlrev_b32 v{t0}, 7, v{t0}")
    a(f"v_bfe_u32 v{t1}, v1, 1, 1")
    a(f"v_lshl_add_u32 v{t0}, v{t1}, 3, v{t0}")
    a(f"v_and_b32 v{t1}, 1, v1")
    a(f"v_lshl_add_u32 v{t0}, v{t1}, 5, v{t0}")
    a(f"v_bfe_u32 v{t1}, v1, 4, 1")
    a(f"v_lshl_add_u32 v{t0}, v{t1}, 4, v{t0}")
    a(f"v_bfe_u32 v{t1}, v1, 3, 1")
    a(f"v_lshl_add_u32 v{t2}, v{t1}, 6, v{t0}")
    for c in "ABCD":
        b = VR + 2 * cls_idx[c]
        a(f"s_add_u32 s42, s59, {cls_base[c]}")
        a(f"v_add_u32 v{b}, s42, v{t2}")
        a(f"v_xor_b32 v{b+1}, 64, v{b}")
    a(f"v_add_u32 v{VR+8}, s60, v{t2}")
    a(f"v_xor_b32 v{VR+9}, 64, v{VR+8}")
    a(f"v_lshlrev_b32 v{t0}, 4, v1")
    a(f"s_mul_i32 s42, s54, {86*1024}")
    a(f"v_add_u32 v{VH0}, s42, v{t0}")
    a(f"v_add_u32 v{VH1}, {32*86*1024}, v{VH0}")
    srd(a, 32, 18, 19, H_SIZE, H_OFF)
    a(f"v_mov_b32 v{VRD}, {FLG+36}")
    free_wait(a, "L2W_f5", 5)
    for i in range(3, 8):
        wload(i)
    a.vmwait(("w", 2))
    for i in range(3):
        wreads(i)
    a("s_waitcnt lgkmcnt(0)")
    for i in range(8, 11):
        wload(i)
    free_wait(a, "L2W_f6", 6)
    for i in range(11, 17):
        wload(i)
    free_wait(a, "L2W_f7", 7)
    for i in range(17, 22):
        wload(i)
    stamp(a, opt)
    a.label("L2W_waitlds")
    a(f"ds_read_b32 v{t0}, v{VRD}")
    a("s_waitcnt lgkmcnt(0)")
    a(f"v_cmp_ne_u32 vcc, 1, v{t0}")
    a("s_cbranch_vccnz L2W_waitlds")
    a.label("L2W_rdy")
    stamp(a, opt)

    def hload(i):
        h = HF + 8 * (i % HR)
        a("s_min_u32 s40, s57, 85")
        a("s_lshl_b32 s40, s40, 10")
        a("s_add_u32 s57, s57, 1")
        a.vmop(f"buffer_load_dwordx4 {vr(h,4)}, v{VH0}, s[32:35], s40 offen sc1", ("h", i))
        a("s_cmp_lt_u32 s57, 88")
        a.vmop(f"buffer_load_dwordx4 {vr(h+4,4)}, v{VH1}, s[32:35], s40 offen sc1", ("h", i))
        a("s_cselect_b32 s57, s57, 0")

    for i in range(HR):
        hload(i)
    for i in range(NS):
        a.vmwait(("h", i))
        if i == 0:
            stamp(a, opt)
        if i + 3 < NS:
            wreads(i + 3)
        if i >= 3:
            a.dswait(("r", i))
        f = WF + 8 * (i % WR)
        h = HF + 8 * (i % HR)
        for L in range(4):
            lt, ln = L & 1, L >> 1
            acc = vr(ACB + 16 * L, 16)
            a(f"{MF32} {acc}, {vr(f+4*ln,4)}, {vr(h+4*lt,4)}, {'0' if i == 0 else acc}")
        if i + HR < NS:
            hload(i + HR)
    stamp(a, opt)
    a(f"v_lshlrev_b32 v{t0}, 4, v1")
    a(f"v_add_u32 v{t0}, s59, v{t0}")
    a("s_nop 7")
    a("s_nop 3")
    for L in range(4):
        for q in range(4):
            a(f"ds_write_b128 v{t0}, {vr(ACB+16*L+4*q,4)} offset:{piece_off(4*L+q)}")
    a("s_waitcnt lgkmcnt(0)")
    a("s_barrier")
    stamp_flush(a, opt, "L")
    a("s_endpgm")


def piece_off(p):
    sl, hf = p >> 1, p & 1
    base = sl * 8192 if sl < 5 else SSZ + (sl - 5) * 8192
    return base + hf * 1024


C_BF = 216


def p1_compute(a, opt, kind):
    CH, gp, T, swz, pitch, wsz = cfg(kind)
    st = " sc1"
    a.ds = []
    VW, VXR, VFL, VFW, VST, VGW, VC2, VFD = 2, 8, 14, 15, 16, 17, 18, 19
    t0, t1, t2 = 20, 21, 22
    WF, XF, ACC = 32, 64, 96
    GACC = 128
    CF, SF, NF = 192, 200, 208
    a.label(f"L1C_{kind}")
    a(f"v_lshrrev_b32 v{t0}, 2, v1")
    a(f"v_mul_u32_u24 v{t0}, {pitch}, v{t0}")
    a(f"v_and_b32 v{t1}, 3, v1")
    a(f"v_lshl_add_u32 v{t0}, v{t1}, 3, v{t0}")
    if swz:
        a(f"v_bfe_u32 v{t1}, v1, 4, 1")
        a(f"v_lshlrev_b32 v{t1}, 5, v{t1}")
        a(f"v_add_u32 v{VW}, v{t0}, v{t1}")
        a(f"v_sub_u32 v{VW+3}, v{t0}, v{t1}")
        a(f"v_add_u32 v{VW+3}, 32, v{VW+3}")
        for sl in range(1, NB):
            a(f"v_add_u32 v{VW+sl}, {sl*SSZ}, v{VW}")
            a(f"v_add_u32 v{VW+3+sl}, {sl*SSZ}, v{VW+3}")
    else:
        a(f"v_mov_b32 v{VW}, v{t0}")
        for sl in range(1, NB):
            a(f"v_add_u32 v{VW+sl}, {sl*SSZ}, v{VW}")
    a(f"v_and_b32 v{t0}, 15, v1")
    a(f"v_lshrrev_b32 v{t1}, 1, v{t0}")
    a(f"v_lshrrev_b32 v{t2}, 4, v1")
    a(f"v_xor_b32 v{t1}, v{t1}, v{t2}")
    a(f"v_lshlrev_b32 v{t1}, 4, v{t1}")
    a(f"v_lshl_add_u32 v{t0}, v{t0}, 7, v{t1}")
    for sl in range(NB):
        a(f"s_add_u32 s44, s48, {sl*SSZ}")
        a(f"v_add_u32 v{VXR+2*sl}, s44, v{t0}")
        a(f"v_xor_b32 v{VXR+2*sl+1}, 64, v{VXR+2*sl}")
    a(f"v_and_b32 v{VFL}, 3, v1")
    a(f"v_lshlrev_b32 v{VFL}, 2, v{VFL}")
    a(f"v_add_u32 v{VFL}, {FLG}, v{VFL}")
    a("s_lshl_b32 s44, s45, 2")
    a(f"s_add_u32 s44, s44, {FLG+16}")
    a(f"v_mov_b32 v{VFW}, s44")
    if kind == "spec":
        tc, ts = 96, 112
        a(f"v_and_b32 v{t0}, 15, v1")
        a(f"v_lshrrev_b32 v{t1}, 4, v1")
        a(f"v_lshlrev_b32 v{t1}, 2, v{t1}")
        for rho in range(2):
            if rho:
                a(f"v_add_u32 v{t0}, 16, v{t0}")
            a(f"v_mul_u32_u24 v{t2}, v{t0}, v{t1}")
            for sg in range(8):
                s1c = 16 * (sg >> 2) + (sg & 3)
                a(f"v_mad_u32_u24 v{tc+8*rho+sg}, v{t0}, {s1c}, v{t2}")
        for i in range(16):
            a(f"v_and_b32 v{tc+i}, 31, v{tc+i}")
        for i in range(16):
            a(f"v_cvt_f32_u32 v{tc+i}, v{tc+i}")
        for i in range(16):
            a(f"v_mul_f32 v{tc+i}, {f2u(1.0/32):#x}, v{tc+i}")
        for i in range(16):
            a(f"v_sin_f32 v{ts+i}, v{tc+i}")
        for i in range(16):
            a(f"v_cos_f32 v{tc+i}, v{tc+i}")
        a("s_nop 0")
        for i in range(8):
            a(f"v_cvt_pk_bf16_f32 v{CF+i}, v{tc+2*i}, v{tc+2*i+1}")
            a(f"v_cvt_pk_bf16_f32 v{SF+i}, v{ts+2*i}, v{ts+2*i+1}")
        for i in range(8):
            a(f"v_xor_b32 v{NF+i}, 0x80008000, v{CF+i}")
        a(f"v_lshrrev_b32 v{t1}, 5, v1")
        a(f"v_mul_u32_u24 v{t1}, {8*64*EP*4}, v{t1}")
        a(f"v_and_b32 v{t0}, 31, v1")
        a(f"v_lshl_add_u32 v{VST}, v{t0}, 2, v{t1}")
        srd(a, 32, 18, 19, Z_SIZE, Z_OFF)
        a("s_sub_u32 s63, s22, 13")
        a("s_lshl_b32 s63, s63, 4")
        a("s_add_u32 s63, s63, s21")
        a("s_lshl_b32 s63, s63, 2")
        a("s_add_u32 s63, s63, 2048")
        a("s_mov_b32 s65, 0xff")
    else:
        a(f"v_mov_b32 v{VC2}, {f2u(C2):#x}")
        a(f"v_lshlrev_b32 v{VST}, 4, v1")
        srd(a, 32, 18, 19, H_SIZE, H_OFF)
        a("s_lshl_b32 s63, s21, 5")
        a("s_add_u32 s63, s63, s22")
        a("s_lshl_b32 s63, s63, 2")
        a("s_mov_b32 s65, 1")
        if kind == "ffn2g":
            a(f"v_lshrrev_b32 v{t0}, 4, v1")
            a(f"v_lshlrev_b32 v{t0}, 4, v{t0}")
            a(f"v_add_u32 v{t2}, {GW_LDS}, v{t0}")
    stamp(a, opt)

    NU = 2 * T + (1 if kind == "ffn2g" else 0)
    units = [(s, u) for s in range(8) for u in range(NU)]
    N = len(units)
    LA = 2

    def unit_reads(n):
        s, u = units[n]
        f = WF + 8 * (n % 4)
        sl = s % NB
        if u == 2 * T:
            return [f"ds_read_b128 {vr(f,4)}, v{VGW}", f"ds_read_b128 {vr(f+4,4)}, v{VGW} offset:64"]
        p, m = u >> 1, u & 1
        if swz and (p & 1):
            base, to = VW + 3 + sl, (p - 1) * 32
        else:
            base, to = VW + sl, p * 32
        r = []
        for ks in range(2):
            off = m * 64 * pitch + ks * 32 * pitch + to
            r.append(f"ds_read_b64_tr_b16 {vr(f+4*ks,2)}, v{base} offset:{off}")
            r.append(f"ds_read_b64_tr_b16 {vr(f+4*ks+2,2)}, v{base} offset:{off+16*pitch}")
        return r

    def flag_read(s):
        a.dsop(f"ds_read_b32 v{VFD}, v{VFL}", ("flag", s))

    def publish_free(s):
        a(f"v_mov_b32 v{t0}, {s+1}")
        a.dsop(f"ds_write_b32 v{VFW}, v{t0}", "free")

    def stage_open(s):
        lab = f"L1C_{kind}_{s}"
        a.dswait(("flag", s))
        a(f"v_cmp_ge_u32 vcc, {s}, v{VFD}")
        a(f"s_cbranch_vccz {lab}_ok")
        a.label(f"{lab}_spin")
        a(f"ds_read_b32 v{VFD}, v{VFL}")
        a("s_waitcnt lgkmcnt(0)")
        a(f"v_cmp_ge_u32 vcc, {s}, v{VFD}")
        a(f"s_cbranch_vccnz {lab}_spin")
        a.label(f"{lab}_ok")
        if s == 0 or opt.fine:
            stamp(a, opt)
        sl = s % NB
        xb = XF + 16 * (s & 1)
        for rt in range(2):
            for ks in range(2):
                a.dsop(f"ds_read_b128 {vr(xb+8*rt+4*ks,4)}, v{VXR+2*sl+ks} offset:{rt*2048}", ("x", s))
        if kind == "ffn2g":
            a("s_lshl_b32 s44, s49, 7")
            a(f"v_add_u32 v{VGW}, s44, v{t2}")
            a("s_add_u32 s49, s49, 1")
            a("s_and_b32 s49, s49, 7")

    def pre_unit(n):
        s, u = units[n]
        if u == 0:
            if s > 0:
                publish_free(s - 1)
            stage_open(s)

    flag_read(0)
    for n in range(LA):
        pre_unit(n)
        for r in unit_reads(n):
            a.dsop(r, ("u", n))
    for n in range(N):
        s, u = units[n]
        nxt = []
        if n + LA < N:
            pre_unit(n + LA)
            nxt = unit_reads(n + LA)
        elif n + LA == N:
            publish_free(7)
        if n + LA + 1 < N and units[n + LA + 1][1] == 0:
            flag_read(units[n + LA + 1][0])
        a.dswait(("u", n))
        f = WF + 8 * (n % 4)
        xb = XF + 16 * (s & 1)
        for j in range(4):
            rt, ks = j >> 1, j & 1
            if u == 2 * T:
                acc = vr(GACC + 4 * rt, 4)
            else:
                acc = vr(ACC + 16 * (u >> 1) + 8 * (u & 1) + 4 * rt, 4)
            w_, x_ = vr(f + 4 * ks, 4), vr(xb + 8 * rt + 4 * ks, 4)
            srcc = "0" if (s == 0 and ks == 0) else acc
            if kind == "spec":
                a(f"{MF16} {acc}, {x_}, {w_}, {srcc}")
            else:
                a(f"{MF16} {acc}, {w_}, {x_}, {srcc}")
            if j < len(nxt):
                a.dsop(nxt[j], ("u", n + LA))
    a("s_nop 7")
    stamp(a, opt)
    if kind == "spec":
        PA = 32
        for u in range(T):
            A = ACC + 16 * u
            for i in range(8):
                a(f"v_cvt_pk_bf16_f32 v{PA+8*u+i}, v{A+2*i}, v{A+2*i+1}")
        a("s_nop 1")
        for u in range(T):
            A = ACC + 16 * u
            pa, pb = vr(PA + 8 * u, 4), vr(PA + 8 * u + 4, 4)
            for rho in range(2):
                zr, zm = vr(A + 4 * rho, 4), vr(A + 8 + 4 * rho, 4)
                a(f"{MF16} {zr}, {vr(CF+4*rho,4)}, {pa}, 0")
                a(f"{MF16} {zr}, {vr(SF+4*rho,4)}, {pb}, {zr}")
                a(f"{MF16} {zm}, {vr(SF+4*rho,4)}, {pa}, 0")
                a(f"{MF16} {zm}, {vr(NF+4*rho,4)}, {pb}, {zm}")
        a("s_sub_u32 s42, s22, 13")
        a("s_mul_i32 s42, s42, 96")
        a(f"s_mul_i32 s43, s23, {EP}")
        a("s_add_u32 s42, s42, s43")
        a("s_lshl_b32 s42, s42, 2")
        a("s_nop 3")
        for up in range(T // 2):
            A, B = ACC + 32 * up, ACC + 32 * up + 16
            for rg in range(8):
                a(f"v_cvt_pk_bf16_f32 v{A+rg}, v{A+rg}, v{A+8+rg}")
                a(f"v_cvt_pk_bf16_f32 v{B+rg}, v{B+rg}, v{B+8+rg}")
            a("s_nop 0")
            for rg in range(8):
                a(f"v_permlane16_swap_b32 v{A+rg}, v{B+rg}")
            for rg in range(8):
                rr = 16 * (rg >> 2) + (rg & 3)
                a(f"s_add_u32 s43, s42, {rr*64*EP*4}")
                a(f"s_add_u32 s44, s42, {(rr+4)*64*EP*4}")
                a(f"buffer_store_dword v{A+rg}, v{VST}, s[32:35], s43 offen offset:{128*up}{st}")
                a(f"buffer_store_dword v{B+rg}, v{VST}, s[32:35], s44 offen offset:{128*up}{st}")
    else:
        TT = 32
        a("s_mul_i32 s42, s23, 86")
        a("s_mul_i32 s43, s22, 7")
        a("s_add_u32 s42, s42, s43")
        a("s_lshl_b32 s42, s42, 10")
        a("s_add_u32 s43, s42, 4096")
        for p in range(T):
            A = ACC + 16 * p
            for v in range(0, 8, 2):
                a(f"v_pk_mul_f32 {vr(TT+v,2)}, {vr(A+v,2)}, {vr(A+v,2)}")
            for v in range(8):
                a(f"v_fmaak_f32 v{TT+v}, v{TT+v}, v{VC2}, {f2u(C1):#x}")
            for v in range(0, 8, 2):
                a(f"v_pk_mul_f32 {vr(TT+v,2)}, {vr(TT+v,2)}, {vr(A+v,2)}")
            for v in range(8):
                a(f"v_exp_f32 v{TT+v}, v{TT+v}")
            for v in range(0, 8, 2):
                a(f"v_pk_mul_f32 {vr(A+8+v,2)}, {vr(A+v,2)}, {vr(A+8+v,2)}")
            for v in range(0, 8, 2):
                a(f"v_pk_add_f32 {vr(TT+v,2)}, {vr(TT+v,2)}, 1.0 op_sel_hi:[1,0]")
            for v in range(8):
                a(f"v_rcp_f32 v{TT+v}, v{TT+v}")
            a("s_nop 0")
            for v in range(0, 8, 2):
                a(f"v_pk_mul_f32 {vr(A+8+v,2)}, {vr(A+8+v,2)}, {vr(TT+v,2)}")
            for i in range(4):
                a(f"v_cvt_pk_bf16_f32 v{A+i}, v{A+8+2*i}, v{A+8+2*i+1}")
            a("s_nop 1")
            a(f"v_permlane16_swap_b32 v{A}, v{A+2}")
            a(f"v_permlane16_swap_b32 v{A+1}, v{A+3}")
            so = "s42" if p < 4 else "s43"
            a(f"buffer_store_dwordx4 {vr(A,4)}, v{VST}, s[32:35], {so} offen offset:{(p%4)*1024}{st}")
        if kind == "ffn2g":
            srd(a, 36, 18, 19, G_SIZE, G_OFF)
            A = GACC
            a(f"v_and_b32 v{t0}, 16, v1")
            a(f"v_cmp_ne_u32 vcc, 0, v{t0}")
            a("s_nop 1")
            a(f"v_cndmask_b32 v{A}, v{A}, v{A+4}, vcc")
            a(f"v_cvt_pk_bf16_f32 v{A}, v{A}, v{A}")
            a(f"v_and_b32 v{A}, 0xffff0000, v{A}")
            a(f"v_mul_f32 v{A}, {f2u(-1.4426950408889634):#x}, v{A}")
            a(f"v_exp_f32 v{A}, v{A}")
            a("s_nop 0")
            a(f"v_add_f32 v{A}, 1.0, v{A}")
            a(f"v_rcp_f32 v{A}, v{A}")
            a("s_nop 0")
            a(f"v_cvt_pk_bf16_f32 v{A}, v{A}, v{A}")
            a(f"v_and_b32 v{A}, 0xffff0000, v{A}")
            a(f"v_and_b32 v{t0}, 31, v1")
            a(f"v_lshlrev_b32 v{t0}, 2, v{t0}")
            a("s_lshl_b32 s42, s23, 7")
            a(f"buffer_store_dword v{A}, v{t0}, s[36:39], s42 offen{st}")
    stamp(a, opt)
    a("s_branch L2C")


def p2_combine(a, opt):
    VFD = 19
    t0, t1, t2 = 20, 21, 22
    VZ, VO, VG = 23, 24, 25
    ZF, ACY, PT = 32, 64, 96
    a.label("L2C")
    srd(a, 36, 18, 19, F_SIZE, F_OFF)
    a(f"v_mov_b32 v{t0}, {FLG+32}")
    a(f"v_mov_b32 v{t1}, 1")
    a("s_waitcnt vmcnt(0)")
    stamp(a, opt)
    a("s_mov_b64 exec, 1")
    a(f"ds_add_rtn_u32 v{t2}, v{t0}, v{t1}")
    a("s_waitcnt lgkmcnt(0)")
    a(f"v_readfirstlane_b32 s42, v{t2}")
    a("s_mov_b64 exec, -1")
    a(f"v_mov_b32 v{t2}, 0")
    a("s_cmp_lg_u32 s42, 3")
    a("s_cbranch_scc1 L2C_waitlds")
    a(f"v_lshlrev_b32 v{t2}, 8, v1")
    a("s_mov_b32 exec_lo, s65")
    a("s_mov_b32 exec_hi, 0")
    a(f"buffer_store_dword v{t1}, v{t2}, s[36:39], s63 offen sc1")
    a("s_mov_b64 exec, -1")
    a("s_lshr_b32 s42, s54, 1")
    a("s_lshl_b32 s42, s42, 7")
    a("s_and_b32 s43, s2, 7")
    a("s_lshl_b32 s43, s43, 8")
    a(f"s_add_u32 s43, s43, {2048-64}")
    a(f"v_min_u32 v{VFD}, 12, v1")
    a(f"v_lshl_add_u32 v{VFD}, v{VFD}, 2, s42")
    a(f"v_lshl_add_u32 v{t2}, v1, 2, s43")
    a(f"v_cmp_gt_u32 vcc, 16, v1")
    a("s_nop 1")
    a(f"v_cndmask_b32 v{t2}, v{t2}, v{VFD}, vcc")
    a.label("L2C_poll")
    if opt.psleep:
        a(f"s_sleep {opt.psleep}")
    a(f"buffer_load_dword v{VFD}, v{t2}, s[36:39], 0 offen sc1")
    a("s_waitcnt vmcnt(0)")
    a(f"v_cmp_ne_u32 vcc, 1, v{VFD}")
    a("s_and_b32 s42, vcc_lo, 0xffff")
    a("s_cbranch_scc1 L2C_poll")
    a(f"ds_write_b32 v{t0}, v{t1} offset:4")
    a("s_cbranch_vccnz L2C_poll")
    a(f"ds_write_b32 v{t0}, v{t1} offset:8")
    a("s_branch L2C_rdy")
    a.label("L2C_waitlds")
    a(f"ds_read_b32 v{VFD}, v{t0} offset:8")
    a("s_waitcnt lgkmcnt(0)")
    a(f"v_cmp_ne_u32 vcc, 1, v{VFD}")
    a("s_cbranch_vccnz L2C_waitlds")
    a.label("L2C_rdy")
    stamp(a, opt)
    srd(a, 32, 18, 19, Z_SIZE, Z_OFF)
    srd(a, 36, 18, 19, G_SIZE, G_OFF)
    srd(a, 28, 6, 7, 2048 * 1024)
    a(f"buffer_load_dword v10, v{VG}, s[36:39], 0 offen sc1")
    for ks in range(8):
        for q in range(4):
            a(f"buffer_load_dword v{ZF+4*ks+q}, v{VZ}, s[32:35], s64 offen offset:{q*EP*4} sc1")
        if ks < 7:
            a(f"s_add_u32 s64, s64, {4*EP*4}")
    a(f"v_lshlrev_b32 v{t0}, 4, v1")
    a("s_lshl_b32 s42, s45, 14")
    a("s_add_u32 s43, s42, 8192")
    a(f"s_add_u32 s44, s42, {SSZ - 5*8192}")
    a("s_cmp_eq_u32 s45, 3")
    a("s_cselect_b32 s42, s44, s42")
    a(f"s_add_u32 s44, s43, {SSZ - 5*8192}")
    a("s_cmp_ge_u32 s45, 2")
    a("s_cselect_b32 s43, s44, s43")
    a(f"v_add_u32 v{t1}, s43, v{t0}")
    a(f"v_add_u32 v{t0}, s42, v{t0}")
    for ks in range(8):
        a(f"s_waitcnt vmcnt({4*(7-ks)})")
        acc = vr(ACY, 16)
        a(f"{MF32} {acc}, {vr(ZF+4*ks,4)}, {vr(C_BF+4*ks,4)}, {'0' if ks == 0 else acc}")
    a("v_sub_f32 v11, 1.0, v10")
    a("v_cvt_pk_bf16_f32 v11, v11, v11")
    a("v_and_b32 v11, 0xffff0000, v11")
    a("s_nop 7")
    a("s_nop 1")
    for rg in range(16):
        a(f"v_mul_f32 v{ACY+rg}, v10, v{ACY+rg}")
    stamp(a, opt)
    a("s_barrier")
    for w in range(4):
        for q in range(4):
            a(f"ds_read_b128 {vr(PT+16*w+4*q,4)}, v{t0 if q < 2 else t1} offset:{w*2048 + (q&1)*1024}")
        if w == 2:
            a("s_waitcnt lgkmcnt(4)")
            for rg in range(0, 16, 2):
                a(f"v_pk_add_f32 {vr(PT+rg,2)}, {vr(PT+rg,2)}, {vr(PT+16+rg,2)}")
    a("s_waitcnt lgkmcnt(0)")
    for rg in range(0, 16, 2):
        a(f"v_pk_add_f32 {vr(PT+32+rg,2)}, {vr(PT+32+rg,2)}, {vr(PT+48+rg,2)}")
    for rg in range(0, 16, 2):
        a(f"v_pk_add_f32 {vr(PT+rg,2)}, {vr(PT+rg,2)}, {vr(PT+32+rg,2)}")
    for rg in range(16):
        a(f"v_fmac_f32 v{ACY+rg}, v11, v{PT+rg}")
    for i in range(8):
        a(f"v_cvt_pk_bf16_f32 v{32+i}, v{ACY+2*i}, v{ACY+2*i+1}")
    a(f"buffer_store_dwordx4 v[32:35], v{VO}, s[28:31], 0 offen")
    a(f"buffer_store_dwordx4 v[36:39], v{VO}, s[28:31], 0 offen offset:16")
    stamp(a, opt)
    stamp_flush(a, opt, "C")
    a("s_endpgm")


def compute_prologue(a, opt):
    t0, t1, t2 = 20, 21, 22
    VZ, VO, VG = 23, 24, 25
    a.label("L1_comp")
    a(f"v_and_b32 v{t0}, 15, v1")
    a(f"v_lshlrev_b32 v{t0}, 2, v{t0}")
    a(f"v_add_u32 v{t0}, {FLG}, v{t0}")
    a(f"v_mov_b32 v{t1}, 0")
    a(f"ds_write_b32 v{t0}, v{t1}")
    a("s_waitcnt lgkmcnt(0)")
    a("s_barrier")
    a("s_cmp_lg_u32 s2, 192")
    a("s_cbranch_scc1 L1_noinit")
    a("s_cmp_lg_u32 s45, 0")
    a("s_cbranch_scc1 L1_noinit")
    srd(a, 24, 52, 53, 256)
    srd(a, 36, 18, 19, F_SIZE, F_OFF)
    for i in range(4):
        a(f"v_mov_b32 v{32+i}, 0")
    a(f"v_lshlrev_b32 v{t0}, 4, v1")
    for i in range(4):
        a(f"buffer_store_dwordx4 v[32:35], v{t0}, s[36:39], 0 offen offset:{1024*i} sc1")
    a(f"v_mov_b32 v{t2}, 1")
    a("s_waitcnt vmcnt(0)")
    a("s_mov_b64 exec, 1")
    a(f"buffer_store_dword v{t2}, v{t1}, s[24:27], 0 offen sc1")
    a("s_mov_b64 exec, -1")
    a.label("L1_noinit")
    a("s_and_b32 s42, s45, 1")
    a("s_lshl_b32 s42, s42, 5")
    a("s_add_u32 s42, s42, s54")
    a("s_lshr_b32 s43, s45, 1")
    a("s_lshl_b32 s43, s43, 5")
    a("s_lshl_b32 s44, s55, 6")
    a("s_add_u32 s43, s43, s44")
    a(f"v_bfe_u32 v{t0}, v1, 2, 1")
    a(f"v_lshlrev_b32 v{t0}, 4, v{t0}")
    a(f"v_bfe_u32 v{t1}, v1, 3, 2")
    a(f"v_lshl_add_u32 v{t0}, v{t1}, 2, v{t0}")
    a(f"v_and_b32 v{t1}, 3, v1")
    a(f"v_add3_u32 v{t0}, v{t0}, v{t1}, s43")
    a(f"v_and_b32 v{t1}, 31, v1")
    a("s_lshl_b32 s44, s42, 7")
    a(f"v_lshl_add_u32 v{VG}, v{t1}, 2, s44")
    a(f"v_lshl_add_u32 v{t1}, v{t1}, 6, s42")
    a(f"v_lshrrev_b32 v{t2}, 5, v1")
    a(f"v_lshlrev_b32 v{VO}, 10, v{t1}")
    a(f"v_lshl_add_u32 v{VO}, v{t2}, 5, v{VO}")
    a("s_lshl_b32 s44, s43, 1")
    a(f"v_add_u32 v{VO}, s44, v{VO}")
    a("s_mov_b32 s64, s54")
    a("s_cmp_lt_u32 s55, 4")
    a("s_cbranch_scc1 L1_nomirror")
    a(f"v_sub_u32 v{t0}, 0x200, v{t0}")
    a(f"v_sub_u32 v{t1}, 0x800, v{t1}")
    a(f"v_and_b32 v{t1}, 0x7ff, v{t1}")
    a("s_sub_u32 s64, 32, s54")
    a("s_and_b32 s64, s64, 31")
    a.label("L1_nomirror")
    a(f"v_mul_u32_u24 v{VZ}, {32*EP*4}, v{t2}")
    a(f"v_lshl_add_u32 v{VZ}, v{t0}, 2, v{VZ}")
    a(f"s_mul_i32 s64, s64, {64*EP*4}")
    a(f"v_cvt_f32_u32 v{t1}, v{t1}")
    a(f"v_mul_f32 v{t1}, {f2u(-1.0/2048):#x}, v{t1}")
    a(f"v_cvt_f32_u32 v{t2}, v{t2}")
    a(f"v_mul_f32 v{t2}, {f2u(32.0):#x}, v{t2}")
    a(f"v_mul_f32 v{t2}, v{t1}, v{t2}")
    for hf in range(2):
        for q in range(16):
            a(f"v_fmamk_f32 v{32+q}, v{t1}, {f2u(float(16*hf+q)):#x}, v{t2}")
        for q in range(16):
            a(f"v_fract_f32 v{32+q}, v{32+q}")
        for q in range(16):
            a(f"v_sin_f32 v{48+q}, v{32+q}")
        for q in range(16):
            a(f"v_cos_f32 v{32+q}, v{32+q}")
        a("s_nop 0")
        for q in range(16):
            a(f"v_cvt_pk_bf16_f32 v{C_BF+16*hf+q}, v{32+q}, v{48+q}")
    a("s_cmp_eq_u32 s22, 12")
    a("s_cbranch_scc1 L1C_ffn2g")
    a("s_cmp_gt_u32 s22, 12")
    a("s_cbranch_scc1 L1C_spec")


def kernel(a, opt):
    a.label(NAME + "_kernel")
    a("s_cmp_ge_u32 s2, 256")
    a("s_cbranch_scc1 L_exit")
    if opt.stamps:
        a("v_mov_b32 v255, 0")
        a("v_mov_b32 v253, 0")
        a("s_mov_b32 s89, 0")
        stamp(a, opt)
    a("s_load_dwordx2 s[4:5], s[0:1], 0")
    a("s_load_dwordx4 s[8:11], s[0:1], 24")
    a("s_load_dwordx4 s[12:15], s[0:1], 48")
    a("s_load_dwordx2 s[50:51], s[0:1], 64")
    a("s_load_dwordx2 s[16:17], s[0:1], 72")
    a("s_load_dwordx2 s[6:7], s[0:1], 80")
    a("s_load_dwordx2 s[52:53], s[0:1], 88")
    a("s_load_dwordx2 s[18:19], s[0:1], 96")
    a("v_lshrrev_b32 v2, 6, v0")
    a("v_and_b32 v1, 63, v0")
    a("v_readfirstlane_b32 s20, v2")
    a("s_and_b32 s42, s2, 1")
    a("s_lshl_b32 s42, s42, 3")
    a("s_bfe_u32 s55, s2, 0x30003")
    a("s_add_u32 s21, s42, s55")
    a("s_bfe_u32 s42, s2, 0x20001")
    a("s_lshr_b32 s44, s2, 6")
    a("s_mul_i32 s22, s42, 3")
    a("s_add_u32 s22, s22, s44")
    a("s_add_u32 s42, s42, 12")
    a("s_cmp_eq_u32 s44, 3")
    a("s_cselect_b32 s22, s42, s22")
    a("s_and_b32 s54, s2, 7")
    a("s_lshl_b32 s54, s54, 2")
    a("s_add_u32 s54, s54, s44")
    a("s_lshl_b32 s44, s44, 1")
    a("s_add_u32 s46, s55, s44")
    a("s_and_b32 s56, s46, 7")
    a(f"s_and_b32 s49, s46, {opt.rotmask}")
    a("s_mul_i32 s56, s56, 11")
    a("s_lshr_b32 s56, s56, 2")
    a("s_and_b32 s45, s20, 3")
    a("s_and_b32 s42, s45, 1")
    a("s_lshr_b32 s43, s45, 1")
    a("s_lshl_b32 s43, s43, 5")
    a("s_lshl_b32 s23, s21, 1")
    a("s_add_u32 s23, s23, s42")
    a("s_add_u32 s23, s23, s43")
    a("s_lshl_b32 s48, s45, 12")
    a(f"s_add_u32 s48, s48, {SSZ - 16384}")
    a("s_cmp_ge_u32 s20, 4")
    a("s_cbranch_scc1 L1_compw")
    t0, t1, t2, VX = L_T0, L_T1, L_T2, L_VX
    a(f"v_lshrrev_b32 v{t0}, 3, v1")
    a(f"v_lshlrev_b32 v{t0}, 16, v{t0}")
    a("s_lshl_b32 s44, s23, 10")
    a(f"v_add_u32 v{t0}, s44, v{t0}")
    a(f"v_lshrrev_b32 v{t1}, 4, v1")
    a(f"v_and_b32 v{t2}, 7, v1")
    a(f"v_xor_b32 v{t1}, v{t1}, v{t2}")
    a(f"v_lshl_add_u32 v{VX}, v{t1}, 4, v{t0}")
    a(f"v_xor_b32 v{VX+1}, 64, v{VX}")
    a(f"v_add_u32 v{VX+1}, {8*65536}, v{VX+1}")
    a(f"v_add_u32 v{VX+2}, {16*65536}, v{VX}")
    a(f"v_add_u32 v{VX+3}, {16*65536}, v{VX+1}")
    a("s_lshl_b32 s47, s49, 7")
    a("s_waitcnt lgkmcnt(0)")
    stamp(a, opt)
    srd(a, 24, 4, 5, 2048 * 1024)
    for i in range(4):
        a(f"s_add_u32 m0, s48, {i*1024}")
        a("s_nop 0")
        a(f"buffer_load_dwordx4 v{VX+i}, s[24:27], s47 offen lds")
    a("s_cmp_eq_u32 s22, 12")
    a("s_cbranch_scc1 L1L_ffn2g")
    a("s_cmp_gt_u32 s22, 12")
    a("s_cbranch_scc1 L1L_spec")
    p1_loader(a, opt, "ffn7")
    p1_loader(a, opt, "spec")
    p1_loader(a, opt, "ffn2g")
    p2_worker(a, opt)
    a.label("L1_compw")
    a("s_waitcnt lgkmcnt(0)")
    stamp(a, opt)
    compute_prologue(a, opt)
    p1_compute(a, opt, "ffn7")
    p1_compute(a, opt, "spec")
    p1_compute(a, opt, "ffn2g")
    p2_combine(a, opt)
    a.label("L_exit")
    a("s_endpgm")


def main():
    ap = argparse.ArgumentParser()
    ap.add_argument("-o", default=f"cdna_kernels/{NAME}.s")
    ap.add_argument("--stamps", action="store_true")
    ap.add_argument("--fine", action="store_true")
    ap.add_argument("--dbg", default="")
    ap.add_argument("--q", type=int, default=8)
    ap.add_argument("--rotmask", type=int, default=7)
    ap.add_argument("--hr", type=int, default=8)
    ap.add_argument("--psleep", type=int, default=0)
    ap.add_argument("--pad", type=int, default=-1)
    ap.add_argument("--padrole", default="C")
    opt = ap.parse_args()
    hdr = open(f"cdna_kernels/{NAME}.s.ref").read().split("; Override launch")[0]
    out = hdr
    out += f"; @launch grid=(256,1,1) block=(512,1,1) lds={LDS_SIZE}\n"
    out += '.amdgcn_target "amdgcn-amd-amdhsa--gfx950"\n.text\n'
    a = Asm()
    kernel(a, opt)
    nm = NAME + "_kernel"
    out += f".globl {nm}\n.p2align 8\n.type {nm},@function\n" + a.text()
    out += f""".section .rodata,"a"
.p2align 6
.amdhsa_kernel {nm}
  .amdhsa_next_free_vgpr 256
  .amdhsa_next_free_sgpr 102
  .amdhsa_accum_offset 256
  .amdhsa_group_segment_fixed_size 0
  .amdhsa_kernarg_size 104
  .amdhsa_user_sgpr_count 2
  .amdhsa_user_sgpr_kernarg_segment_ptr 1
  .amdhsa_system_sgpr_workgroup_id_x 1
.end_amdhsa_kernel
"""
    open(opt.o, "w").write(out)


if __name__ == "__main__":
    main()
```

```python
import struct, sys, argparse

NAME = "gated_mix__spectral_fnet__geglu_ffn__prompt"
H_OFF = 0
H_SIZE = 64 * 86 * 1024
Z_OFF = 0x600000
EP = 264
ZR_B = 16 * EP * 16
Z_SIZE = 32 * ZR_B
G_OFF = 0x900000
G_SIZE = 2048 * 4
F_OFF = 0x980000
F_SIZE = 32768
T_OFF = 0xA00000
MF16 = "v_mfma_f32_16x16x32_bf16"
MF32 = "v_mfma_f32_32x32x16_bf16"


def f2u(f):
    return struct.unpack("<I", struct.pack("<f", f))[0]


class Asm:
    def __init__(self):
        self.l = []
        self.ds = []
        self.vm = []
        self.n = 0

    def __call__(self, s):
        self.l.append("    " + s)
        self.n += 1

    def label(self, s):
        self.l.append(s + ":")

    def dsop(self, s, tag):
        self(s)
        self.ds.append(tag)

    def dswait(self, tag):
        idx = max(i for i, t in enumerate(self.ds) if t == tag)
        n = len(self.ds) - 1 - idx
        assert n <= 15, n
        self(f"s_waitcnt lgkmcnt({n})")

    def vmop(self, s, tag):
        self(s)
        self.vm.append(tag)

    def vmwait(self, tag):
        idx = max(i for i, t in enumerate(self.vm) if t == tag)
        n = len(self.vm) - 1 - idx
        assert n <= 63, n
        self(f"s_waitcnt vmcnt({n})")

    def text(self):
        return "\n".join(self.l) + "\n"


def vr(b, n):
    return f"v[{b}:{b+n-1}]"


def srd(a, d, lo, hi, size, add=0):
    if add:
        a(f"s_add_u32 s{d}, s{lo}, {add:#x}")
        a(f"s_addc_u32 s{d+1}, s{hi}, 0")
    else:
        a(f"s_mov_b32 s{d}, s{lo}")
        a(f"s_mov_b32 s{d+1}, s{hi}")
    a(f"s_mov_b32 s{d+2}, {size:#x}")
    a(f"s_mov_b32 s{d+3}, 0x20000")


def stamp(a, opt):
    if not opt.stamps:
        return
    a("s_memrealtime s[90:91]")
    a("s_memtime s[86:87]")
    a("s_mov_b32 s88, m0")
    a("s_waitcnt lgkmcnt(0)")
    a("s_mov_b32 m0, s89")
    a("s_add_u32 s89, s89, 1")
    a("v_writelane_b32 v255, s90, m0")
    a("v_writelane_b32 v253, s86, m0")
    a("s_mov_b32 m0, s88")


def stamp_flush(a, opt, role):
    if not opt.stamps:
        return
    if opt.pad >= 0:
        if role == opt.padrole:
            a("s_nop 4")
            a(f"v_readlane_b32 s92, v255, {opt.pad}")
            a("s_nop 4")
            a("s_add_u32 s92, s92, 4000")
            a.label("Lpad")
            a("s_memrealtime s[90:91]")
            a("s_waitcnt lgkmcnt(0)")
            a("s_sub_u32 s93, s92, s90")
            a("s_cmp_gt_i32 s93, 0")
            a("s_cbranch_scc1 Lpad")
        return
    a("s_waitcnt vmcnt(0)")
    stamp(a, opt)
    srd(a, 92, 18, 19, 0x200000, T_OFF)
    a("s_lshl_b32 s96, s2, 3")
    a("s_add_u32 s96, s96, s20")
    a("s_lshl_b32 s96, s96, 8")
    a("v_lshlrev_b32 v254, 2, v1")
    a("buffer_store_dword v255, v254, s[92:95], s96 offen")
    a("s_add_u32 s96, s96, 0x100000")
    a("buffer_store_dword v253, v254, s[92:95], s96 offen")


C1 = -2.0 * 0.7978845608028654 * 1.4426950408889634
C2 = C1 * 0.044715
NB = 3
SSZ = 49152
FLG = 78 * 2048
RH = FLG + 256
GW_LDS = FLG + 512
LDS_SIZE = 163840
assert GW_LDS + 2048 <= LDS_SIZE
K_FFN, K_SPEC, K_6G, K_IDLE, K_S4G = 0, 1, 2, 4, 3

L_VD, L_VX, L_T0, L_T1, L_T2, L_VF, L_VA = 2, 10, 16, 17, 18, 20, 21


FSLEEP = 0


def free_wait(a, lab, val):
    if FSLEEP:
        a(f"s_branch {lab}_c")
    a.label(lab)
    if FSLEEP:
        a(f"s_sleep {FSLEEP}")
        a.label(lab + "_c")
    a(f"ds_read_b32 v{L_T0}, v{L_VA}")
    a("s_waitcnt lgkmcnt(0)")
    a(f"v_cmp_ge_u32 vcc, {val}, v{L_T0}")
    a(f"s_cbranch_vccnz {lab}")


def p1_loader(a, opt):
    VD, VX, t0 = L_VD, L_VX, L_T0
    Q = opt.q
    a.label("L1L_loop")
    a("s_lshl_b32 s47, s49, 7")
    a("s_add_u32 m0, s48, s67")
    a("s_mul_i32 s40, s49, s44")
    n = 0

    def after():
        nonlocal n
        n += 1
        if n == Q:
            a("s_cmp_eq_u32 s66, 0")
            a("s_cbranch_scc1 L1L_nobar")
            a(f"s_waitcnt vmcnt({Q})")
            if opt.fine:
                stamp(a, opt)
            a("s_barrier")
            a.label("L1L_nobar")

    for i in range(4):
        a(f"buffer_load_dwordx4 v{VX+i}, s[24:27], s47 offen lds")
        if i < 3:
            a("s_add_u32 m0, m0, 1024")
            a("s_nop 0")
        else:
            a("s_add_u32 m0, s41, s67")
            a("s_lshl_b32 s40, s40, 3")
        after()
    for u in range(8):
        a(f"buffer_load_dwordx4 v{VD+(u&1)}, s[28:31], s40 offen lds")
        if u < 7:
            a("s_add_u32 m0, m0, 2048")
            a("s_add_u32 s40, s40, s44")
        after()
    a("s_cmp_eq_u32 s66, s80")
    a("s_cbranch_scc0 L1L_next")
    srd(a, 36, 16, 17, 1024)
    a(f"s_mov_b32 m0, {GW_LDS}")
    a(f"v_lshlrev_b32 v{t0}, 4, v1")
    a(f"buffer_load_dwordx4 v{t0}, s[36:39], 0 offen lds")
    srd(a, 36, 8, 9, 1024, 256 * 1024)
    a(f"s_mov_b32 m0, {GW_LDS+1024}")
    a("s_nop 0")
    a(f"buffer_load_dwordx4 v{t0}, s[36:39], 0 offen lds")
    a.label("L1L_next")
    a("s_cmp_eq_u32 s66, s81")
    a("s_cbranch_scc0 L1L_next2")
    a("buffer_load_dword v14, v15, s[68:71], 0 offen sc1")
    a.label("L1L_next2")
    a("s_add_u32 s49, s49, 1")
    a("s_and_b32 s49, s49, 7")
    a(f"s_add_u32 s67, s67, {SSZ}")
    a(f"s_cmp_eq_u32 s67, {3*SSZ}")
    a("s_cselect_b32 s67, 0, s67")
    a("s_add_u32 s66, s66, 1")
    a("s_cmp_lt_u32 s66, 8")
    a("s_cbranch_scc1 L1L_loop")


def p2_worker(a, opt):
    HR = opt.hr
    LA = opt.la
    t0, t1, t2 = L_T0, L_T1, L_T2
    VW0, VW1 = 2, 3
    VH0, VH1 = 4, 5
    VRH = 7
    VRB = 22
    WF, ACB, HF = 32, 64, 128
    WR = 4
    assert HF + 8 * HR <= 252 and LA < HR
    a.vm, a.ds = [], []
    a.label("L2W")
    srd(a, 28, 50, 51, 1376 * 1024)
    a(f"v_bfe_u32 v{t0}, v1, 4, 1")
    a(f"v_lshlrev_b32 v{t0}, 2, v{t0}")
    a(f"v_and_b32 v{t1}, 7, v1")
    a(f"v_xor_b32 v{t0}, v{t0}, v{t1}")
    a(f"v_lshrrev_b32 v{t1}, 3, v1")
    a(f"v_lshlrev_b32 v{t1}, 10, v{t1}")
    a(f"v_lshl_add_u32 v{VW0}, v{t0}, 4, v{t1}")
    a("s_lshl_b32 s42, s55, 7")
    a("s_lshl_b32 s43, s45, 14")
    a("s_add_u32 s42, s42, s43")
    a(f"v_add_u32 v{VW0}, s42, v{VW0}")
    a(f"v_add_u32 v{VW1}, 0x2000, v{VW0}")
    a("s_lshl_b32 s59, s45, 11")
    a("s_cmp_lt_u32 s45, 2")
    a("s_cselect_b32 s57, 22, 21")
    rows = [18, 18] + list(range(12, 18)) + [18] + list(range(0, 12)) + [19]
    NI = 22
    assert len(rows) == NI

    def tau(b, dst):
        a(f"s_add_u32 s{dst}, s56, {b}")
        a(f"s_sub_u32 s43, s{dst}, s57")
        a(f"s_cselect_b32 s{dst}, s{dst}, s43")

    def wload(i):
        tau(i, 40)
        a(f"s_add_u32 m0, s59, {rows[i]*8192}")
        a("s_lshl_b32 s40, s40, 16")
        a.vmop(f"buffer_load_dwordx4 v{VW0}, s[28:31], s40 offen lds", ("w", i))
        a("s_add_u32 m0, m0, 1024")
        a("s_nop 0")
        a.vmop(f"buffer_load_dwordx4 v{VW1}, s[28:31], s40 offen lds", ("w", i))

    def wreads(i):
        f = WF + 8 * (i % WR)
        b = VRB + 2 * (rows[i] // 8)
        o = (rows[i] % 8) * 8192
        for ln in range(2):
            a.dsop(f"ds_read_b64_tr_b16 {vr(f+4*ln,2)}, v{b+ln} offset:{o}", ("r", i))
            a.dsop(f"ds_read_b64_tr_b16 {vr(f+4*ln+2,2)}, v{b+ln} offset:{o+512}", ("r", i))

    a(f"s_cmp_eq_u32 s46, {K_IDLE}")
    a("s_cselect_b32 s83, 1, 0")
    wload(0)
    for i in range(2, 2 + opt.nb):
        wload(i)
    a(f"v_lshrrev_b32 v{t2}, 5, v1")
    a(f"v_bfe_u32 v{t0}, v1, 2, 2")
    a(f"v_lshl_add_u32 v{t0}, v{t2}, 3, v{t0}")
    a(f"v_lshlrev_b32 v{t0}, 7, v{t0}")
    a(f"v_bfe_u32 v{t1}, v1, 1, 1")
    a(f"v_lshl_add_u32 v{t0}, v{t1}, 3, v{t0}")
    a(f"v_and_b32 v{t1}, 1, v1")
    a(f"v_lshl_add_u32 v{t0}, v{t1}, 5, v{t0}")
    a(f"v_bfe_u32 v{t1}, v1, 4, 1")
    a(f"v_lshl_add_u32 v{t0}, v{t1}, 4, v{t0}")
    a(f"v_bfe_u32 v{t1}, v1, 3, 1")
    a(f"v_lshl_add_u32 v{t0}, v{t1}, 6, v{t0}")
    a(f"v_add_u32 v{VRB}, s59, v{t0}")
    a(f"v_xor_b32 v{VRB+1}, 64, v{VRB}")
    for k in (1, 2):
        a(f"v_add_u32 v{VRB+2*k}, {k*65536}, v{VRB}")
        a(f"v_add_u32 v{VRB+2*k+1}, {k*65536}, v{VRB+1}")
    a(f"v_lshlrev_b32 v{t0}, 4, v1")
    a(f"s_mul_i32 s42, s54, {86*1024}")
    a("s_lshl_b32 s43, s45, 10")
    a("s_add_u32 s42, s42, s43")
    a(f"v_add_u32 v{VH0}, s42, v{t0}")
    a(f"v_add_u32 v{VH1}, {32*86*1024}, v{VH0}")
    srd(a, 32, 18, 19, H_SIZE, H_OFF)
    a(f"v_add_u32 v{t0}, s56, v1")
    a(f"v_subrev_u32 v{t1}, s57, v{t0}")
    a(f"v_min_u32 v{t0}, v{t0}, v{t1}")
    a(f"v_lshrrev_b32 v{t0}, 1, v{t0}")
    a(f"v_min_u32 v{t0}, 10, v{t0}")
    a(f"v_lshlrev_b32 v{t0}, 2, v{t0}")
    a(f"v_add_u32 v{VRH}, {RH}, v{t0}")
    a("s_mov_b32 s60, 0")
    a.vmwait(("w", 0))
    a("s_or_b32 s42, s45, s83")
    a("s_cbranch_scc1 L2W_gook")
    a("v_cmp_eq_u32 vcc, 32, v14")
    a("s_cbranch_vccnz L2W_gook")
    a.label("L2W_go")
    a("buffer_load_dword v14, v15, s[68:71], 0 offen sc1")
    a("s_waitcnt vmcnt(0)")
    a("v_cmp_ne_u32 vcc, 32, v14")
    a("s_cbranch_vccnz L2W_go")
    a.label("L2W_gook")
    wreads(0)
    stamp(a, opt)
    a("s_cmp_lg_u32 s83, 0")
    a("s_cbranch_scc1 L2W_nob6")
    a("s_barrier")
    a.label("L2W_nob6")
    a("s_waitcnt lgkmcnt(0)")
    wload(1)
    for i in range(2 + opt.nb, 8):
        wload(i)
    for i in range(9, 9 + opt.nc):
        wload(i)
    a("s_cmp_lg_u32 s83, 0")
    a("s_cbranch_scc1 L2W_nob7")
    a("s_barrier")
    a("s_bitcmp1_b32 s46, 0")
    a("s_cbranch_scc0 L2W_nob7")
    a("s_barrier")
    a("s_barrier")
    a.label("L2W_nob7")
    a.vmwait(("w", 1))
    wreads(1)
    a("s_waitcnt lgkmcnt(0)")
    for i in [8] + list(range(9 + opt.nc, 21)):
        wload(i)
        if opt.thr2:
            a("s_cmp_lg_u32 s83, 0")
            a(f"s_cbranch_scc1 L2W_nt{i}")
            a(f"s_waitcnt vmcnt({opt.thr2})")
            a.label(f"L2W_nt{i}")
    a("s_cmp_ge_u32 s45, 2")
    a("s_cbranch_scc1 L2W_no19")
    wload(21)
    a.label("L2W_no19")
    a(f"s_cmp_lg_u32 s46, {K_IDLE}")
    a("s_cbranch_scc1 L2W_nopf")
    a("s_sub_u32 s42, s55, 4")
    a("s_lshl_b32 s42, s42, 2")
    a("s_add_u32 s42, s42, s45")
    if opt.xrot:
        a("s_lshl_b32 s43, s2, 1")
        a("s_add_u32 s42, s42, s43")
        a("s_and_b32 s42, s42, 15")
    a(f"s_mul_i32 s42, s42, {96*1024}")
    a(f"v_lshrrev_b32 v{t0}, 1, v1")
    a(f"v_lshlrev_b32 v{t0}, 10, v{t0}")
    a(f"v_and_b32 v{t1}, 1, v1")
    a(f"v_lshl_add_u32 v{t0}, v{t1}, 7, v{t0}")
    for k in range(3):
        for c in range(opt.tcb):
            a(f"buffer_load_dword v250, v{t0}, s[28:31], s42 offen offset:{256*c}")
        a("s_add_u32 s42, s42, 0x8000")
    a.label("L2W_nopf")
    stamp(a, opt)
    a.vm = []

    def issue(i):
        h = HF + 8 * (i % HR)
        lab = f"L2W_i{i}"
        a(f"s_bitcmp1_b32 s60, {i}")
        a(f"s_cbranch_scc1 {lab}_ok")
        a.label(f"{lab}_spin")
        a(f"ds_read2_b32 {vr(t0,2)}, v{VRH} offset0:0 offset1:16")
        a("s_waitcnt lgkmcnt(0)")
        a(f"v_and_b32 v{t0}, v{t0}, v{t1}")
        a(f"v_cmp_eq_u32 vcc, 1, v{t0}")
        a("s_mov_b32 s60, vcc_lo")
        a(f"s_bitcmp1_b32 s60, {i}")
        a(f"s_cbranch_scc0 {lab}_spin")
        a.label(f"{lab}_ok")
        tau(i, 40)
        a("s_lshl_b32 s40, s40, 12")
        a.vmop(f"buffer_load_dwordx4 {vr(h,4)}, v{VH0}, s[32:35], s40 offen sc1", ("h", i))
        a.vmop(f"buffer_load_dwordx4 {vr(h+4,4)}, v{VH1}, s[32:35], s40 offen sc1", ("h", i))

    a("s_waitcnt vmcnt(0)")
    wreads(2)
    for i in range(LA):
        issue(i)
        if i == 0:
            stamp(a, opt)
    for i in range(NI):
        if i + LA < NI:
            issue(i + LA)
        if i + 3 < NI:
            wreads(i + 3)
        a.vmwait(("h", i))
        if i == 0:
            stamp(a, opt)
        if i >= 2:
            a.dswait(("r", i))
        f = WF + 8 * (i % WR)
        h = HF + 8 * (i % HR)
        if i == 21:
            a("s_cmp_ge_u32 s45, 2")
            a("s_cbranch_scc1 L2W_skip")
        for L in range(4):
            lt, ln = L & 1, L >> 1
            acc = vr(ACB + 16 * L, 16)
            a(f"{MF32} {acc}, {vr(f+4*ln,4)}, {vr(h+4*lt,4)}, {'0' if i == 0 else acc}")
        if i == 21:
            a.label("L2W_skip")
        if opt.fine2 and i % 4 == 3:
            stamp(a, opt)
    stamp(a, opt)
    a(f"v_lshlrev_b32 v{t0}, 4, v1")
    a(f"v_add_u32 v{t0}, s59, v{t0}")
    a("s_nop 7")
    a("s_nop 1")
    for L in range(4):
        for q in range(4):
            p = 4 * L + q
            a(f"ds_write_b128 v{t0}, {vr(ACB+16*L+4*q,4)} offset:{(p>>1)*8192 + (p&1)*1024}")
    a("s_waitcnt lgkmcnt(0)")
    a("s_barrier")
    stamp_flush(a, opt, "L")
    a("s_endpgm")


C_VA, C_VX, C_VFL, C_VFW, C_VST, C_VGW, C_VFD = 2, 10, 12, 13, 14, 15, 19
C_T0, C_T1, C_T2 = 20, 21, 22
C_K1, C_K2 = 24, 26
C_WF, C_XF, C_ACC, C_TT, C_CF, C_SF = 32, 64, 96, 224, 236, 244


def dft32_consts(a):
    t0, t1, t2 = C_T0, C_T1, C_T2
    tc, ts = 96, 112
    a(f"v_and_b32 v{t0}, 15, v1")
    a(f"v_cvt_f32_u32 v{t0}, v{t0}")
    a(f"v_mul_f32 v{t0}, {f2u(1.0/32):#x}, v{t0}")
    a(f"v_lshrrev_b32 v{t1}, 4, v1")
    a(f"v_cvt_f32_u32 v{t1}, v{t1}")
    a(f"v_mul_f32 v{t1}, 4.0, v{t1}")
    for rho in range(2):
        if rho:
            a(f"v_add_f32 v{t0}, 0.5, v{t0}")
        a(f"v_mul_f32 v{t2}, v{t0}, v{t1}")
        for sg in range(8):
            s1c = 16 * (sg >> 2) + (sg & 3)
            a(f"v_fmamk_f32 v{tc+8*rho+sg}, v{t0}, {f2u(float(s1c)):#x}, v{t2}")
    for i in range(16):
        a(f"v_fract_f32 v{tc+i}, v{tc+i}")
    for i in range(16):
        a(f"v_sin_f32 v{ts+i}, v{tc+i}")
    for i in range(16):
        a(f"v_cos_f32 v{tc+i}, v{tc+i}")
    a("s_nop 0")
    for i in range(8):
        a(f"v_cvt_pk_bf16_f32 v{C_CF+i}, v{tc+2*i}, v{tc+2*i+1}")
        a(f"v_cvt_pk_bf16_f32 v{C_SF+i}, v{ts+2*i}, v{ts+2*i+1}")


def ffn_epi(p):
    A, TT = C_ACC + 16 * p, C_TT
    r = []
    for v in range(0, 8, 2):
        r.append(f"v_pk_mul_f32 {vr(TT+v,2)}, {vr(A+v,2)}, {vr(A+v,2)}")
    for v in range(0, 8, 2):
        r.append(f"v_pk_fma_f32 {vr(TT+v,2)}, {vr(TT+v,2)}, {vr(C_K2,2)}, {vr(C_K1,2)}")
    for v in range(0, 8, 2):
        r.append(f"v_pk_mul_f32 {vr(TT+v,2)}, {vr(TT+v,2)}, {vr(A+v,2)}")
    for v in range(8):
        r.append(f"v_exp_f32 v{TT+v}, v{TT+v}")
    for v in range(0, 8, 2):
        r.append(f"v_pk_mul_f32 {vr(A+8+v,2)}, {vr(A+v,2)}, {vr(A+8+v,2)}")
    for v in range(0, 8, 2):
        r.append(f"v_pk_add_f32 {vr(TT+v,2)}, {vr(TT+v,2)}, 1.0 op_sel_hi:[1,0]")
    for v in range(8):
        r.append(f"v_rcp_f32 v{TT+v}, v{TT+v}")
    for v in range(0, 8, 2):
        r.append(f"v_pk_mul_f32 {vr(A+8+v,2)}, {vr(A+8+v,2)}, {vr(TT+v,2)}")
    for i in (0, 2, 1, 3):
        r.append(f"v_cvt_pk_bf16_f32 v{A+i}, v{A+8+2*i}, v{A+8+2*i+1}")
    r.append(f"v_permlane16_swap_b32 v{A}, v{A+2}")
    r.append("s_nop 0")
    r.append(f"v_permlane16_swap_b32 v{A+1}, v{A+3}")
    so = "s42" if p < 4 else "s43"
    r.append(f"buffer_store_dwordx4 {vr(A,4)}, v{C_VST}, s[32:35], {so} offen offset:{(p%4)*1024} sc1")
    return r


def spec_epi(p):
    A, TT = C_ACC + 16 * p, (C_TT if p & 1 else C_XF + 16)
    r = []
    for i in range(8):
        r.append(f"v_cvt_pk_bf16_f32 v{TT+i}, v{A+2*i}, v{A+2*i+1}")
    for i in range(4):
        r.append(f"v_cvt_pk_bf16_f32 v{TT+8+i}, -v{A+8+2*i}, -v{A+8+2*i+1}")
    pa, pb, pn = vr(TT, 4), vr(TT + 4, 4), vr(TT + 8, 4)
    for rho in range(2):
        zr = vr(A + 4 * rho, 4)
        r.append(f"{MF16} {zr}, {vr(C_CF+4*rho,4)}, {pa}, 0")
        r.append(f"{MF16} {zr}, {vr(C_SF+4*rho,4)}, {pb}, {zr}")
    for rho in range(2):
        zm = vr(A + 8 + 4 * rho, 4)
        r.append(f"{MF16} {zm}, {vr(C_SF+4*rho,4)}, {pa}, 0")
        r.append(f"{MF16} {zm}, {vr(C_CF+4*rho,4)}, {pn}, {zm}")
    return r


def spec_pack(p):
    A = C_ACC + 16 * p
    r = [f"v_cvt_pk_bf16_f32 v{A+rg}, v{A+rg}, v{A+8+rg}" for rg in range(8)]
    r += [f"ds_write_b128 v{C_T0}, {vr(A+4*rho,4)} offset:{(2*p+rho)*4096}" for rho in range(2)]
    return r


def p1_compute(a, opt, kind):
    T = {"ffn6": 6, "spec6": 6, "spec4g": 4, "ffn8": 8}[kind]
    hasg = kind == "spec4g"
    lab_kind = kind
    kind = "spec" if kind.startswith("spec") else kind
    a.ds = []
    VA, VX, VFL, VFW, VST, VGW, VFD = C_VA, C_VX, C_VFL, C_VFW, C_VST, C_VGW, C_VFD
    t0, t1, t2 = C_T0, C_T1, C_T2
    WF, XF, ACC = C_WF, C_XF, C_ACC
    GACC = ACC + 96
    a.label(f"L1C_{lab_kind}")
    if kind == "spec":
        a(f"v_lshrrev_b32 v{t1}, 4, v1")
        a(f"v_mul_u32_u24 v{t1}, {4*ZR_B}, v{t1}")
        a(f"v_and_b32 v{t0}, 15, v1")
        a(f"v_lshl_add_u32 v{VST}, v{t0}, 4, v{t1}")
        if hasg:
            a(f"v_lshrrev_b32 v{t0}, 4, v1")
            a(f"v_lshlrev_b32 v{t0}, 4, v{t0}")
            a(f"v_and_b32 v{t1}, 1, v1")
            a(f"v_lshl_add_u32 v{t0}, v{t1}, 10, v{t0}")
            a(f"v_add_u32 v{t2}, {GW_LDS}, v{t0}")
        srd(a, 32, 18, 19, Z_SIZE, Z_OFF)
        a("s_mul_i32 s42, s22, 96")
        a(f"s_mul_i32 s43, s21, {EP}")
        a("s_add_u32 s42, s42, s43")
        a("s_lshr_b32 s43, s45, 1")
        a("s_lshl_b32 s43, s43, 4")
        a("s_add_u32 s42, s42, s43")
        a("s_lshl_b32 s42, s42, 4")
        a("s_and_b32 s43, s45, 1")
        a(f"s_mul_i32 s43, s43, {16*ZR_B}")
        a("s_add_u32 s42, s42, s43")
    else:
        for i in range(2):
            a(f"v_mov_b32 v{C_K1+i}, {f2u(C1):#x}")
            a(f"v_mov_b32 v{C_K2+i}, {f2u(C2):#x}")
        a(f"v_lshlrev_b32 v{VST}, 4, v1")
        srd(a, 32, 18, 19, H_SIZE, H_OFF)
        a("s_mul_i32 s42, s23, 86")
        a("s_lshl_b32 s43, s22, 3")
        a("s_add_u32 s42, s42, s43")
        a("s_lshl_b32 s42, s42, 10")
        a("s_add_u32 s43, s42, 4096")
    stamp(a, opt)

    G = 2 * T
    units = []
    tail = 0 if kind == "spec" else opt.tail
    for s in range(8 - (2 if tail == 2 else 0)):
        if hasg:
            units.append((s, G))
        units += [(s, u) for u in range(2 * T)]
    if tail == 2:
        for p in range(T):
            if p == 0 and kind == "ffn6g":
                units.append((6, G))
            units += [(6, 2 * p), (6, 2 * p + 1)]
            if p == 0 and kind == "ffn6g":
                units.append((7, G))
            units += [(7, 2 * p), (7, 2 * p + 1)]
    N = len(units)
    first = {}
    last = {}
    for n, (s, u) in enumerate(units):
        first.setdefault(s, n)
        last[s] = n
    LA = 2

    def delta(s):
        return SSZ if (s % NB) < 2 else -2 * SSZ

    def unit_reads(n):
        s, u = units[n]
        f = WF + 8 * (n % 4)
        if u == G:
            return [f"ds_read_b128 {vr(f,4)}, v{VGW}", f"ds_read_b128 {vr(f+4,4)}, v{VGW} offset:64"]
        p, m = u >> 1, u & 1
        r = []
        for ks in range(2):
            off = m * 16384 + ks * 8192
            r.append(f"ds_read_b64_tr_b16 {vr(f+4*ks,2)}, v{VA+p} offset:{off}")
            r.append(f"ds_read_b64_tr_b16 {vr(f+4*ks+2,2)}, v{VA+p} offset:{off+1024}")
        return r[:1] if opt.noreads else r

    def upd(reg, s):
        d = delta(s)
        return f"v_add_u32 v{reg}, {d}, v{reg}" if d > 0 else f"v_subrev_u32 v{reg}, {-d}, v{reg}"

    def side_ops(n):
        s, u = units[n]
        ops = []
        if first[s] == n:
            xb = XF + 16 * (s & 1)
            if hasg:
                ops.append(("s_lshl_b32 s44, s49, 7", None))
                ops.append((f"v_add_u32 v{VGW}, s44, v{t2}", None))
            for rt in range(2):
                for ks in range(2):
                    ops.append((f"ds_read_b128 {vr(xb+8*rt+4*ks,4)}, v{VX+ks} offset:{rt*2048}", ("x", s)))
        ops += [(r, ("u", n)) for r in unit_reads(n)]
        if first[s] == n:
            if s < 7:
                ops += [(upd(VX + ks, s), None) for ks in range(2)]
            if hasg:
                ops.append(("s_add_u32 s49, s49, 1", None))
                ops.append(("s_and_b32 s49, s49, 7", None))
        if u != G and (u & 1) and s < 7:
            ops.append((upd(VA + (u >> 1), s), None))

        return ops

    def emit(op):
        if op[1] is None:
            a(op[0])
        else:
            a.dsop(op[0], op[1])

    epi = spec_epi if kind == "spec" else ffn_epi
    fill = []
    a("s_barrier")
    stamp(a, opt)
    for n in range(LA):
        for op in side_ops(n):
            emit(op)
    pend = []
    for n in range(N):
        s, u = units[n]
        boundary = (n + LA < N and first[units[n + LA][0]] == n + LA) or n + LA == N
        if n + LA < N:
            pend += side_ops(n + LA)
        a.dswait(("u", n))
        f = WF + 8 * (n % 4)
        xb = XF + 16 * (s & 1)
        nxt_boundary = n >= 1 and first[units[min(n + 1, N - 1)][0]] == n + 1
        for j in range(4):
            rt, ks = j >> 1, j & 1
            if u == G:
                acc = vr(GACC + 4 * rt, 4)
            else:
                acc = vr(ACC + 16 * (u >> 1) + 8 * (u & 1) + 4 * rt, 4)
            w_, x_ = vr(f + 4 * ks, 4), vr(xb + 8 * rt + 4 * ks, 4)
            srcc = "0" if (s == 0 and ks == 0) else acc
            if kind == "spec" or u == G:
                a(f"{MF16} {acc}, {x_}, {w_}, {srcc}")
            else:
                a(f"{MF16} {acc}, {w_}, {x_}, {srcc}")
            if boundary:
                if j == opt.bpos:
                    a("s_waitcnt lgkmcnt(0)")
                    a("s_barrier")
                    if opt.fine:
                        stamp(a, opt)
                cnt = 2 if j >= opt.bpos else 0
            else:
                cnt = -(-len(pend) // (4 - j))
            for _ in range(min(cnt, len(pend))):
                emit(pend.pop(0))
            k = 0
            while fill and k < opt.fpg and fill[0][0] <= a.n:
                a(fill.pop(0)[1])
                k += 1
        if tail and s == 7 and u != G and (u & 1):
            at = a.n + 9
            fill += [(at, i) for i in epi(u >> 1)]
    assert not pend
    stamp(a, opt)
    if tail:
        while fill:
            at, ins = fill.pop(0)
            if at > a.n:
                a(f"s_nop {min(at - a.n - 1, 15)}")
                a.n = at
            a(ins)
    else:
        a("s_nop 7")
        if kind != "spec":
            for p in range(T):
                for ins in epi(p):
                    a(ins)
        else:
            a(f"v_lshlrev_b32 v{t1}, 4, v1")
            a("s_lshl_b32 s43, s45, 10")
            a(f"s_add_u32 s43, s43, {SSZ}")
            a(f"v_add_u32 v{t0}, s43, v{t1}")
            a("s_lshl_b32 s43, s45, 12")
            a(f"s_add_u32 s43, s43, {SSZ}")
            a(f"v_add_u32 v{t1}, s43, v{t1}")
            if hasg:
                A, TT, ZR = GACC, C_TT, GACC + 8
                for i in range(4):
                    a(f"v_cvt_pk_bf16_f32 v{TT+i}, v{A+2*i}, v{A+2*i+1}")
                srd(a, 36, 18, 19, G_SIZE, G_OFF)
                for rho in range(2):
                    a(f"{MF16} {vr(ZR+4*rho,4)}, {vr(C_CF+4*rho,4)}, {vr(TT,4)}, 0")
                    a(f"{MF16} {vr(ZR+8+4*rho,4)}, {vr(C_SF+4*rho,4)}, {vr(TT,4)}, 0")
                for i in range(4):
                    a(f"v_lshlrev_b32 v{A+2*i}, 16, v{TT+i}")
                    a(f"v_and_b32 v{A+2*i+1}, 0xffff0000, v{TT+i}")
                for i in range(8):
                    a(f"v_mul_f32 v{A+i}, {f2u(-1.4426950408889634):#x}, v{A+i}")
                for i in range(8):
                    a(f"v_exp_f32 v{A+i}, v{A+i}")
                for i in range(8):
                    a(f"v_add_f32 v{A+i}, 1.0, v{A+i}")
                for i in range(8):
                    a(f"v_rcp_f32 v{A+i}, v{A+i}")
                for rg in range(8):
                    a(f"v_cvt_pk_bf16_f32 v{ZR+rg}, v{ZR+rg}, v{ZR+8+rg}")
                for rho in range(2):
                    a(f"ds_write_b128 v{t0}, {vr(ZR+4*rho,4)} offset:{(2*T+rho)*4096}")
                for i in range(4):
                    a(f"v_cvt_pk_bf16_f32 v{TT+i}, v{A+2*i}, v{A+2*i+1}")
                for i in range(4):
                    a(f"v_lshlrev_b32 v{A+2*i}, 16, v{TT+i}")
                    a(f"v_and_b32 v{A+2*i+1}, 0xffff0000, v{TT+i}")
                a("s_lshl_b32 s43, s23, 7")
                a("s_mov_b32 exec_lo, 0x00010001")
                a("s_mov_b32 exec_hi, 0x00010001")
                a(f"buffer_store_dwordx4 {vr(A,4)}, v1, s[36:39], s43 offen sc1")
                a(f"buffer_store_dwordx4 {vr(A+4,4)}, v1, s[36:39], s43 offen offset:64 sc1")
                a("s_mov_b64 exec, -1")
            for p in range(T + 1):
                if p < T:
                    for ins in epi(p):
                        a(ins)
                else:
                    a("s_nop 7")
                if p > 0:
                    for ins in spec_pack(p - 1):
                        a(ins)
            a("s_waitcnt lgkmcnt(0)")
            a("s_barrier")
            NG = T // 2 + (1 if hasg else 0)
            for k in range(NG):
                for w in range(4):
                    a(f"ds_read_b128 {vr(WF+16*k+4*w,4)}, v{t1} offset:{k*16384 + w*1024}")
            for k in range(NG):
                R = WF + 16 * k
                a(f"s_waitcnt lgkmcnt({4*(NG-1-k)})")
                for i in range(4):
                    for j in range(i + 1, 4):
                        a(f"v_swap_b32 v{R+4*i+j}, v{R+4*j+i}")
                off = 512 * k
                if hasg and k == NG - 1:
                    a("s_cmp_ge_u32 s45, 2")
                    a("s_cbranch_scc1 L1C_no256")
                    a("s_mov_b32 exec_lo, 0x00020002")
                    a("s_mov_b32 exec_hi, 0x00020002")
                    off -= 16
                for b in range(4):
                    a(f"s_add_u32 s43, s42, {b*ZR_B}")
                    a(f"buffer_store_dwordx4 {vr(R+4*b,4)}, v{VST}, s[32:35], s43 offen offset:{off} sc1")
            if hasg:
                a("s_mov_b64 exec, -1")
                a.label("L1C_no256")
            a("s_barrier")

    stamp(a, opt)
    a("s_branch L2C")


def p2_combine(a, opt):
    VFD = C_VFD
    t0, t1, t2 = C_T0, C_T1, C_T2
    VZ, VO, VG = 23, 24, 25
    ZF, ACY, PT, BF, TR = 160, 192, 96, 208, 2
    a.label("L2C")
    a("s_and_b32 s42, s45, 1")
    a("s_lshl_b32 s42, s42, 5")
    a("s_add_u32 s42, s42, s54")
    a("s_lshr_b32 s43, s45, 1")
    a("s_lshl_b32 s43, s43, 5")
    a("s_lshl_b32 s44, s55, 6")
    a("s_add_u32 s43, s43, s44")
    a(f"v_bfe_u32 v{t0}, v1, 2, 1")
    a(f"v_lshlrev_b32 v{t0}, 4, v{t0}")
    a(f"v_and_or_b32 v{t0}, v1, 3, v{t0}")
    a(f"v_bfe_u32 v{t1}, v1, 3, 2")
    a(f"v_lshlrev_b32 v{t1}, 2, v{t1}")
    a(f"v_add3_u32 v{t0}, v{t0}, v{t1}, s43")
    a(f"v_and_b32 v{t1}, 31, v1")
    a("s_lshl_b32 s44, s42, 7")
    a(f"v_lshl_add_u32 v{VG}, v{t1}, 2, s44")
    a(f"v_lshl_add_u32 v{t1}, v{t1}, 6, s42")
    a(f"v_lshrrev_b32 v{t2}, 5, v1")
    a(f"v_lshlrev_b32 v{VO}, 10, v{t1}")
    a(f"v_lshl_add_u32 v{VO}, v{t2}, 5, v{VO}")
    a("s_lshl_b32 s44, s43, 1")
    a(f"v_add_u32 v{VO}, s44, v{VO}")
    a("s_mov_b32 s64, s54")
    a("s_cmp_lt_u32 s55, 4")
    a("s_cbranch_scc1 L2C_nomirror")
    a(f"v_sub_u32 v{t0}, 0x200, v{t0}")
    a(f"v_sub_u32 v{t1}, 0x800, v{t1}")
    a(f"v_and_b32 v{t1}, 0x7ff, v{t1}")
    a("s_sub_u32 s64, 32, s54")
    a("s_and_b32 s64, s64, 31")
    a.label("L2C_nomirror")
    a(f"v_mul_u32_u24 v{VZ}, {8*EP*16}, v{t2}")
    a(f"v_lshl_add_u32 v{VZ}, v{t0}, 4, v{VZ}")
    a(f"s_mul_i32 s64, s64, {ZR_B}")
    a(f"v_cvt_f32_u32 v26, v{t1}")
    a(f"v_mul_f32 v26, {f2u(-1.0/2048):#x}, v26")
    a(f"v_cvt_f32_u32 v27, v{t2}")
    a(f"v_mul_f32 v27, {f2u(16.0):#x}, v27")
    a("v_mul_f32 v27, v26, v27")

    def trig(o):
        for q in range(8):
            ks_, qq = (8 * o + q) >> 2, q & 3
            a(f"v_fmamk_f32 v{TR+q}, v26, {f2u(float(2*ks_ + (qq&1) + 32*(qq>>1))):#x}, v27")
        for q in range(8):
            a(f"v_fract_f32 v{TR+q}, v{TR+q}")
        for q in range(8):
            a(f"v_sin_f32 v{TR+8+q}, v{TR+q}")
        for q in range(8):
            a(f"v_cos_f32 v{TR+q}, v{TR+q}")
        a("s_nop 0")
        for q in range(8):
            a(f"v_cvt_pk_bf16_f32 v{BF+8*o+q}, v{TR+q}, v{TR+8+q}")

    trig(2)
    trig(3)
    srd(a, 36, 18, 19, F_SIZE, F_OFF)
    a(f"v_mov_b32 v{t0}, {FLG}")
    a(f"v_mov_b32 v{t1}, 1")
    a(f"v_lshlrev_b32 v{t2}, 7, v1")
    a("s_waitcnt vmcnt(0)")
    stamp(a, opt)
    a("s_bitcmp1_b32 s65, 0")
    a("s_cbranch_scc0 L2C_noh")
    a("s_mov_b64 exec, 0xff")
    a(f"buffer_store_dword v{t1}, v{t2}, s[36:39], s63 offen sc1")
    a.label("L2C_noh")
    a("s_bitcmp1_b32 s65, 1")
    a("s_cbranch_scc0 L2C_noz")
    a("s_mov_b64 exec, 1")
    a(f"ds_add_rtn_u32 v{VFD}, v{t0}, v{t1}")
    srd(a, 24, 52, 53, 256)
    a("s_waitcnt lgkmcnt(0)")
    a(f"v_cmp_ne_u32 vcc, 3, v{VFD}")
    a("s_cbranch_vccnz L2C_noz")
    a(f"v_mov_b32 v{VFD}, 1")
    a(f"buffer_atomic_add v{VFD}, v{t2}, s[24:27], 0 offen offset:128 sc0 sc1")
    a("s_waitcnt vmcnt(0)")
    a(f"v_cmp_ne_u32 vcc, 47, v{VFD}")
    a("s_cbranch_vccnz L2C_noz")
    a("s_mov_b64 exec, -1")
    for i in range(4):
        a(f"s_movk_i32 s42, {i*8192}")
        a(f"buffer_store_dword v{t1}, v{t2}, s[36:39], s42 offen offset:124 sc1")
    a.label("L2C_noz")
    a("s_mov_b64 exec, -1")
    a("s_lshl_b32 s42, s54, 3")
    a("s_add_u32 s42, s42, s55")
    a("s_lshl_b32 s42, s42, 7")
    a(f"v_and_b32 v{VFD}, 15, v1")
    a(f"v_min_u32 v{VFD}, 10, v{VFD}")
    a(f"v_and_or_b32 v{VFD}, v1, 16, v{VFD}")
    a("v_cmp_gt_u32 vcc, 32, v1")
    a(f"s_mov_b32 s43, {RH}")
    a(f"v_lshl_add_u32 v{t2}, v1, 4, s42")
    a(f"v_cndmask_b32 v{VFD}, 31, v{VFD}, vcc")
    a(f"v_lshl_add_u32 v{t0}, v{VFD}, 2, s43")
    a(f"s_mov_b32 m0, {RH}")
    a("s_cmp_lg_u32 s45, 0")
    a("s_cbranch_scc1 L2C_t01")
    a("s_mov_b64 exec, 0xff")
    a(f"buffer_load_dwordx4 v{t2}, s[36:39], 0 offen sc1 lds")
    a("s_mov_b64 exec, -1")
    a.label("L2C_t01")
    trig(0)
    a("s_cbranch_scc1 L2C_t1")
    a("s_mov_b64 exec, 0xff")
    a(f"buffer_load_dwordx4 v{t2}, s[36:39], 0 offen sc1 lds")
    a("s_mov_b64 exec, -1")
    a.label("L2C_t1")
    trig(1)
    srd(a, 32, 18, 19, Z_SIZE, Z_OFF)
    srd(a, 24, 18, 19, G_SIZE, G_OFF)
    srd(a, 28, 6, 7, 2048 * 1024)
    a.label("L2C_wz")
    a("s_cmp_lg_u32 s45, 0")
    a("s_cbranch_scc1 L2C_wz1")
    a("s_mov_b64 exec, 0xff")
    a(f"buffer_load_dwordx4 v{t2}, s[36:39], 0 offen sc1 lds")
    a("s_mov_b64 exec, -1")
    a(f"s_waitcnt vmcnt({opt.pq})")
    if opt.psleep:
        a(f"s_sleep {opt.psleep}")
    a.label("L2C_wz1")
    a(f"ds_read_b32 v{VFD}, v{t0}")
    a("s_waitcnt lgkmcnt(0)")
    a(f"v_cmp_ne_u32 vcc, v{t1}, v{VFD}")
    a("s_cmp_lg_u32 vcc_hi, 0")
    a("s_cbranch_scc1 L2C_wz")
    stamp(a, opt)
    a(f"buffer_load_dword v10, v{VG}, s[24:27], 0 offen sc1")
    for ks in range(8):
        a(f"buffer_load_dwordx4 {vr(ZF+4*ks,4)}, v{VZ}, s[32:35], s64 offen sc1")
        if ks < 7:
            a(f"s_add_u32 s64, s64, {EP*16}")
    a("s_cmp_lg_u32 s45, 0")
    a("s_cbranch_scc1 L2C_y")
    a("s_cbranch_vccz L2C_y")
    a.label("L2C_wh")
    a("s_mov_b64 exec, 0xff")
    a(f"buffer_load_dwordx4 v{t2}, s[36:39], 0 offen sc1 lds")
    a("s_mov_b64 exec, -1")
    a(f"s_waitcnt vmcnt({opt.pq})")
    if opt.psleep:
        a(f"s_sleep {opt.psleep}")
    a(f"ds_read_b32 v{VFD}, v{t0}")
    a("s_waitcnt lgkmcnt(0)")
    a(f"v_cmp_ne_u32 vcc, v{t1}, v{VFD}")
    a("s_cbranch_vccnz L2C_wh")
    a("s_waitcnt vmcnt(0)")
    a.label("L2C_y")
    a(f"v_lshlrev_b32 v{t0}, 4, v1")
    a("s_lshl_b32 s42, s45, 14")
    a(f"v_add_u32 v{t0}, s42, v{t0}")
    for ks in range(8):
        a(f"s_waitcnt vmcnt({7-ks})")
        acc = vr(ACY, 16)
        a(f"{MF32} {acc}, {vr(ZF+4*ks,4)}, {vr(BF+4*ks,4)}, {'0' if ks == 0 else acc}")
    a("v_sub_f32 v11, 1.0, v10")
    a("v_cvt_pk_bf16_f32 v11, v11, v11")
    a("v_and_b32 v11, 0xffff0000, v11")
    a("s_nop 7")
    a("s_nop 1")
    for rg in range(16):
        a(f"v_mul_f32 v{ACY+rg}, v10, v{ACY+rg}")
    stamp(a, opt)
    a("s_barrier")
    for w in range(4):
        for q in range(4):
            a(f"ds_read_b128 {vr(PT+16*w+4*q,4)}, v{t0} offset:{w*2048 + (q>>1)*8192 + (q&1)*1024}")
        if w == 2:
            a("s_waitcnt lgkmcnt(4)")
            for rg in range(0, 16, 2):
                a(f"v_pk_add_f32 {vr(PT+rg,2)}, {vr(PT+rg,2)}, {vr(PT+16+rg,2)}")
    a("s_waitcnt lgkmcnt(0)")
    for rg in range(0, 16, 2):
        a(f"v_pk_add_f32 {vr(PT+32+rg,2)}, {vr(PT+32+rg,2)}, {vr(PT+48+rg,2)}")
    for rg in range(0, 16, 2):
        a(f"v_pk_add_f32 {vr(PT+rg,2)}, {vr(PT+rg,2)}, {vr(PT+32+rg,2)}")
    for rg in range(16):
        a(f"v_fmac_f32 v{ACY+rg}, v11, v{PT+rg}")
    for i in range(8):
        a(f"v_cvt_pk_bf16_f32 v{32+i}, v{ACY+2*i}, v{ACY+2*i+1}")
    a(f"buffer_store_dwordx4 v[32:35], v{VO}, s[28:31], 0 offen")
    a(f"buffer_store_dwordx4 v[36:39], v{VO}, s[28:31], 0 offen offset:16")
    stamp(a, opt)
    stamp_flush(a, opt, "C")
    a("s_endpgm")


def compute_prologue(a, opt):
    t0, t1, t2 = C_T0, C_T1, C_T2
    if opt.pf:
        a(f"s_cmp_eq_u32 s46, {K_SPEC}")
        a("s_mov_b32 s47, 2752")
        a("s_cselect_b32 s47, 1024, s47")
        a("s_cmp_eq_u32 s22, 10")
        a("s_movk_i32 s40, 252")
        a("s_cselect_b32 s40, 188, s40")
        a(f"v_lshrrev_b32 v{t2}, 5, v1")
        a(f"v_bfe_u32 v{t0}, v1, 2, 3")
        a(f"v_lshl_add_u32 v{t0}, v{t2}, 7, v{t0}")
        a("s_lshl_b32 s44, s42, 3")
        a("s_add_u32 s44, s44, s55")
        a("s_lshl_b32 s44, s44, 3")
        a(f"v_add_u32 v{t0}, s44, v{t0}")
        a(f"v_mul_u32_u24 v{t0}, s47, v{t0}")
        a(f"v_and_b32 v{t1}, 3, v1")
        a(f"v_lshlrev_b32 v{t1}, 7, v{t1}")
        a(f"v_min_u32 v{t1}, s40, v{t1}")
        a("s_lshl_b32 s44, s22, 8")
        a(f"v_add3_u32 v{t0}, v{t0}, v{t1}, s44")
        a(f"v_and_b32 v{t1}, 31, v1")
        a(f"v_lshlrev_b32 v{t1}, 16, v{t1}")
        a(f"v_mul_u32_u24 v{t2}, 384, v{t2}")
        a("s_lshl_b32 s44, s23, 3")
        a("s_lshr_b32 s41, s2, 6")
        a("s_add_u32 s44, s44, s41")
        a("s_lshl_b32 s44, s44, 7")
        a(f"v_add3_u32 v{t1}, v{t1}, v{t2}, s44")
        a("s_lshl_b32 s40, s47, 6")
        a("s_mul_i32 s41, s40, 5")
        a("s_lshl_b32 s30, s47, 9")
        a("s_mov_b32 s31, 0x20000")
        a("s_waitcnt lgkmcnt(0)")
        srd(a, 24, 4, 5, 2048 * 1024)
        a(f"s_cmp_eq_u32 s46, {K_SPEC}")
        a("s_cselect_b64 s[12:13], s[8:9], s[12:13]")
        a("s_cselect_b64 s[14:15], s[10:11], s[14:15]")
        a("s_cmp_ge_u32 s45, 2")
        a("s_cselect_b64 s[28:29], s[14:15], s[12:13]")
        a(f"buffer_load_dword v29, v{t0}, s[28:31], s40 offen")
        a(f"buffer_load_dword v30, v{t1}, s[24:27], 0 offen offset:128")
        a(f"buffer_load_dword v31, v{t0}, s[28:31], s41 offen")
    a(f"v_lshlrev_b32 v{t0}, 3, v1")
    a(f"v_add_u32 v{t0}, {FLG}, v{t0}")
    a("v_mov_b32 v2, 0")
    a("v_mov_b32 v3, 0")
    a(f"ds_write_b64 v{t0}, v[2:3]")
    a("s_waitcnt lgkmcnt(0)")
    stamp(a, opt)
    a("s_and_b32 s63, s23, 31")
    a("s_lshl_b32 s63, s63, 8")
    a("s_lshr_b32 s44, s23, 5")
    a("s_lshl_b32 s44, s44, 4")
    a("s_add_u32 s63, s63, s44")
    a("s_add_u32 s63, s63, s22")
    a("s_lshl_b32 s63, s63, 2")
    a(f"s_cmp_eq_u32 s46, {K_IDLE}")
    a("s_cbranch_scc1 L1C_idle")
    a(f"v_bfe_u32 v{t0}, v1, 2, 2")
    a(f"v_lshrrev_b32 v{t1}, 4, v1")
    a(f"v_lshl_add_u32 v{t1}, v{t1}, 3, v{t0}")
    a(f"v_lshlrev_b32 v{t1}, 8, v{t1}")
    a(f"v_bfe_u32 v{t0}, v1, 2, 3")
    a(f"v_lshl_add_u32 v{t1}, v{t0}, 5, v{t1}")
    a(f"v_and_b32 v{t0}, 3, v1")
    a(f"v_lshl_add_u32 v{C_VA}, v{t0}, 3, v{t1}")
    for t in range(1, 8):
        a(f"v_xor_b32 v{C_VA+t}, {t*32}, v{C_VA}")
    a(f"v_and_b32 v{t0}, 15, v1")
    a(f"v_lshrrev_b32 v{t1}, 1, v{t0}")
    a(f"v_lshrrev_b32 v{t2}, 4, v1")
    a(f"v_xor_b32 v{t1}, v{t1}, v{t2}")
    a(f"v_lshlrev_b32 v{t1}, 4, v{t1}")
    a(f"v_lshl_add_u32 v{t0}, v{t0}, 7, v{t1}")
    a(f"v_add_u32 v{C_VX}, s48, v{t0}")
    a(f"v_xor_b32 v{C_VX+1}, 64, v{C_VX}")
    a("s_mov_b32 s65, 1")
    a(f"s_cmp_eq_u32 s46, {K_6G}")
    a("s_cbranch_scc1 L1C_ffn6")
    a("s_cmp_lg_u32 s46, 0")
    a("s_cbranch_scc1 L1C_specs")


def idle_compute(a, opt):
    t0, t1, t2 = C_T0, C_T1, C_T2
    a.label("L1C_idle")
    a("s_mov_b32 s65, 0")
    srd(a, 24, 52, 53, 256)
    a(f"v_mov_b32 v{t1}, 0")
    a("s_cmp_lg_u32 s55, 4")
    a("s_cbranch_scc1 L1_noinit")
    srd(a, 36, 18, 19, F_SIZE, F_OFF)
    for i in range(4):
        a(f"v_mov_b32 v{32+i}, 0")
    a(f"v_lshlrev_b32 v{t0}, 4, v1")
    a("s_and_b32 s42, s2, 7")
    a("s_lshl_b32 s42, s42, 2")
    a("s_add_u32 s42, s42, s45")
    a("s_lshl_b32 s42, s42, 10")
    a(f"buffer_store_dwordx4 v[32:35], v{t0}, s[36:39], s42 offen sc1")
    a(f"v_mov_b32 v{t2}, 1")
    a.label("L1_noinit")
    if opt.codepf:
        a("s_getpc_b64 s[36:37]")
        a.label("L_pcref")
        a(f"s_sub_u32 s36, s36, L_pcref-{NAME}_kernel")
        a("s_subb_u32 s37, s37, 0")
        a(f"s_mov_b32 s38, L_exit-{NAME}_kernel")
        a("s_mov_b32 s39, 0x20000")
        a("s_sub_u32 s42, s55, 4")
        a("s_lshl_b32 s42, s42, 2")
        a("s_add_u32 s42, s42, s45")
        a("s_and_b32 s42, s42, 7")
        a("s_mul_i32 s42, s42, 5888")
        a(f"v_lshlrev_b32 v{t0}, 7, v1")
        a(f"buffer_load_dword v250, v{t0}, s[36:39], s42 offen")
    a("s_waitcnt vmcnt(0)")
    a("s_cmp_lg_u32 s55, 4")
    a("s_cbranch_scc1 L1_noinit2")
    a("s_mov_b64 exec, 1")
    a(f"buffer_atomic_add v{t2}, v{t1}, s[24:27], 0 offen sc1")
    a("s_mov_b64 exec, -1")
    a.label("L1_noinit2")
    a("s_barrier")
    a("s_cmp_lg_u32 s45, 0")
    a("s_cbranch_scc1 L2C")
    a.label("L1C_idle_go")
    a("s_sleep 32")
    a(f"buffer_load_dword v{t2}, v{t1}, s[24:27], 0 offen sc1")
    a("s_waitcnt vmcnt(0)")
    a(f"v_cmp_ne_u32 vcc, 32, v{t2}")
    a("s_cbranch_vccnz L1C_idle_go")
    a("s_branch L2C")


def kernel(a, opt):
    a.label(NAME + "_kernel")
    a("s_cmp_ge_u32 s2, 256")
    a("s_cbranch_scc1 L_exit")
    if opt.stamps:
        a("v_mov_b32 v255, 0")
        a("v_mov_b32 v253, 0")
        a("s_mov_b32 s89, 0")
        stamp(a, opt)
    a("s_load_dwordx2 s[4:5], s[0:1], 0")
    a("s_load_dwordx4 s[8:11], s[0:1], 24")
    a("s_load_dwordx4 s[12:15], s[0:1], 48")
    a("s_load_dwordx2 s[50:51], s[0:1], 64")
    a("s_load_dwordx2 s[16:17], s[0:1], 72")
    a("s_load_dwordx2 s[6:7], s[0:1], 80")
    a("s_load_dwordx2 s[52:53], s[0:1], 88")
    a("s_load_dwordx2 s[18:19], s[0:1], 96")
    a("v_lshrrev_b32 v2, 6, v0")
    a("v_and_b32 v1, 63, v0")
    a("v_readfirstlane_b32 s20, v2")
    a("s_bfe_u32 s55, s2, 0x30003")
    a("s_bfe_u32 s42, s2, 0x20001")
    a("s_lshr_b32 s44, s2, 6")
    a("s_and_b32 s54, s2, 7")
    a("s_lshl_b32 s54, s54, 2")
    a("s_add_u32 s54, s54, s44")
    a("s_and_b32 s21, s2, 1")
    a("s_lshl_b32 s21, s21, 3")
    a("s_lshl_b32 s43, s44, 1")
    a("s_add_u32 s56, s55, s43")
    if opt.xrot:
        a("s_add_u32 s56, s56, s2")
    a("s_and_b32 s56, s56, 7")
    a("s_mul_i32 s56, s56, 21")
    a("s_lshr_b32 s56, s56, 3")
    a("s_cmp_eq_u32 s44, 3")
    a("s_cbranch_scc1 L_cl3")
    a("s_add_u32 s21, s21, s55")
    a("s_mul_i32 s49, s44, 3")
    a("s_add_u32 s49, s49, s55")
    a("s_mul_i32 s22, s42, 3")
    a("s_min_u32 s22, s22, 8")
    a("s_add_u32 s22, s22, s44")
    a("s_mov_b32 s46, 0")
    a("s_lshr_b32 s43, s42, 1")
    a("s_lshr_b32 s44, s44, 1")
    a("s_and_b32 s43, s43, s44")
    a("s_cbranch_scc0 L_ids")
    a(f"s_mov_b32 s46, {K_SPEC}")
    a("s_and_b32 s22, s42, 1")
    a("s_branch L_ids")
    a.label("L_cl3")
    a("s_lshl_b32 s42, s42, 1")
    a("s_and_b32 s43, s55, 1")
    a("s_add_u32 s42, s42, s43")
    a("s_add_u32 s21, s21, s42")
    a("s_mul_i32 s49, s55, 3")
    a("s_add_u32 s49, s49, s42")
    a("s_add_u32 s49, s49, 1")
    a("s_cmp_lt_u32 s55, 2")
    a("s_cselect_b32 s22, 10, 2")
    a("s_lshr_b32 s46, s55, 1")
    a("s_add_u32 s46, s46, 2")
    a(f"s_min_u32 s46, s46, {K_IDLE}")
    a.label("L_ids")
    a(f"s_and_b32 s49, s49, {opt.rotmask}")
    a("s_and_b32 s45, s20, 3")
    a("s_and_b32 s42, s45, 1")
    a("s_lshr_b32 s43, s45, 1")
    a("s_lshl_b32 s44, s43, 5")
    a("s_lshl_b32 s23, s21, 1")
    a("s_add_u32 s23, s23, s42")
    a("s_add_u32 s23, s23, s44")
    a("s_lshl_b32 s48, s45, 12")
    a("s_add_u32 s48, s48, 32768")
    a("s_cmp_ge_u32 s20, 4")
    a("s_cbranch_scc1 L1_compw")
    t0, t1, t2, VX, VD = L_T0, L_T1, L_T2, L_VX, L_VD
    a(f"v_lshrrev_b32 v{t0}, 3, v1")
    a(f"v_lshlrev_b32 v{t0}, 16, v{t0}")
    a("s_lshl_b32 s44, s23, 10")
    a(f"v_add_u32 v{t0}, s44, v{t0}")
    a(f"v_lshrrev_b32 v{t1}, 4, v1")
    a(f"v_and_b32 v{t2}, 7, v1")
    a(f"v_xor_b32 v{t2}, v{t1}, v{t2}")
    a(f"v_lshl_add_u32 v{VX}, v{t2}, 4, v{t0}")
    a(f"v_xor_b32 v{VX+1}, 64, v{VX}")
    a(f"v_add_u32 v{VX+1}, {8*65536}, v{VX+1}")
    a(f"v_add_u32 v{VX+2}, {16*65536}, v{VX}")
    a(f"v_add_u32 v{VX+3}, {16*65536}, v{VX+1}")
    a("s_lshl_b32 s41, s43, 14")
    a("s_lshl_b32 s44, s42, 10")
    a("s_add_u32 s41, s41, s44")
    a("s_cmp_eq_u32 s46, 0")
    a("s_cselect_b32 s40, 15, 11")
    a(f"s_cmp_eq_u32 s46, {K_S4G}")
    a("s_cselect_b32 s40, 7, s40")
    a("s_cselect_b32 s80, 0, -1")
    a("s_bitcmp1_b32 s46, 0")
    a("s_mov_b32 s47, 2752")
    a("s_cselect_b32 s47, 1024, s47")
    a("s_movk_i32 s82, 256")
    a("s_cselect_b32 s82, 192, s82")
    a("s_lshl_b32 s42, s42, 2")
    a(f"v_add_u32 v{t0}, s42, v{t1}")
    a(f"v_mul_u32_u24 v{t0}, s47, v{t0}")
    a("s_mul_i32 s42, s22, s82")
    a(f"v_add_u32 v{t0}, s42, v{t0}")
    a(f"v_and_b32 v{t2}, 15, v1")
    a(f"v_lshlrev_b32 v{t1}, 1, v{t1}")
    a(f"v_xor_b32 v{t1}, v{t1}, v{t2}")
    a(f"v_xor_b32 v{t2}, 8, v{t1}")
    a(f"v_min_u32 v{t1}, s40, v{t1}")
    a(f"v_min_u32 v{t2}, s40, v{t2}")
    a(f"v_lshl_add_u32 v{VD}, v{t1}, 4, v{t0}")
    a(f"v_lshl_add_u32 v{VD+1}, v{t2}, 4, v{t0}")
    a("s_lshl_b32 s44, s47, 3")
    a("s_lshl_b32 s30, s47, 9")
    a("s_mov_b32 s31, 0x20000")
    a("v_mov_b32 v14, 0")
    a("v_mov_b32 v15, 0")
    a("s_mov_b32 s66, 0")
    a("s_mov_b32 s67, 0")
    a("s_cmp_eq_u32 s45, 0")
    a("s_cselect_b32 s81, 5, -1")
    a("s_waitcnt lgkmcnt(0)")
    stamp(a, opt)
    srd(a, 24, 4, 5, 2048 * 1024)
    a("s_bitcmp1_b32 s46, 0")
    a("s_cselect_b64 s[12:13], s[8:9], s[12:13]")
    a("s_cselect_b64 s[14:15], s[10:11], s[14:15]")
    a("s_cmp_ge_u32 s45, 2")
    a("s_cselect_b64 s[28:29], s[14:15], s[12:13]")
    srd(a, 68, 52, 53, 256)
    a(f"s_cmp_lg_u32 s46, {K_IDLE}")
    a("s_cbranch_scc1 L1L_loop")
    a("s_barrier")
    a("s_branch L2W")
    p1_loader(a, opt)
    p2_worker(a, opt)
    a.label("L1_compw")
    if opt.prio:
        a(f"s_setprio {opt.prio}")
    compute_prologue(a, opt)
    p1_compute(a, opt, "ffn8")
    p2_combine(a, opt)
    a.label("L1C_specs")
    a("s_mov_b32 s65, 2")
    dft32_consts(a)
    a(f"s_cmp_eq_u32 s46, {K_S4G}")
    a("s_cbranch_scc1 L1C_spec4g")
    p1_compute(a, opt, "spec6")
    p1_compute(a, opt, "spec4g")
    p1_compute(a, opt, "ffn6")
    idle_compute(a, opt)
    a.label("L_exit")
    a("s_endpgm")


def main():
    ap = argparse.ArgumentParser()
    ap.add_argument("-o", default=f"cdna_kernels/{NAME}.s")
    ap.add_argument("--stamps", action="store_true")
    ap.add_argument("--fine", action="store_true")
    ap.add_argument("--fine2", action="store_true")
    ap.add_argument("--q", type=int, default=8)
    ap.add_argument("--rotmask", type=int, default=7)
    ap.add_argument("--hr", type=int, default=8)
    ap.add_argument("--la", type=int, default=6)
    ap.add_argument("--psleep", type=int, default=8)
    ap.add_argument("--tail", type=int, default=0)
    ap.add_argument("--fpg", type=int, default=6)
    ap.add_argument("--codepf", type=int, default=1)
    ap.add_argument("--pad", type=int, default=-1)
    ap.add_argument("--padrole", default="C")
    ap.add_argument("--prio", type=int, default=0)
    ap.add_argument("--bpos", type=int, default=1)
    ap.add_argument("--nb", type=int, default=3)
    ap.add_argument("--spr", type=int, default=6)
    ap.add_argument("--fine4", action="store_true")
    ap.add_argument("--nost", action="store_true")
    ap.add_argument("--idledelay", type=int, default=0)
    ap.add_argument("--xrot", type=int, default=1)
    ap.add_argument("--tcb", type=int, default=2)
    ap.add_argument("--wtouch", type=int, default=1)
    ap.add_argument("--pf", type=int, default=0)
    ap.add_argument("--pq", type=int, default=1)
    ap.add_argument("--idlego", type=int, default=0)
    ap.add_argument("--nc", type=int, default=3)
    ap.add_argument("--stag", type=int, default=1)
    ap.add_argument("--thrz", type=int, default=0)
    ap.add_argument("--pace", type=int, default=0)
    ap.add_argument("--thr", type=int, default=0)
    ap.add_argument("--thr2", type=int, default=2)
    ap.add_argument("--early", type=int, default=0)
    ap.add_argument("--nowait", action="store_true")
    ap.add_argument("--fine3", action="store_true")
    ap.add_argument("--nomfma", action="store_true")
    ap.add_argument("--noidle", action="store_true")
    ap.add_argument("--fsleep", type=int, default=0)
    ap.add_argument("--noreads", action="store_true")
    opt = ap.parse_args()
    global FSLEEP
    FSLEEP = opt.fsleep
    hdr = open(f"cdna_kernels/{NAME}.s.ref").read().split("; Override launch")[0]
    out = hdr
    out += f"; @launch grid=(256,1,1) block=(512,1,1) lds={LDS_SIZE}\n"
    out += '.amdgcn_target "amdgcn-amd-amdhsa--gfx950"\n.text\n'
    a = Asm()
    kernel(a, opt)
    nm = NAME + "_kernel"
    out += f".globl {nm}\n.p2align 8\n.type {nm},@function\n" + a.text()
    out += f""".section .rodata,"a"
.p2align 6
.amdhsa_kernel {nm}
  .amdhsa_next_free_vgpr 256
  .amdhsa_next_free_sgpr 102
  .amdhsa_accum_offset 256
  .amdhsa_group_segment_fixed_size 0
  .amdhsa_kernarg_size 104
  .amdhsa_user_sgpr_count 2
  .amdhsa_user_sgpr_kernarg_segment_ptr 1
  .amdhsa_system_sgpr_workgroup_id_x 1
.end_amdhsa_kernel
"""
    open(opt.o, "w").write(out)


if __name__ == "__main__":
    main()
```

```python
import struct, sys, argparse

NAME = "gated_mix__spectral_fnet__geglu_ffn__prompt"
H_OFF = 0
H_SIZE = 64 * 86 * 1024
Z_OFF = 0x600000
EP = 264
ZR_B = 16 * EP * 16
Z_SIZE = 32 * ZR_B
G_OFF = 0x900000
G_SIZE = 2048 * 4
F_OFF = 0x980000
F_SIZE = 32768
T_OFF = 0xA00000
MF16 = "v_mfma_f32_16x16x32_bf16"
MF32 = "v_mfma_f32_32x32x16_bf16"


def f2u(f):
    return struct.unpack("<I", struct.pack("<f", f))[0]


class Asm:
    def __init__(self):
        self.l = []
        self.ds = []
        self.vm = []
        self.n = 0

    def __call__(self, s):
        self.l.append("    " + s)
        self.n += 1

    def label(self, s):
        self.l.append(s + ":")

    def dsop(self, s, tag):
        self(s)
        self.ds.append(tag)

    def dswait(self, tag):
        idx = max(i for i, t in enumerate(self.ds) if t == tag)
        n = len(self.ds) - 1 - idx
        assert n <= 15, n
        self(f"s_waitcnt lgkmcnt({n})")

    def vmop(self, s, tag):
        self(s)
        self.vm.append(tag)

    def vmwait(self, tag):
        idx = max(i for i, t in enumerate(self.vm) if t == tag)
        n = len(self.vm) - 1 - idx
        assert n <= 63, n
        self(f"s_waitcnt vmcnt({n})")

    def text(self):
        return "\n".join(self.l) + "\n"


def vr(b, n):
    return f"v[{b}:{b+n-1}]"


def srd(a, d, lo, hi, size, add=0):
    if add:
        a(f"s_add_u32 s{d}, s{lo}, {add:#x}")
        a(f"s_addc_u32 s{d+1}, s{hi}, 0")
    else:
        a(f"s_mov_b32 s{d}, s{lo}")
        a(f"s_mov_b32 s{d+1}, s{hi}")
    a(f"s_mov_b32 s{d+2}, {size:#x}")
    a(f"s_mov_b32 s{d+3}, 0x20000")


def stamp(a, opt):
    if not opt.stamps:
        return
    a("s_memrealtime s[90:91]")
    a("s_memtime s[86:87]")
    a("s_mov_b32 s88, m0")
    a("s_waitcnt lgkmcnt(0)")
    a("s_mov_b32 m0, s89")
    a("s_add_u32 s89, s89, 1")
    a("v_writelane_b32 v255, s90, m0")
    a("v_writelane_b32 v253, s86, m0")
    a("s_mov_b32 m0, s88")


def stamp_flush(a, opt, role):
    if not opt.stamps:
        return
    if opt.pad >= 0:
        if role == opt.padrole:
            a("s_nop 4")
            a(f"v_readlane_b32 s92, v255, {opt.pad}")
            a("s_nop 4")
            a("s_add_u32 s92, s92, 4000")
            a.label("Lpad")
            a("s_memrealtime s[90:91]")
            a("s_waitcnt lgkmcnt(0)")
            a("s_sub_u32 s93, s92, s90")
            a("s_cmp_gt_i32 s93, 0")
            a("s_cbranch_scc1 Lpad")
        return
    a("s_waitcnt vmcnt(0)")
    stamp(a, opt)
    srd(a, 92, 18, 19, 0x200000, T_OFF)
    a("s_lshl_b32 s96, s2, 3")
    a("s_add_u32 s96, s96, s20")
    a("s_lshl_b32 s96, s96, 8")
    a("v_lshlrev_b32 v254, 2, v1")
    a("buffer_store_dword v255, v254, s[92:95], s96 offen")
    a("s_add_u32 s96, s96, 0x100000")
    a("buffer_store_dword v253, v254, s[92:95], s96 offen")


C1 = -2.0 * 0.7978845608028654 * 1.4426950408889634
C2 = C1 * 0.044715
NB = 3
SSZ = 49152
FLG = 78 * 2048
RH = FLG + 256
GW_LDS = FLG + 512
LDS_SIZE = 163840
assert GW_LDS + 2048 <= LDS_SIZE
K_FFN, K_SPEC, K_6G, K_IDLE, K_S4G = 0, 1, 2, 4, 3

L_VD, L_VX, L_T0, L_T1, L_T2, L_VF, L_VA = 2, 10, 16, 17, 18, 20, 21


FSLEEP = 0


def free_wait(a, lab, val):
    if FSLEEP:
        a(f"s_branch {lab}_c")
    a.label(lab)
    if FSLEEP:
        a(f"s_sleep {FSLEEP}")
        a.label(lab + "_c")
    a(f"ds_read_b32 v{L_T0}, v{L_VA}")
    a("s_waitcnt lgkmcnt(0)")
    a(f"v_cmp_ge_u32 vcc, {val}, v{L_T0}")
    a(f"s_cbranch_vccnz {lab}")


def p1_loader(a, opt):
    VD, VX, t0 = L_VD, L_VX, L_T0
    Q = opt.q
    a.label("L1L_loop")
    a("s_lshl_b32 s47, s49, 7")
    a("s_add_u32 m0, s48, s67")
    a("s_mul_i32 s40, s49, s44")
    n = 0

    def after():
        nonlocal n
        n += 1
        if n == Q:
            a("s_cmp_eq_u32 s66, 0")
            a("s_cbranch_scc1 L1L_nobar")
            a(f"s_waitcnt vmcnt({Q})")
            if opt.fine:
                stamp(a, opt)
            a("s_barrier")
            a.label("L1L_nobar")

    for i in range(4):
        a(f"buffer_load_dwordx4 v{VX+i}, s[24:27], s47 offen lds")
        if i < 3:
            a("s_add_u32 m0, m0, 1024")
            a("s_nop 0")
        else:
            a("s_add_u32 m0, s41, s67")
            a("s_lshl_b32 s40, s40, 3")
        after()
    for u in range(8):
        a(f"buffer_load_dwordx4 v{VD+(u&1)}, s[28:31], s40 offen lds")
        if u < 7:
            a("s_add_u32 m0, m0, 2048")
            a("s_add_u32 s40, s40, s44")
        after()
    a("s_cmp_eq_u32 s66, s80")
    a("s_cbranch_scc0 L1L_next")
    srd(a, 36, 16, 17, 1024)
    a(f"s_mov_b32 m0, {GW_LDS}")
    a(f"v_lshlrev_b32 v{t0}, 4, v1")
    a(f"buffer_load_dwordx4 v{t0}, s[36:39], 0 offen lds")
    srd(a, 36, 8, 9, 1024, 256 * 1024)
    a(f"s_mov_b32 m0, {GW_LDS+1024}")
    a("s_nop 0")
    a(f"buffer_load_dwordx4 v{t0}, s[36:39], 0 offen lds")
    a.label("L1L_next")
    a("s_cmp_eq_u32 s66, s81")
    a("s_cbranch_scc0 L1L_next2")
    a("buffer_load_dword v14, v15, s[68:71], 0 offen sc1")
    a.label("L1L_next2")
    a("s_add_u32 s49, s49, 1")
    a("s_and_b32 s49, s49, 7")
    a(f"s_add_u32 s67, s67, {SSZ}")
    a(f"s_cmp_eq_u32 s67, {3*SSZ}")
    a("s_cselect_b32 s67, 0, s67")
    a("s_add_u32 s66, s66, 1")
    a("s_cmp_lt_u32 s66, 8")
    a("s_cbranch_scc1 L1L_loop")


def p2_worker(a, opt):
    HR = opt.hr
    LA = opt.la
    t0, t1, t2 = L_T0, L_T1, L_T2
    VW0, VW1 = 2, 3
    VH0, VH1 = 4, 5
    VRH = 7
    VRB = 22
    WF, ACB, HF = 32, 64, 128
    WR = 4
    assert HF + 8 * HR <= 252 and LA < HR
    a.vm, a.ds = [], []
    a.label("L2W")
    srd(a, 28, 50, 51, 1376 * 1024)
    a(f"v_bfe_u32 v{t0}, v1, 4, 1")
    a(f"v_lshlrev_b32 v{t0}, 2, v{t0}")
    a(f"v_and_b32 v{t1}, 7, v1")
    a(f"v_xor_b32 v{t0}, v{t0}, v{t1}")
    a(f"v_lshrrev_b32 v{t1}, 3, v1")
    a(f"v_lshlrev_b32 v{t1}, 10, v{t1}")
    a(f"v_lshl_add_u32 v{VW0}, v{t0}, 4, v{t1}")
    a("s_lshl_b32 s42, s55, 7")
    a("s_lshl_b32 s43, s45, 14")
    a("s_add_u32 s42, s42, s43")
    a(f"v_add_u32 v{VW0}, s42, v{VW0}")
    a(f"v_add_u32 v{VW1}, 0x2000, v{VW0}")
    a("s_lshl_b32 s59, s45, 11")
    a("s_cmp_lt_u32 s45, 2")
    a("s_cselect_b32 s57, 22, 21")
    rows = [18, 18] + list(range(12, 18)) + [18] + list(range(0, 12)) + [19]
    NI = 22
    assert len(rows) == NI

    def tau(b, dst):
        a(f"s_add_u32 s{dst}, s56, {b}")
        a(f"s_sub_u32 s43, s{dst}, s57")
        a(f"s_cselect_b32 s{dst}, s{dst}, s43")

    def wload(i):
        tau(i, 40)
        a(f"s_add_u32 m0, s59, {rows[i]*8192}")
        a("s_lshl_b32 s40, s40, 16")
        a.vmop(f"buffer_load_dwordx4 v{VW0}, s[28:31], s40 offen lds", ("w", i))
        a("s_add_u32 m0, m0, 1024")
        a("s_nop 0")
        a.vmop(f"buffer_load_dwordx4 v{VW1}, s[28:31], s40 offen lds", ("w", i))

    def wreads(i):
        f = WF + 8 * (i % WR)
        b = VRB + 2 * (rows[i] // 8)
        o = (rows[i] % 8) * 8192
        for ln in range(2):
            a.dsop(f"ds_read_b64_tr_b16 {vr(f+4*ln,2)}, v{b+ln} offset:{o}", ("r", i))
            a.dsop(f"ds_read_b64_tr_b16 {vr(f+4*ln+2,2)}, v{b+ln} offset:{o+512}", ("r", i))

    a(f"s_cmp_eq_u32 s46, {K_IDLE}")
    a("s_cselect_b32 s83, 1, 0")
    wload(0)
    for i in range(2, 2 + opt.nb):
        wload(i)
    a(f"v_lshrrev_b32 v{t2}, 5, v1")
    a(f"v_bfe_u32 v{t0}, v1, 2, 2")
    a(f"v_lshl_add_u32 v{t0}, v{t2}, 3, v{t0}")
    a(f"v_lshlrev_b32 v{t0}, 7, v{t0}")
    a(f"v_bfe_u32 v{t1}, v1, 1, 1")
    a(f"v_lshl_add_u32 v{t0}, v{t1}, 3, v{t0}")
    a(f"v_and_b32 v{t1}, 1, v1")
    a(f"v_lshl_add_u32 v{t0}, v{t1}, 5, v{t0}")
    a(f"v_bfe_u32 v{t1}, v1, 4, 1")
    a(f"v_lshl_add_u32 v{t0}, v{t1}, 4, v{t0}")
    a(f"v_bfe_u32 v{t1}, v1, 3, 1")
    a(f"v_lshl_add_u32 v{t0}, v{t1}, 6, v{t0}")
    a(f"v_add_u32 v{VRB}, s59, v{t0}")
    a(f"v_xor_b32 v{VRB+1}, 64, v{VRB}")
    for k in (1, 2):
        a(f"v_add_u32 v{VRB+2*k}, {k*65536}, v{VRB}")
        a(f"v_add_u32 v{VRB+2*k+1}, {k*65536}, v{VRB+1}")
    a(f"v_lshlrev_b32 v{t0}, 4, v1")
    a(f"s_mul_i32 s42, s54, {86*1024}")
    a("s_lshl_b32 s43, s45, 10")
    a("s_add_u32 s42, s42, s43")
    a(f"v_add_u32 v{VH0}, s42, v{t0}")
    a(f"v_add_u32 v{VH1}, {32*86*1024}, v{VH0}")
    srd(a, 32, 18, 19, H_SIZE, H_OFF)
    a(f"v_add_u32 v{t0}, s56, v1")
    a(f"v_subrev_u32 v{t1}, s57, v{t0}")
    a(f"v_min_u32 v{t0}, v{t0}, v{t1}")
    a(f"v_lshrrev_b32 v{t0}, 1, v{t0}")
    a(f"v_min_u32 v{t0}, 10, v{t0}")
    a(f"v_lshlrev_b32 v{t0}, 2, v{t0}")
    a(f"v_add_u32 v{VRH}, {RH}, v{t0}")
    a("s_mov_b32 s60, 0")
    a.vmwait(("w", 0))
    a("s_or_b32 s42, s45, s83")
    a("s_cbranch_scc1 L2W_gook")
    a("v_cmp_le_u32 vcc, 32, v14")
    a("s_cbranch_vccnz L2W_gook")
    a.label("L2W_go")
    a("buffer_load_dword v14, v15, s[68:71], 0 offen sc1")
    a("s_waitcnt vmcnt(0)")
    a("v_cmp_gt_u32 vcc, 32, v14")
    a("s_cbranch_vccnz L2W_go")
    a.label("L2W_gook")
    wreads(0)
    stamp(a, opt)
    a("s_cmp_lg_u32 s83, 0")
    a("s_cbranch_scc1 L2W_nob6")
    a("s_barrier")
    a.label("L2W_nob6")
    a("s_waitcnt lgkmcnt(0)")
    wload(1)
    for i in range(2 + opt.nb, 8):
        wload(i)
    for i in range(9, 9 + opt.nc):
        wload(i)
    a("s_cmp_lg_u32 s83, 0")
    a("s_cbranch_scc1 L2W_nob7")
    a("s_barrier")
    a("s_bitcmp1_b32 s46, 0")
    a("s_cbranch_scc0 L2W_nob7")
    a("s_barrier")
    a("s_barrier")
    a.label("L2W_nob7")
    a.vmwait(("w", 1))
    wreads(1)
    a("s_waitcnt lgkmcnt(0)")
    for i in [8] + list(range(9 + opt.nc, 21)):
        wload(i)
        if opt.thr2:
            a("s_cmp_lg_u32 s83, 0")
            a(f"s_cbranch_scc1 L2W_nt{i}")
            a(f"s_waitcnt vmcnt({opt.thr2})")
            a.label(f"L2W_nt{i}")
    a("s_cmp_ge_u32 s45, 2")
    a("s_cbranch_scc1 L2W_no19")
    wload(21)
    a.label("L2W_no19")
    a(f"s_cmp_lg_u32 s46, {K_IDLE}")
    a("s_cbranch_scc1 L2W_nopf")
    a("s_sub_u32 s42, s55, 4")
    a("s_lshl_b32 s42, s42, 2")
    a("s_add_u32 s42, s42, s45")
    if opt.xrot:
        a("s_lshl_b32 s43, s2, 1")
        a("s_add_u32 s42, s42, s43")
        a("s_and_b32 s42, s42, 15")
    a(f"s_mul_i32 s42, s42, {96*1024}")
    a(f"v_lshrrev_b32 v{t0}, 1, v1")
    a(f"v_lshlrev_b32 v{t0}, 10, v{t0}")
    a(f"v_and_b32 v{t1}, 1, v1")
    a(f"v_lshl_add_u32 v{t0}, v{t1}, 7, v{t0}")
    for k in range(3):
        for c in range(opt.tcb):
            a(f"buffer_load_dword v250, v{t0}, s[28:31], s42 offen offset:{256*c}")
        a("s_add_u32 s42, s42, 0x8000")
    a.label("L2W_nopf")
    stamp(a, opt)
    a.vm = []

    def issue(i):
        h = HF + 8 * (i % HR)
        lab = f"L2W_i{i}"
        a(f"s_bitcmp1_b32 s60, {i}")
        a(f"s_cbranch_scc1 {lab}_ok")
        a.label(f"{lab}_spin")
        a(f"ds_read2_b32 {vr(t0,2)}, v{VRH} offset0:0 offset1:16")
        a("s_waitcnt lgkmcnt(0)")
        a(f"v_and_b32 v{t0}, v{t0}, v{t1}")
        a(f"v_cmp_eq_u32 vcc, 1, v{t0}")
        a("s_mov_b32 s60, vcc_lo")
        a(f"s_bitcmp1_b32 s60, {i}")
        a(f"s_cbranch_scc0 {lab}_spin")
        a.label(f"{lab}_ok")
        tau(i, 40)
        a("s_lshl_b32 s40, s40, 12")
        a.vmop(f"buffer_load_dwordx4 {vr(h,4)}, v{VH0}, s[32:35], s40 offen sc1", ("h", i))
        a.vmop(f"buffer_load_dwordx4 {vr(h+4,4)}, v{VH1}, s[32:35], s40 offen sc1", ("h", i))

    a("s_waitcnt vmcnt(0)")
    wreads(2)
    for i in range(LA):
        issue(i)
        if i == 0:
            stamp(a, opt)
    for i in range(NI):
        if i + LA < NI:
            issue(i + LA)
        if i + 3 < NI:
            wreads(i + 3)
        a.vmwait(("h", i))
        if i == 0:
            stamp(a, opt)
        if i >= 2:
            a.dswait(("r", i))
        f = WF + 8 * (i % WR)
        h = HF + 8 * (i % HR)
        if i == 21:
            a("s_cmp_ge_u32 s45, 2")
            a("s_cbranch_scc1 L2W_skip")
        for L in range(4):
            lt, ln = L & 1, L >> 1
            acc = vr(ACB + 16 * L, 16)
            a(f"{MF32} {acc}, {vr(f+4*ln,4)}, {vr(h+4*lt,4)}, {'0' if i == 0 else acc}")
        if i == 21:
            a.label("L2W_skip")
        if opt.fine2 and i % 4 == 3:
            stamp(a, opt)
    stamp(a, opt)
    a(f"v_lshlrev_b32 v{t0}, 4, v1")
    a(f"v_add_u32 v{t0}, s59, v{t0}")
    a("s_nop 7")
    a("s_nop 1")
    for L in range(4):
        for q in range(4):
            p = 4 * L + q
            a(f"ds_write_b128 v{t0}, {vr(ACB+16*L+4*q,4)} offset:{(p>>1)*8192 + (p&1)*1024}")
    a("s_waitcnt lgkmcnt(0)")
    a("s_barrier")
    stamp_flush(a, opt, "L")
    a("s_endpgm")


C_VA, C_VX, C_VFL, C_VFW, C_VST, C_VGW, C_VFD = 2, 10, 12, 13, 14, 15, 19
C_T0, C_T1, C_T2 = 20, 21, 22
C_K1, C_K2 = 24, 26
C_WF, C_XF, C_ACC, C_TT, C_CF, C_SF = 32, 64, 96, 224, 236, 244


def dft32_consts(a):
    t0, t1, t2 = C_T0, C_T1, C_T2
    tc, ts = 96, 112
    a(f"v_and_b32 v{t0}, 15, v1")
    a(f"v_cvt_f32_u32 v{t0}, v{t0}")
    a(f"v_mul_f32 v{t0}, {f2u(1.0/32):#x}, v{t0}")
    a(f"v_lshrrev_b32 v{t1}, 4, v1")
    a(f"v_cvt_f32_u32 v{t1}, v{t1}")
    a(f"v_mul_f32 v{t1}, 4.0, v{t1}")
    for rho in range(2):
        if rho:
            a(f"v_add_f32 v{t0}, 0.5, v{t0}")
        a(f"v_mul_f32 v{t2}, v{t0}, v{t1}")
        for sg in range(8):
            s1c = 16 * (sg >> 2) + (sg & 3)
            a(f"v_fmamk_f32 v{tc+8*rho+sg}, v{t0}, {f2u(float(s1c)):#x}, v{t2}")
    for i in range(16):
        a(f"v_fract_f32 v{tc+i}, v{tc+i}")
    for i in range(16):
        a(f"v_sin_f32 v{ts+i}, v{tc+i}")
    for i in range(16):
        a(f"v_cos_f32 v{tc+i}, v{tc+i}")
    a("s_nop 0")
    for i in range(8):
        a(f"v_cvt_pk_bf16_f32 v{C_CF+i}, v{tc+2*i}, v{tc+2*i+1}")
        a(f"v_cvt_pk_bf16_f32 v{C_SF+i}, v{ts+2*i}, v{ts+2*i+1}")


def ffn_epi(p):
    A, TT = C_ACC + 16 * p, C_TT
    r = []
    for v in range(0, 8, 2):
        r.append(f"v_pk_mul_f32 {vr(TT+v,2)}, {vr(A+v,2)}, {vr(A+v,2)}")
    for v in range(0, 8, 2):
        r.append(f"v_pk_fma_f32 {vr(TT+v,2)}, {vr(TT+v,2)}, {vr(C_K2,2)}, {vr(C_K1,2)}")
    for v in range(0, 8, 2):
        r.append(f"v_pk_mul_f32 {vr(TT+v,2)}, {vr(TT+v,2)}, {vr(A+v,2)}")
    for v in range(8):
        r.append(f"v_exp_f32 v{TT+v}, v{TT+v}")
    for v in range(0, 8, 2):
        r.append(f"v_pk_mul_f32 {vr(A+8+v,2)}, {vr(A+v,2)}, {vr(A+8+v,2)}")
    for v in range(0, 8, 2):
        r.append(f"v_pk_add_f32 {vr(TT+v,2)}, {vr(TT+v,2)}, 1.0 op_sel_hi:[1,0]")
    for v in range(8):
        r.append(f"v_rcp_f32 v{TT+v}, v{TT+v}")
    for v in range(0, 8, 2):
        r.append(f"v_pk_mul_f32 {vr(A+8+v,2)}, {vr(A+8+v,2)}, {vr(TT+v,2)}")
    for i in (0, 2, 1, 3):
        r.append(f"v_cvt_pk_bf16_f32 v{A+i}, v{A+8+2*i}, v{A+8+2*i+1}")
    r.append(f"v_permlane16_swap_b32 v{A}, v{A+2}")
    r.append("s_nop 0")
    r.append(f"v_permlane16_swap_b32 v{A+1}, v{A+3}")
    so = "s42" if p < 4 else "s43"
    r.append(f"buffer_store_dwordx4 {vr(A,4)}, v{C_VST}, s[32:35], {so} offen offset:{(p%4)*1024} sc1")
    return r


def spec_epi(p):
    A, TT = C_ACC + 16 * p, (C_TT if p & 1 else C_XF + 16)
    r = []
    for i in range(8):
        r.append(f"v_cvt_pk_bf16_f32 v{TT+i}, v{A+2*i}, v{A+2*i+1}")
    for i in range(4):
        r.append(f"v_cvt_pk_bf16_f32 v{TT+8+i}, -v{A+8+2*i}, -v{A+8+2*i+1}")
    pa, pb, pn = vr(TT, 4), vr(TT + 4, 4), vr(TT + 8, 4)
    for rho in range(2):
        zr = vr(A + 4 * rho, 4)
        r.append(f"{MF16} {zr}, {vr(C_CF+4*rho,4)}, {pa}, 0")
        r.append(f"{MF16} {zr}, {vr(C_SF+4*rho,4)}, {pb}, {zr}")
    for rho in range(2):
        zm = vr(A + 8 + 4 * rho, 4)
        r.append(f"{MF16} {zm}, {vr(C_SF+4*rho,4)}, {pa}, 0")
        r.append(f"{MF16} {zm}, {vr(C_CF+4*rho,4)}, {pn}, {zm}")
    return r


def spec_pack(p):
    A = C_ACC + 16 * p
    r = [f"v_cvt_pk_bf16_f32 v{A+rg}, v{A+rg}, v{A+8+rg}" for rg in range(8)]
    r += [f"ds_write_b128 v{C_T0}, {vr(A+4*rho,4)} offset:{(2*p+rho)*4096}" for rho in range(2)]
    return r


def p1_compute(a, opt, kind):
    T = {"ffn6": 6, "spec6": 6, "spec4g": 4, "ffn8": 8}[kind]
    hasg = kind == "spec4g"
    lab_kind = kind
    kind = "spec" if kind.startswith("spec") else kind
    a.ds = []
    VA, VX, VFL, VFW, VST, VGW, VFD = C_VA, C_VX, C_VFL, C_VFW, C_VST, C_VGW, C_VFD
    t0, t1, t2 = C_T0, C_T1, C_T2
    WF, XF, ACC = C_WF, C_XF, C_ACC
    GACC = ACC + 96
    a.label(f"L1C_{lab_kind}")
    if kind == "spec":
        a(f"v_lshrrev_b32 v{t1}, 4, v1")
        a(f"v_mul_u32_u24 v{t1}, {4*ZR_B}, v{t1}")
        a(f"v_and_b32 v{t0}, 15, v1")
        a(f"v_lshl_add_u32 v{VST}, v{t0}, 4, v{t1}")
        if hasg:
            a(f"v_lshrrev_b32 v{t0}, 4, v1")
            a(f"v_lshlrev_b32 v{t0}, 4, v{t0}")
            a(f"v_and_b32 v{t1}, 1, v1")
            a(f"v_lshl_add_u32 v{t0}, v{t1}, 10, v{t0}")
            a(f"v_add_u32 v{t2}, {GW_LDS}, v{t0}")
        srd(a, 32, 18, 19, Z_SIZE, Z_OFF)
        a("s_mul_i32 s42, s22, 96")
        a(f"s_mul_i32 s43, s21, {EP}")
        a("s_add_u32 s42, s42, s43")
        a("s_lshr_b32 s43, s45, 1")
        a("s_lshl_b32 s43, s43, 4")
        a("s_add_u32 s42, s42, s43")
        a("s_lshl_b32 s42, s42, 4")
        a("s_and_b32 s43, s45, 1")
        a(f"s_mul_i32 s43, s43, {16*ZR_B}")
        a("s_add_u32 s42, s42, s43")
    else:
        for i in range(2):
            a(f"v_mov_b32 v{C_K1+i}, {f2u(C1):#x}")
            a(f"v_mov_b32 v{C_K2+i}, {f2u(C2):#x}")
        a(f"v_lshlrev_b32 v{VST}, 4, v1")
        srd(a, 32, 18, 19, H_SIZE, H_OFF)
        a("s_mul_i32 s42, s23, 86")
        a("s_lshl_b32 s43, s22, 3")
        a("s_add_u32 s42, s42, s43")
        a("s_lshl_b32 s42, s42, 10")
        a("s_add_u32 s43, s42, 4096")
    stamp(a, opt)

    G = 2 * T
    units = []
    tail = 0 if kind == "spec" else opt.tail
    for s in range(8 - (2 if tail == 2 else 0)):
        if hasg:
            units.append((s, G))
        units += [(s, u) for u in range(2 * T)]
    if tail == 2:
        for p in range(T):
            if p == 0 and kind == "ffn6g":
                units.append((6, G))
            units += [(6, 2 * p), (6, 2 * p + 1)]
            if p == 0 and kind == "ffn6g":
                units.append((7, G))
            units += [(7, 2 * p), (7, 2 * p + 1)]
    N = len(units)
    first = {}
    last = {}
    for n, (s, u) in enumerate(units):
        first.setdefault(s, n)
        last[s] = n
    LA = 2

    def delta(s):
        return SSZ if (s % NB) < 2 else -2 * SSZ

    def unit_reads(n):
        s, u = units[n]
        f = WF + 8 * (n % 4)
        if u == G:
            return [f"ds_read_b128 {vr(f,4)}, v{VGW}", f"ds_read_b128 {vr(f+4,4)}, v{VGW} offset:64"]
        p, m = u >> 1, u & 1
        r = []
        for ks in range(2):
            off = m * 16384 + ks * 8192
            r.append(f"ds_read_b64_tr_b16 {vr(f+4*ks,2)}, v{VA+p} offset:{off}")
            r.append(f"ds_read_b64_tr_b16 {vr(f+4*ks+2,2)}, v{VA+p} offset:{off+1024}")
        return r[:1] if opt.noreads else r

    def upd(reg, s):
        d = delta(s)
        return f"v_add_u32 v{reg}, {d}, v{reg}" if d > 0 else f"v_subrev_u32 v{reg}, {-d}, v{reg}"

    def side_ops(n):
        s, u = units[n]
        ops = []
        if first[s] == n:
            xb = XF + 16 * (s & 1)
            if hasg:
                ops.append(("s_lshl_b32 s44, s49, 7", None))
                ops.append((f"v_add_u32 v{VGW}, s44, v{t2}", None))
            for rt in range(2):
                for ks in range(2):
                    ops.append((f"ds_read_b128 {vr(xb+8*rt+4*ks,4)}, v{VX+ks} offset:{rt*2048}", ("x", s)))
        ops += [(r, ("u", n)) for r in unit_reads(n)]
        if first[s] == n:
            if s < 7:
                ops += [(upd(VX + ks, s), None) for ks in range(2)]
            if hasg:
                ops.append(("s_add_u32 s49, s49, 1", None))
                ops.append(("s_and_b32 s49, s49, 7", None))
        if u != G and (u & 1) and s < 7:
            ops.append((upd(VA + (u >> 1), s), None))

        return ops

    def emit(op):
        if op[1] is None:
            a(op[0])
        else:
            a.dsop(op[0], op[1])

    epi = spec_epi if kind == "spec" else ffn_epi
    fill = []
    a("s_barrier")
    stamp(a, opt)
    for n in range(LA):
        for op in side_ops(n):
            emit(op)
    pend = []
    for n in range(N):
        s, u = units[n]
        boundary = (n + LA < N and first[units[n + LA][0]] == n + LA) or n + LA == N
        if n + LA < N:
            pend += side_ops(n + LA)
        a.dswait(("u", n))
        f = WF + 8 * (n % 4)
        xb = XF + 16 * (s & 1)
        nxt_boundary = n >= 1 and first[units[min(n + 1, N - 1)][0]] == n + 1
        for j in range(4):
            rt, ks = j >> 1, j & 1
            if u == G:
                acc = vr(GACC + 4 * rt, 4)
            else:
                acc = vr(ACC + 16 * (u >> 1) + 8 * (u & 1) + 4 * rt, 4)
            w_, x_ = vr(f + 4 * ks, 4), vr(xb + 8 * rt + 4 * ks, 4)
            srcc = "0" if (s == 0 and ks == 0) else acc
            if kind == "spec" or u == G:
                a(f"{MF16} {acc}, {x_}, {w_}, {srcc}")
            else:
                a(f"{MF16} {acc}, {w_}, {x_}, {srcc}")
            if boundary:
                if j == opt.bpos:
                    a("s_waitcnt lgkmcnt(0)")
                    a("s_barrier")
                    if opt.fine:
                        stamp(a, opt)
                cnt = 2 if j >= opt.bpos else 0
            else:
                cnt = -(-len(pend) // (4 - j))
            for _ in range(min(cnt, len(pend))):
                emit(pend.pop(0))
            k = 0
            while fill and k < opt.fpg and fill[0][0] <= a.n:
                a(fill.pop(0)[1])
                k += 1
        if tail and s == 7 and u != G and (u & 1):
            at = a.n + 9
            fill += [(at, i) for i in epi(u >> 1)]
    assert not pend
    stamp(a, opt)
    if tail:
        while fill:
            at, ins = fill.pop(0)
            if at > a.n:
                a(f"s_nop {min(at - a.n - 1, 15)}")
                a.n = at
            a(ins)
    else:
        a("s_nop 7")
        if kind != "spec":
            for p in range(T):
                for ins in epi(p):
                    a(ins)
        else:
            a(f"v_lshlrev_b32 v{t1}, 4, v1")
            a("s_lshl_b32 s43, s45, 10")
            a(f"s_add_u32 s43, s43, {SSZ}")
            a(f"v_add_u32 v{t0}, s43, v{t1}")
            a("s_lshl_b32 s43, s45, 12")
            a(f"s_add_u32 s43, s43, {SSZ}")
            a(f"v_add_u32 v{t1}, s43, v{t1}")
            if hasg:
                A, TT, ZR = GACC, C_TT, GACC + 8
                for i in range(4):
                    a(f"v_cvt_pk_bf16_f32 v{TT+i}, v{A+2*i}, v{A+2*i+1}")
                srd(a, 36, 18, 19, G_SIZE, G_OFF)
                for rho in range(2):
                    a(f"{MF16} {vr(ZR+4*rho,4)}, {vr(C_CF+4*rho,4)}, {vr(TT,4)}, 0")
                    a(f"{MF16} {vr(ZR+8+4*rho,4)}, {vr(C_SF+4*rho,4)}, {vr(TT,4)}, 0")
                for i in range(4):
                    a(f"v_lshlrev_b32 v{A+2*i}, 16, v{TT+i}")
                    a(f"v_and_b32 v{A+2*i+1}, 0xffff0000, v{TT+i}")
                for i in range(8):
                    a(f"v_mul_f32 v{A+i}, {f2u(-1.4426950408889634):#x}, v{A+i}")
                for i in range(8):
                    a(f"v_exp_f32 v{A+i}, v{A+i}")
                for i in range(8):
                    a(f"v_add_f32 v{A+i}, 1.0, v{A+i}")
                for i in range(8):
                    a(f"v_rcp_f32 v{A+i}, v{A+i}")
                for rg in range(8):
                    a(f"v_cvt_pk_bf16_f32 v{ZR+rg}, v{ZR+rg}, v{ZR+8+rg}")
                for rho in range(2):
                    a(f"ds_write_b128 v{t0}, {vr(ZR+4*rho,4)} offset:{(2*T+rho)*4096}")
                for i in range(4):
                    a(f"v_cvt_pk_bf16_f32 v{TT+i}, v{A+2*i}, v{A+2*i+1}")
                for i in range(4):
                    a(f"v_lshlrev_b32 v{A+2*i}, 16, v{TT+i}")
                    a(f"v_and_b32 v{A+2*i+1}, 0xffff0000, v{TT+i}")
                a("s_lshl_b32 s43, s23, 7")
                a("s_mov_b32 exec_lo, 0x00010001")
                a("s_mov_b32 exec_hi, 0x00010001")
                a(f"buffer_store_dwordx4 {vr(A,4)}, v1, s[36:39], s43 offen sc1")
                a(f"buffer_store_dwordx4 {vr(A+4,4)}, v1, s[36:39], s43 offen offset:64 sc1")
                a("s_mov_b64 exec, -1")
            for p in range(T + 1):
                if p < T:
                    for ins in epi(p):
                        a(ins)
                else:
                    a("s_nop 7")
                if p > 0:
                    for ins in spec_pack(p - 1):
                        a(ins)
            a("s_waitcnt lgkmcnt(0)")
            a("s_barrier")
            NG = T // 2 + (1 if hasg else 0)
            for k in range(NG):
                for w in range(4):
                    a(f"ds_read_b128 {vr(WF+16*k+4*w,4)}, v{t1} offset:{k*16384 + w*1024}")
            for k in range(NG):
                R = WF + 16 * k
                a(f"s_waitcnt lgkmcnt({4*(NG-1-k)})")
                for i in range(4):
                    for j in range(i + 1, 4):
                        a(f"v_swap_b32 v{R+4*i+j}, v{R+4*j+i}")
                off = 512 * k
                if hasg and k == NG - 1:
                    a("s_cmp_ge_u32 s45, 2")
                    a("s_cbranch_scc1 L1C_no256")
                    a("s_mov_b32 exec_lo, 0x00020002")
                    a("s_mov_b32 exec_hi, 0x00020002")
                    off -= 16
                for b in range(4):
                    a(f"s_add_u32 s43, s42, {b*ZR_B}")
                    a(f"buffer_store_dwordx4 {vr(R+4*b,4)}, v{VST}, s[32:35], s43 offen offset:{off} sc1")
            if hasg:
                a("s_mov_b64 exec, -1")
                a.label("L1C_no256")
            a("s_barrier")

    stamp(a, opt)
    a("s_branch L2C")


def p2_combine(a, opt):
    VFD = C_VFD
    t0, t1, t2 = C_T0, C_T1, C_T2
    VZ, VO, VG = 23, 24, 25
    ZF, ACY, PT, BF, TR = 160, 192, 96, 208, 2
    a.label("L2C")
    a("s_and_b32 s42, s45, 1")
    a("s_lshl_b32 s42, s42, 5")
    a("s_add_u32 s42, s42, s54")
    a("s_lshr_b32 s43, s45, 1")
    a("s_lshl_b32 s43, s43, 5")
    a("s_lshl_b32 s44, s55, 6")
    a("s_add_u32 s43, s43, s44")
    a(f"v_bfe_u32 v{t0}, v1, 2, 1")
    a(f"v_lshlrev_b32 v{t0}, 4, v{t0}")
    a(f"v_and_or_b32 v{t0}, v1, 3, v{t0}")
    a(f"v_bfe_u32 v{t1}, v1, 3, 2")
    a(f"v_lshlrev_b32 v{t1}, 2, v{t1}")
    a(f"v_add3_u32 v{t0}, v{t0}, v{t1}, s43")
    a(f"v_and_b32 v{t1}, 31, v1")
    a("s_lshl_b32 s44, s42, 7")
    a(f"v_lshl_add_u32 v{VG}, v{t1}, 2, s44")
    a(f"v_lshl_add_u32 v{t1}, v{t1}, 6, s42")
    a(f"v_lshrrev_b32 v{t2}, 5, v1")
    a(f"v_lshlrev_b32 v{VO}, 10, v{t1}")
    a(f"v_lshl_add_u32 v{VO}, v{t2}, 5, v{VO}")
    a("s_lshl_b32 s44, s43, 1")
    a(f"v_add_u32 v{VO}, s44, v{VO}")
    a("s_mov_b32 s64, s54")
    a("s_cmp_lt_u32 s55, 4")
    a("s_cbranch_scc1 L2C_nomirror")
    a(f"v_sub_u32 v{t0}, 0x200, v{t0}")
    a(f"v_sub_u32 v{t1}, 0x800, v{t1}")
    a(f"v_and_b32 v{t1}, 0x7ff, v{t1}")
    a("s_sub_u32 s64, 32, s54")
    a("s_and_b32 s64, s64, 31")
    a.label("L2C_nomirror")
    a(f"v_mul_u32_u24 v{VZ}, {8*EP*16}, v{t2}")
    a(f"v_lshl_add_u32 v{VZ}, v{t0}, 4, v{VZ}")
    a(f"s_mul_i32 s64, s64, {ZR_B}")
    a(f"v_cvt_f32_u32 v26, v{t1}")
    a(f"v_mul_f32 v26, {f2u(-1.0/2048):#x}, v26")
    a(f"v_cvt_f32_u32 v27, v{t2}")
    a(f"v_mul_f32 v27, {f2u(16.0):#x}, v27")
    a("v_mul_f32 v27, v26, v27")

    def trig(o):
        for q in range(8):
            ks_, qq = (8 * o + q) >> 2, q & 3
            a(f"v_fmamk_f32 v{TR+q}, v26, {f2u(float(2*ks_ + (qq&1) + 32*(qq>>1))):#x}, v27")
        for q in range(8):
            a(f"v_fract_f32 v{TR+q}, v{TR+q}")
        for q in range(8):
            a(f"v_sin_f32 v{TR+8+q}, v{TR+q}")
        for q in range(8):
            a(f"v_cos_f32 v{TR+q}, v{TR+q}")
        a("s_nop 0")
        for q in range(8):
            a(f"v_cvt_pk_bf16_f32 v{BF+8*o+q}, v{TR+q}, v{TR+8+q}")

    trig(2)
    trig(3)
    srd(a, 36, 18, 19, F_SIZE, F_OFF)
    a(f"v_mov_b32 v{t0}, {FLG}")
    a(f"v_mov_b32 v{t1}, 1")
    a(f"v_lshlrev_b32 v{t2}, 7, v1")
    a("s_waitcnt vmcnt(0)")
    stamp(a, opt)
    a("s_bitcmp1_b32 s65, 0")
    a("s_cbranch_scc0 L2C_noh")
    a("s_mov_b64 exec, 0xff")
    a(f"buffer_store_dword v{t1}, v{t2}, s[36:39], s63 offen sc1")
    a.label("L2C_noh")
    a("s_bitcmp1_b32 s65, 1")
    a("s_cbranch_scc0 L2C_noz")
    a("s_mov_b64 exec, 1")
    a(f"ds_add_rtn_u32 v{VFD}, v{t0}, v{t1}")
    srd(a, 24, 52, 53, 256)
    a("s_waitcnt lgkmcnt(0)")
    a(f"v_cmp_ne_u32 vcc, 3, v{VFD}")
    a("s_cbranch_vccnz L2C_noz")
    a("s_lshr_b32 s42, s46, 1")
    a("s_add_u32 s42, s42, 1")
    a(f"v_mov_b32 v{VFD}, s42")
    a(f"buffer_atomic_add v{VFD}, v{t2}, s[24:27], 0 offen offset:128 sc0 sc1")
    a("s_waitcnt vmcnt(0)")
    a(f"v_add_u32 v{VFD}, s42, v{VFD}")
    a(f"v_and_b32 v{VFD}, 63, v{VFD}")
    a(f"v_cmp_ne_u32 vcc, 0, v{VFD}")
    a("s_cbranch_vccnz L2C_noz")
    a("s_mov_b64 exec, -1")
    for i in range(4):
        a(f"s_movk_i32 s42, {i*8192}")
        a(f"buffer_store_dword v{t1}, v{t2}, s[36:39], s42 offen offset:124 sc1")
    a.label("L2C_noz")
    a("s_mov_b64 exec, -1")
    a("s_lshl_b32 s42, s54, 3")
    a("s_add_u32 s42, s42, s55")
    a("s_lshl_b32 s42, s42, 7")
    a(f"v_and_b32 v{VFD}, 15, v1")
    a(f"v_min_u32 v{VFD}, 10, v{VFD}")
    a(f"v_and_or_b32 v{VFD}, v1, 16, v{VFD}")
    a("v_cmp_gt_u32 vcc, 32, v1")
    a(f"s_mov_b32 s43, {RH}")
    a(f"v_lshl_add_u32 v{t2}, v1, 4, s42")
    a(f"v_cndmask_b32 v{VFD}, 31, v{VFD}, vcc")
    a(f"v_lshl_add_u32 v{t0}, v{VFD}, 2, s43")
    a(f"s_mov_b32 m0, {RH}")
    a("s_cmp_lg_u32 s45, 0")
    a("s_cbranch_scc1 L2C_t01")
    a("s_mov_b64 exec, 0xff")
    a(f"buffer_load_dwordx4 v{t2}, s[36:39], 0 offen sc1 lds")
    a("s_mov_b64 exec, -1")
    a.label("L2C_t01")
    trig(0)
    a("s_cbranch_scc1 L2C_t1")
    a("s_mov_b64 exec, 0xff")
    a(f"buffer_load_dwordx4 v{t2}, s[36:39], 0 offen sc1 lds")
    a("s_mov_b64 exec, -1")
    a.label("L2C_t1")
    trig(1)
    srd(a, 32, 18, 19, Z_SIZE, Z_OFF)
    srd(a, 24, 18, 19, G_SIZE, G_OFF)
    srd(a, 28, 6, 7, 2048 * 1024)
    a.label("L2C_wz")
    a("s_cmp_lg_u32 s45, 0")
    a("s_cbranch_scc1 L2C_wz1")
    a("s_mov_b64 exec, 0xff")
    a(f"buffer_load_dwordx4 v{t2}, s[36:39], 0 offen sc1 lds")
    a("s_mov_b64 exec, -1")
    a(f"s_waitcnt vmcnt({opt.pq})")
    if opt.psleep:
        a(f"s_sleep {opt.psleep}")
    a.label("L2C_wz1")
    a(f"ds_read_b32 v{VFD}, v{t0}")
    a("s_waitcnt lgkmcnt(0)")
    a(f"v_cmp_ne_u32 vcc, v{t1}, v{VFD}")
    a("s_cmp_lg_u32 vcc_hi, 0")
    a("s_cbranch_scc1 L2C_wz")
    stamp(a, opt)
    a(f"buffer_load_dword v10, v{VG}, s[24:27], 0 offen sc1")
    for ks in range(8):
        a(f"buffer_load_dwordx4 {vr(ZF+4*ks,4)}, v{VZ}, s[32:35], s64 offen sc1")
        if ks < 7:
            a(f"s_add_u32 s64, s64, {EP*16}")
    a("s_cmp_lg_u32 s45, 0")
    a("s_cbranch_scc1 L2C_y")
    a("s_cbranch_vccz L2C_y")
    a.label("L2C_wh")
    a("s_mov_b64 exec, 0xff")
    a(f"buffer_load_dwordx4 v{t2}, s[36:39], 0 offen sc1 lds")
    a("s_mov_b64 exec, -1")
    a(f"s_waitcnt vmcnt({opt.pq})")
    if opt.psleep:
        a(f"s_sleep {opt.psleep}")
    a(f"ds_read_b32 v{VFD}, v{t0}")
    a("s_waitcnt lgkmcnt(0)")
    a(f"v_cmp_ne_u32 vcc, v{t1}, v{VFD}")
    a("s_cbranch_vccnz L2C_wh")
    a("s_waitcnt vmcnt(0)")
    a.label("L2C_y")
    a(f"v_lshlrev_b32 v{t0}, 4, v1")
    a("s_lshl_b32 s42, s45, 14")
    a(f"v_add_u32 v{t0}, s42, v{t0}")
    for ks in range(8):
        a(f"s_waitcnt vmcnt({7-ks})")
        acc = vr(ACY, 16)
        a(f"{MF32} {acc}, {vr(ZF+4*ks,4)}, {vr(BF+4*ks,4)}, {'0' if ks == 0 else acc}")
    a("v_sub_f32 v11, 1.0, v10")
    a("v_cvt_pk_bf16_f32 v11, v11, v11")
    a("v_and_b32 v11, 0xffff0000, v11")
    a("s_nop 7")
    a("s_nop 1")
    for rg in range(16):
        a(f"v_mul_f32 v{ACY+rg}, v10, v{ACY+rg}")
    stamp(a, opt)
    a("s_barrier")
    for w in range(4):
        for q in range(4):
            a(f"ds_read_b128 {vr(PT+16*w+4*q,4)}, v{t0} offset:{w*2048 + (q>>1)*8192 + (q&1)*1024}")
        if w == 2:
            a("s_waitcnt lgkmcnt(4)")
            for rg in range(0, 16, 2):
                a(f"v_pk_add_f32 {vr(PT+rg,2)}, {vr(PT+rg,2)}, {vr(PT+16+rg,2)}")
    a("s_waitcnt lgkmcnt(0)")
    for rg in range(0, 16, 2):
        a(f"v_pk_add_f32 {vr(PT+32+rg,2)}, {vr(PT+32+rg,2)}, {vr(PT+48+rg,2)}")
    for rg in range(0, 16, 2):
        a(f"v_pk_add_f32 {vr(PT+rg,2)}, {vr(PT+rg,2)}, {vr(PT+32+rg,2)}")
    for rg in range(16):
        a(f"v_fmac_f32 v{ACY+rg}, v11, v{PT+rg}")
    for i in range(8):
        a(f"v_cvt_pk_bf16_f32 v{32+i}, v{ACY+2*i}, v{ACY+2*i+1}")
    a(f"buffer_store_dwordx4 v[32:35], v{VO}, s[28:31], 0 offen")
    a(f"buffer_store_dwordx4 v[36:39], v{VO}, s[28:31], 0 offen offset:16")
    stamp(a, opt)
    stamp_flush(a, opt, "C")
    a("s_endpgm")


def compute_prologue(a, opt):
    t0, t1, t2 = C_T0, C_T1, C_T2
    if opt.pf:
        a(f"s_cmp_eq_u32 s46, {K_SPEC}")
        a("s_mov_b32 s47, 2752")
        a("s_cselect_b32 s47, 1024, s47")
        a("s_cmp_eq_u32 s22, 10")
        a("s_movk_i32 s40, 252")
        a("s_cselect_b32 s40, 188, s40")
        a(f"v_lshrrev_b32 v{t2}, 5, v1")
        a(f"v_bfe_u32 v{t0}, v1, 2, 3")
        a(f"v_lshl_add_u32 v{t0}, v{t2}, 7, v{t0}")
        a("s_lshl_b32 s44, s42, 3")
        a("s_add_u32 s44, s44, s55")
        a("s_lshl_b32 s44, s44, 3")
        a(f"v_add_u32 v{t0}, s44, v{t0}")
        a(f"v_mul_u32_u24 v{t0}, s47, v{t0}")
        a(f"v_and_b32 v{t1}, 3, v1")
        a(f"v_lshlrev_b32 v{t1}, 7, v{t1}")
        a(f"v_min_u32 v{t1}, s40, v{t1}")
        a("s_lshl_b32 s44, s22, 8")
        a(f"v_add3_u32 v{t0}, v{t0}, v{t1}, s44")
        a(f"v_and_b32 v{t1}, 31, v1")
        a(f"v_lshlrev_b32 v{t1}, 16, v{t1}")
        a(f"v_mul_u32_u24 v{t2}, 384, v{t2}")
        a("s_lshl_b32 s44, s23, 3")
        a("s_lshr_b32 s41, s2, 6")
        a("s_add_u32 s44, s44, s41")
        a("s_lshl_b32 s44, s44, 7")
        a(f"v_add3_u32 v{t1}, v{t1}, v{t2}, s44")
        a("s_lshl_b32 s40, s47, 6")
        a("s_mul_i32 s41, s40, 5")
        a("s_lshl_b32 s30, s47, 9")
        a("s_mov_b32 s31, 0x20000")
        a("s_waitcnt lgkmcnt(0)")
        srd(a, 24, 4, 5, 2048 * 1024)
        a(f"s_cmp_eq_u32 s46, {K_SPEC}")
        a("s_cselect_b64 s[12:13], s[8:9], s[12:13]")
        a("s_cselect_b64 s[14:15], s[10:11], s[14:15]")
        a("s_cmp_ge_u32 s45, 2")
        a("s_cselect_b64 s[28:29], s[14:15], s[12:13]")
        a(f"buffer_load_dword v29, v{t0}, s[28:31], s40 offen")
        a(f"buffer_load_dword v30, v{t1}, s[24:27], 0 offen offset:128")
        a(f"buffer_load_dword v31, v{t0}, s[28:31], s41 offen")
    a(f"v_lshlrev_b32 v{t0}, 3, v1")
    a(f"v_add_u32 v{t0}, {FLG}, v{t0}")
    a("v_mov_b32 v2, 0")
    a("v_mov_b32 v3, 0")
    a(f"ds_write_b64 v{t0}, v[2:3]")
    a("s_waitcnt lgkmcnt(0)")
    stamp(a, opt)
    a("s_and_b32 s63, s23, 31")
    a("s_lshl_b32 s63, s63, 8")
    a("s_lshr_b32 s44, s23, 5")
    a("s_lshl_b32 s44, s44, 4")
    a("s_add_u32 s63, s63, s44")
    a("s_add_u32 s63, s63, s22")
    a("s_lshl_b32 s63, s63, 2")
    a(f"s_cmp_eq_u32 s46, {K_IDLE}")
    a("s_cbranch_scc1 L1C_idle")
    a(f"v_bfe_u32 v{t0}, v1, 2, 2")
    a(f"v_lshrrev_b32 v{t1}, 4, v1")
    a(f"v_lshl_add_u32 v{t1}, v{t1}, 3, v{t0}")
    a(f"v_lshlrev_b32 v{t1}, 8, v{t1}")
    a(f"v_bfe_u32 v{t0}, v1, 2, 3")
    a(f"v_lshl_add_u32 v{t1}, v{t0}, 5, v{t1}")
    a(f"v_and_b32 v{t0}, 3, v1")
    a(f"v_lshl_add_u32 v{C_VA}, v{t0}, 3, v{t1}")
    for t in range(1, 8):
        a(f"v_xor_b32 v{C_VA+t}, {t*32}, v{C_VA}")
    a(f"v_and_b32 v{t0}, 15, v1")
    a(f"v_lshrrev_b32 v{t1}, 1, v{t0}")
    a(f"v_lshrrev_b32 v{t2}, 4, v1")
    a(f"v_xor_b32 v{t1}, v{t1}, v{t2}")
    a(f"v_lshlrev_b32 v{t1}, 4, v{t1}")
    a(f"v_lshl_add_u32 v{t0}, v{t0}, 7, v{t1}")
    a(f"v_add_u32 v{C_VX}, s48, v{t0}")
    a(f"v_xor_b32 v{C_VX+1}, 64, v{C_VX}")
    a("s_mov_b32 s65, 1")
    a(f"s_cmp_eq_u32 s46, {K_6G}")
    a("s_cbranch_scc1 L1C_ffn6")
    a("s_cmp_lg_u32 s46, 0")
    a("s_cbranch_scc1 L1C_specs")


def idle_compute(a, opt):
    t0, t1, t2 = C_T0, C_T1, C_T2
    a.label("L1C_idle")
    a("s_mov_b32 s65, 0")
    srd(a, 24, 52, 53, 256)
    a(f"v_mov_b32 v{t1}, 0")
    a("s_cmp_lg_u32 s55, 4")
    a("s_cbranch_scc1 L1_noinit")
    srd(a, 36, 18, 19, F_SIZE, F_OFF)
    for i in range(4):
        a(f"v_mov_b32 v{32+i}, 0")
    a(f"v_lshlrev_b32 v{t0}, 4, v1")
    a("s_and_b32 s42, s2, 7")
    a("s_lshl_b32 s42, s42, 2")
    a("s_add_u32 s42, s42, s45")
    a("s_lshl_b32 s42, s42, 10")
    a(f"buffer_store_dwordx4 v[32:35], v{t0}, s[36:39], s42 offen sc1")
    a(f"v_mov_b32 v{t2}, 1")
    a.label("L1_noinit")
    if opt.codepf:
        a("s_getpc_b64 s[36:37]")
        a.label("L_pcref")
        a(f"s_sub_u32 s36, s36, L_pcref-{NAME}_kernel")
        a("s_subb_u32 s37, s37, 0")
        a(f"s_mov_b32 s38, L_exit-{NAME}_kernel")
        a("s_mov_b32 s39, 0x20000")
        a("s_sub_u32 s42, s55, 4")
        a("s_lshl_b32 s42, s42, 2")
        a("s_add_u32 s42, s42, s45")
        a("s_and_b32 s42, s42, 7")
        a("s_mul_i32 s42, s42, 5888")
        a(f"v_lshlrev_b32 v{t0}, 7, v1")
        a(f"buffer_load_dword v250, v{t0}, s[36:39], s42 offen")
    a("s_waitcnt vmcnt(0)")
    a("s_cmp_lg_u32 s55, 4")
    a("s_cbranch_scc1 L1_noinit2")
    a("s_mov_b64 exec, 1")
    a(f"buffer_atomic_add v{t2}, v{t1}, s[24:27], 0 offen sc1")
    a("s_mov_b64 exec, -1")
    a.label("L1_noinit2")
    a("s_barrier")
    a("s_cmp_lg_u32 s45, 0")
    a("s_cbranch_scc1 L2C")
    a.label("L1C_idle_go")
    a("s_sleep 32")
    a(f"buffer_load_dword v{t2}, v{t1}, s[24:27], 0 offen sc1")
    a("s_waitcnt vmcnt(0)")
    a(f"v_cmp_gt_u32 vcc, 32, v{t2}")
    a("s_cbranch_vccnz L1C_idle_go")
    a("s_branch L2C")


def kernel(a, opt):
    a.label(NAME + "_kernel")
    a("s_cmp_ge_u32 s2, 256")
    a("s_cbranch_scc1 L_exit")
    if opt.stamps:
        a("v_mov_b32 v255, 0")
        a("v_mov_b32 v253, 0")
        a("s_mov_b32 s89, 0")
        stamp(a, opt)
    a("s_load_dwordx2 s[4:5], s[0:1], 0")
    a("s_load_dwordx4 s[8:11], s[0:1], 24")
    a("s_load_dwordx4 s[12:15], s[0:1], 48")
    a("s_load_dwordx2 s[50:51], s[0:1], 64")
    a("s_load_dwordx2 s[16:17], s[0:1], 72")
    a("s_load_dwordx2 s[6:7], s[0:1], 80")
    a("s_load_dwordx2 s[52:53], s[0:1], 88")
    a("s_load_dwordx2 s[18:19], s[0:1], 96")
    a("v_lshrrev_b32 v2, 6, v0")
    a("v_and_b32 v1, 63, v0")
    a("v_readfirstlane_b32 s20, v2")
    a("s_bfe_u32 s55, s2, 0x30003")
    a("s_bfe_u32 s42, s2, 0x20001")
    a("s_lshr_b32 s44, s2, 6")
    a("s_and_b32 s54, s2, 7")
    a("s_lshl_b32 s54, s54, 2")
    a("s_add_u32 s54, s54, s44")
    a("s_and_b32 s21, s2, 1")
    a("s_lshl_b32 s21, s21, 3")
    a("s_lshl_b32 s43, s44, 1")
    a("s_add_u32 s56, s55, s43")
    if opt.xrot:
        a("s_add_u32 s56, s56, s2")
    a("s_and_b32 s56, s56, 7")
    a("s_mul_i32 s56, s56, 21")
    a("s_lshr_b32 s56, s56, 3")
    a("s_cmp_eq_u32 s44, 3")
    a("s_cbranch_scc1 L_cl3")
    a("s_add_u32 s21, s21, s55")
    a("s_mul_i32 s49, s44, 3")
    a("s_add_u32 s49, s49, s55")
    a("s_mul_i32 s22, s42, 3")
    a("s_min_u32 s22, s22, 8")
    a("s_add_u32 s22, s22, s44")
    a("s_mov_b32 s46, 0")
    a("s_lshr_b32 s43, s42, 1")
    a("s_lshr_b32 s44, s44, 1")
    a("s_and_b32 s43, s43, s44")
    a("s_cbranch_scc0 L_ids")
    a(f"s_mov_b32 s46, {K_SPEC}")
    a("s_and_b32 s22, s42, 1")
    a("s_branch L_ids")
    a.label("L_cl3")
    a("s_lshl_b32 s42, s42, 1")
    a("s_and_b32 s43, s55, 1")
    a("s_add_u32 s42, s42, s43")
    a("s_add_u32 s21, s21, s42")
    a("s_mul_i32 s49, s55, 3")
    a("s_add_u32 s49, s49, s42")
    a("s_add_u32 s49, s49, 1")
    a("s_cmp_lt_u32 s55, 2")
    a("s_cselect_b32 s22, 10, 2")
    a("s_lshr_b32 s46, s55, 1")
    a("s_add_u32 s46, s46, 2")
    a(f"s_min_u32 s46, s46, {K_IDLE}")
    a.label("L_ids")
    a(f"s_and_b32 s49, s49, {opt.rotmask}")
    a("s_and_b32 s45, s20, 3")
    a("s_and_b32 s42, s45, 1")
    a("s_lshr_b32 s43, s45, 1")
    a("s_lshl_b32 s44, s43, 5")
    a("s_lshl_b32 s23, s21, 1")
    a("s_add_u32 s23, s23, s42")
    a("s_add_u32 s23, s23, s44")
    a("s_lshl_b32 s48, s45, 12")
    a("s_add_u32 s48, s48, 32768")
    a("s_cmp_ge_u32 s20, 4")
    a("s_cbranch_scc1 L1_compw")
    t0, t1, t2, VX, VD = L_T0, L_T1, L_T2, L_VX, L_VD
    a(f"v_lshrrev_b32 v{t0}, 3, v1")
    a(f"v_lshlrev_b32 v{t0}, 16, v{t0}")
    a("s_lshl_b32 s44, s23, 10")
    a(f"v_add_u32 v{t0}, s44, v{t0}")
    a(f"v_lshrrev_b32 v{t1}, 4, v1")
    a(f"v_and_b32 v{t2}, 7, v1")
    a(f"v_xor_b32 v{t2}, v{t1}, v{t2}")
    a(f"v_lshl_add_u32 v{VX}, v{t2}, 4, v{t0}")
    a(f"v_xor_b32 v{VX+1}, 64, v{VX}")
    a(f"v_add_u32 v{VX+1}, {8*65536}, v{VX+1}")
    a(f"v_add_u32 v{VX+2}, {16*65536}, v{VX}")
    a(f"v_add_u32 v{VX+3}, {16*65536}, v{VX+1}")
    a("s_lshl_b32 s41, s43, 14")
    a("s_lshl_b32 s44, s42, 10")
    a("s_add_u32 s41, s41, s44")
    a("s_cmp_eq_u32 s46, 0")
    a("s_cselect_b32 s40, 15, 11")
    a(f"s_cmp_eq_u32 s46, {K_S4G}")
    a("s_cselect_b32 s40, 7, s40")
    a("s_cselect_b32 s80, 0, -1")
    a("s_bitcmp1_b32 s46, 0")
    a("s_mov_b32 s47, 2752")
    a("s_cselect_b32 s47, 1024, s47")
    a("s_movk_i32 s82, 256")
    a("s_cselect_b32 s82, 192, s82")
    a("s_lshl_b32 s42, s42, 2")
    a(f"v_add_u32 v{t0}, s42, v{t1}")
    a(f"v_mul_u32_u24 v{t0}, s47, v{t0}")
    a("s_mul_i32 s42, s22, s82")
    a(f"v_add_u32 v{t0}, s42, v{t0}")
    a(f"v_and_b32 v{t2}, 15, v1")
    a(f"v_lshlrev_b32 v{t1}, 1, v{t1}")
    a(f"v_xor_b32 v{t1}, v{t1}, v{t2}")
    a(f"v_xor_b32 v{t2}, 8, v{t1}")
    a(f"v_min_u32 v{t1}, s40, v{t1}")
    a(f"v_min_u32 v{t2}, s40, v{t2}")
    a(f"v_lshl_add_u32 v{VD}, v{t1}, 4, v{t0}")
    a(f"v_lshl_add_u32 v{VD+1}, v{t2}, 4, v{t0}")
    a("s_lshl_b32 s44, s47, 3")
    a("s_lshl_b32 s30, s47, 9")
    a("s_mov_b32 s31, 0x20000")
    a("v_mov_b32 v14, 0")
    a("v_mov_b32 v15, 0")
    a("s_mov_b32 s66, 0")
    a("s_mov_b32 s67, 0")
    a("s_cmp_eq_u32 s45, 0")
    a("s_cselect_b32 s81, 5, -1")
    a("s_waitcnt lgkmcnt(0)")
    stamp(a, opt)
    srd(a, 24, 4, 5, 2048 * 1024)
    a("s_bitcmp1_b32 s46, 0")
    a("s_cselect_b64 s[12:13], s[8:9], s[12:13]")
    a("s_cselect_b64 s[14:15], s[10:11], s[14:15]")
    a("s_cmp_ge_u32 s45, 2")
    a("s_cselect_b64 s[28:29], s[14:15], s[12:13]")
    srd(a, 68, 52, 53, 256)
    a(f"s_cmp_lg_u32 s46, {K_IDLE}")
    a("s_cbranch_scc1 L1L_loop")
    a("s_barrier")
    a("s_branch L2W")
    p1_loader(a, opt)
    p2_worker(a, opt)
    a.label("L1_compw")
    if opt.prio:
        a(f"s_setprio {opt.prio}")
    compute_prologue(a, opt)
    p1_compute(a, opt, "ffn8")
    p2_combine(a, opt)
    a.label("L1C_specs")
    a("s_mov_b32 s65, 2")
    dft32_consts(a)
    a(f"s_cmp_eq_u32 s46, {K_S4G}")
    a("s_cbranch_scc1 L1C_spec4g")
    p1_compute(a, opt, "spec6")
    p1_compute(a, opt, "spec4g")
    p1_compute(a, opt, "ffn6")
    idle_compute(a, opt)
    a.label("L_exit")
    a("s_endpgm")


def main():
    ap = argparse.ArgumentParser()
    ap.add_argument("-o", default=f"cdna_kernels/{NAME}.s")
    ap.add_argument("--stamps", action="store_true")
    ap.add_argument("--fine", action="store_true")
    ap.add_argument("--fine2", action="store_true")
    ap.add_argument("--q", type=int, default=8)
    ap.add_argument("--rotmask", type=int, default=7)
    ap.add_argument("--hr", type=int, default=8)
    ap.add_argument("--la", type=int, default=6)
    ap.add_argument("--psleep", type=int, default=8)
    ap.add_argument("--tail", type=int, default=0)
    ap.add_argument("--fpg", type=int, default=6)
    ap.add_argument("--codepf", type=int, default=1)
    ap.add_argument("--pad", type=int, default=-1)
    ap.add_argument("--padrole", default="C")
    ap.add_argument("--prio", type=int, default=0)
    ap.add_argument("--bpos", type=int, default=1)
    ap.add_argument("--nb", type=int, default=3)
    ap.add_argument("--spr", type=int, default=6)
    ap.add_argument("--fine4", action="store_true")
    ap.add_argument("--nost", action="store_true")
    ap.add_argument("--idledelay", type=int, default=0)
    ap.add_argument("--xrot", type=int, default=1)
    ap.add_argument("--tcb", type=int, default=2)
    ap.add_argument("--wtouch", type=int, default=1)
    ap.add_argument("--pf", type=int, default=0)
    ap.add_argument("--pq", type=int, default=1)
    ap.add_argument("--idlego", type=int, default=0)
    ap.add_argument("--nc", type=int, default=6)
    ap.add_argument("--stag", type=int, default=1)
    ap.add_argument("--thrz", type=int, default=0)
    ap.add_argument("--pace", type=int, default=0)
    ap.add_argument("--thr", type=int, default=0)
    ap.add_argument("--thr2", type=int, default=4)
    ap.add_argument("--early", type=int, default=0)
    ap.add_argument("--nowait", action="store_true")
    ap.add_argument("--fine3", action="store_true")
    ap.add_argument("--nomfma", action="store_true")
    ap.add_argument("--noidle", action="store_true")
    ap.add_argument("--fsleep", type=int, default=0)
    ap.add_argument("--noreads", action="store_true")
    opt = ap.parse_args()
    global FSLEEP
    FSLEEP = opt.fsleep
    hdr = open(f"cdna_kernels/{NAME}.s.ref").read().split("; Override launch")[0]
    out = hdr
    out += f"; @launch grid=(256,1,1) block=(512,1,1) lds={LDS_SIZE}\n"
    out += '.amdgcn_target "amdgcn-amd-amdhsa--gfx950"\n.text\n'
    a = Asm()
    kernel(a, opt)
    nm = NAME + "_kernel"
    out += f".globl {nm}\n.p2align 8\n.type {nm},@function\n" + a.text()
    out += f""".section .rodata,"a"
.p2align 6
.amdhsa_kernel {nm}
  .amdhsa_next_free_vgpr 256
  .amdhsa_next_free_sgpr 102
  .amdhsa_accum_offset 256
  .amdhsa_group_segment_fixed_size 0
  .amdhsa_kernarg_size 104
  .amdhsa_user_sgpr_count 2
  .amdhsa_user_sgpr_kernarg_segment_ptr 1
  .amdhsa_system_sgpr_workgroup_id_x 1
.end_amdhsa_kernel
"""
    open(opt.o, "w").write(out)


if __name__ == "__main__":
    main()
```

```python
import struct, sys, argparse, re

NAME = "gated_mix__spectral_fnet__geglu_ffn__prompt"
H_OFF = 0
H_SIZE = 64 * 86 * 1024
Z_OFF = 0x600000
EP = 264
ZR_B = 16 * EP * 16
Z_SIZE = 32 * ZR_B
G_OFF = 0x900000
G_SIZE = 2048 * 4
F_OFF = 0x980000
F_SIZE = 32768
T_OFF = 0xA00000
MF16 = "v_mfma_f32_16x16x32_bf16"
MF32 = "v_mfma_f32_32x32x16_bf16"


def f2u(f):
    return struct.unpack("<I", struct.pack("<f", f))[0]


class Asm:
    def __init__(self):
        self.l = []
        self.ds = []
        self.vm = []
        self.n = 0
        self.ub = 0

    def __call__(self, s):
        if s.startswith("ds_"):
            if self.ub >= 15:
                self("s_waitcnt lgkmcnt(10)")
            self.ub += 1
        m = re.search(r"lgkmcnt\((\d+)\)", s)
        if m:
            self.ub = min(self.ub, int(m.group(1)))
        self.l.append("    " + s)
        self.n += 1

    def label(self, s):
        self.l.append(s + ":")

    def dsop(self, s, tag):
        self(s)
        self.ds.append(tag)

    def dswait(self, tag):
        idx = max(i for i, t in enumerate(self.ds) if t == tag)
        n = len(self.ds) - 1 - idx
        assert n <= 15, n
        self(f"s_waitcnt lgkmcnt({n})")

    def vmop(self, s, tag):
        self(s)
        self.vm.append(tag)

    def vmwait(self, tag):
        idx = max(i for i, t in enumerate(self.vm) if t == tag)
        n = len(self.vm) - 1 - idx
        assert n <= 63, n
        self(f"s_waitcnt vmcnt({n})")

    def text(self):
        return "\n".join(self.l) + "\n"


def vr(b, n):
    return f"v[{b}:{b+n-1}]"


def srd(a, d, lo, hi, size, add=0):
    if add:
        a(f"s_add_u32 s{d}, s{lo}, {add:#x}")
        a(f"s_addc_u32 s{d+1}, s{hi}, 0")
    else:
        a(f"s_mov_b32 s{d}, s{lo}")
        a(f"s_mov_b32 s{d+1}, s{hi}")
    a(f"s_mov_b32 s{d+2}, {size:#x}")
    a(f"s_mov_b32 s{d+3}, 0x20000")


def stamp(a, opt):
    if not opt.stamps:
        return
    a("s_memrealtime s[90:91]")
    a("s_memtime s[86:87]")
    a("s_mov_b32 s88, m0")
    a("s_waitcnt lgkmcnt(0)")
    a("s_mov_b32 m0, s89")
    a("s_add_u32 s89, s89, 1")
    a("v_writelane_b32 v255, s90, m0")
    a("v_writelane_b32 v253, s86, m0")
    a("s_mov_b32 m0, s88")


def stamp_flush(a, opt, role):
    if not opt.stamps:
        return
    if opt.pad >= 0:
        if role == opt.padrole:
            a("s_nop 4")
            a(f"v_readlane_b32 s92, v255, {opt.pad}")
            a("s_nop 4")
            a("s_add_u32 s92, s92, 4000")
            a.label("Lpad")
            a("s_memrealtime s[90:91]")
            a("s_waitcnt lgkmcnt(0)")
            a("s_sub_u32 s93, s92, s90")
            a("s_cmp_gt_i32 s93, 0")
            a("s_cbranch_scc1 Lpad")
        return
    a("s_waitcnt vmcnt(0)")
    stamp(a, opt)
    srd(a, 92, 78, 79, 0x200000, T_OFF)
    a("s_lshl_b32 s96, s2, 3")
    a("s_add_u32 s96, s96, s20")
    a("s_lshl_b32 s96, s96, 8")
    a("v_lshlrev_b32 v254, 2, v1")
    a("buffer_store_dword v255, v254, s[92:95], s96 offen")
    a("s_add_u32 s96, s96, 0x100000")
    a("buffer_store_dword v253, v254, s[92:95], s96 offen")


C1 = -2.0 * 0.7978845608028654 * 1.4426950408889634
C2 = C1 * 0.044715
NB = 3
SSZ = 49152
FLG = 78 * 2048
RH = FLG + 256
RZ = FLG + 64
GW_LDS = FLG + 512
LDS_SIZE = 163840
assert GW_LDS + 2048 <= LDS_SIZE
K_FFN, K_SPEC, K_6G, K_IDLE, K_S4G = 0, 1, 2, 4, 3

L_VD, L_VX, L_T0, L_T1, L_T2, L_VF, L_VA = 2, 10, 16, 17, 18, 20, 21


FSLEEP = 0


def free_wait(a, lab, val):
    if FSLEEP:
        a(f"s_branch {lab}_c")
    a.label(lab)
    if FSLEEP:
        a(f"s_sleep {FSLEEP}")
        a.label(lab + "_c")
    a(f"ds_read_b32 v{L_T0}, v{L_VA}")
    a("s_waitcnt lgkmcnt(0)")
    a(f"v_cmp_ge_u32 vcc, {val}, v{L_T0}")
    a(f"s_cbranch_vccnz {lab}")


def p2_setup(a, opt):
    t0, t1, t2 = L_T0, L_T1, L_T2
    VW0, VW1 = 28, 29
    VH0, VH1 = 4, 5
    VRH = 7
    VRB = 22
    a(f"s_cmp_eq_u32 s46, {K_IDLE}")
    a("s_cselect_b32 s83, 1, 0")
    if opt.xrot:
        a("s_add_u32 s56, s56, s2")
    a("s_and_b32 s56, s56, 7")
    a("s_mul_i32 s56, s56, 5")
    a("s_lshr_b32 s56, s56, 2")
    a(f"v_bfe_u32 v{t0}, v1, 4, 1")
    a(f"v_lshlrev_b32 v{t0}, 2, v{t0}")
    a(f"v_and_b32 v{t1}, 7, v1")
    a(f"v_xor_b32 v{t0}, v{t0}, v{t1}")
    a(f"v_lshrrev_b32 v{t1}, 3, v1")
    a(f"v_lshlrev_b32 v{t1}, 10, v{t1}")
    a(f"v_lshl_add_u32 v{VW0}, v{t0}, 4, v{t1}")
    a("s_lshl_b32 s42, s55, 7")
    a("s_lshl_b32 s43, s45, 14")
    a("s_add_u32 s42, s42, s43")
    a(f"v_add_u32 v{VW0}, s42, v{VW0}")
    a(f"v_add_u32 v{VW1}, 0x2000, v{VW0}")
    a("s_lshl_b32 s59, s45, 11")
    a("s_cmp_lt_u32 s45, 2")
    a("s_cselect_b32 s57, 11, 10")
    a(f"v_lshrrev_b32 v{t2}, 5, v1")
    a(f"v_bfe_u32 v{t0}, v1, 2, 2")
    a(f"v_lshl_add_u32 v{t0}, v{t2}, 3, v{t0}")
    a(f"v_lshlrev_b32 v{t0}, 7, v{t0}")
    a(f"v_bfe_u32 v{t1}, v1, 1, 1")
    a(f"v_lshl_add_u32 v{t0}, v{t1}, 3, v{t0}")
    a(f"v_and_b32 v{t1}, 1, v1")
    a(f"v_lshl_add_u32 v{t0}, v{t1}, 5, v{t0}")
    a(f"v_bfe_u32 v{t1}, v1, 4, 1")
    a(f"v_lshl_add_u32 v{t0}, v{t1}, 4, v{t0}")
    a(f"v_bfe_u32 v{t1}, v1, 3, 1")
    a(f"v_lshl_add_u32 v{t0}, v{t1}, 6, v{t0}")
    a(f"v_add_u32 v{VRB}, s59, v{t0}")
    a(f"v_xor_b32 v{VRB+1}, 64, v{VRB}")
    for k in (1, 2):
        a(f"v_add_u32 v{VRB+2*k}, {k*65536}, v{VRB}")
        a(f"v_add_u32 v{VRB+2*k+1}, {k*65536}, v{VRB+1}")
    a(f"v_lshlrev_b32 v{t0}, 4, v1")
    a(f"s_mul_i32 s42, s54, {86*1024}")
    a("s_lshl_b32 s43, s45, 10")
    a("s_add_u32 s42, s42, s43")
    a(f"v_add_u32 v{VH0}, s42, v{t0}")
    a(f"v_add_u32 v{VH1}, {32*86*1024}, v{VH0}")
    srd(a, 32, 78, 79, H_SIZE, H_OFF)
    a("v_cmp_gt_u32 vcc, 11, v1")
    a(f"v_subrev_u32 v{t0}, 11, v1")
    a(f"v_mov_b32 v{t1}, s57")
    a(f"v_cndmask_b32 v{t0}, v{t0}, v1, vcc")
    a(f"v_cndmask_b32 v{t1}, v{t1}, 11, vcc")
    a(f"v_cndmask_b32 v6, 2, {1 if opt.half else 2}, vcc")
    a(f"v_add_u32 v{t0}, s56, v{t0}")
    a(f"v_sub_u32 v{t1}, v{t0}, v{t1}")
    a(f"v_min_u32 v{t0}, v{t0}, v{t1}")
    a(f"v_min_u32 v{t0}, 10, v{t0}")
    a(f"v_lshlrev_b32 v{t0}, 2, v{t0}")
    a(f"v_add_u32 v{VRH}, {RH}, v{t0}")
    srd(a, 36, 78, 79, F_SIZE, F_OFF)
    a("s_lshl_b32 s62, s54, 3")
    a(f"s_and_b32 s43, s55, {opt.cmask}")
    a("s_add_u32 s62, s62, s43")
    a("s_lshl_b32 s62, s62, 7")
    a("v_lshlrev_b32 v8, 4, v1")
    a("s_or_b32 s61, s45, s83")
    a("s_mov_b32 s60, 0")


def p1_loader(a, opt):
    VD, VX, t0 = L_VD, L_VX, L_T0
    Q = opt.q
    a.label("L1L_loop")
    a("s_lshl_b32 s47, s49, 7")
    a("s_add_u32 m0, s48, s67")
    a("s_mul_i32 s40, s49, s44")
    n = 0

    def after():
        nonlocal n
        n += 1
        if n == Q:
            a("s_cmp_eq_u32 s66, 0")
            a("s_cbranch_scc1 L1L_nobar")
            a(f"s_waitcnt vmcnt({Q})")
            if opt.fine:
                stamp(a, opt)
            a("s_barrier")
            a.label("L1L_nobar")

    for i in range(4):
        a(f"buffer_load_dwordx4 v{VX+i}, s[24:27], s47 offen lds")
        if i < 3:
            a("s_add_u32 m0, m0, 1024")
            a("s_nop 0")
        else:
            a.label("L1L_w")
            a("s_add_u32 m0, s41, s67")
            a("s_lshl_b32 s40, s40, 3")
        if opt.split0 and i == opt.split0 - 1:
            a("s_cmp_lg_u32 s66, 1")
            a("s_cbranch_scc1 L1L_nosp")
            a(f"s_waitcnt vmcnt({4 + opt.split0})")
            a("s_barrier")
            a.label("L1L_nosp")
        after()
    for u in range(8):
        a(f"buffer_load_dwordx4 v{VD+(u&1)}, s[28:31], s40 offen lds")
        if u < 7:
            a("s_add_u32 m0, m0, 2048")
            a("s_add_u32 s40, s40, s44")
        after()
    a("s_cmp_lg_u32 s66, 0")
    a("s_cbranch_scc1 L1L_next")
    a("v_mov_b32 v14, 0")
    a("v_mov_b32 v15, 0")
    srd(a, 68, 76, 77, 256)
    a("s_cmp_eq_u32 s45, 0")
    a("s_cselect_b32 s81, 5, -1")
    a("s_cmp_eq_u32 s66, s80")
    a("s_cbranch_scc0 L1L_next")
    srd(a, 36, 16, 17, 1024)
    a(f"s_mov_b32 m0, {GW_LDS}")
    a(f"v_lshlrev_b32 v{t0}, 4, v1")
    a(f"buffer_load_dwordx4 v{t0}, s[36:39], 0 offen lds")
    srd(a, 36, 4, 5, 1024, 256 * 1024)
    a(f"s_mov_b32 m0, {GW_LDS+1024}")
    a("s_nop 0")
    a(f"buffer_load_dwordx4 v{t0}, s[36:39], 0 offen lds")
    a.label("L1L_next")
    a("s_cmp_eq_u32 s66, s81")
    a("s_cbranch_scc0 L1L_next2")
    a("buffer_load_dword v14, v15, s[68:71], 0 offen")
    a.label("L1L_next2")
    a("s_cmp_lg_u32 s66, 0")
    a("s_cbranch_scc1 L1L_next3")
    p2_setup(a, opt)
    a.label("L1L_next3")
    a("s_add_u32 s49, s49, 1")
    a("s_and_b32 s49, s49, 7")
    a(f"s_add_u32 s67, s67, {SSZ}")
    a(f"s_cmp_eq_u32 s67, {3*SSZ}")
    a("s_cselect_b32 s67, 0, s67")
    a("s_add_u32 s66, s66, 1")
    a("s_cmp_lt_u32 s66, 8")
    a("s_cbranch_scc1 L1L_loop")


def p2_worker(a, opt):
    HR = opt.hr
    LA = opt.la
    t0, t1, t2 = L_T0, L_T1, L_T2
    VW0, VW1 = 28, 29
    VH0, VH1 = 4, 5
    VRH = 7
    VRB = 22
    WF, ACB, HF = 32, 64, 128
    WR = 4
    assert HF + 8 * HR <= 252 and LA < HR
    a.vm, a.ds = [], []
    a.label("L2W")
    srd(a, 28, 14, 15, 1376 * 1024)
    rows = [18, 18] + list(range(12, 18)) + [18] + list(range(0, 12)) + [19]
    NI = 22
    assert len(rows) == NI

    def prod(i, dst, sh):
        if i < 11:
            a(f"s_add_u32 s{dst}, s56, {i}")
            a(f"s_sub_u32 s43, s{dst}, 11")
        else:
            a(f"s_add_u32 s{dst}, s56, {i-11}")
            a(f"s_sub_u32 s43, s{dst}, s57")
        a(f"s_cselect_b32 s{dst}, s{dst}, s43")
        a(f"s_lshl_b32 s{dst}, s{dst}, {sh+1}")
        if i >= 11:
            a(f"s_add_u32 s{dst}, s{dst}, {1 << sh}")

    def wload(i):
        a(f"s_add_u32 m0, s59, {rows[i]*8192}")
        prod(i, 40, 16)
        a.vmop(f"buffer_load_dwordx4 v{VW0}, s[28:31], s40 offen lds", ("w", i))
        a("s_add_u32 m0, m0, 1024")
        a("s_nop 0")
        a.vmop(f"buffer_load_dwordx4 v{VW1}, s[28:31], s40 offen lds", ("w", i))

    def wreads(i):
        f = WF + 8 * (i % WR)
        b = VRB + 2 * (rows[i] // 8)
        o = (rows[i] % 8) * 8192
        for ln in range(2):
            a.dsop(f"ds_read_b64_tr_b16 {vr(f+4*ln,2)}, v{b+ln} offset:{o}", ("r", i))
            a.dsop(f"ds_read_b64_tr_b16 {vr(f+4*ln+2,2)}, v{b+ln} offset:{o+512}", ("r", i))

    wload(0)
    for i in range(2, 2 + opt.nb):
        wload(i)
    a(f"s_waitcnt vmcnt({len(a.vm)})")
    a("s_or_b32 s42, s45, s83")
    a("s_cbranch_scc1 L2W_gook")
    a("v_cmp_le_u32 vcc, 32, v14")
    a("s_cbranch_vccnz L2W_gook")
    a.label("L2W_go")
    a("buffer_load_dword v14, v15, s[68:71], 0 offen sc1")
    a("s_waitcnt vmcnt(0)")
    a("v_cmp_gt_u32 vcc, 32, v14")
    a("s_cbranch_vccnz L2W_go")
    a.label("L2W_gook")
    stamp(a, opt)
    a("s_cmp_lg_u32 s83, 0")
    a("s_cbranch_scc1 L2W_nob6")
    a("s_barrier")
    a.label("L2W_nob6")
    a.vmwait(("w", 0))
    wreads(0)
    a("s_waitcnt lgkmcnt(0)")
    wload(1)
    for i in range(2 + opt.nb, 8):
        wload(i)
    a("s_bitcmp1_b32 s46, 0")
    a("s_cbranch_scc0 L2W_c")
    a("s_barrier")
    a("s_barrier")
    a("s_barrier")
    a.label("L2W_c")
    for i in range(9, 9 + opt.nc):
        wload(i)
    a("s_and_b32 s42, s46, 5")
    a("s_cbranch_scc1 L2W_nob7")
    a("s_barrier")
    a.label("L2W_nob7")
    a.vmwait(("w", 1))
    wreads(1)
    a("s_waitcnt lgkmcnt(0)")
    for i in [8] + list(range(9 + opt.nc, 21)):
        wload(i)
        if opt.thr2:
            a("s_and_b32 s42, s46, 5")
            a(f"s_cbranch_scc1 L2W_nt{i}")
            a(f"s_waitcnt vmcnt({opt.thr2})")
            a.label(f"L2W_nt{i}")
    a("s_cmp_ge_u32 s45, 2")
    a("s_cbranch_scc1 L2W_no19")
    wload(21)
    a.label("L2W_no19")
    a(f"s_cmp_lg_u32 s46, {K_IDLE}")
    a("s_cbranch_scc1 L2W_nopf")
    a("s_sub_u32 s42, s55, 4")
    a("s_lshl_b32 s42, s42, 2")
    a("s_add_u32 s42, s42, s45")
    if opt.xrot:
        a("s_lshl_b32 s43, s2, 1")
        a("s_add_u32 s42, s42, s43")
        a("s_and_b32 s42, s42, 15")
    a(f"s_mul_i32 s42, s42, {96*1024}")
    a(f"v_lshrrev_b32 v{t0}, 1, v1")
    a(f"v_lshlrev_b32 v{t0}, 10, v{t0}")
    a(f"v_and_b32 v{t1}, 1, v1")
    a(f"v_lshl_add_u32 v{t0}, v{t1}, 7, v{t0}")
    for k in range(3):
        for c in range(opt.tcb):
            a(f"buffer_load_dword v250, v{t0}, s[28:31], s42 offen offset:{256*c}")
        a("s_add_u32 s42, s42, 0x8000")
    a.label("L2W_nopf")
    stamp(a, opt)
    a.vm = []

    spins = []

    def issue1(i):
        h = HF + 8 * (i % HR)
        a(f"s_bitcmp1_b32 s60, {i}")
        a(f"s_cbranch_scc0 L2W_i{i}_spin")
        a.label(f"L2W_i{i}_ok")
        spins.append(i)
        prod(i, 40, 12)
        a.vmop(f"buffer_load_dwordx4 {vr(h,4)}, v{VH0}, s[32:35], s40 offen sc1", ("h", i))

    def issue2(i):
        h = HF + 8 * (i % HR)
        a.vmop(f"buffer_load_dwordx4 {vr(h+4,4)}, v{VH1}, s[32:35], s40 offen sc1", ("h", i))

    a("s_waitcnt vmcnt(0)")
    a(f"s_mov_b32 m0, {RH}")
    wreads(2)
    for i in range(LA):
        issue1(i)
        issue2(i)
        if i == 0:
            stamp(a, opt)
    for i in range(NI):
        a.vmwait(("h", i))
        if i == 0:
            stamp(a, opt)
        if i >= 2:
            a.dswait(("r", i))
        f = WF + 8 * (i % WR)
        h = HF + 8 * (i % HR)
        if i == 21:
            a("s_cmp_ge_u32 s45, 2")
            a("s_cbranch_scc1 L2W_skip")
        for L in range(4):
            lt, ln = L & 1, L >> 1
            acc = vr(ACB + 16 * L, 16)
            a(f"{MF32} {acc}, {vr(f+4*ln,4)}, {vr(h+4*lt,4)}, {'0' if i == 0 else acc}")
            if L == 0 and i + 3 < NI:
                wreads(i + 3)
            if L == 1 and i + LA < NI:
                issue1(i + LA)
            if L == 2 and i + LA < NI:
                issue2(i + LA)
                if i + LA == opt.zbar:
                    a("s_barrier")
        if i == 21:
            a.label("L2W_skip")
        if opt.fine2 and i % 4 == 3:
            stamp(a, opt)
    stamp(a, opt)
    a(f"v_lshlrev_b32 v{t0}, 4, v1")
    a(f"v_add_u32 v{t0}, s59, v{t0}")
    a("s_nop 7")
    a("s_nop 1")
    for L in range(4):
        for q in range(4):
            p = 4 * L + q
            a(f"ds_write_b128 v{t0}, {vr(ACB+16*L+4*q,4)} offset:{(p>>1)*8192 + (p&1)*1024}")
    a("s_waitcnt lgkmcnt(0)")
    a("s_barrier")
    stamp_flush(a, opt, "L")
    a("s_endpgm")
    for i in spins:
        a.label(f"L2W_i{i}_spin")
        a(f"ds_read2_b32 {vr(t0,2)}, v{VRH} offset0:0 offset1:16")
        a("s_waitcnt lgkmcnt(0)")
        a(f"v_min_u32 v{t0}, v{t0}, v{t1}")
        a(f"v_cmp_ge_u32 vcc, v{t0}, v6")
        a("s_mov_b32 s60, vcc_lo")
        a(f"s_bitcmp1_b32 s60, {i}")
        a(f"s_cbranch_scc1 L2W_i{i}_ok")
        if opt.wpoll and i < LA:
            a("s_cmp_lg_u32 s61, 0")
            a(f"s_cbranch_scc1 L2W_i{i}_spin")
            a("s_mov_b64 exec, 0xff")
            a("buffer_load_dwordx4 v8, s[36:39], s62 offen sc1 lds")
            a("s_mov_b64 exec, -1")
            a("s_waitcnt vmcnt(0)")
        if opt.ssleep:
            a(f"s_sleep {opt.ssleep}")
        a(f"s_branch L2W_i{i}_spin")


C_VA, C_VX, C_VB, C_VST, C_VGW, C_VFD = 2, 6, 10, 14, 15, 19
C_T0, C_T1, C_T2 = 20, 21, 22
C_K1, C_K2 = 24, 26
C_WF, C_XF, C_ACC, C_TT, C_TT2, C_CF, C_SF = 28, 52, 116, 88, 100, 212, 220


def dft32_consts(a):
    t0, t1, t2 = C_T0, C_T1, C_T2
    tc, ts = 96, 112
    a(f"v_and_b32 v{t0}, 15, v1")
    a(f"v_cvt_f32_u32 v{t0}, v{t0}")
    a(f"v_mul_f32 v{t0}, {f2u(1.0/32):#x}, v{t0}")
    a(f"v_lshrrev_b32 v{t1}, 4, v1")
    a(f"v_cvt_f32_u32 v{t1}, v{t1}")
    a(f"v_mul_f32 v{t1}, 4.0, v{t1}")
    for rho in range(2):
        if rho:
            a(f"v_add_f32 v{t0}, 0.5, v{t0}")
        a(f"v_mul_f32 v{t2}, v{t0}, v{t1}")
        for sg in range(8):
            s1c = 16 * (sg >> 2) + (sg & 3)
            a(f"v_fmamk_f32 v{tc+8*rho+sg}, v{t0}, {f2u(float(s1c)):#x}, v{t2}")
    for i in range(16):
        a(f"v_fract_f32 v{tc+i}, v{tc+i}")
    for i in range(16):
        a(f"v_sin_f32 v{ts+i}, v{tc+i}")
    for i in range(16):
        a(f"v_cos_f32 v{tc+i}, v{tc+i}")
    a("s_nop 0")
    for i in range(8):
        a(f"v_cvt_pk_bf16_f32 v{C_CF+i}, v{tc+2*i}, v{tc+2*i+1}")
        a(f"v_cvt_pk_bf16_f32 v{C_SF+i}, v{ts+2*i}, v{ts+2*i+1}")


def ffn_epi(p):
    A, TT = C_ACC + 16 * p, C_TT
    r = []
    for v in range(0, 8, 2):
        r.append(f"v_pk_mul_f32 {vr(TT+v,2)}, {vr(A+v,2)}, {vr(A+v,2)}")
    for v in range(0, 8, 2):
        r.append(f"v_pk_fma_f32 {vr(TT+v,2)}, {vr(TT+v,2)}, {vr(C_K2,2)}, {vr(C_K1,2)}")
    for v in range(0, 8, 2):
        r.append(f"v_pk_mul_f32 {vr(TT+v,2)}, {vr(TT+v,2)}, {vr(A+v,2)}")
    for v in range(8):
        r.append(f"v_exp_f32 v{TT+v}, v{TT+v}")
    for v in range(0, 8, 2):
        r.append(f"v_pk_mul_f32 {vr(A+8+v,2)}, {vr(A+v,2)}, {vr(A+8+v,2)}")
    for v in range(0, 8, 2):
        r.append(f"v_pk_add_f32 {vr(TT+v,2)}, {vr(TT+v,2)}, 1.0 op_sel_hi:[1,0]")
    for v in range(8):
        r.append(f"v_rcp_f32 v{TT+v}, v{TT+v}")
    for v in range(0, 8, 2):
        r.append(f"v_pk_mul_f32 {vr(A+8+v,2)}, {vr(A+8+v,2)}, {vr(TT+v,2)}")
    for i in (0, 2, 1, 3):
        r.append(f"v_cvt_pk_bf16_f32 v{A+i}, v{A+8+2*i}, v{A+8+2*i+1}")
    r.append(f"v_permlane16_swap_b32 v{A}, v{A+2}")
    r.append("s_nop 0")
    r.append(f"v_permlane16_swap_b32 v{A+1}, v{A+3}")
    so = "s43" if p & 1 else "s42"
    r.append(f"buffer_store_dwordx4 {vr(A,4)}, v{C_VST}, s[32:35], {so} offen offset:{(p>>1)*1024} sc1")
    return r


def spec_epi(p):
    A, TT = C_ACC + 16 * p, (C_TT if p & 1 else C_TT2)
    r = []
    for i in range(8):
        r.append(f"v_cvt_pk_bf16_f32 v{TT+i}, v{A+2*i}, v{A+2*i+1}")
    for i in range(4):
        r.append(f"v_cvt_pk_bf16_f32 v{TT+8+i}, -v{A+8+2*i}, -v{A+8+2*i+1}")
    pa, pb, pn = vr(TT, 4), vr(TT + 4, 4), vr(TT + 8, 4)
    for rho in range(2):
        zr = vr(A + 4 * rho, 4)
        r.append(f"{MF16} {zr}, {vr(C_CF+4*rho,4)}, {pa}, 0")
        r.append(f"{MF16} {zr}, {vr(C_SF+4*rho,4)}, {pb}, {zr}")
    for rho in range(2):
        zm = vr(A + 8 + 4 * rho, 4)
        r.append(f"{MF16} {zm}, {vr(C_SF+4*rho,4)}, {pa}, 0")
        r.append(f"{MF16} {zm}, {vr(C_CF+4*rho,4)}, {pn}, {zm}")
    return r


def spec_pack(p):
    A = C_ACC + 16 * p
    r = [f"v_cvt_pk_bf16_f32 v{A+rg}, v{A+rg}, v{A+8+rg}" for rg in range(8)]
    r += [f"ds_write_b128 v{2+(p&1)}, {vr(A+4*rho,4)} offset:{(2*(p>>1)+rho)*4096}" for rho in range(2)]
    return r


def p1_compute(a, opt, kind):
    T = {"ffn6": 6, "spec6": 6, "spec4g": 4, "ffn8": 8}[kind]
    hasg = kind == "spec4g"
    lab_kind = kind
    kind = "spec" if kind.startswith("spec") else kind
    a.ds = []
    VA, VX, VST, VGW, VFD = C_VA, C_VX, C_VST, C_VGW, C_VFD
    P = T // 2
    t0, t1, t2 = C_T0, C_T1, C_T2
    WF, XF, ACC = C_WF, C_XF, C_ACC
    GACC = ACC + 64
    a.label(f"L1C_{lab_kind}")
    a(f"s_mul_i32 s41, s41, {P}")
    for pl in range(P):
        a(f"s_add_u32 s42, s41, {pl}")
        a("s_lshl_b32 s42, s42, 5")
        a(f"v_xor_b32 v{VA+pl}, s42, v{C_VB}")
    if kind == "spec":
        a(f"v_lshrrev_b32 v{t1}, 4, v1")
        a(f"v_mul_u32_u24 v{t1}, {4*ZR_B}, v{t1}")
        a(f"v_and_b32 v{t0}, 15, v1")
        a(f"v_lshl_add_u32 v{VST}, v{t0}, 4, v{t1}")
        if hasg:
            a(f"v_lshrrev_b32 v{t0}, 4, v1")
            a(f"v_lshlrev_b32 v{t0}, 4, v{t0}")
            a(f"v_and_b32 v{t1}, 1, v1")
            a(f"v_lshl_add_u32 v{t0}, v{t1}, 10, v{t0}")
            a(f"v_add_u32 v{t2}, {GW_LDS}, v{t0}")
        srd(a, 32, 78, 79, Z_SIZE, Z_OFF)
        a("s_mul_i32 s42, s22, 96")
        a(f"s_mul_i32 s43, s21, {EP}")
        a("s_add_u32 s42, s42, s43")
        a("s_lshr_b32 s43, s45, 1")
        a("s_lshl_b32 s43, s43, 4")
        a("s_add_u32 s42, s42, s43")
        a("s_lshl_b32 s42, s42, 4")
        a("s_and_b32 s43, s45, 1")
        a(f"s_mul_i32 s43, s43, {16*ZR_B}")
        a("s_add_u32 s42, s42, s43")
    else:
        for i in range(2):
            a(f"v_mov_b32 v{C_K1+i}, {f2u(C1):#x}")
            a(f"v_mov_b32 v{C_K2+i}, {f2u(C2):#x}")
        a(f"v_lshlrev_b32 v{VST}, 4, v1")
        srd(a, 32, 78, 79, H_SIZE, H_OFF)
        a("s_lshl3_add_u32 s44, s22, s41")
        a("s_mul_i32 s42, s23, 86")
        a("s_add_u32 s42, s42, s44")
        a("s_lshl_b32 s42, s42, 10")
        a("s_xor_b32 s43, s23, 32")
        a("s_mul_i32 s43, s43, 86")
        a("s_add_u32 s43, s43, s44")
        a("s_lshl_b32 s43, s43, 10")
    stamp(a, opt)

    tail = 0
    units = []
    for s in range(8):
        us = []
        if s == 0 and opt.split0:
            us += [dict(s=s, p=p, frags=[(0, 0), (1, 0)]) for p in range(P)]
            us += [dict(s=s, p=p, frags=[(0, 1), (1, 1)], upd=True, bar=(p == 0)) for p in range(P)]
            if hasg:
                us.append(dict(s=s, p=None))
        else:
            if hasg:
                us.append(dict(s=s, p=None))
            for p in range(P):
                us += [dict(s=s, p=p, frags=[(0, 0), (0, 1)]), dict(s=s, p=p, frags=[(1, 0), (1, 1)], upd=True)]
        us[0]["open"] = True
        us[0]["bar"] = True
        units += us
    N = len(units)
    LA = 2

    def delta(s):
        return SSZ if (s % NB) < 2 else -2 * SSZ

    def upd(reg, s):
        d = delta(s)
        return f"v_add_u32 v{reg}, {d}, v{reg}" if d > 0 else f"v_subrev_u32 v{reg}, {-d}, v{reg}"

    def side_ops(n):
        U = units[n]
        s = U["s"]
        f = WF + 8 * (n % 3)
        ops = []
        if U.get("open"):
            xb = XF + 32 * (s & 1)
            for g in range(2):
                for rt in range(2):
                    for ks in range(2):
                        ops.append((f"ds_read_b128 {vr(xb+16*g+8*rt+4*ks,4)}, v{VX+2*g+ks} offset:{rt*2048}", ("x", s)))
        if U["p"] is None:
            ops.append(("s_lshl_b32 s44, s49, 7", None))
            ops.append((f"v_add_u32 v{VGW}, s44, v{t2}", None))
            ops.append((f"ds_read_b128 {vr(f,4)}, v{VGW}", ("u", n)))
            ops.append((f"ds_read_b128 {vr(f+4,4)}, v{VGW} offset:64", ("u", n)))
            ops.append(("s_add_u32 s49, s49, 1", None))
            ops.append(("s_and_b32 s49, s49, 7", None))
        else:
            for k, (m, ks) in enumerate(U["frags"]):
                off = m * 16384 + ks * 8192
                ops.append((f"ds_read_b64_tr_b16 {vr(f+4*k,2)}, v{VA+U['p']} offset:{off}", ("u", n)))
                ops.append((f"ds_read_b64_tr_b16 {vr(f+4*k+2,2)}, v{VA+U['p']} offset:{off+1024}", ("u", n)))
        if U.get("open") and s < 7:
            ops += [(upd(VX + ks, s), None) for ks in range(4)]
        if U.get("upd") and s < 7:
            ops.append((upd(VA + U["p"], s), None))
        return ops

    def emit(op):
        if op[1] is None:
            a(op[0])
        else:
            a.dsop(op[0], op[1])

    epi = spec_epi if kind == "spec" else ffn_epi
    fill = []
    a("s_barrier")
    stamp(a, opt)
    for n in range(LA):
        for op in side_ops(n):
            emit(op)
    pend = []
    for n in range(N):
        U = units[n]
        s = U["s"]
        boundary = n + LA == N or (n + LA < N and units[n + LA].get("bar"))
        carry = len(pend)
        if boundary and carry:
            for _ in range(carry):
                emit(pend.pop(0))
            carry = 0
        if n + LA < N:
            pend += side_ops(n + LA)
        a.dswait(("u", n))
        f = WF + 8 * (n % 3)
        xb = XF + 32 * (s & 1)
        frags = U.get("frags", [(0, 0), (0, 1)])
        NM = 4 if U["p"] is None else 8
        bpos = min(opt.bpos, NM - 2)
        for j in range(NM):
            g, rt, k = j >> 2, (j >> 1) & 1, j & 1
            m, ks = frags[k]
            if U["p"] is None:
                acc = vr(GACC + 4 * rt, 4)
            else:
                acc = vr(ACC + 16 * (2 * U["p"] + g) + 8 * m + 4 * rt, 4)
            w_, x_ = vr(f + 4 * k, 4), vr(xb + 16 * g + 8 * rt + 4 * ks, 4)
            srcc = "0" if (s == 0 and ks == 0) else acc
            if kind == "spec":
                a(f"{MF16} {acc}, {x_}, {w_}, {srcc}")
            else:
                a(f"{MF16} {acc}, {w_}, {x_}, {srcc}")
            if boundary:
                if j < bpos:
                    cnt = -(-carry // (bpos - j)) if carry else 0
                    carry -= cnt
                else:
                    cnt = 2
                if j == bpos:
                    a("s_waitcnt lgkmcnt(0)")
                    a("s_barrier")
                    if opt.fine:
                        stamp(a, opt)
            else:
                cnt = max(-(-len(pend) // (NM - j)), 1)
            for _ in range(min(cnt, len(pend))):
                emit(pend.pop(0))
    assert not pend
    stamp(a, opt)
    if tail:
        while fill:
            at, ins = fill.pop(0)
            if at > a.n:
                a(f"s_nop {min(at - a.n - 1, 15)}")
                a.n = at
            a(ins)
    else:
        a("s_nop 7")
        if kind != "spec":
            hp = min(opt.hp, T - 1)
            for p in range(T):
                for ins in epi(p):
                    a(ins)
                if opt.half and p == 0:
                    srd(a, 36, 78, 79, F_SIZE, F_OFF)
                    a(f"v_mov_b32 v{t1}, 1")
                    a(f"v_lshlrev_b32 v{t2}, 7, v1")
                if opt.half and p == hp:
                    a(f"s_waitcnt vmcnt({hp - 3})")
                    a("s_mov_b64 exec, " + opt.fmask)
                    a(f"buffer_store_dword v{t1}, v{t2}, s[36:39], s63 offen sc1")
                    a("s_mov_b64 exec, -1")
        else:
            a(f"v_lshlrev_b32 v{t1}, 4, v1")
            a("s_lshl_b32 s43, s45, 10")
            a(f"s_add_u32 s43, s43, {SSZ}")
            a(f"v_add_u32 v{t0}, s43, v{t1}")
            a("s_lshl_b32 s43, s41, 13")
            a(f"v_add_u32 v2, s43, v{t0}")
            a("v_xor_b32 v3, 0x800, v2")
            a("s_lshl_b32 s43, s45, 12")
            a(f"s_add_u32 s43, s43, {SSZ}")
            a(f"v_add_u32 v{t1}, s43, v{t1}")
            if hasg:
                A, TT, ZR = GACC, C_TT, GACC + 8
                for i in range(4):
                    a(f"v_cvt_pk_bf16_f32 v{TT+i}, v{A+2*i}, v{A+2*i+1}")
                srd(a, 36, 78, 79, G_SIZE, G_OFF)
                for rho in range(2):
                    a(f"{MF16} {vr(ZR+4*rho,4)}, {vr(C_CF+4*rho,4)}, {vr(TT,4)}, 0")
                    a(f"{MF16} {vr(ZR+8+4*rho,4)}, {vr(C_SF+4*rho,4)}, {vr(TT,4)}, 0")
                for i in range(4):
                    a(f"v_lshlrev_b32 v{A+2*i}, 16, v{TT+i}")
                    a(f"v_and_b32 v{A+2*i+1}, 0xffff0000, v{TT+i}")
                for i in range(8):
                    a(f"v_mul_f32 v{A+i}, {f2u(-1.4426950408889634):#x}, v{A+i}")
                for i in range(8):
                    a(f"v_exp_f32 v{A+i}, v{A+i}")
                for i in range(8):
                    a(f"v_add_f32 v{A+i}, 1.0, v{A+i}")
                for i in range(8):
                    a(f"v_rcp_f32 v{A+i}, v{A+i}")
                for rg in range(8):
                    a(f"v_cvt_pk_bf16_f32 v{ZR+rg}, v{ZR+rg}, v{ZR+8+rg}")
                for rho in range(2):
                    a(f"ds_write_b128 v{t0}, {vr(ZR+4*rho,4)} offset:{(2*T+rho)*4096}")
                for i in range(4):
                    a(f"v_cvt_pk_bf16_f32 v{TT+i}, v{A+2*i}, v{A+2*i+1}")
                for i in range(4):
                    a(f"v_lshlrev_b32 v{A+2*i}, 16, v{TT+i}")
                    a(f"v_and_b32 v{A+2*i+1}, 0xffff0000, v{TT+i}")
                a("s_lshl_b32 s43, s23, 7")
                a("s_mov_b32 exec_lo, 0x00010001")
                a("s_mov_b32 exec_hi, 0x00010001")
                a(f"buffer_store_dwordx4 {vr(A,4)}, v1, s[36:39], s43 offen sc1")
                a(f"buffer_store_dwordx4 {vr(A+4,4)}, v1, s[36:39], s43 offen offset:64 sc1")
                a("s_mov_b64 exec, -1")
            cv = [[x for x in epi(p) if not x.startswith("v_mfma")] for p in range(T)]
            mf = [[x for x in epi(p) if x.startswith("v_mfma")] for p in range(T)]
            for ins in cv[0]:
                a(ins)
            for p in range(T):
                side = (cv[p + 1] if p + 1 < T else ["s_nop 3", "s_nop 3", "s_nop 3"]) + (spec_pack(p - 1) if p > 0 else [])
                for i, ins in enumerate(mf[p]):
                    a(ins)
                    for _ in range(-(-len(side) // (8 - i))):
                        a(side.pop(0))
            if opt.fine4:
                stamp(a, opt)
            a("s_nop 7")
            for ins in spec_pack(T - 1):
                a(ins)
            if opt.fine4:
                stamp(a, opt)
            a("s_waitcnt lgkmcnt(0)")
            a("s_barrier")
            if opt.fine4:
                stamp(a, opt)
            NG = T // 2 + (1 if hasg else 0)
            for k in range(NG):
                for w in range(4):
                    a(f"ds_read_b128 {vr(WF+16*k+4*w,4)}, v{t1} offset:{k*16384 + w*1024}")
            for k in range(NG):
                R = WF + 16 * k
                a(f"s_waitcnt lgkmcnt({4*(NG-1-k)})")
                for i in range(4):
                    for j in range(i + 1, 4):
                        a(f"v_swap_b32 v{R+4*i+j}, v{R+4*j+i}")
                if opt.fine4:
                    stamp(a, opt)
                off = 512 * k
                if hasg and k == NG - 1:
                    a("s_cmp_ge_u32 s45, 2")
                    a("s_cbranch_scc1 L1C_no256")
                    a("s_mov_b32 exec_lo, 0x00020002")
                    a("s_mov_b32 exec_hi, 0x00020002")
                    off -= 16
                for b in range(4):
                    a(f"s_add_u32 s43, s42, {b*ZR_B}")
                    a(f"buffer_store_dwordx4 {vr(R+4*b,4)}, v{VST}, s[32:35], s43 offen offset:{off} sc1")
            if hasg:
                a("s_mov_b64 exec, -1")
                a.label("L1C_no256")
            if opt.fine4:
                stamp(a, opt)
            if not opt.lateb9:
                a("s_barrier")

    stamp(a, opt)
    a("s_branch L2C")


def p2_combine(a, opt):
    VFD = C_VFD
    t0, t1, t2 = C_T0, C_T1, C_T2
    VZ, VO, VG = 23, 24, 25
    ZF, ACY, PT, BF, TR = 160, 192, 96, 208, 2
    a.label("L2C")
    a("s_and_b32 s42, s45, 1")
    a("s_lshl_b32 s42, s42, 5")
    a("s_add_u32 s42, s42, s54")
    a("s_lshr_b32 s43, s45, 1")
    a("s_lshl_b32 s43, s43, 5")
    a("s_lshl_b32 s44, s55, 6")
    a("s_add_u32 s43, s43, s44")
    a(f"v_bfe_u32 v{t0}, v1, 2, 1")
    a(f"v_lshlrev_b32 v{t0}, 4, v{t0}")
    a(f"v_and_or_b32 v{t0}, v1, 3, v{t0}")
    a(f"v_bfe_u32 v{t1}, v1, 3, 2")
    a(f"v_lshlrev_b32 v{t1}, 2, v{t1}")
    a(f"v_add3_u32 v{t0}, v{t0}, v{t1}, s43")
    a(f"v_and_b32 v{t1}, 31, v1")
    a("s_lshl_b32 s44, s42, 7")
    a(f"v_lshl_add_u32 v{VG}, v{t1}, 2, s44")
    a(f"v_lshl_add_u32 v{t1}, v{t1}, 6, s42")
    a(f"v_lshrrev_b32 v{t2}, 5, v1")
    a(f"v_lshlrev_b32 v{VO}, 10, v{t1}")
    a(f"v_lshl_add_u32 v{VO}, v{t2}, 5, v{VO}")
    a("s_lshl_b32 s44, s43, 1")
    a(f"v_add_u32 v{VO}, s44, v{VO}")
    a("s_mov_b32 s64, s54")
    a("s_cmp_lt_u32 s55, 4")
    a("s_cbranch_scc1 L2C_nomirror")
    a(f"v_sub_u32 v{t0}, 0x200, v{t0}")
    a(f"v_sub_u32 v{t1}, 0x800, v{t1}")
    a(f"v_and_b32 v{t1}, 0x7ff, v{t1}")
    a("s_sub_u32 s64, 32, s54")
    a("s_and_b32 s64, s64, 31")
    a.label("L2C_nomirror")
    a(f"v_mul_u32_u24 v{VZ}, {8*EP*16}, v{t2}")
    a(f"v_lshl_add_u32 v{VZ}, v{t0}, 4, v{VZ}")
    a(f"s_mul_i32 s64, s64, {ZR_B}")
    a(f"v_cvt_f32_u32 v26, v{t1}")
    a(f"v_mul_f32 v26, {f2u(-1.0/2048):#x}, v26")
    a(f"v_cvt_f32_u32 v27, v{t2}")
    a(f"v_mul_f32 v27, {f2u(16.0):#x}, v27")
    a("v_mul_f32 v27, v26, v27")

    def trig(o):
        for q in range(8):
            ks_, qq = (8 * o + q) >> 2, q & 3
            a(f"v_fmamk_f32 v{TR+q}, v26, {f2u(float(2*ks_ + (qq&1) + 32*(qq>>1))):#x}, v27")
        for q in range(8):
            a(f"v_fract_f32 v{TR+q}, v{TR+q}")
        for q in range(8):
            a(f"v_sin_f32 v{TR+8+q}, v{TR+q}")
        for q in range(8):
            a(f"v_cos_f32 v{TR+q}, v{TR+q}")
        a("s_nop 0")
        for q in range(8):
            a(f"v_cvt_pk_bf16_f32 v{BF+8*o+q}, v{TR+q}, v{TR+8+q}")

    a("s_bitcmp1_b32 s65, 1")
    a("s_cbranch_scc1 L2C_t23s")
    trig(2)
    trig(3)
    a.label("L2C_t23s")
    srd(a, 36, 78, 79, F_SIZE, F_OFF)
    a(f"v_mov_b32 v{t0}, {FLG}")
    a(f"v_mov_b32 v{t1}, 1")
    a(f"v_lshlrev_b32 v{t2}, 7, v1")
    a("v_mov_b32 v28, 2")
    a("s_waitcnt vmcnt(0)")
    stamp(a, opt)
    a("s_bitcmp1_b32 s65, 0")
    a("s_cbranch_scc0 L2C_noh")
    a("s_mov_b64 exec, " + opt.fmask)
    a(f"buffer_store_dword v28, v{t2}, s[36:39], s63 offen sc1")
    a.label("L2C_noh")
    a("s_bitcmp1_b32 s65, 1")
    a("s_cbranch_scc0 L2C_noz")
    a("s_mov_b64 exec, 1")
    a(f"ds_add_rtn_u32 v{VFD}, v{t0}, v{t1}")
    a("s_and_b32 s42, s22, 1")
    a("s_lshl4_add_u32 s42, s42, s21")
    a("s_lshl_b32 s42, s42, 10")
    a("s_lshr_b32 s43, s22, 1")
    a("s_lshl_b32 s43, s43, 7")
    a("s_add_u32 s42, s42, s43")
    a("s_waitcnt lgkmcnt(0)")
    a(f"v_cmp_ne_u32 vcc, 3, v{VFD}")
    a("s_cbranch_vccnz L2C_noz")
    a(f"buffer_store_dword v28, v{t2}, s[36:39], s42 offen offset:256 sc1")
    a.label("L2C_noz")
    a("s_mov_b64 exec, -1")
    if opt.lateb9:
        a("s_bitcmp1_b32 s65, 1")
        a("s_cbranch_scc0 L2C_nob9")
        a("s_barrier")
        a.label("L2C_nob9")
    a(f"v_and_b32 v{VFD}, 15, v1")
    a(f"v_min_u32 v{VFD}, 10, v{VFD}")
    a(f"v_and_or_b32 v{VFD}, v1, 16, v{VFD}")
    a(f"s_mov_b32 s43, {RH}")
    a(f"v_lshl_add_u32 v{t0}, v{VFD}, 2, s43")
    a("v_min_u32 v28, 47, v1")
    a(f"s_mov_b32 s43, {RZ}")
    a("v_lshl_add_u32 v28, v28, 2, s43")
    a("s_lshl_b32 s42, s54, 3")
    a(f"s_and_b32 s43, s55, {opt.cmask}")
    a("s_add_u32 s42, s42, s43")
    a("s_lshl_b32 s42, s42, 7")
    a(f"v_lshl_add_u32 v{t2}, v1, 4, s42")
    a(f"s_mov_b32 m0, {RH}")

    def hpoll():
        a("s_mov_b64 exec, 0xff")
        a(f"buffer_load_dwordx4 v{t2}, s[36:39], 0 offen sc1 lds")
        a("s_mov_b64 exec, -1")

    def zpoll():
        a("s_mov_b32 exec_hi, 0xffff")
        a(f"buffer_load_dword v{t2}, s[36:39], 0 offen sc1 lds")
        a("s_mov_b64 exec, -1")

    a("s_cmp_lg_u32 s45, 0")
    a("s_cbranch_scc1 L2C_rest")
    a.label("L2C_wh")
    hpoll()
    a(f"s_waitcnt vmcnt({opt.pq})")
    if opt.psleep:
        a(f"s_sleep {opt.psleep}")
    a(f"ds_read_b32 v{VFD}, v{t0}")
    a("s_waitcnt lgkmcnt(0)")
    a(f"v_cmp_ne_u32 vcc, 2, v{VFD}")
    a("s_cbranch_vccnz L2C_wh")
    a(f"v_and_b32 v{t2}, 31, v1")
    a(f"v_lshlrev_b32 v{t2}, 10, v{t2}")
    a(f"v_lshrrev_b32 v{VFD}, 5, v1")
    a(f"v_lshl_add_u32 v{t2}, v{VFD}, 7, v{t2}")
    a(f"s_mov_b32 m0, {RZ}")
    a(f"v_add_u32 v{t2}, 0x100, v{t2}")
    zpoll()
    a.label("L2C_rest")
    trig(0)
    trig(1)
    a("s_bitcmp1_b32 s65, 1")
    a("s_cbranch_scc0 L2C_t23d")
    trig(2)
    trig(3)
    a.label("L2C_t23d")
    srd(a, 32, 78, 79, Z_SIZE, Z_OFF)
    srd(a, 24, 78, 79, G_SIZE, G_OFF)
    srd(a, 28, 18, 19, 2048 * 1024)
    a("s_barrier")
    a("s_branch L2C_wz1")
    a.label("L2C_wz")
    a("s_cmp_lg_u32 s45, 0")
    a("s_cbranch_scc1 L2C_wz1")
    a("s_waitcnt vmcnt(0)")
    zpoll()
    a(f"s_sleep {opt.zsleep}")
    a.label("L2C_wz1")
    a(f"ds_read_b32 v{VFD}, v28")
    a("s_waitcnt lgkmcnt(0)")
    a(f"v_cmp_ne_u32 vcc, 2, v{VFD}")
    a("s_cbranch_vccnz L2C_wz")

    def zloads():
        stamp(a, opt)
        a(f"buffer_load_dword v10, v{VG}, s[24:27], 0 offen sc1")
        for ks in range(8):
            if not opt.noz:
                a(f"buffer_load_dwordx4 {vr(ZF+4*ks,4)}, v{VZ}, s[32:35], s64 offen sc1")
            if ks < 7:
                a(f"s_add_u32 s64, s64, {EP*16}")

    zloads()
    a(f"v_lshlrev_b32 v{t0}, 4, v1")
    a("s_lshl_b32 s42, s45, 14")
    a(f"v_add_u32 v{t0}, s42, v{t0}")
    for ks in range(8):
        a(f"s_waitcnt vmcnt({7-ks})")
        acc = vr(ACY, 16)
        a(f"{MF32} {acc}, {vr(ZF+4*ks,4)}, {vr(BF+4*ks,4)}, {'0' if ks == 0 else acc}")
    a("v_sub_f32 v11, 1.0, v10")
    a("v_cvt_pk_bf16_f32 v11, v11, v11")
    a("v_and_b32 v11, 0xffff0000, v11")
    a("s_nop 7")
    a("s_nop 1")
    for rg in range(16):
        a(f"v_mul_f32 v{ACY+rg}, v10, v{ACY+rg}")
    stamp(a, opt)
    a("s_barrier")
    for w in range(4):
        for q in range(4):
            a(f"ds_read_b128 {vr(PT+16*w+4*q,4)}, v{t0} offset:{w*2048 + (q>>1)*8192 + (q&1)*1024}")
        if w == 2:
            a("s_waitcnt lgkmcnt(4)")
            for rg in range(0, 16, 2):
                a(f"v_pk_add_f32 {vr(PT+rg,2)}, {vr(PT+rg,2)}, {vr(PT+16+rg,2)}")
    a("s_waitcnt lgkmcnt(0)")
    for rg in range(0, 16, 2):
        a(f"v_pk_add_f32 {vr(PT+32+rg,2)}, {vr(PT+32+rg,2)}, {vr(PT+48+rg,2)}")
    for rg in range(0, 16, 2):
        a(f"v_pk_add_f32 {vr(PT+rg,2)}, {vr(PT+rg,2)}, {vr(PT+32+rg,2)}")
    for rg in range(16):
        a(f"v_fmac_f32 v{ACY+rg}, v11, v{PT+rg}")
    for i in range(8):
        a(f"v_cvt_pk_bf16_f32 v{32+i}, v{ACY+2*i}, v{ACY+2*i+1}")
    a(f"buffer_store_dwordx4 v[32:35], v{VO}, s[28:31], 0 offen {opt.ofl}")
    a(f"buffer_store_dwordx4 v[36:39], v{VO}, s[28:31], 0 offen offset:16 {opt.ofl}")
    stamp(a, opt)
    stamp_flush(a, opt, "C")
    a("s_endpgm")


def compute_prologue(a, opt):
    t0, t1, t2 = C_T0, C_T1, C_T2
    if opt.pf:
        a(f"s_cmp_eq_u32 s46, {K_SPEC}")
        a("s_mov_b32 s47, 2752")
        a("s_cselect_b32 s47, 1024, s47")
        a("s_cmp_eq_u32 s22, 10")
        a("s_movk_i32 s40, 252")
        a("s_cselect_b32 s40, 188, s40")
        a(f"v_lshrrev_b32 v{t2}, 5, v1")
        a(f"v_bfe_u32 v{t0}, v1, 2, 3")
        a(f"v_lshl_add_u32 v{t0}, v{t2}, 7, v{t0}")
        a("s_lshl_b32 s44, s42, 3")
        a("s_add_u32 s44, s44, s55")
        a("s_lshl_b32 s44, s44, 3")
        a(f"v_add_u32 v{t0}, s44, v{t0}")
        a(f"v_mul_u32_u24 v{t0}, s47, v{t0}")
        a(f"v_and_b32 v{t1}, 3, v1")
        a(f"v_lshlrev_b32 v{t1}, 7, v{t1}")
        a(f"v_min_u32 v{t1}, s40, v{t1}")
        a("s_lshl_b32 s44, s22, 8")
        a(f"v_add3_u32 v{t0}, v{t0}, v{t1}, s44")
        a(f"v_and_b32 v{t1}, 31, v1")
        a(f"v_lshlrev_b32 v{t1}, 16, v{t1}")
        a(f"v_mul_u32_u24 v{t2}, 384, v{t2}")
        a("s_lshl_b32 s44, s23, 3")
        a("s_lshr_b32 s41, s2, 6")
        a("s_add_u32 s44, s44, s41")
        a("s_lshl_b32 s44, s44, 7")
        a(f"v_add3_u32 v{t1}, v{t1}, v{t2}, s44")
        a("s_lshl_b32 s40, s47, 6")
        a("s_mul_i32 s41, s40, 5")
        a("s_lshl_b32 s30, s47, 9")
        a("s_mov_b32 s31, 0x20000")
        a("s_waitcnt lgkmcnt(0)")
        srd(a, 24, 4, 5, 2048 * 1024)
        a(f"s_cmp_eq_u32 s46, {K_SPEC}")
        a("s_cselect_b64 s[12:13], s[8:9], s[12:13]")
        a("s_cselect_b64 s[14:15], s[10:11], s[14:15]")
        a("s_cmp_ge_u32 s45, 2")
        a("s_cselect_b64 s[28:29], s[14:15], s[12:13]")
        a(f"buffer_load_dword v29, v{t0}, s[28:31], s40 offen")
        a(f"buffer_load_dword v30, v{t1}, s[24:27], 0 offen offset:128")
        a(f"buffer_load_dword v31, v{t0}, s[28:31], s41 offen")
    a(f"v_lshlrev_b32 v{t0}, 3, v1")
    a(f"v_add_u32 v{t0}, {FLG}, v{t0}")
    a("v_mov_b32 v2, 0")
    a("v_mov_b32 v3, 0")
    a(f"ds_write_b64 v{t0}, v[2:3]")
    a("s_waitcnt lgkmcnt(0)")
    stamp(a, opt)
    a("s_and_b32 s63, s23, 31")
    a("s_lshl_b32 s63, s63, 8")
    a("s_lshr_b32 s44, s23, 5")
    a("s_lshl_b32 s44, s44, 4")
    a("s_add_u32 s63, s63, s44")
    a("s_add_u32 s63, s63, s22")
    a("s_lshl_b32 s63, s63, 2")
    a(f"s_cmp_eq_u32 s46, {K_IDLE}")
    a("s_cbranch_scc1 L1C_idle")
    a(f"v_bfe_u32 v{t0}, v1, 2, 2")
    a(f"v_lshrrev_b32 v{t1}, 4, v1")
    a(f"v_lshl_add_u32 v{t1}, v{t1}, 3, v{t0}")
    a(f"v_lshlrev_b32 v{t1}, 8, v{t1}")
    a(f"v_bfe_u32 v{t0}, v1, 2, 3")
    a(f"v_lshl_add_u32 v{t1}, v{t0}, 5, v{t1}")
    a(f"v_and_b32 v{t0}, 3, v1")
    a(f"v_lshl_add_u32 v{C_VB}, v{t0}, 3, v{t1}")
    a(f"v_and_b32 v{t0}, 15, v1")
    a(f"v_lshrrev_b32 v{t1}, 1, v{t0}")
    a(f"v_lshrrev_b32 v{t2}, 4, v1")
    a(f"v_xor_b32 v{t1}, v{t1}, v{t2}")
    a(f"v_lshlrev_b32 v{t1}, 4, v{t1}")
    a(f"v_lshl_add_u32 v{t0}, v{t0}, 7, v{t1}")
    a(f"v_add_u32 v{C_VX}, s48, v{t0}")
    a(f"v_xor_b32 v{C_VX+1}, 64, v{C_VX}")
    a(f"v_xor_b32 v{C_VX+2}, 0x2000, v{C_VX}")
    a(f"v_xor_b32 v{C_VX+3}, 0x2040, v{C_VX}")
    a("s_mov_b32 s65, 1")
    a(f"s_cmp_eq_u32 s46, {K_6G}")
    a("s_cbranch_scc1 L1C_ffn6")
    a("s_cmp_lg_u32 s46, 0")
    a("s_cbranch_scc1 L1C_specs")


def idle_compute(a, opt):
    t0, t1, t2 = C_T0, C_T1, C_T2
    a.label("L1C_idle")
    a("s_mov_b32 s65, 0")
    srd(a, 24, 76, 77, 256)
    a(f"v_mov_b32 v{t1}, 0")
    a("s_cmp_lg_u32 s55, 4")
    a("s_cbranch_scc1 L1_noinit")
    srd(a, 36, 78, 79, F_SIZE, F_OFF)
    for i in range(4):
        a(f"v_mov_b32 v{32+i}, 0")
    a(f"v_lshlrev_b32 v{t0}, 4, v1")
    a("s_and_b32 s42, s2, 7")
    a("s_lshl_b32 s42, s42, 2")
    a("s_add_u32 s42, s42, s45")
    a("s_lshl_b32 s42, s42, 10")
    a(f"buffer_store_dwordx4 v[32:35], v{t0}, s[36:39], s42 offen sc1")
    a(f"v_mov_b32 v{t2}, 1")
    a.label("L1_noinit")
    if opt.codepf:
        a("s_getpc_b64 s[36:37]")
        a.label("L_pcref")
        a(f"s_sub_u32 s36, s36, L_pcref-{NAME}_kernel")
        a("s_subb_u32 s37, s37, 0")
        a(f"s_mov_b32 s38, L_exit-{NAME}_kernel")
        a("s_mov_b32 s39, 0x20000")
        a("s_sub_u32 s42, s55, 4")
        a("s_lshl_b32 s42, s42, 2")
        a("s_add_u32 s42, s42, s45")
        a("s_and_b32 s42, s42, 7")
        a("s_mul_i32 s42, s42, 5120")
        a(f"v_lshlrev_b32 v{t0}, 7, v1")
        a(f"buffer_load_dword v250, v{t0}, s[36:39], s42 offen")
    a("s_waitcnt vmcnt(0)")
    a("s_cmp_lg_u32 s55, 4")
    a("s_cbranch_scc1 L1_noinit2")
    a("s_mov_b64 exec, 1")
    a(f"buffer_atomic_add v{t2}, v{t1}, s[24:27], 0 offen sc1")
    a("s_mov_b64 exec, -1")
    a.label("L1_noinit2")
    a("s_barrier")
    a("s_cmp_lg_u32 s45, 0")
    a("s_cbranch_scc1 L2C")
    a.label("L1C_idle_go")
    a("s_sleep 32")
    a(f"buffer_load_dword v{t2}, v{t1}, s[24:27], 0 offen sc1")
    a("s_waitcnt vmcnt(0)")
    a(f"v_cmp_gt_u32 vcc, 32, v{t2}")
    a("s_cbranch_vccnz L1C_idle_go")
    a("s_branch L2C")


def decode_rest(a, opt, lab):
    a("s_and_b32 s54, s2, 7")
    if opt.mir:
        a("s_and_b32 s46, s44, 1")
        a("s_lshl1_add_u32 s54, s54, s46")
        a("s_add_u32 s54, s54, 1")
        a("s_sub_u32 s46, 32, s54")
        a("s_cmp_eq_u32 s46, 16")
        a("s_cselect_b32 s46, 0, s46")
        a("s_cmp_ge_u32 s44, 2")
        a("s_cselect_b32 s54, s46, s54")
    else:
        a("s_lshl_b32 s54, s54, 2")
        a("s_add_u32 s54, s54, s44")
    a("s_cmp_eq_u32 s44, 3")
    a(f"s_cbranch_scc1 {lab}_3")
    a("s_mul_i32 s22, s42, 3")
    a("s_min_u32 s22, s22, 8")
    a("s_add_u32 s22, s22, s44")
    a("s_and_b32 s46, s42, s44")
    a("s_lshr_b32 s46, s46, 1")
    a(f"s_cbranch_scc0 {lab}_d")
    a("s_and_b32 s22, s42, 1")
    a(f"s_branch {lab}_d")
    a.label(f"{lab}_3")
    a("s_cmp_lt_u32 s55, 2")
    a("s_cselect_b32 s22, 10, 2")
    a("s_lshr_b32 s46, s55, 1")
    a("s_add_u32 s46, s46, 2")
    a(f"s_min_u32 s46, s46, {K_IDLE}")
    a.label(f"{lab}_d")


def kernel(a, opt):
    a.label(NAME + "_kernel")
    if opt.stamps:
        a("v_mov_b32 v255, 0")
        a("v_mov_b32 v253, 0")
        a("s_mov_b32 s89, 0")
        stamp(a, opt)
    a("s_load_dwordx2 s[24:25], s[0:1], 0")
    a("s_load_dwordx16 s[4:19], s[0:1], 24")
    a("s_load_dwordx4 s[76:79], s[0:1], 88")
    a("v_lshrrev_b32 v2, 6, v0")
    a("v_and_b32 v1, 63, v0")
    a("v_readfirstlane_b32 s20, v2")
    a("s_cmp_ge_u32 s2, 256")
    a("s_cbranch_scc1 L_exit")
    a("s_bfe_u32 s55, s2, 0x30003")
    a("s_bfe_u32 s42, s2, 0x20001")
    a("s_lshr_b32 s44, s2, 6")
    a("s_and_b32 s43, s55, 1")
    a("s_lshl1_add_u32 s43, s42, s43")
    a("s_cmp_eq_u32 s44, 3")
    a("s_cselect_b32 s21, s43, s55")
    a("s_cselect_b32 s43, s55, s44")
    a("s_mul_i32 s43, s43, 3")
    a("s_addc_u32 s49, s43, s21")
    a(f"s_and_b32 s49, s49, {opt.rotmask}")
    a("s_and_b32 s43, s2, 1")
    a("s_lshl3_add_u32 s21, s43, s21")
    a("s_and_b32 s45, s20, 3")
    a("s_and_b32 s40, s45, 1")
    a("s_lshr_b32 s41, s45, 1")
    a("s_lshl1_add_u32 s23, s21, s40")
    a("s_lshl_b32 s43, s41, 5")
    a("s_add_u32 s23, s23, s43")
    a("s_lshl_b32 s48, s45, 12")
    a("s_bitset1_b32 s48, 15")
    a("s_cmp_ge_u32 s20, 4")
    a("s_cbranch_scc1 L1_compw")
    t0, t1, t2, VX, VD = L_T0, L_T1, L_T2, L_VX, L_VD
    a(f"v_lshrrev_b32 v{t0}, 3, v1")
    a("s_lshl_b32 s43, s23, 10")
    a(f"v_lshl_add_u32 v{t0}, v{t0}, 16, s43")
    a(f"v_lshrrev_b32 v{t1}, 4, v1")
    a(f"v_and_b32 v{t2}, 7, v1")
    a(f"v_xor_b32 v{t2}, v{t1}, v{t2}")
    a(f"v_lshl_add_u32 v{VX}, v{t2}, 4, v{t0}")
    a(f"v_xor_b32 v{VX+1}, {8*65536+64:#x}, v{VX}")
    a(f"v_xor_b32 v{VX+2}, {16*65536:#x}, v{VX}")
    a(f"v_xor_b32 v{VX+3}, {24*65536+64:#x}, v{VX}")
    a("s_mov_b32 s26, 0x200000")
    a("s_mov_b32 s27, 0x20000")
    a("s_lshl_b32 s47, s49, 7")
    a("s_mov_b32 m0, s48")
    a("s_cmp_ge_u32 s2, 224")
    a("s_waitcnt lgkmcnt(0)")
    a("s_cbranch_scc1 L_nox")
    for i in range(4):
        a(f"buffer_load_dwordx4 v{VX+i}, s[24:27], s47 offen lds")
        if i < 3:
            a("s_add_u32 m0, m0, 1024")
            a("s_nop 0")
    a.label("L_nox")
    stamp(a, opt)
    decode_rest(a, opt, "L_dl")
    a("s_cmp_eq_u32 s46, 0")
    a("s_cselect_b32 s43, 15, 11")
    a(f"s_cmp_eq_u32 s46, {K_S4G}")
    a("s_cselect_b32 s43, 7, s43")
    a("s_cselect_b32 s80, 0, -1")
    a("s_bitcmp1_b32 s46, 0")
    a("s_cselect_b64 s[10:11], s[4:5], s[10:11]")
    a("s_cselect_b64 s[12:13], s[6:7], s[12:13]")
    a("s_movk_i32 s47, 2752")
    a("s_cselect_b32 s47, 1024, s47")
    a("s_movk_i32 s82, 256")
    a("s_cselect_b32 s82, 192, s82")
    a("s_cmp_eq_u32 s41, 1")
    a("s_cselect_b64 s[28:29], s[12:13], s[10:11]")
    a(f"v_lshl_add_u32 v{t0}, s40, 2, v{t1}")
    a("s_mul_i32 s82, s22, s82")
    a(f"v_mul_u32_u24 v{t0}, s47, v{t0}")
    a(f"v_and_b32 v{t2}, 15, v1")
    a(f"v_add_u32 v{t0}, s82, v{t0}")
    a(f"v_lshlrev_b32 v{t1}, 1, v{t1}")
    a(f"v_xor_b32 v{t1}, v{t1}, v{t2}")
    a(f"v_xor_b32 v{t2}, 8, v{t1}")
    a(f"v_min_u32 v{t1}, s43, v{t1}")
    a(f"v_min_u32 v{t2}, s43, v{t2}")
    a(f"v_lshl_add_u32 v{VD}, v{t1}, 4, v{t0}")
    a(f"v_lshl_add_u32 v{VD+1}, v{t2}, 4, v{t0}")
    a("s_lshl_b32 s41, s41, 14")
    a("s_lshl_b32 s40, s40, 10")
    a("s_add_u32 s41, s41, s40")
    a("s_lshl1_add_u32 s56, s44, s55")
    a("s_lshl_b32 s44, s47, 3")
    a("s_lshl_b32 s30, s47, 9")
    a("s_mov_b32 s31, 0x20000")
    a("s_mov_b32 s66, 0")
    a("s_mov_b32 s67, 0")
    a("s_mul_i32 s40, s49, s44")
    a(f"s_cmp_lg_u32 s46, {K_IDLE}")
    a("s_cbranch_scc1 L1L_w")
    a("v_mov_b32 v14, 0")
    a("v_mov_b32 v15, 0")
    srd(a, 68, 76, 77, 256)
    p2_setup(a, opt)
    a("s_barrier")
    a("s_branch L2W")
    p1_loader(a, opt)
    p2_worker(a, opt)
    a.label("L1_compw")
    if opt.prio:
        a(f"s_setprio {opt.prio}")
    decode_rest(a, opt, "L_dc")
    compute_prologue(a, opt)
    p1_compute(a, opt, "ffn8")
    p2_combine(a, opt)
    a.label("L1C_specs")
    a("s_mov_b32 s65, 2")
    dft32_consts(a)
    a(f"s_cmp_eq_u32 s46, {K_S4G}")
    a("s_cbranch_scc1 L1C_spec4g")
    p1_compute(a, opt, "spec6")
    p1_compute(a, opt, "spec4g")
    p1_compute(a, opt, "ffn6")
    idle_compute(a, opt)
    a.label("L_exit")
    a("s_endpgm")


def main():
    ap = argparse.ArgumentParser()
    ap.add_argument("-o", default=f"cdna_kernels/{NAME}.s")
    ap.add_argument("--stamps", action="store_true")
    ap.add_argument("--fine", action="store_true")
    ap.add_argument("--fine2", action="store_true")
    ap.add_argument("--q", type=int, default=8)
    ap.add_argument("--rotmask", type=int, default=7)
    ap.add_argument("--hr", type=int, default=7)
    ap.add_argument("--la", type=int, default=5)
    ap.add_argument("--psleep", type=int, default=8)
    ap.add_argument("--tail", type=int, default=0)
    ap.add_argument("--fpg", type=int, default=6)
    ap.add_argument("--codepf", type=int, default=1)
    ap.add_argument("--pad", type=int, default=-1)
    ap.add_argument("--padrole", default="C")
    ap.add_argument("--prio", type=int, default=0)
    ap.add_argument("--bpos", type=int, default=3)
    ap.add_argument("--nb", type=int, default=3)
    ap.add_argument("--zlate", type=int, default=1)
    ap.add_argument("--mir", type=int, default=1)
    ap.add_argument("--zbar", type=int, default=20)
    ap.add_argument("--lateb9", type=int, default=1)
    ap.add_argument("--zsleep", type=int, default=4)
    ap.add_argument("--noz", action="store_true")
    ap.add_argument("--ofl", default="")
    ap.add_argument("--ssleep", type=int, default=0)
    ap.add_argument("--split0", type=int, default=1)
    ap.add_argument("--fmask", default="3")
    ap.add_argument("--cmask", type=int, default=1)
    ap.add_argument("--half", type=int, default=0)
    ap.add_argument("--hp", type=int, default=6)
    ap.add_argument("--wpoll", type=int, default=0)
    ap.add_argument("--spr", type=int, default=6)
    ap.add_argument("--fine4", action="store_true")
    ap.add_argument("--nost", action="store_true")
    ap.add_argument("--idledelay", type=int, default=0)
    ap.add_argument("--xrot", type=int, default=1)
    ap.add_argument("--tcb", type=int, default=2)
    ap.add_argument("--wtouch", type=int, default=1)
    ap.add_argument("--pf", type=int, default=0)
    ap.add_argument("--pq", type=int, default=1)
    ap.add_argument("--idlego", type=int, default=0)
    ap.add_argument("--nc", type=int, default=6)
    ap.add_argument("--stag", type=int, default=1)
    ap.add_argument("--thrz", type=int, default=0)
    ap.add_argument("--pace", type=int, default=0)
    ap.add_argument("--thr", type=int, default=0)
    ap.add_argument("--thr2", type=int, default=4)
    ap.add_argument("--early", type=int, default=0)
    ap.add_argument("--nowait", action="store_true")
    ap.add_argument("--fine3", action="store_true")
    ap.add_argument("--nomfma", action="store_true")
    ap.add_argument("--noidle", action="store_true")
    ap.add_argument("--fsleep", type=int, default=0)
    ap.add_argument("--noreads", action="store_true")
    opt = ap.parse_args()
    global FSLEEP
    FSLEEP = opt.fsleep
    hdr = open(f"cdna_kernels/{NAME}.s.ref").read().split("; Override launch")[0]
    out = hdr
    out += f"; @launch grid=(256,1,1) block=(512,1,1) lds={LDS_SIZE}\n"
    out += '.amdgcn_target "amdgcn-amd-amdhsa--gfx950"\n.text\n'
    a = Asm()
    kernel(a, opt)
    nm = NAME + "_kernel"
    out += f".globl {nm}\n.p2align 8\n.type {nm},@function\n" + a.text()
    out += f""".section .rodata,"a"
.p2align 6
.amdhsa_kernel {nm}
  .amdhsa_next_free_vgpr 256
  .amdhsa_next_free_sgpr 102
  .amdhsa_accum_offset 256
  .amdhsa_group_segment_fixed_size 0
  .amdhsa_kernarg_size 104
  .amdhsa_user_sgpr_count 2
  .amdhsa_user_sgpr_kernarg_segment_ptr 1
  .amdhsa_system_sgpr_workgroup_id_x 1
.end_amdhsa_kernel
"""
    open(opt.o, "w").write(out)


if __name__ == "__main__":
    main()
```

```python
import struct, sys, argparse, re

NAME = "gated_mix__spectral_fnet__geglu_ffn__prompt"
H_OFF = 0
H_SIZE = 64 * 86 * 1024
Z_OFF = 0x600000
EP = 264
ZR_B = 16 * EP * 16
Z_SIZE = 32 * ZR_B
G_OFF = 0x900000
G_SIZE = 2048 * 4
F_OFF = 0x980000
F_SIZE = 32768
T_OFF = 0xA00000
MF16 = "v_mfma_f32_16x16x32_bf16"
MF32 = "v_mfma_f32_32x32x16_bf16"


def f2u(f):
    return struct.unpack("<I", struct.pack("<f", f))[0]


class Asm:
    def __init__(self):
        self.l = []
        self.ds = []
        self.vm = []
        self.n = 0
        self.ub = 0

    def __call__(self, s):
        if s.startswith("ds_"):
            if self.ub >= 15:
                self("s_waitcnt lgkmcnt(10)")
            self.ub += 1
        m = re.search(r"lgkmcnt\((\d+)\)", s)
        if m:
            self.ub = min(self.ub, int(m.group(1)))
        self.l.append("    " + s)
        self.n += 1

    def label(self, s):
        self.l.append(s + ":")

    def dsop(self, s, tag):
        self(s)
        self.ds.append(tag)

    def dswait(self, tag):
        idx = max(i for i, t in enumerate(self.ds) if t == tag)
        n = len(self.ds) - 1 - idx
        assert n <= 15, n
        self(f"s_waitcnt lgkmcnt({n})")

    def vmop(self, s, tag):
        self(s)
        self.vm.append(tag)

    def vmwait(self, tag):
        idx = max(i for i, t in enumerate(self.vm) if t == tag)
        n = len(self.vm) - 1 - idx
        assert n <= 63, n
        self(f"s_waitcnt vmcnt({n})")

    def text(self):
        return "\n".join(self.l) + "\n"


def vr(b, n):
    return f"v[{b}:{b+n-1}]"


def srd(a, d, lo, hi, size, add=0):
    if add:
        a(f"s_add_u32 s{d}, s{lo}, {add:#x}")
        a(f"s_addc_u32 s{d+1}, s{hi}, 0")
    else:
        a(f"s_mov_b32 s{d}, s{lo}")
        a(f"s_mov_b32 s{d+1}, s{hi}")
    a(f"s_mov_b32 s{d+2}, {size:#x}")
    a(f"s_mov_b32 s{d+3}, 0x20000")


def stamp(a, opt):
    if not opt.stamps:
        return
    a("s_memrealtime s[90:91]")
    a("s_memtime s[86:87]")
    a("s_mov_b32 s88, m0")
    a("s_waitcnt lgkmcnt(0)")
    a("s_mov_b32 m0, s89")
    a("s_add_u32 s89, s89, 1")
    a("v_writelane_b32 v255, s90, m0")
    a("v_writelane_b32 v253, s86, m0")
    a("s_mov_b32 m0, s88")


def stamp_flush(a, opt, role):
    if not opt.stamps:
        return
    if opt.pad >= 0:
        if role == opt.padrole:
            a("s_cmp_lg_u32 s46, 0")
            a("s_cbranch_scc1 Lpad_end")
            if opt.padx >= 0:
                a("s_and_b32 s92, s2, 7")
                a(f"s_cmp_lg_u32 s92, {opt.padx}")
                a("s_cbranch_scc1 Lpad_end")
            a("s_nop 4")
            a(f"v_readlane_b32 s92, v255, {opt.pad}")
            a("s_nop 4")
            a("s_add_u32 s92, s92, 4000")
            a.label("Lpad")
            a("s_memrealtime s[90:91]")
            a("s_waitcnt lgkmcnt(0)")
            a("s_sub_u32 s93, s92, s90")
            a("s_cmp_gt_i32 s93, 0")
            a("s_cbranch_scc1 Lpad")
            a.label("Lpad_end")
        return
    a("s_waitcnt vmcnt(0)")
    stamp(a, opt)
    srd(a, 92, 78, 79, 0x200000, T_OFF)
    a("s_lshl_b32 s96, s2, 3")
    a("s_add_u32 s96, s96, s20")
    a("s_lshl_b32 s96, s96, 8")
    a("v_lshlrev_b32 v254, 2, v1")
    a("buffer_store_dword v255, v254, s[92:95], s96 offen")
    a("s_add_u32 s96, s96, 0x100000")
    a("buffer_store_dword v253, v254, s[92:95], s96 offen")


C1 = -2.0 * 0.7978845608028654 * 1.4426950408889634
C2 = C1 * 0.044715
NB = 3
SSZ = 49152
FLG = 78 * 2048
RH = FLG + 256
RZ = FLG + 64
GW_LDS = FLG + 512
LDS_SIZE = 163840
assert GW_LDS + 2048 <= LDS_SIZE
K_FFN, K_SPEC, K_6G, K_IDLE, K_S4G = 0, 1, 2, 4, 3

L_VD, L_VX, L_T0, L_T1, L_T2, L_VF, L_VA = 2, 10, 16, 17, 18, 20, 21


FSLEEP = 0


def free_wait(a, lab, val):
    if FSLEEP:
        a(f"s_branch {lab}_c")
    a.label(lab)
    if FSLEEP:
        a(f"s_sleep {FSLEEP}")
        a.label(lab + "_c")
    a(f"ds_read_b32 v{L_T0}, v{L_VA}")
    a("s_waitcnt lgkmcnt(0)")
    a(f"v_cmp_ge_u32 vcc, {val}, v{L_T0}")
    a(f"s_cbranch_vccnz {lab}")


def p2_setup(a, opt):
    t0, t1, t2 = L_T0, L_T1, L_T2
    VW0, VW1 = 28, 29
    VH0, VH1 = 4, 5
    VRH = 7
    VRB = 22
    a(f"s_cmp_eq_u32 s46, {K_IDLE}")
    a("s_cselect_b32 s83, 1, 0")
    if opt.xrot:
        a("s_add_u32 s56, s56, s2")
    a("s_and_b32 s56, s56, 7")
    a("s_mul_i32 s56, s56, 5")
    a("s_lshr_b32 s56, s56, 2")
    a(f"v_bfe_u32 v{t0}, v1, 4, 1")
    a(f"v_lshlrev_b32 v{t0}, 2, v{t0}")
    a(f"v_and_b32 v{t1}, 7, v1")
    a(f"v_xor_b32 v{t0}, v{t0}, v{t1}")
    a(f"v_lshrrev_b32 v{t1}, 3, v1")
    a(f"v_lshlrev_b32 v{t1}, 10, v{t1}")
    a(f"v_lshl_add_u32 v{VW0}, v{t0}, 4, v{t1}")
    a("s_lshl_b32 s42, s55, 7")
    a("s_lshl_b32 s43, s45, 14")
    a("s_add_u32 s42, s42, s43")
    a(f"v_add_u32 v{VW0}, s42, v{VW0}")
    a(f"v_add_u32 v{VW1}, 0x2000, v{VW0}")
    a("s_lshl_b32 s59, s45, 11")
    a("s_cmp_lt_u32 s45, 2")
    a("s_cselect_b32 s57, 11, 10")
    a(f"v_lshrrev_b32 v{t2}, 5, v1")
    a(f"v_bfe_u32 v{t0}, v1, 2, 2")
    a(f"v_lshl_add_u32 v{t0}, v{t2}, 3, v{t0}")
    a(f"v_lshlrev_b32 v{t0}, 7, v{t0}")
    a(f"v_bfe_u32 v{t1}, v1, 1, 1")
    a(f"v_lshl_add_u32 v{t0}, v{t1}, 3, v{t0}")
    a(f"v_and_b32 v{t1}, 1, v1")
    a(f"v_lshl_add_u32 v{t0}, v{t1}, 5, v{t0}")
    a(f"v_bfe_u32 v{t1}, v1, 4, 1")
    a(f"v_lshl_add_u32 v{t0}, v{t1}, 4, v{t0}")
    a(f"v_bfe_u32 v{t1}, v1, 3, 1")
    a(f"v_lshl_add_u32 v{t0}, v{t1}, 6, v{t0}")
    a(f"v_add_u32 v{VRB}, s59, v{t0}")
    a(f"v_xor_b32 v{VRB+1}, 64, v{VRB}")
    for k in (1, 2):
        a(f"v_add_u32 v{VRB+2*k}, {k*65536}, v{VRB}")
        a(f"v_add_u32 v{VRB+2*k+1}, {k*65536}, v{VRB+1}")
    a(f"v_lshlrev_b32 v{t0}, 4, v1")
    a(f"s_mul_i32 s42, s54, {86*1024}")
    a("s_lshl_b32 s43, s45, 10")
    a("s_add_u32 s42, s42, s43")
    a(f"v_add_u32 v{VH0}, s42, v{t0}")
    a(f"v_add_u32 v{VH1}, {32*86*1024}, v{VH0}")
    srd(a, 32, 78, 79, H_SIZE, H_OFF)
    a("v_cmp_gt_u32 vcc, 11, v1")
    a(f"v_subrev_u32 v{t0}, 11, v1")
    a(f"v_mov_b32 v{t1}, s57")
    a(f"v_cndmask_b32 v{t0}, v{t0}, v1, vcc")
    a(f"v_cndmask_b32 v{t1}, v{t1}, 11, vcc")
    a(f"v_cndmask_b32 v6, 2, {1 if opt.half else 2}, vcc")
    a(f"v_add_u32 v{t0}, s56, v{t0}")
    a(f"v_sub_u32 v{t1}, v{t0}, v{t1}")
    a(f"v_min_u32 v{t0}, v{t0}, v{t1}")
    a(f"v_min_u32 v{t0}, 10, v{t0}")
    a(f"v_lshlrev_b32 v{t0}, 2, v{t0}")
    a(f"v_add_u32 v{VRH}, {RH}, v{t0}")
    srd(a, 36, 78, 79, F_SIZE, F_OFF)
    a("s_lshl_b32 s62, s54, 3")
    a(f"s_and_b32 s43, s55, {opt.cmask}")
    a("s_add_u32 s62, s62, s43")
    a("s_lshl_b32 s62, s62, 7")
    a("v_lshlrev_b32 v8, 4, v1")
    a("s_or_b32 s61, s45, s83")
    a("s_mov_b32 s60, 0")


def p1_loader(a, opt):
    VD, VX, t0 = L_VD, L_VX, L_T0
    Q = opt.q
    a.label("L1L_loop")
    a("s_lshl_b32 s47, s49, 7")
    a("s_add_u32 m0, s48, s67")
    a("s_mul_i32 s40, s49, s44")
    n = 0

    def after():
        nonlocal n
        n += 1
        if n == Q:
            a("s_cmp_eq_u32 s66, 0")
            a("s_cbranch_scc1 L1L_nobar")
            a(f"s_waitcnt vmcnt({Q})")
            if opt.fine:
                stamp(a, opt)
            a("s_barrier")
            a.label("L1L_nobar")

    for i in range(4):
        a(f"buffer_load_dwordx4 v{VX+i}, s[24:27], s47 offen lds")
        if i < 3:
            a("s_add_u32 m0, m0, 1024")
            a("s_nop 0")
        else:
            a.label("L1L_w")
            a("s_add_u32 m0, s41, s67")
            a("s_lshl_b32 s40, s40, 3")
        if opt.split0 and i == opt.split0 - 1:
            a("s_cmp_lg_u32 s66, 1")
            a("s_cbranch_scc1 L1L_nosp")
            a(f"s_waitcnt vmcnt({4 + opt.split0})")
            a("s_barrier")
            a.label("L1L_nosp")
        after()
    for u in range(8):
        a(f"buffer_load_dwordx4 v{VD+(u&1)}, s[28:31], s40 offen lds")
        if u < 7:
            a("s_add_u32 m0, m0, 2048")
            a("s_add_u32 s40, s40, s44")
        after()
    a("s_cmp_lg_u32 s66, 0")
    a("s_cbranch_scc1 L1L_next")
    a("v_mov_b32 v14, 0")
    a("v_mov_b32 v15, 0")
    srd(a, 68, 76, 77, 256)
    a("s_cmp_eq_u32 s45, 0")
    a("s_cselect_b32 s81, 5, -1")
    a("s_cmp_eq_u32 s66, s80")
    a("s_cbranch_scc0 L1L_next")
    srd(a, 36, 16, 17, 1024)
    a(f"s_mov_b32 m0, {GW_LDS}")
    a(f"v_lshlrev_b32 v{t0}, 4, v1")
    a(f"buffer_load_dwordx4 v{t0}, s[36:39], 0 offen lds")
    srd(a, 36, 4, 5, 1024, 256 * 1024)
    a(f"s_mov_b32 m0, {GW_LDS+1024}")
    a("s_nop 0")
    a(f"buffer_load_dwordx4 v{t0}, s[36:39], 0 offen lds")
    a.label("L1L_next")
    a("s_cmp_eq_u32 s66, s81")
    a("s_cbranch_scc0 L1L_next2")
    a("buffer_load_dword v14, v15, s[68:71], 0 offen")
    a.label("L1L_next2")
    a("s_cmp_lg_u32 s66, 0")
    a("s_cbranch_scc1 L1L_next3")
    p2_setup(a, opt)
    a.label("L1L_next3")
    a("s_add_u32 s49, s49, 1")
    a("s_and_b32 s49, s49, 7")
    a(f"s_add_u32 s67, s67, {SSZ}")
    a(f"s_cmp_eq_u32 s67, {3*SSZ}")
    a("s_cselect_b32 s67, 0, s67")
    a("s_add_u32 s66, s66, 1")
    a("s_cmp_lt_u32 s66, 8")
    a("s_cbranch_scc1 L1L_loop")


def p2_worker(a, opt):
    HR = opt.hr
    LA = opt.la
    t0, t1, t2 = L_T0, L_T1, L_T2
    VW0, VW1 = 28, 29
    VH0, VH1 = 4, 5
    VRH = 7
    VRB = 22
    WF, ACB, HF = 32, 64, 128
    WR = 4
    assert HF + 8 * HR <= 252 and LA < HR
    a.vm, a.ds = [], []
    a.label("L2W")
    srd(a, 28, 14, 15, 1376 * 1024)
    rows = [18, 18] + list(range(12, 18)) + [18] + list(range(0, 12)) + [19]
    NI = 22
    assert len(rows) == NI

    def prod(i, dst, sh):
        if i < 11:
            a(f"s_add_u32 s{dst}, s56, {i}")
            a(f"s_sub_u32 s43, s{dst}, 11")
        else:
            a(f"s_add_u32 s{dst}, s56, {i-11}")
            a(f"s_sub_u32 s43, s{dst}, s57")
        a(f"s_cselect_b32 s{dst}, s{dst}, s43")
        a(f"s_lshl_b32 s{dst}, s{dst}, {sh+1}")
        if i >= 11:
            a(f"s_add_u32 s{dst}, s{dst}, {1 << sh}")

    def wload(i):
        a(f"s_add_u32 m0, s59, {rows[i]*8192}")
        prod(i, 40, 16)
        a.vmop(f"buffer_load_dwordx4 v{VW0}, s[28:31], s40 offen lds", ("w", i))
        a("s_add_u32 m0, m0, 1024")
        a("s_nop 0")
        a.vmop(f"buffer_load_dwordx4 v{VW1}, s[28:31], s40 offen lds", ("w", i))

    def wreads(i):
        f = WF + 8 * (i % WR)
        b = VRB + 2 * (rows[i] // 8)
        o = (rows[i] % 8) * 8192
        for ln in range(2):
            a.dsop(f"ds_read_b64_tr_b16 {vr(f+4*ln,2)}, v{b+ln} offset:{o}", ("r", i))
            a.dsop(f"ds_read_b64_tr_b16 {vr(f+4*ln+2,2)}, v{b+ln} offset:{o+512}", ("r", i))

    wload(0)
    for i in range(2, 2 + opt.nb):
        wload(i)
    a(f"s_waitcnt vmcnt({len(a.vm)})")
    a("s_or_b32 s42, s45, s83")
    a("s_cbranch_scc1 L2W_gook")
    a("v_cmp_le_u32 vcc, 32, v14")
    a("s_cbranch_vccnz L2W_gook")
    a.label("L2W_go")
    a("buffer_load_dword v14, v15, s[68:71], 0 offen sc1")
    a("s_waitcnt vmcnt(0)")
    a("v_cmp_gt_u32 vcc, 32, v14")
    a("s_cbranch_vccnz L2W_go")
    a.label("L2W_gook")
    stamp(a, opt)
    a("s_cmp_lg_u32 s83, 0")
    a("s_cbranch_scc1 L2W_nob6")
    a("s_barrier")
    a.label("L2W_nob6")
    a.vmwait(("w", 0))
    wreads(0)
    a("s_waitcnt lgkmcnt(0)")
    wload(1)
    for i in range(2 + opt.nb, 8):
        wload(i)
    a("s_bitcmp1_b32 s46, 0")
    a("s_cbranch_scc0 L2W_c")
    a("s_barrier")
    a("s_barrier")
    a("s_barrier")
    a.label("L2W_c")
    for i in range(9, 9 + opt.nc):
        wload(i)
    a("s_and_b32 s42, s46, 5")
    a("s_cbranch_scc1 L2W_nob7")
    a("s_barrier")
    a.label("L2W_nob7")
    a.vmwait(("w", 1))
    wreads(1)
    a("s_waitcnt lgkmcnt(0)")
    for i in [8] + list(range(9 + opt.nc, 21)):
        wload(i)
        if opt.thr2:
            a("s_and_b32 s42, s46, 5")
            a(f"s_cbranch_scc1 L2W_nt{i}")
            a(f"s_waitcnt vmcnt({opt.thr2})")
            a.label(f"L2W_nt{i}")
    a("s_cmp_ge_u32 s45, 2")
    a("s_cbranch_scc1 L2W_no19")
    wload(21)
    a.label("L2W_no19")
    a(f"s_cmp_lg_u32 s46, {K_IDLE}")
    a("s_cbranch_scc1 L2W_nopf")
    a("s_sub_u32 s42, s55, 4")
    a("s_lshl_b32 s42, s42, 2")
    a("s_add_u32 s42, s42, s45")
    if opt.xrot:
        a("s_lshl_b32 s43, s2, 1")
        a("s_add_u32 s42, s42, s43")
        a("s_and_b32 s42, s42, 15")
    a(f"s_mul_i32 s42, s42, {96*1024}")
    a(f"v_lshrrev_b32 v{t0}, 1, v1")
    a(f"v_lshlrev_b32 v{t0}, 10, v{t0}")
    a(f"v_and_b32 v{t1}, 1, v1")
    a(f"v_lshl_add_u32 v{t0}, v{t1}, 7, v{t0}")
    for k in range(3):
        for c in range(opt.tcb):
            a(f"buffer_load_dword v250, v{t0}, s[28:31], s42 offen offset:{256*c}")
        a("s_add_u32 s42, s42, 0x8000")
    a.label("L2W_nopf")
    stamp(a, opt)
    a.vm = []

    spins = []

    def issue1(i):
        h = HF + 8 * (i % HR)
        a(f"s_bitcmp1_b32 s60, {i}")
        a(f"s_cbranch_scc0 L2W_i{i}_spin")
        a.label(f"L2W_i{i}_ok")
        spins.append(i)
        prod(i, 40, 12)
        a.vmop(f"buffer_load_dwordx4 {vr(h,4)}, v{VH0}, s[32:35], s40 offen sc1", ("h", i))

    def issue2(i):
        h = HF + 8 * (i % HR)
        a.vmop(f"buffer_load_dwordx4 {vr(h+4,4)}, v{VH1}, s[32:35], s40 offen sc1", ("h", i))

    a("s_waitcnt vmcnt(0)")
    a(f"s_mov_b32 m0, {RH}")
    wreads(2)
    for i in range(LA):
        issue1(i)
        issue2(i)
        if i == 0:
            stamp(a, opt)
    for i in range(NI):
        a.vmwait(("h", i))
        if i == 0:
            stamp(a, opt)
        if i >= 2:
            a.dswait(("r", i))
        f = WF + 8 * (i % WR)
        h = HF + 8 * (i % HR)
        if i == 21:
            a("s_cmp_ge_u32 s45, 2")
            a("s_cbranch_scc1 L2W_skip")
        for L in range(4):
            lt, ln = L & 1, L >> 1
            acc = vr(ACB + 16 * L, 16)
            a(f"{MF32} {acc}, {vr(f+4*ln,4)}, {vr(h+4*lt,4)}, {'0' if i == 0 else acc}")
            if L == 0 and i + 3 < NI:
                wreads(i + 3)
            if L == 1 and i + LA < NI:
                issue1(i + LA)
            if L == 2 and i + LA < NI:
                issue2(i + LA)
                if i + LA == opt.zbar:
                    a("s_barrier")
        if i == 21:
            a.label("L2W_skip")
        if opt.fine2 and i % 4 == 3:
            stamp(a, opt)
    stamp(a, opt)
    a(f"v_lshlrev_b32 v{t0}, 4, v1")
    a(f"v_add_u32 v{t0}, s59, v{t0}")
    a("s_nop 7")
    a("s_nop 1")
    for L in range(4):
        for q in range(4):
            p = 4 * L + q
            a(f"ds_write_b128 v{t0}, {vr(ACB+16*L+4*q,4)} offset:{(p>>1)*8192 + (p&1)*1024}")
    a("s_waitcnt lgkmcnt(0)")
    a("s_barrier")
    stamp_flush(a, opt, "L")
    a("s_endpgm")
    for i in spins:
        a.label(f"L2W_i{i}_spin")
        a(f"ds_read2_b32 {vr(t0,2)}, v{VRH} offset0:0 offset1:16")
        a("s_waitcnt lgkmcnt(0)")
        a(f"v_min_u32 v{t0}, v{t0}, v{t1}")
        a(f"v_cmp_ge_u32 vcc, v{t0}, v6")
        a("s_mov_b32 s60, vcc_lo")
        a(f"s_bitcmp1_b32 s60, {i}")
        a(f"s_cbranch_scc1 L2W_i{i}_ok")
        if opt.wpoll and i < LA:
            a("s_cmp_lg_u32 s61, 0")
            a(f"s_cbranch_scc1 L2W_i{i}_spin")
            a("s_mov_b64 exec, 0xff")
            a("buffer_load_dwordx4 v8, s[36:39], s62 offen sc1 lds")
            a("s_mov_b64 exec, -1")
            a("s_waitcnt vmcnt(0)")
        if opt.ssleep:
            a(f"s_sleep {opt.ssleep}")
        a(f"s_branch L2W_i{i}_spin")


C_VA, C_VX, C_VB, C_VST, C_VGW, C_VFD = 2, 6, 10, 14, 15, 19
C_T0, C_T1, C_T2 = 20, 21, 22
C_K1, C_K2 = 24, 26
C_WF, C_XF, C_ACC, C_TT, C_TT2, C_CF, C_SF = 28, 52, 116, 88, 100, 212, 220


def dft32_consts(a):
    t0, t1, t2 = C_T0, C_T1, C_T2
    tc, ts = 96, 112
    a(f"v_and_b32 v{t0}, 15, v1")
    a(f"v_cvt_f32_u32 v{t0}, v{t0}")
    a(f"v_mul_f32 v{t0}, {f2u(1.0/32):#x}, v{t0}")
    a(f"v_lshrrev_b32 v{t1}, 4, v1")
    a(f"v_cvt_f32_u32 v{t1}, v{t1}")
    a(f"v_mul_f32 v{t1}, 4.0, v{t1}")
    for rho in range(2):
        if rho:
            a(f"v_add_f32 v{t0}, 0.5, v{t0}")
        a(f"v_mul_f32 v{t2}, v{t0}, v{t1}")
        for sg in range(8):
            s1c = 16 * (sg >> 2) + (sg & 3)
            a(f"v_fmamk_f32 v{tc+8*rho+sg}, v{t0}, {f2u(float(s1c)):#x}, v{t2}")
    for i in range(16):
        a(f"v_fract_f32 v{tc+i}, v{tc+i}")
    for i in range(16):
        a(f"v_sin_f32 v{ts+i}, v{tc+i}")
    for i in range(16):
        a(f"v_cos_f32 v{tc+i}, v{tc+i}")
    a("s_nop 0")
    for i in range(8):
        a(f"v_cvt_pk_bf16_f32 v{C_CF+i}, v{tc+2*i}, v{tc+2*i+1}")
        a(f"v_cvt_pk_bf16_f32 v{C_SF+i}, v{ts+2*i}, v{ts+2*i+1}")


def ffn_epi(p):
    A, TT = C_ACC + 16 * p, C_TT
    r = []
    for v in range(0, 8, 2):
        r.append(f"v_pk_mul_f32 {vr(TT+v,2)}, {vr(A+v,2)}, {vr(A+v,2)}")
    for v in range(0, 8, 2):
        r.append(f"v_pk_fma_f32 {vr(TT+v,2)}, {vr(TT+v,2)}, {vr(C_K2,2)}, {vr(C_K1,2)}")
    for v in range(0, 8, 2):
        r.append(f"v_pk_mul_f32 {vr(TT+v,2)}, {vr(TT+v,2)}, {vr(A+v,2)}")
    for v in range(8):
        r.append(f"v_exp_f32 v{TT+v}, v{TT+v}")
    for v in range(0, 8, 2):
        r.append(f"v_pk_mul_f32 {vr(A+8+v,2)}, {vr(A+v,2)}, {vr(A+8+v,2)}")
    for v in range(0, 8, 2):
        r.append(f"v_pk_add_f32 {vr(TT+v,2)}, {vr(TT+v,2)}, 1.0 op_sel_hi:[1,0]")
    for v in range(8):
        r.append(f"v_rcp_f32 v{TT+v}, v{TT+v}")
    for v in range(0, 8, 2):
        r.append(f"v_pk_mul_f32 {vr(A+8+v,2)}, {vr(A+8+v,2)}, {vr(TT+v,2)}")
    for i in (0, 2, 1, 3):
        r.append(f"v_cvt_pk_bf16_f32 v{A+i}, v{A+8+2*i}, v{A+8+2*i+1}")
    r.append(f"v_permlane16_swap_b32 v{A}, v{A+2}")
    r.append("s_nop 0")
    r.append(f"v_permlane16_swap_b32 v{A+1}, v{A+3}")
    so = "s43" if p & 1 else "s42"
    r.append(f"buffer_store_dwordx4 {vr(A,4)}, v{C_VST}, s[32:35], {so} offen offset:{(p>>1)*1024} sc1")
    return r


def spec_epi(p):
    A, TT = C_ACC + 16 * p, (C_TT if p & 1 else C_TT2)
    r = []
    for i in range(8):
        r.append(f"v_cvt_pk_bf16_f32 v{TT+i}, v{A+2*i}, v{A+2*i+1}")
    for i in range(4):
        r.append(f"v_cvt_pk_bf16_f32 v{TT+8+i}, -v{A+8+2*i}, -v{A+8+2*i+1}")
    pa, pb, pn = vr(TT, 4), vr(TT + 4, 4), vr(TT + 8, 4)
    for rho in range(2):
        zr = vr(A + 4 * rho, 4)
        r.append(f"{MF16} {zr}, {vr(C_CF+4*rho,4)}, {pa}, 0")
        r.append(f"{MF16} {zr}, {vr(C_SF+4*rho,4)}, {pb}, {zr}")
    for rho in range(2):
        zm = vr(A + 8 + 4 * rho, 4)
        r.append(f"{MF16} {zm}, {vr(C_SF+4*rho,4)}, {pa}, 0")
        r.append(f"{MF16} {zm}, {vr(C_CF+4*rho,4)}, {pn}, {zm}")
    return r


def spec_pack(p):
    A = C_ACC + 16 * p
    r = [f"v_cvt_pk_bf16_f32 v{A+rg}, v{A+rg}, v{A+8+rg}" for rg in range(8)]
    r += [f"ds_write_b128 v{2+(p&1)}, {vr(A+4*rho,4)} offset:{(2*(p>>1)+rho)*4096}" for rho in range(2)]
    return r


def p1_compute(a, opt, kind):
    T = {"ffn6": 6, "spec6": 6, "spec4g": 4, "ffn8": 8}[kind]
    hasg = kind == "spec4g"
    lab_kind = kind
    kind = "spec" if kind.startswith("spec") else kind
    a.ds = []
    VA, VX, VST, VGW, VFD = C_VA, C_VX, C_VST, C_VGW, C_VFD
    P = T // 2
    t0, t1, t2 = C_T0, C_T1, C_T2
    WF, XF, ACC = C_WF, C_XF, C_ACC
    GACC = ACC + 64
    a.label(f"L1C_{lab_kind}")
    a(f"s_mul_i32 s41, s41, {P}")
    for pl in range(P):
        a(f"s_add_u32 s42, s41, {pl}")
        a("s_lshl_b32 s42, s42, 5")
        a(f"v_xor_b32 v{VA+pl}, s42, v{C_VB}")
    if kind == "spec":
        a(f"v_lshrrev_b32 v{t1}, 4, v1")
        a(f"v_mul_u32_u24 v{t1}, {4*ZR_B}, v{t1}")
        a(f"v_and_b32 v{t0}, 15, v1")
        a(f"v_lshl_add_u32 v{VST}, v{t0}, 4, v{t1}")
        if hasg:
            a(f"v_lshrrev_b32 v{t0}, 4, v1")
            a(f"v_lshlrev_b32 v{t0}, 4, v{t0}")
            a(f"v_and_b32 v{t1}, 1, v1")
            a(f"v_lshl_add_u32 v{t0}, v{t1}, 10, v{t0}")
            a(f"v_add_u32 v{t2}, {GW_LDS}, v{t0}")
        srd(a, 32, 78, 79, Z_SIZE, Z_OFF)
        a("s_mul_i32 s42, s22, 96")
        a(f"s_mul_i32 s43, s21, {EP}")
        a("s_add_u32 s42, s42, s43")
        a("s_lshr_b32 s43, s45, 1")
        a("s_lshl_b32 s43, s43, 4")
        a("s_add_u32 s42, s42, s43")
        a("s_lshl_b32 s42, s42, 4")
        a("s_and_b32 s43, s45, 1")
        a(f"s_mul_i32 s43, s43, {16*ZR_B}")
        a("s_add_u32 s42, s42, s43")
    else:
        for i in range(2):
            a(f"v_mov_b32 v{C_K1+i}, {f2u(C1):#x}")
            a(f"v_mov_b32 v{C_K2+i}, {f2u(C2):#x}")
        a(f"v_lshlrev_b32 v{VST}, 4, v1")
        srd(a, 32, 78, 79, H_SIZE, H_OFF)
        a("s_lshl3_add_u32 s44, s22, s41")
        a("s_mul_i32 s42, s23, 86")
        a("s_add_u32 s42, s42, s44")
        a("s_lshl_b32 s42, s42, 10")
        a("s_xor_b32 s43, s23, 32")
        a("s_mul_i32 s43, s43, 86")
        a("s_add_u32 s43, s43, s44")
        a("s_lshl_b32 s43, s43, 10")
    stamp(a, opt)

    tail = 0
    units = []
    for s in range(8):
        us = []
        if s == 0 and opt.split0:
            us += [dict(s=s, p=p, frags=[(0, 0), (1, 0)]) for p in range(P)]
            us += [dict(s=s, p=p, frags=[(0, 1), (1, 1)], upd=True, bar=(p == 0)) for p in range(P)]
            if hasg:
                us.append(dict(s=s, p=None))
        else:
            if hasg:
                us.append(dict(s=s, p=None))
            for p in range(P):
                us += [dict(s=s, p=p, frags=[(0, 0), (0, 1)]), dict(s=s, p=p, frags=[(1, 0), (1, 1)], upd=True)]
        us[0]["open"] = True
        us[0]["bar"] = True
        units += us
    N = len(units)
    LA = 2

    def delta(s):
        return SSZ if (s % NB) < 2 else -2 * SSZ

    def upd(reg, s):
        d = delta(s)
        return f"v_add_u32 v{reg}, {d}, v{reg}" if d > 0 else f"v_subrev_u32 v{reg}, {-d}, v{reg}"

    def side_ops(n):
        U = units[n]
        s = U["s"]
        f = WF + 8 * (n % 3)
        ops = []
        if U.get("open"):
            xb = XF + 32 * (s & 1)
            for g in range(2):
                for rt in range(2):
                    for ks in range(2):
                        ops.append((f"ds_read_b128 {vr(xb+16*g+8*rt+4*ks,4)}, v{VX+2*g+ks} offset:{rt*2048}", ("x", s)))
        if U["p"] is None:
            ops.append(("s_lshl_b32 s44, s49, 7", None))
            ops.append((f"v_add_u32 v{VGW}, s44, v{t2}", None))
            ops.append((f"ds_read_b128 {vr(f,4)}, v{VGW}", ("u", n)))
            ops.append((f"ds_read_b128 {vr(f+4,4)}, v{VGW} offset:64", ("u", n)))
            ops.append(("s_add_u32 s49, s49, 1", None))
            ops.append(("s_and_b32 s49, s49, 7", None))
        else:
            for k, (m, ks) in enumerate(U["frags"]):
                off = m * 16384 + ks * 8192
                ops.append((f"ds_read_b64_tr_b16 {vr(f+4*k,2)}, v{VA+U['p']} offset:{off}", ("u", n)))
                ops.append((f"ds_read_b64_tr_b16 {vr(f+4*k+2,2)}, v{VA+U['p']} offset:{off+1024}", ("u", n)))
        if U.get("open") and s < 7:
            ops += [(upd(VX + ks, s), None) for ks in range(4)]
        if U.get("upd") and s < 7:
            ops.append((upd(VA + U["p"], s), None))
        return ops

    def emit(op):
        if op[1] is None:
            a(op[0])
        else:
            a.dsop(op[0], op[1])

    epi = spec_epi if kind == "spec" else ffn_epi
    fill = []
    a("s_barrier")
    stamp(a, opt)
    for n in range(LA):
        for op in side_ops(n):
            emit(op)
    pend = []
    for n in range(N):
        U = units[n]
        s = U["s"]
        boundary = n + LA == N or (n + LA < N and units[n + LA].get("bar"))
        carry = len(pend)
        if boundary and carry:
            for _ in range(carry):
                emit(pend.pop(0))
            carry = 0
        if n + LA < N:
            pend += side_ops(n + LA)
        a.dswait(("u", n))
        f = WF + 8 * (n % 3)
        xb = XF + 32 * (s & 1)
        frags = U.get("frags", [(0, 0), (0, 1)])
        NM = 4 if U["p"] is None else 8
        bpos = min(opt.bpos, NM - 2)
        for j in range(NM):
            g, rt, k = j >> 2, (j >> 1) & 1, j & 1
            m, ks = frags[k]
            if U["p"] is None:
                acc = vr(GACC + 4 * rt, 4)
            else:
                acc = vr(ACC + 16 * (2 * U["p"] + g) + 8 * m + 4 * rt, 4)
            w_, x_ = vr(f + 4 * k, 4), vr(xb + 16 * g + 8 * rt + 4 * ks, 4)
            srcc = "0" if (s == 0 and ks == 0) else acc
            if kind == "spec":
                a(f"{MF16} {acc}, {x_}, {w_}, {srcc}")
            else:
                a(f"{MF16} {acc}, {w_}, {x_}, {srcc}")
            if boundary:
                if j < bpos:
                    cnt = -(-carry // (bpos - j)) if carry else 0
                    carry -= cnt
                else:
                    cnt = 2
                if j == bpos:
                    a("s_waitcnt lgkmcnt(0)")
                    a("s_barrier")
                    if opt.fine:
                        stamp(a, opt)
            else:
                cnt = max(-(-len(pend) // (NM - j)), 1)
            for _ in range(min(cnt, len(pend))):
                emit(pend.pop(0))
    assert not pend
    stamp(a, opt)
    if tail:
        while fill:
            at, ins = fill.pop(0)
            if at > a.n:
                a(f"s_nop {min(at - a.n - 1, 15)}")
                a.n = at
            a(ins)
    else:
        a("s_nop 7")
        if kind != "spec":
            hp = min(opt.hp, T - 1)
            for p in range(T):
                for ins in epi(p):
                    a(ins)
                if opt.half and p == 0:
                    srd(a, 36, 78, 79, F_SIZE, F_OFF)
                    a(f"v_mov_b32 v{t1}, 1")
                    a(f"v_lshlrev_b32 v{t2}, 7, v1")
                if opt.half and p == hp:
                    a(f"s_waitcnt vmcnt({hp - 3})")
                    a("s_mov_b64 exec, " + opt.fmask)
                    a(f"buffer_store_dword v{t1}, v{t2}, s[36:39], s63 offen sc1")
                    a("s_mov_b64 exec, -1")
        else:
            a(f"v_lshlrev_b32 v{t1}, 4, v1")
            a("s_lshl_b32 s43, s45, 10")
            a(f"s_add_u32 s43, s43, {SSZ}")
            a(f"v_add_u32 v{t0}, s43, v{t1}")
            a("s_lshl_b32 s43, s41, 13")
            a(f"v_add_u32 v2, s43, v{t0}")
            a("v_xor_b32 v3, 0x800, v2")
            a("s_lshl_b32 s43, s45, 12")
            a(f"s_add_u32 s43, s43, {SSZ}")
            a(f"v_add_u32 v{t1}, s43, v{t1}")
            if hasg:
                A, TT, ZR = GACC, C_TT, GACC + 8
                for i in range(4):
                    a(f"v_cvt_pk_bf16_f32 v{TT+i}, v{A+2*i}, v{A+2*i+1}")
                srd(a, 36, 78, 79, G_SIZE, G_OFF)
                for rho in range(2):
                    a(f"{MF16} {vr(ZR+4*rho,4)}, {vr(C_CF+4*rho,4)}, {vr(TT,4)}, 0")
                    a(f"{MF16} {vr(ZR+8+4*rho,4)}, {vr(C_SF+4*rho,4)}, {vr(TT,4)}, 0")
                for i in range(4):
                    a(f"v_lshlrev_b32 v{A+2*i}, 16, v{TT+i}")
                    a(f"v_and_b32 v{A+2*i+1}, 0xffff0000, v{TT+i}")
                for i in range(8):
                    a(f"v_mul_f32 v{A+i}, {f2u(-1.4426950408889634):#x}, v{A+i}")
                for i in range(8):
                    a(f"v_exp_f32 v{A+i}, v{A+i}")
                for i in range(8):
                    a(f"v_add_f32 v{A+i}, 1.0, v{A+i}")
                for i in range(8):
                    a(f"v_rcp_f32 v{A+i}, v{A+i}")
                for rg in range(8):
                    a(f"v_cvt_pk_bf16_f32 v{ZR+rg}, v{ZR+rg}, v{ZR+8+rg}")
                for rho in range(2):
                    a(f"ds_write_b128 v{t0}, {vr(ZR+4*rho,4)} offset:{(2*T+rho)*4096}")
                for i in range(4):
                    a(f"v_cvt_pk_bf16_f32 v{TT+i}, v{A+2*i}, v{A+2*i+1}")
                for i in range(4):
                    a(f"v_lshlrev_b32 v{A+2*i}, 16, v{TT+i}")
                    a(f"v_and_b32 v{A+2*i+1}, 0xffff0000, v{TT+i}")
                a("s_lshl_b32 s43, s23, 7")
                a("s_mov_b32 exec_lo, 0x00010001")
                a("s_mov_b32 exec_hi, 0x00010001")
                a(f"buffer_store_dwordx4 {vr(A,4)}, v1, s[36:39], s43 offen sc1")
                a(f"buffer_store_dwordx4 {vr(A+4,4)}, v1, s[36:39], s43 offen offset:64 sc1")
                a("s_mov_b64 exec, -1")
            cv = [[x for x in epi(p) if not x.startswith("v_mfma")] for p in range(T)]
            mf = [[x for x in epi(p) if x.startswith("v_mfma")] for p in range(T)]
            for ins in cv[0]:
                a(ins)
            for p in range(T):
                side = (cv[p + 1] if p + 1 < T else ["s_nop 3", "s_nop 3", "s_nop 3"]) + (spec_pack(p - 1) if p > 0 else [])
                for i, ins in enumerate(mf[p]):
                    a(ins)
                    for _ in range(-(-len(side) // (8 - i))):
                        a(side.pop(0))
            if opt.fine4:
                stamp(a, opt)
            a("s_nop 7")
            for ins in spec_pack(T - 1):
                a(ins)
            if opt.fine4:
                stamp(a, opt)
            a("s_waitcnt lgkmcnt(0)")
            a("s_barrier")
            if opt.fine4:
                stamp(a, opt)
            NG = T // 2 + (1 if hasg else 0)
            for k in range(NG):
                for w in range(4):
                    a(f"ds_read_b128 {vr(WF+16*k+4*w,4)}, v{t1} offset:{k*16384 + w*1024}")
            for k in range(NG):
                R = WF + 16 * k
                a(f"s_waitcnt lgkmcnt({4*(NG-1-k)})")
                for i in range(4):
                    for j in range(i + 1, 4):
                        a(f"v_swap_b32 v{R+4*i+j}, v{R+4*j+i}")
                if opt.fine4:
                    stamp(a, opt)
                off = 512 * k
                if hasg and k == NG - 1:
                    a("s_cmp_ge_u32 s45, 2")
                    a("s_cbranch_scc1 L1C_no256")
                    a("s_mov_b32 exec_lo, 0x00020002")
                    a("s_mov_b32 exec_hi, 0x00020002")
                    off -= 16
                for b in range(4):
                    a(f"s_add_u32 s43, s42, {b*ZR_B}")
                    a(f"buffer_store_dwordx4 {vr(R+4*b,4)}, v{VST}, s[32:35], s43 offen offset:{off} sc1")
            if hasg:
                a("s_mov_b64 exec, -1")
                a.label("L1C_no256")
            if opt.fine4:
                stamp(a, opt)
            if not opt.lateb9:
                a("s_barrier")

    stamp(a, opt)
    a("s_branch L2C")


def p2_combine(a, opt):
    VFD = C_VFD
    t0, t1, t2 = C_T0, C_T1, C_T2
    VZ, VO, VG = 23, 24, 25
    ZF, ACY, PT, BF, TR = 160, 192, 96, 208, 2
    a.label("L2C")
    a("s_and_b32 s42, s45, 1")
    a("s_lshl_b32 s42, s42, 5")
    a("s_add_u32 s42, s42, s54")
    a("s_lshr_b32 s43, s45, 1")
    a("s_lshl_b32 s43, s43, 5")
    a("s_lshl_b32 s44, s55, 6")
    a("s_add_u32 s43, s43, s44")
    a(f"v_bfe_u32 v{t0}, v1, 2, 1")
    a(f"v_lshlrev_b32 v{t0}, 4, v{t0}")
    a(f"v_and_or_b32 v{t0}, v1, 3, v{t0}")
    a(f"v_bfe_u32 v{t1}, v1, 3, 2")
    a(f"v_lshlrev_b32 v{t1}, 2, v{t1}")
    a(f"v_add3_u32 v{t0}, v{t0}, v{t1}, s43")
    a(f"v_and_b32 v{t1}, 31, v1")
    a("s_lshl_b32 s44, s42, 7")
    a(f"v_lshl_add_u32 v{VG}, v{t1}, 2, s44")
    a(f"v_lshl_add_u32 v{t1}, v{t1}, 6, s42")
    a(f"v_lshrrev_b32 v{t2}, 5, v1")
    a(f"v_lshlrev_b32 v{VO}, 10, v{t1}")
    a(f"v_lshl_add_u32 v{VO}, v{t2}, 5, v{VO}")
    a("s_lshl_b32 s44, s43, 1")
    a(f"v_add_u32 v{VO}, s44, v{VO}")
    a("s_mov_b32 s64, s54")
    a("s_cmp_lt_u32 s55, 4")
    a("s_cbranch_scc1 L2C_nomirror")
    a(f"v_sub_u32 v{t0}, 0x200, v{t0}")
    a(f"v_sub_u32 v{t1}, 0x800, v{t1}")
    a(f"v_and_b32 v{t1}, 0x7ff, v{t1}")
    a("s_sub_u32 s64, 32, s54")
    a("s_and_b32 s64, s64, 31")
    a.label("L2C_nomirror")
    a(f"v_mul_u32_u24 v{VZ}, {8*EP*16}, v{t2}")
    a(f"v_lshl_add_u32 v{VZ}, v{t0}, 4, v{VZ}")
    a(f"s_mul_i32 s64, s64, {ZR_B}")
    a(f"v_cvt_f32_u32 v26, v{t1}")
    a(f"v_mul_f32 v26, {f2u(-1.0/2048):#x}, v26")
    a(f"v_cvt_f32_u32 v27, v{t2}")
    a(f"v_mul_f32 v27, {f2u(16.0):#x}, v27")
    a("v_mul_f32 v27, v26, v27")

    def trig(o):
        for q in range(8):
            ks_, qq = (8 * o + q) >> 2, q & 3
            a(f"v_fmamk_f32 v{TR+q}, v26, {f2u(float(2*ks_ + (qq&1) + 32*(qq>>1))):#x}, v27")
        for q in range(8):
            a(f"v_fract_f32 v{TR+q}, v{TR+q}")
        for q in range(8):
            a(f"v_sin_f32 v{TR+8+q}, v{TR+q}")
        for q in range(8):
            a(f"v_cos_f32 v{TR+q}, v{TR+q}")
        a("s_nop 0")
        for q in range(8):
            a(f"v_cvt_pk_bf16_f32 v{BF+8*o+q}, v{TR+q}, v{TR+8+q}")

    a("s_bitcmp1_b32 s65, 1")
    a("s_cbranch_scc1 L2C_t23s")
    trig(2)
    trig(3)
    a.label("L2C_t23s")
    srd(a, 36, 78, 79, F_SIZE, F_OFF)
    a(f"v_mov_b32 v{t0}, {FLG}")
    a(f"v_mov_b32 v{t1}, 1")
    a(f"v_lshlrev_b32 v{t2}, 7, v1")
    a("v_mov_b32 v28, 2")
    a("s_waitcnt vmcnt(0)")
    stamp(a, opt)
    a("s_bitcmp1_b32 s65, 0")
    a("s_cbranch_scc0 L2C_noh")
    a("s_mov_b64 exec, " + opt.fmask)
    a(f"buffer_store_dword v28, v{t2}, s[36:39], s63 offen sc1")
    a.label("L2C_noh")
    a("s_bitcmp1_b32 s65, 1")
    a("s_cbranch_scc0 L2C_noz")
    a("s_mov_b64 exec, 1")
    a(f"ds_add_rtn_u32 v{VFD}, v{t0}, v{t1}")
    a("s_and_b32 s42, s22, 1")
    a("s_lshl4_add_u32 s42, s42, s21")
    a("s_lshl_b32 s42, s42, 10")
    a("s_lshr_b32 s43, s22, 1")
    a("s_lshl_b32 s43, s43, 7")
    a("s_add_u32 s42, s42, s43")
    a("s_waitcnt lgkmcnt(0)")
    a(f"v_cmp_ne_u32 vcc, 3, v{VFD}")
    a("s_cbranch_vccnz L2C_noz")
    a(f"buffer_store_dword v28, v{t2}, s[36:39], s42 offen offset:256 sc1")
    a.label("L2C_noz")
    a("s_mov_b64 exec, -1")
    if opt.lateb9:
        a("s_bitcmp1_b32 s65, 1")
        a("s_cbranch_scc0 L2C_nob9")
        a("s_barrier")
        a.label("L2C_nob9")
    a(f"v_and_b32 v{VFD}, 15, v1")
    a(f"v_min_u32 v{VFD}, 10, v{VFD}")
    a(f"v_and_or_b32 v{VFD}, v1, 16, v{VFD}")
    a(f"s_mov_b32 s43, {RH}")
    a(f"v_lshl_add_u32 v{t0}, v{VFD}, 2, s43")
    a("v_min_u32 v28, 47, v1")
    a(f"s_mov_b32 s43, {RZ}")
    a("v_lshl_add_u32 v28, v28, 2, s43")
    a("s_lshl_b32 s42, s54, 3")
    a(f"s_and_b32 s43, s55, {opt.cmask}")
    a("s_add_u32 s42, s42, s43")
    a("s_lshl_b32 s42, s42, 7")
    a(f"v_lshl_add_u32 v{t2}, v1, 4, s42")
    a(f"s_mov_b32 m0, {RH}")

    def hpoll():
        a("s_mov_b64 exec, 0xff")
        a(f"buffer_load_dwordx4 v{t2}, s[36:39], 0 offen sc1 lds")
        a("s_mov_b64 exec, -1")

    def zpoll():
        a("s_mov_b32 exec_hi, 0xffff")
        a(f"buffer_load_dword v{t2}, s[36:39], 0 offen sc1 lds")
        a("s_mov_b64 exec, -1")

    a("s_cmp_lg_u32 s45, 0")
    a("s_cbranch_scc1 L2C_rest")
    a.label("L2C_wh")
    hpoll()
    a(f"s_waitcnt vmcnt({opt.pq})")
    if opt.psleep:
        a(f"s_sleep {opt.psleep}")
    a(f"ds_read_b32 v{VFD}, v{t0}")
    a("s_waitcnt lgkmcnt(0)")
    a(f"v_cmp_ne_u32 vcc, 2, v{VFD}")
    a("s_cbranch_vccnz L2C_wh")
    a(f"v_and_b32 v{t2}, 31, v1")
    a(f"v_lshlrev_b32 v{t2}, 10, v{t2}")
    a(f"v_lshrrev_b32 v{VFD}, 5, v1")
    a(f"v_lshl_add_u32 v{t2}, v{VFD}, 7, v{t2}")
    a(f"s_mov_b32 m0, {RZ}")
    a(f"v_add_u32 v{t2}, 0x100, v{t2}")
    zpoll()
    a.label("L2C_rest")
    trig(0)
    trig(1)
    a("s_bitcmp1_b32 s65, 1")
    a("s_cbranch_scc0 L2C_t23d")
    trig(2)
    trig(3)
    a.label("L2C_t23d")
    srd(a, 32, 78, 79, Z_SIZE, Z_OFF)
    srd(a, 24, 78, 79, G_SIZE, G_OFF)
    srd(a, 28, 18, 19, 2048 * 1024)
    a("s_barrier")
    a("s_branch L2C_wz1")
    a.label("L2C_wz")
    a("s_cmp_lg_u32 s45, 0")
    a("s_cbranch_scc1 L2C_wz1")
    a("s_waitcnt vmcnt(0)")
    zpoll()
    a(f"s_sleep {opt.zsleep}")
    a.label("L2C_wz1")
    a(f"ds_read_b32 v{VFD}, v28")
    a("s_waitcnt lgkmcnt(0)")
    a(f"v_cmp_ne_u32 vcc, 2, v{VFD}")
    a("s_cbranch_vccnz L2C_wz")

    def zloads():
        stamp(a, opt)
        a(f"buffer_load_dword v10, v{VG}, s[24:27], 0 offen sc1")
        for ks in range(8):
            if not opt.noz:
                a(f"buffer_load_dwordx4 {vr(ZF+4*ks,4)}, v{VZ}, s[32:35], s64 offen sc1")
            if ks < 7:
                a(f"s_add_u32 s64, s64, {EP*16}")

    zloads()
    a(f"v_lshlrev_b32 v{t0}, 4, v1")
    a("s_lshl_b32 s42, s45, 14")
    a(f"v_add_u32 v{t0}, s42, v{t0}")
    for ks in range(8):
        a(f"s_waitcnt vmcnt({7-ks})")
        acc = vr(ACY, 16)
        a(f"{MF32} {acc}, {vr(ZF+4*ks,4)}, {vr(BF+4*ks,4)}, {'0' if ks == 0 else acc}")
    a("v_sub_f32 v11, 1.0, v10")
    a("v_cvt_pk_bf16_f32 v11, v11, v11")
    a("v_and_b32 v11, 0xffff0000, v11")
    a("s_nop 7")
    a("s_nop 1")
    for rg in range(16):
        a(f"v_mul_f32 v{ACY+rg}, v10, v{ACY+rg}")
    stamp(a, opt)
    a("s_barrier")
    for w in range(4):
        for q in range(4):
            a(f"ds_read_b128 {vr(PT+16*w+4*q,4)}, v{t0} offset:{w*2048 + (q>>1)*8192 + (q&1)*1024}")
        if w == 2:
            a("s_waitcnt lgkmcnt(4)")
            for rg in range(0, 16, 2):
                a(f"v_pk_add_f32 {vr(PT+rg,2)}, {vr(PT+rg,2)}, {vr(PT+16+rg,2)}")
    a("s_waitcnt lgkmcnt(0)")
    for rg in range(0, 16, 2):
        a(f"v_pk_add_f32 {vr(PT+32+rg,2)}, {vr(PT+32+rg,2)}, {vr(PT+48+rg,2)}")
    for rg in range(0, 16, 2):
        a(f"v_pk_add_f32 {vr(PT+rg,2)}, {vr(PT+rg,2)}, {vr(PT+32+rg,2)}")
    for rg in range(16):
        a(f"v_fmac_f32 v{ACY+rg}, v11, v{PT+rg}")
    for i in range(8):
        a(f"v_cvt_pk_bf16_f32 v{32+i}, v{ACY+2*i}, v{ACY+2*i+1}")
    a(f"buffer_store_dwordx4 v[32:35], v{VO}, s[28:31], 0 offen {opt.ofl}")
    a(f"buffer_store_dwordx4 v[36:39], v{VO}, s[28:31], 0 offen offset:16 {opt.ofl}")
    stamp(a, opt)
    stamp_flush(a, opt, "C")
    a("s_endpgm")


def compute_prologue(a, opt):
    t0, t1, t2 = C_T0, C_T1, C_T2
    if opt.pf:
        a(f"s_cmp_eq_u32 s46, {K_SPEC}")
        a("s_mov_b32 s47, 2752")
        a("s_cselect_b32 s47, 1024, s47")
        a("s_cmp_eq_u32 s22, 10")
        a("s_movk_i32 s40, 252")
        a("s_cselect_b32 s40, 188, s40")
        a(f"v_lshrrev_b32 v{t2}, 5, v1")
        a(f"v_bfe_u32 v{t0}, v1, 2, 3")
        a(f"v_lshl_add_u32 v{t0}, v{t2}, 7, v{t0}")
        a("s_lshl_b32 s44, s42, 3")
        a("s_add_u32 s44, s44, s55")
        a("s_lshl_b32 s44, s44, 3")
        a(f"v_add_u32 v{t0}, s44, v{t0}")
        a(f"v_mul_u32_u24 v{t0}, s47, v{t0}")
        a(f"v_and_b32 v{t1}, 3, v1")
        a(f"v_lshlrev_b32 v{t1}, 7, v{t1}")
        a(f"v_min_u32 v{t1}, s40, v{t1}")
        a("s_lshl_b32 s44, s22, 8")
        a(f"v_add3_u32 v{t0}, v{t0}, v{t1}, s44")
        a(f"v_and_b32 v{t1}, 31, v1")
        a(f"v_lshlrev_b32 v{t1}, 16, v{t1}")
        a(f"v_mul_u32_u24 v{t2}, 384, v{t2}")
        a("s_lshl_b32 s44, s23, 3")
        a("s_lshr_b32 s41, s2, 6")
        a("s_add_u32 s44, s44, s41")
        a("s_lshl_b32 s44, s44, 7")
        a(f"v_add3_u32 v{t1}, v{t1}, v{t2}, s44")
        a("s_lshl_b32 s40, s47, 6")
        a("s_mul_i32 s41, s40, 5")
        a("s_lshl_b32 s30, s47, 9")
        a("s_mov_b32 s31, 0x20000")
        a("s_waitcnt lgkmcnt(0)")
        srd(a, 24, 4, 5, 2048 * 1024)
        a(f"s_cmp_eq_u32 s46, {K_SPEC}")
        a("s_cselect_b64 s[12:13], s[8:9], s[12:13]")
        a("s_cselect_b64 s[14:15], s[10:11], s[14:15]")
        a("s_cmp_ge_u32 s45, 2")
        a("s_cselect_b64 s[28:29], s[14:15], s[12:13]")
        a(f"buffer_load_dword v29, v{t0}, s[28:31], s40 offen")
        a(f"buffer_load_dword v30, v{t1}, s[24:27], 0 offen offset:128")
        a(f"buffer_load_dword v31, v{t0}, s[28:31], s41 offen")
    a(f"v_lshlrev_b32 v{t0}, 3, v1")
    a(f"v_add_u32 v{t0}, {FLG}, v{t0}")
    a("v_mov_b32 v2, 0")
    a("v_mov_b32 v3, 0")
    a(f"ds_write_b64 v{t0}, v[2:3]")
    a("s_waitcnt lgkmcnt(0)")
    stamp(a, opt)
    a("s_and_b32 s63, s23, 31")
    a("s_lshl_b32 s63, s63, 8")
    a("s_lshr_b32 s44, s23, 5")
    a("s_lshl_b32 s44, s44, 4")
    a("s_add_u32 s63, s63, s44")
    a("s_add_u32 s63, s63, s22")
    a("s_lshl_b32 s63, s63, 2")
    a(f"s_cmp_eq_u32 s46, {K_IDLE}")
    a("s_cbranch_scc1 L1C_idle")
    a(f"v_bfe_u32 v{t0}, v1, 2, 2")
    a(f"v_lshrrev_b32 v{t1}, 4, v1")
    a(f"v_lshl_add_u32 v{t1}, v{t1}, 3, v{t0}")
    a(f"v_lshlrev_b32 v{t1}, 8, v{t1}")
    a(f"v_bfe_u32 v{t0}, v1, 2, 3")
    a(f"v_lshl_add_u32 v{t1}, v{t0}, 5, v{t1}")
    a(f"v_and_b32 v{t0}, 3, v1")
    a(f"v_lshl_add_u32 v{C_VB}, v{t0}, 3, v{t1}")
    a(f"v_and_b32 v{t0}, 15, v1")
    a(f"v_lshrrev_b32 v{t1}, 1, v{t0}")
    a(f"v_lshrrev_b32 v{t2}, 4, v1")
    a(f"v_xor_b32 v{t1}, v{t1}, v{t2}")
    a(f"v_lshlrev_b32 v{t1}, 4, v{t1}")
    a(f"v_lshl_add_u32 v{t0}, v{t0}, 7, v{t1}")
    a(f"v_add_u32 v{C_VX}, s48, v{t0}")
    a(f"v_xor_b32 v{C_VX+1}, 64, v{C_VX}")
    a(f"v_xor_b32 v{C_VX+2}, 0x2000, v{C_VX}")
    a(f"v_xor_b32 v{C_VX+3}, 0x2040, v{C_VX}")
    a("s_mov_b32 s65, 1")
    a(f"s_cmp_eq_u32 s46, {K_6G}")
    a("s_cbranch_scc1 L1C_ffn6")
    a("s_cmp_lg_u32 s46, 0")
    a("s_cbranch_scc1 L1C_specs")


def idle_compute(a, opt):
    t0, t1, t2 = C_T0, C_T1, C_T2
    a.label("L1C_idle")
    a("s_mov_b32 s65, 0")
    srd(a, 24, 76, 77, 256)
    a(f"v_mov_b32 v{t1}, 0")
    a("s_cmp_lg_u32 s55, 4")
    a("s_cbranch_scc1 L1_noinit")
    srd(a, 36, 78, 79, F_SIZE, F_OFF)
    for i in range(4):
        a(f"v_mov_b32 v{32+i}, 0")
    a(f"v_lshlrev_b32 v{t0}, 4, v1")
    a("s_and_b32 s42, s2, 7")
    a("s_lshl_b32 s42, s42, 2")
    a("s_add_u32 s42, s42, s45")
    a("s_lshl_b32 s42, s42, 10")
    a(f"buffer_store_dwordx4 v[32:35], v{t0}, s[36:39], s42 offen sc1")
    a(f"v_mov_b32 v{t2}, 1")
    a.label("L1_noinit")
    if opt.codepf:
        a("s_getpc_b64 s[36:37]")
        a.label("L_pcref")
        a(f"s_sub_u32 s36, s36, L_pcref-{NAME}_kernel")
        a("s_subb_u32 s37, s37, 0")
        a(f"s_mov_b32 s38, L_exit-{NAME}_kernel")
        a("s_mov_b32 s39, 0x20000")
        a("s_sub_u32 s42, s55, 4")
        a("s_lshl_b32 s42, s42, 2")
        a("s_add_u32 s42, s42, s45")
        a("s_and_b32 s42, s42, 7")
        a("s_mul_i32 s42, s42, 5120")
        a(f"v_lshlrev_b32 v{t0}, 7, v1")
        a(f"buffer_load_dword v250, v{t0}, s[36:39], s42 offen")
    a("s_waitcnt vmcnt(0)")
    a("s_cmp_lg_u32 s55, 4")
    a("s_cbranch_scc1 L1_noinit2")
    a("s_mov_b64 exec, 1")
    a(f"buffer_atomic_add v{t2}, v{t1}, s[24:27], 0 offen sc1")
    a("s_mov_b64 exec, -1")
    a.label("L1_noinit2")
    a("s_barrier")
    a("s_cmp_lg_u32 s45, 0")
    a("s_cbranch_scc1 L2C")
    a.label("L1C_idle_go")
    a("s_sleep 32")
    a(f"buffer_load_dword v{t2}, v{t1}, s[24:27], 0 offen sc1")
    a("s_waitcnt vmcnt(0)")
    a(f"v_cmp_gt_u32 vcc, 32, v{t2}")
    a("s_cbranch_vccnz L1C_idle_go")
    a("s_branch L2C")


def decode_rest(a, opt, lab):
    a("s_and_b32 s54, s2, 7")
    if opt.mir:
        a("s_and_b32 s46, s44, 1")
        a("s_lshl1_add_u32 s54, s54, s46")
        a("s_add_u32 s54, s54, 1")
        a("s_sub_u32 s46, 32, s54")
        a("s_cmp_eq_u32 s46, 16")
        a("s_cselect_b32 s46, 0, s46")
        a("s_cmp_ge_u32 s44, 2")
        a("s_cselect_b32 s54, s46, s54")
    else:
        a("s_lshl_b32 s54, s54, 2")
        a("s_add_u32 s54, s54, s44")
    a("s_cmp_eq_u32 s44, 3")
    a(f"s_cbranch_scc1 {lab}_3")
    a("s_mul_i32 s22, s42, 3")
    a("s_min_u32 s22, s22, 8")
    a("s_add_u32 s22, s22, s44")
    a("s_and_b32 s46, s42, s44")
    a("s_lshr_b32 s46, s46, 1")
    a(f"s_cbranch_scc0 {lab}_d")
    a("s_and_b32 s22, s42, 1")
    a(f"s_branch {lab}_d")
    a.label(f"{lab}_3")
    a("s_cmp_lt_u32 s55, 2")
    a("s_cselect_b32 s22, 10, 2")
    a("s_lshr_b32 s46, s55, 1")
    a("s_add_u32 s46, s46, 2")
    a(f"s_min_u32 s46, s46, {K_IDLE}")
    a.label(f"{lab}_d")


def kernel(a, opt):
    a.label(NAME + "_kernel")
    if opt.stamps:
        a("v_mov_b32 v255, 0")
        a("v_mov_b32 v253, 0")
        a("s_mov_b32 s89, 0")
        stamp(a, opt)
    a("s_load_dwordx2 s[24:25], s[0:1], 0")
    a("s_load_dwordx16 s[4:19], s[0:1], 24")
    a("s_load_dwordx4 s[76:79], s[0:1], 88")
    a("v_lshrrev_b32 v2, 6, v0")
    a("v_and_b32 v1, 63, v0")
    a("v_readfirstlane_b32 s20, v2")
    a("s_cmp_ge_u32 s2, 256")
    a("s_cbranch_scc1 L_exit")
    a("s_bfe_u32 s55, s2, 0x30003")
    a("s_bfe_u32 s42, s2, 0x20001")
    a("s_lshr_b32 s44, s2, 6")
    a("s_and_b32 s43, s55, 1")
    a("s_lshl1_add_u32 s43, s42, s43")
    a("s_cmp_eq_u32 s44, 3")
    a("s_cselect_b32 s21, s43, s55")
    a("s_cselect_b32 s43, s55, s44")
    a("s_mul_i32 s43, s43, 3")
    a("s_addc_u32 s49, s43, s21")
    a(f"s_and_b32 s49, s49, {opt.rotmask}")
    a("s_and_b32 s43, s2, 1")
    a("s_lshl3_add_u32 s21, s43, s21")
    a("s_and_b32 s45, s20, 3")
    a("s_and_b32 s40, s45, 1")
    a("s_lshr_b32 s41, s45, 1")
    a("s_lshl1_add_u32 s23, s21, s40")
    a("s_lshl_b32 s43, s41, 5")
    a("s_add_u32 s23, s23, s43")
    a("s_lshl_b32 s48, s45, 12")
    a("s_bitset1_b32 s48, 15")
    a("s_cmp_ge_u32 s20, 4")
    a("s_cbranch_scc1 L1_compw")
    t0, t1, t2, VX, VD = L_T0, L_T1, L_T2, L_VX, L_VD
    a(f"v_lshrrev_b32 v{t0}, 3, v1")
    a("s_lshl_b32 s43, s23, 10")
    a(f"v_lshl_add_u32 v{t0}, v{t0}, 16, s43")
    a(f"v_lshrrev_b32 v{t1}, 4, v1")
    a(f"v_and_b32 v{t2}, 7, v1")
    a(f"v_xor_b32 v{t2}, v{t1}, v{t2}")
    a(f"v_lshl_add_u32 v{VX}, v{t2}, 4, v{t0}")
    a(f"v_xor_b32 v{VX+1}, {8*65536+64:#x}, v{VX}")
    a(f"v_xor_b32 v{VX+2}, {16*65536:#x}, v{VX}")
    a(f"v_xor_b32 v{VX+3}, {24*65536+64:#x}, v{VX}")
    a("s_mov_b32 s26, 0x200000")
    a("s_mov_b32 s27, 0x20000")
    a("s_lshl_b32 s47, s49, 7")
    a("s_mov_b32 m0, s48")
    a("s_cmp_ge_u32 s2, 224")
    a("s_waitcnt lgkmcnt(0)")
    a("s_cbranch_scc1 L_nox")
    for i in range(4):
        a(f"buffer_load_dwordx4 v{VX+i}, s[24:27], s47 offen lds")
        if i < 3:
            a("s_add_u32 m0, m0, 1024")
            a("s_nop 0")
    a.label("L_nox")
    stamp(a, opt)
    decode_rest(a, opt, "L_dl")
    a("s_cmp_eq_u32 s46, 0")
    a("s_cselect_b32 s43, 15, 11")
    a(f"s_cmp_eq_u32 s46, {K_S4G}")
    a("s_cselect_b32 s43, 7, s43")
    a("s_cselect_b32 s80, 0, -1")
    a("s_bitcmp1_b32 s46, 0")
    a("s_cselect_b64 s[10:11], s[4:5], s[10:11]")
    a("s_cselect_b64 s[12:13], s[6:7], s[12:13]")
    a("s_movk_i32 s47, 2752")
    a("s_cselect_b32 s47, 1024, s47")
    a("s_movk_i32 s82, 256")
    a("s_cselect_b32 s82, 192, s82")
    a("s_cmp_eq_u32 s41, 1")
    a("s_cselect_b64 s[28:29], s[12:13], s[10:11]")
    a(f"v_lshl_add_u32 v{t0}, s40, 2, v{t1}")
    a("s_mul_i32 s82, s22, s82")
    a(f"v_mul_u32_u24 v{t0}, s47, v{t0}")
    a(f"v_and_b32 v{t2}, 15, v1")
    a(f"v_add_u32 v{t0}, s82, v{t0}")
    a(f"v_lshlrev_b32 v{t1}, 1, v{t1}")
    a(f"v_xor_b32 v{t1}, v{t1}, v{t2}")
    a(f"v_xor_b32 v{t2}, 8, v{t1}")
    a(f"v_min_u32 v{t1}, s43, v{t1}")
    a(f"v_min_u32 v{t2}, s43, v{t2}")
    a(f"v_lshl_add_u32 v{VD}, v{t1}, 4, v{t0}")
    a(f"v_lshl_add_u32 v{VD+1}, v{t2}, 4, v{t0}")
    a("s_lshl_b32 s41, s41, 14")
    a("s_lshl_b32 s40, s40, 10")
    a("s_add_u32 s41, s41, s40")
    a("s_lshl1_add_u32 s56, s44, s55")
    a("s_lshl_b32 s44, s47, 3")
    a("s_lshl_b32 s30, s47, 9")
    a("s_mov_b32 s31, 0x20000")
    a("s_mov_b32 s66, 0")
    a("s_mov_b32 s67, 0")
    a("s_mul_i32 s40, s49, s44")
    a(f"s_cmp_lg_u32 s46, {K_IDLE}")
    a("s_cbranch_scc1 L1L_w")
    a("v_mov_b32 v14, 0")
    a("v_mov_b32 v15, 0")
    srd(a, 68, 76, 77, 256)
    p2_setup(a, opt)
    a("s_barrier")
    a("s_branch L2W")
    p1_loader(a, opt)
    p2_worker(a, opt)
    a.label("L1_compw")
    if opt.prio:
        a(f"s_setprio {opt.prio}")
    decode_rest(a, opt, "L_dc")
    compute_prologue(a, opt)
    p1_compute(a, opt, "ffn8")
    p2_combine(a, opt)
    a.label("L1C_specs")
    a("s_mov_b32 s65, 2")
    dft32_consts(a)
    a(f"s_cmp_eq_u32 s46, {K_S4G}")
    a("s_cbranch_scc1 L1C_spec4g")
    p1_compute(a, opt, "spec6")
    p1_compute(a, opt, "spec4g")
    p1_compute(a, opt, "ffn6")
    idle_compute(a, opt)
    a.label("L_exit")
    a("s_endpgm")


def main():
    ap = argparse.ArgumentParser()
    ap.add_argument("-o", default=f"cdna_kernels/{NAME}.s")
    ap.add_argument("--stamps", action="store_true")
    ap.add_argument("--fine", action="store_true")
    ap.add_argument("--fine2", action="store_true")
    ap.add_argument("--q", type=int, default=8)
    ap.add_argument("--rotmask", type=int, default=7)
    ap.add_argument("--hr", type=int, default=7)
    ap.add_argument("--la", type=int, default=5)
    ap.add_argument("--psleep", type=int, default=8)
    ap.add_argument("--tail", type=int, default=0)
    ap.add_argument("--fpg", type=int, default=6)
    ap.add_argument("--codepf", type=int, default=1)
    ap.add_argument("--pad", type=int, default=-1)
    ap.add_argument("--padrole", default="C")
    ap.add_argument("--prio", type=int, default=0)
    ap.add_argument("--bpos", type=int, default=3)
    ap.add_argument("--nb", type=int, default=3)
    ap.add_argument("--padx", type=int, default=-1)
    ap.add_argument("--zlate", type=int, default=1)
    ap.add_argument("--mir", type=int, default=1)
    ap.add_argument("--zbar", type=int, default=20)
    ap.add_argument("--lateb9", type=int, default=1)
    ap.add_argument("--zsleep", type=int, default=4)
    ap.add_argument("--noz", action="store_true")
    ap.add_argument("--ofl", default="")
    ap.add_argument("--ssleep", type=int, default=0)
    ap.add_argument("--split0", type=int, default=1)
    ap.add_argument("--fmask", default="3")
    ap.add_argument("--cmask", type=int, default=1)
    ap.add_argument("--half", type=int, default=0)
    ap.add_argument("--hp", type=int, default=6)
    ap.add_argument("--wpoll", type=int, default=0)
    ap.add_argument("--spr", type=int, default=6)
    ap.add_argument("--fine4", action="store_true")
    ap.add_argument("--nost", action="store_true")
    ap.add_argument("--idledelay", type=int, default=0)
    ap.add_argument("--xrot", type=int, default=1)
    ap.add_argument("--tcb", type=int, default=2)
    ap.add_argument("--wtouch", type=int, default=1)
    ap.add_argument("--pf", type=int, default=0)
    ap.add_argument("--pq", type=int, default=1)
    ap.add_argument("--idlego", type=int, default=0)
    ap.add_argument("--nc", type=int, default=6)
    ap.add_argument("--stag", type=int, default=1)
    ap.add_argument("--thrz", type=int, default=0)
    ap.add_argument("--pace", type=int, default=0)
    ap.add_argument("--thr", type=int, default=0)
    ap.add_argument("--thr2", type=int, default=4)
    ap.add_argument("--early", type=int, default=0)
    ap.add_argument("--nowait", action="store_true")
    ap.add_argument("--fine3", action="store_true")
    ap.add_argument("--nomfma", action="store_true")
    ap.add_argument("--noidle", action="store_true")
    ap.add_argument("--fsleep", type=int, default=0)
    ap.add_argument("--noreads", action="store_true")
    opt = ap.parse_args()
    global FSLEEP
    FSLEEP = opt.fsleep
    hdr = open(f"cdna_kernels/{NAME}.s.ref").read().split("; Override launch")[0]
    out = hdr
    out += f"; @launch grid=(256,1,1) block=(512,1,1) lds={LDS_SIZE}\n"
    out += '.amdgcn_target "amdgcn-amd-amdhsa--gfx950"\n.text\n'
    a = Asm()
    kernel(a, opt)
    nm = NAME + "_kernel"
    out += f".globl {nm}\n.p2align 8\n.type {nm},@function\n" + a.text()
    out += f""".section .rodata,"a"
.p2align 6
.amdhsa_kernel {nm}
  .amdhsa_next_free_vgpr 256
  .amdhsa_next_free_sgpr 102
  .amdhsa_accum_offset 256
  .amdhsa_group_segment_fixed_size 0
  .amdhsa_kernarg_size 104
  .amdhsa_user_sgpr_count 2
  .amdhsa_user_sgpr_kernarg_segment_ptr 1
  .amdhsa_system_sgpr_workgroup_id_x 1
.end_amdhsa_kernel
"""
    open(opt.o, "w").write(out)


if __name__ == "__main__":
    main()
```

```python
import struct, sys, argparse, re

NAME = "gated_mix__spectral_fnet__geglu_ffn__prompt"
H_OFF = 0
HS = 87
H_SIZE = 64 * HS * 1024
Z_OFF = 0x580000
EP = 264
ZR_B = 16 * EP * 16 + 128
Z_SIZE = 32 * ZR_B
G_OFF = 0x7A0000
G_SIZE = 2048 * 4
F_OFF = 0x7B0000
F_SIZE = 32768
T_OFF = 0xA00000
MF16 = "v_mfma_f32_16x16x32_bf16"
MF32 = "v_mfma_f32_32x32x16_bf16"


DOC = """; ---------------------------------------------------------------------------------------------
;    spectral groups: hidden DFT a,b = x Cd, x Sd for e = 0..256 (Hermitian half), then the 32-point
; ---------------------------------------------------------------------------------------------
"""


def f2u(f):
    return struct.unpack("<I", struct.pack("<f", f))[0]


class Asm:
    def __init__(self):
        self.l = []
        self.ds = []
        self.vm = []
        self.n = 0
        self.ub = 0

    def __call__(self, s):
        if s.startswith("ds_"):
            if self.ub >= 15:
                self("s_waitcnt lgkmcnt(10)")
            self.ub += 1
        m = re.search(r"lgkmcnt\((\d+)\)", s)
        if m:
            self.ub = min(self.ub, int(m.group(1)))
        self.l.append("    " + s)
        self.n += 1

    def label(self, s):
        self.l.append(s + ":")

    def dsop(self, s, tag):
        self(s)
        self.ds.append(tag)

    def dswait(self, tag):
        idx = max(i for i, t in enumerate(self.ds) if t == tag)
        n = len(self.ds) - 1 - idx
        assert n <= 15, n
        self(f"s_waitcnt lgkmcnt({n})")

    def vmop(self, s, tag):
        self(s)
        self.vm.append(tag)

    def vmwait(self, tag):
        idx = max(i for i, t in enumerate(self.vm) if t == tag)
        n = len(self.vm) - 1 - idx
        assert n <= 63, n
        self(f"s_waitcnt vmcnt({n})")

    def text(self):
        return "\n".join(self.l) + "\n"


def vr(b, n):
    return f"v[{b}:{b+n-1}]"


def srd(a, d, lo, hi, size, add=0):
    if add:
        a(f"s_add_u32 s{d}, s{lo}, {add:#x}")
        a(f"s_addc_u32 s{d+1}, s{hi}, 0")
    else:
        a(f"s_mov_b32 s{d}, s{lo}")
        a(f"s_mov_b32 s{d+1}, s{hi}")
    a(f"s_mov_b32 s{d+2}, {size:#x}")
    a(f"s_mov_b32 s{d+3}, 0x20000")


def stamp(a, opt):
    if not opt.stamps:
        return
    a("s_memrealtime s[90:91]")
    a("s_memtime s[86:87]")
    a("s_mov_b32 s88, m0")
    a("s_waitcnt lgkmcnt(0)")
    a("s_mov_b32 m0, s89")
    a("s_add_u32 s89, s89, 1")
    a("v_writelane_b32 v255, s90, m0")
    a("v_writelane_b32 v253, s86, m0")
    a("s_mov_b32 m0, s88")


def stamp_flush(a, opt, role):
    if not opt.stamps:
        return
    if opt.pad >= 0:
        if role == opt.padrole:
            a("s_cmp_lg_u32 s46, 0")
            a("s_cbranch_scc1 Lpad_end")
            if opt.padx >= 0:
                a("s_and_b32 s92, s2, 7")
                a(f"s_cmp_lg_u32 s92, {opt.padx}")
                a("s_cbranch_scc1 Lpad_end")
            a("s_nop 4")
            a(f"v_readlane_b32 s92, v255, {opt.pad}")
            a("s_nop 4")
            a("s_add_u32 s92, s92, 4000")
            a.label("Lpad")
            a("s_memrealtime s[90:91]")
            a("s_waitcnt lgkmcnt(0)")
            a("s_sub_u32 s93, s92, s90")
            a("s_cmp_gt_i32 s93, 0")
            a("s_cbranch_scc1 Lpad")
            a.label("Lpad_end")
        return
    a("s_waitcnt vmcnt(0)")
    stamp(a, opt)
    srd(a, 92, 78, 79, 0x200000, T_OFF)
    a("s_lshl_b32 s96, s2, 3")
    a("s_add_u32 s96, s96, s20")
    a("s_lshl_b32 s96, s96, 8")
    a("v_lshlrev_b32 v254, 2, v1")
    a("buffer_store_dword v255, v254, s[92:95], s96 offen")
    a("s_add_u32 s96, s96, 0x100000")
    a("buffer_store_dword v253, v254, s[92:95], s96 offen")


C1 = -2.0 * 0.7978845608028654 * 1.4426950408889634
C2 = C1 * 0.044715
NB = 3
SSZ = 49152
FLG = 78 * 2048
RH = FLG + 256
RZ = FLG + 64
GW_LDS = FLG + 512
LDS_SIZE = 163840
assert GW_LDS + 2048 <= LDS_SIZE
K_FFN, K_SPEC, K_6G, K_IDLE, K_S4G = 0, 1, 2, 4, 3

L_VD, L_VX, L_T0, L_T1, L_T2, L_VF, L_VA = 2, 10, 16, 17, 18, 20, 21


FSLEEP = 0


def free_wait(a, lab, val):
    if FSLEEP:
        a(f"s_branch {lab}_c")
    a.label(lab)
    if FSLEEP:
        a(f"s_sleep {FSLEEP}")
        a.label(lab + "_c")
    a(f"ds_read_b32 v{L_T0}, v{L_VA}")
    a("s_waitcnt lgkmcnt(0)")
    a(f"v_cmp_ge_u32 vcc, {val}, v{L_T0}")
    a(f"s_cbranch_vccnz {lab}")


def p2_setup(a, opt):
    t0, t1, t2 = L_T0, L_T1, L_T2
    VW0, VW1 = 28, 29
    VH0, VH1 = 4, 5
    VRH = 7
    VRB = 22
    a(f"s_cmp_eq_u32 s46, {K_IDLE}")
    a("s_cselect_b32 s83, 1, 0")
    if opt.xrot:
        a("s_add_u32 s56, s56, s2")
    a("s_and_b32 s56, s56, 7")
    a("s_mul_i32 s56, s56, 5")
    a("s_lshr_b32 s56, s56, 2")
    a(f"v_bfe_u32 v{t0}, v1, 4, 1")
    a(f"v_lshlrev_b32 v{t0}, 2, v{t0}")
    a(f"v_and_b32 v{t1}, 7, v1")
    a(f"v_xor_b32 v{t0}, v{t0}, v{t1}")
    a(f"v_lshrrev_b32 v{t1}, 3, v1")
    a(f"v_lshlrev_b32 v{t1}, 10, v{t1}")
    a(f"v_lshl_add_u32 v{VW0}, v{t0}, 4, v{t1}")
    a("s_lshl_b32 s42, s55, 7")
    a("s_lshl_b32 s43, s45, 14")
    a("s_add_u32 s42, s42, s43")
    a(f"v_add_u32 v{VW0}, s42, v{VW0}")
    a(f"v_add_u32 v{VW1}, 0x2000, v{VW0}")
    a("s_lshl_b32 s59, s45, 11")
    a("s_cmp_lt_u32 s45, 2")
    a("s_cselect_b32 s57, 11, 10")
    a(f"v_lshrrev_b32 v{t2}, 5, v1")
    a(f"v_bfe_u32 v{t0}, v1, 2, 2")
    a(f"v_lshl_add_u32 v{t0}, v{t2}, 3, v{t0}")
    a(f"v_lshlrev_b32 v{t0}, 7, v{t0}")
    a(f"v_bfe_u32 v{t1}, v1, 1, 1")
    a(f"v_lshl_add_u32 v{t0}, v{t1}, 3, v{t0}")
    a(f"v_and_b32 v{t1}, 1, v1")
    a(f"v_lshl_add_u32 v{t0}, v{t1}, 5, v{t0}")
    a(f"v_bfe_u32 v{t1}, v1, 4, 1")
    a(f"v_lshl_add_u32 v{t0}, v{t1}, 4, v{t0}")
    a(f"v_bfe_u32 v{t1}, v1, 3, 1")
    a(f"v_lshl_add_u32 v{t0}, v{t1}, 6, v{t0}")
    a(f"v_add_u32 v{VRB}, s59, v{t0}")
    a(f"v_xor_b32 v{VRB+1}, 64, v{VRB}")
    for k in (1, 2):
        a(f"v_add_u32 v{VRB+2*k}, {k*65536}, v{VRB}")
        a(f"v_add_u32 v{VRB+2*k+1}, {k*65536}, v{VRB+1}")
    a(f"v_lshlrev_b32 v{t0}, 4, v1")
    a(f"s_mul_i32 s42, s54, {HS*1024}")
    a("s_lshl_b32 s43, s45, 10")
    a("s_add_u32 s42, s42, s43")
    a(f"v_add_u32 v{VH0}, s42, v{t0}")
    a(f"v_add_u32 v{VH1}, {32*HS*1024}, v{VH0}")
    srd(a, 32, 78, 79, H_SIZE, H_OFF)
    a("v_cmp_gt_u32 vcc, 11, v1")
    a(f"v_subrev_u32 v{t0}, 11, v1")
    a(f"v_mov_b32 v{t1}, s57")
    a(f"v_cndmask_b32 v{t0}, v{t0}, v1, vcc")
    a(f"v_cndmask_b32 v{t1}, v{t1}, 11, vcc")
    a(f"v_cndmask_b32 v6, 2, {1 if opt.half else 2}, vcc")
    a(f"v_add_u32 v{t0}, s56, v{t0}")
    a(f"v_sub_u32 v{t1}, v{t0}, v{t1}")
    a(f"v_min_u32 v{t0}, v{t0}, v{t1}")
    a(f"v_min_u32 v{t0}, 10, v{t0}")
    a(f"v_lshlrev_b32 v{t0}, 2, v{t0}")
    a(f"v_add_u32 v{VRH}, {RH}, v{t0}")
    srd(a, 36, 78, 79, F_SIZE, F_OFF)
    a(f"s_lshl_b32 s62, s54, {opt.lr}")
    a(f"s_and_b32 s43, s55, {opt.cmask}")
    a("s_add_u32 s62, s62, s43")
    a("s_lshl_b32 s62, s62, 7")
    a("v_lshlrev_b32 v8, 4, v1")
    a("s_or_b32 s61, s45, s83")
    a("s_mov_b32 s60, 0")


def p1_loader(a, opt):
    VD, VX, t0 = L_VD, L_VX, L_T0
    Q = opt.q
    a.label("L1L_loop")
    a("s_lshl_b32 s47, s49, 7")
    a("s_add_u32 m0, s48, s67")
    a("s_mul_i32 s40, s49, s44")
    n = 0

    def after():
        nonlocal n
        n += 1
        if n == Q:
            a("s_cmp_eq_u32 s66, 0")
            a("s_cbranch_scc1 L1L_nobar")
            a(f"s_waitcnt vmcnt({Q})")
            if opt.fine:
                stamp(a, opt)
            a("s_barrier")
            a.label("L1L_nobar")

    for i in range(4):
        a(f"buffer_load_dwordx4 v{VX+i}, s[24:27], s47 offen lds")
        if i < 3:
            a("s_add_u32 m0, m0, 1024")
            a("s_nop 0")
        else:
            a.label("L1L_w")
            a("s_add_u32 m0, s41, s67")
            a("s_lshl_b32 s40, s40, 3")
        if opt.split0 and i == opt.split0 - 1:
            a("s_cmp_lg_u32 s66, 1")
            a("s_cbranch_scc1 L1L_nosp")
            a(f"s_waitcnt vmcnt({4 + opt.split0})")
            a("s_barrier")
            a.label("L1L_nosp")
        after()
    for u in range(8):
        a(f"buffer_load_dwordx4 v{VD+(u&1)}, s[28:31], s40 offen lds")
        if u < 7:
            a("s_add_u32 m0, m0, 2048")
            a("s_add_u32 s40, s40, s44")
        after()
    a("s_cmp_lg_u32 s66, 0")
    a("s_cbranch_scc1 L1L_next")
    a("v_mov_b32 v14, 0")
    a("v_mov_b32 v15, 0")
    srd(a, 68, 76, 77, 256)
    a("s_cmp_eq_u32 s45, 0")
    a("s_cselect_b32 s81, 5, -1")
    a("s_cmp_eq_u32 s66, s80")
    a("s_cbranch_scc0 L1L_next")
    srd(a, 36, 16, 17, 1024)
    a(f"s_mov_b32 m0, {GW_LDS}")
    a(f"v_lshlrev_b32 v{t0}, 4, v1")
    a(f"buffer_load_dwordx4 v{t0}, s[36:39], 0 offen lds")
    srd(a, 36, 4, 5, 1024, 256 * 1024)
    a(f"s_mov_b32 m0, {GW_LDS+1024}")
    a("s_nop 0")
    a(f"buffer_load_dwordx4 v{t0}, s[36:39], 0 offen lds")
    a.label("L1L_next")
    a("s_cmp_eq_u32 s66, s81")
    a("s_cbranch_scc0 L1L_next2")
    a("buffer_load_dword v14, v15, s[68:71], 0 offen")
    a.label("L1L_next2")
    a("s_cmp_lg_u32 s66, 0")
    a("s_cbranch_scc1 L1L_next3")
    p2_setup(a, opt)
    a.label("L1L_next3")
    a("s_add_u32 s49, s49, 1")
    a("s_and_b32 s49, s49, 7")
    a(f"s_add_u32 s67, s67, {SSZ}")
    a(f"s_cmp_eq_u32 s67, {3*SSZ}")
    a("s_cselect_b32 s67, 0, s67")
    a("s_add_u32 s66, s66, 1")
    a("s_cmp_lt_u32 s66, 8")
    a("s_cbranch_scc1 L1L_loop")


NI_ = 22


def p2_worker(a, opt):
    HR = opt.hr
    LA = opt.la
    t0, t1, t2 = L_T0, L_T1, L_T2
    VW0, VW1 = 28, 29
    VH0, VH1 = 4, 5
    VRH = 7
    VRB = 22
    WF, ACB, HF = 32, 64, 128
    WR = 4
    assert HF + 8 * HR <= 252 and LA < HR
    a.vm, a.ds = [], []
    a.label("L2W")
    srd(a, 28, 14, 15, 1376 * 1024)
    rows = [18, 18] + list(range(12, 18)) + [18, 0, 1, 19] + list(range(2, 12))
    OPT = 11
    clsC = [i for i in range(NI_) if rows[i] < 6]
    clsD = [i for i in range(NI_) if 6 <= rows[i] < 12]
    NI = 22
    assert len(rows) == NI

    def prod(i, dst, sh):
        if i < 11:
            a(f"s_add_u32 s{dst}, s56, {i}")
            a(f"s_sub_u32 s43, s{dst}, 11")
        else:
            a(f"s_add_u32 s{dst}, s56, {i-11}")
            a(f"s_sub_u32 s43, s{dst}, s57")
        a(f"s_cselect_b32 s{dst}, s{dst}, s43")
        a(f"s_lshl_b32 s{dst}, s{dst}, {sh+1}")
        if i >= 11:
            a(f"s_add_u32 s{dst}, s{dst}, {1 << sh}")

    def wload(i):
        a(f"s_add_u32 m0, s59, {rows[i]*8192}")
        prod(i, 40, 16)
        a.vmop(f"buffer_load_dwordx4 v{VW0}, s[28:31], s40 offen lds", ("w", i))
        a("s_add_u32 m0, m0, 1024")
        a("s_nop 0")
        a.vmop(f"buffer_load_dwordx4 v{VW1}, s[28:31], s40 offen lds", ("w", i))

    def wreads(i):
        f = WF + 8 * (i % WR)
        b = VRB + 2 * (rows[i] // 8)
        o = (rows[i] % 8) * 8192
        for ln in range(2):
            a.dsop(f"ds_read_b64_tr_b16 {vr(f+4*ln,2)}, v{b+ln} offset:{o}", ("r", i))
            a.dsop(f"ds_read_b64_tr_b16 {vr(f+4*ln+2,2)}, v{b+ln} offset:{o+512}", ("r", i))

    wload(0)
    for i in range(2, 2 + opt.nb):
        wload(i)
    a(f"s_waitcnt vmcnt({len(a.vm)})")
    a("s_or_b32 s42, s45, s83")
    a("s_cbranch_scc1 L2W_gook")
    a("v_cmp_le_u32 vcc, 32, v14")
    a("s_cbranch_vccnz L2W_gook")
    a.label("L2W_go")
    a("buffer_load_dword v14, v15, s[68:71], 0 offen sc1")
    a("s_waitcnt vmcnt(0)")
    a("v_cmp_gt_u32 vcc, 32, v14")
    a("s_cbranch_vccnz L2W_go")
    a.label("L2W_gook")
    stamp(a, opt)
    a("s_cmp_lg_u32 s83, 0")
    a("s_cbranch_scc1 L2W_nob6")
    a("s_barrier")
    a.label("L2W_nob6")
    a.vmwait(("w", 0))
    wreads(0)
    a("s_waitcnt lgkmcnt(0)")
    wload(1)
    for i in range(2 + opt.nb, 8):
        wload(i)
    if opt.tail == 2:
        a("s_and_b32 s42, s46, 5")
        a("s_cbranch_scc1 L2W_t2")
        a("s_barrier")
        a.label("L2W_t2")
    a("s_bitcmp1_b32 s46, 0")
    a("s_cbranch_scc0 L2W_c")
    a("s_barrier")
    if not opt.cmid:
        a("s_barrier")
        a("s_barrier")
    a.label("L2W_c")
    for i in clsC[:opt.nc]:
        wload(i)
    if opt.cmid:
        a("s_cmp_lg_u32 s83, 0")
        a("s_cbranch_scc1 L2W_nob7")
        a("s_barrier")
        a("s_bitcmp1_b32 s46, 0")
        a("s_cbranch_scc0 L2W_nob7")
        a("s_barrier")
    else:
        a("s_and_b32 s42, s46, 5")
        a("s_cbranch_scc1 L2W_nob7")
        a("s_barrier")
    a.label("L2W_nob7")
    a.vmwait(("w", 1))
    wreads(1)
    a("s_waitcnt lgkmcnt(0)")
    for i in [8] + clsC[opt.nc:] + clsD:
        wload(i)
        if opt.thr2:
            a("s_and_b32 s42, s46, 5")
            a(f"s_cbranch_scc1 L2W_nt{i}")
            a(f"s_waitcnt vmcnt({opt.thr2})")
            a.label(f"L2W_nt{i}")
    a("s_cmp_ge_u32 s45, 2")
    a("s_cbranch_scc1 L2W_no19")
    wload(OPT)
    a.label("L2W_no19")
    a(f"s_cmp_lg_u32 s46, {K_IDLE}")
    a("s_cbranch_scc1 L2W_nopf")
    a("s_sub_u32 s42, s55, 4")
    a("s_lshl_b32 s42, s42, 2")
    a("s_add_u32 s42, s42, s45")
    if opt.xrot:
        a("s_lshl_b32 s43, s2, 1")
        a("s_add_u32 s42, s42, s43")
        a("s_and_b32 s42, s42, 15")
    a(f"s_mul_i32 s42, s42, {96*1024}")
    a(f"v_lshrrev_b32 v{t0}, 1, v1")
    a(f"v_lshlrev_b32 v{t0}, 10, v{t0}")
    a(f"v_and_b32 v{t1}, 1, v1")
    a(f"v_lshl_add_u32 v{t0}, v{t1}, 7, v{t0}")
    for k in range(3):
        for c in range(opt.tcb):
            a(f"buffer_load_dword v250, v{t0}, s[28:31], s42 offen offset:{256*c}")
        a("s_add_u32 s42, s42, 0x8000")
    if opt.codepf2:
        a("s_waitcnt vmcnt(0)")
        a("s_getpc_b64 s[72:73]")
        a.label("L_pcref2")
        a(f"s_sub_u32 s72, s72, L_pcref2-{NAME}_kernel")
        a("s_subb_u32 s73, s73, 0")
        a(f"s_mov_b32 s74, L_exit-{NAME}_kernel")
        a("s_mov_b32 s75, 0x20000")
        a("s_lshl2_add_u32 s42, s55, s45")
        a("s_and_b32 s42, s42, 7")
        a("s_mul_i32 s42, s42, 6144")
        a(f"v_lshlrev_b32 v{t0}, 7, v1")
        a(f"buffer_load_dword v250, v{t0}, s[72:75], s42 offen sc1")
    a.label("L2W_nopf")
    stamp(a, opt)
    a.vm = []

    spins = []

    def issue1(i):
        h = HF + 8 * (i % HR)
        a(f"s_bitcmp1_b32 s60, {i}")
        a(f"s_cbranch_scc0 L2W_i{i}_spin")
        a.label(f"L2W_i{i}_ok")
        spins.append(i)
        prod(i, 40, 12)
        a.vmop(f"buffer_load_dwordx4 {vr(h,4)}, v{VH0}, s[32:35], s40 offen sc1", ("h", i))

    def issue2(i):
        h = HF + 8 * (i % HR)
        a.vmop(f"buffer_load_dwordx4 {vr(h+4,4)}, v{VH1}, s[32:35], s40 offen sc1", ("h", i))

    a("s_waitcnt vmcnt(0)")
    a(f"s_mov_b32 m0, {RH}")
    wreads(2)
    for i in range(LA):
        issue1(i)
        issue2(i)
        if i == 0:
            stamp(a, opt)
    TM = opt.tm
    for i in range(NI - TM):
        a.vmwait(("h", i))
        if i == 0:
            stamp(a, opt)
        if i >= 2:
            a.dswait(("r", i))
        f = WF + 8 * (i % WR)
        h = HF + 8 * (i % HR)
        for L in range(4):
            lt, ln = L & 1, L >> 1
            acc = vr(ACB + 16 * L, 16)
            if i == OPT:
                a("s_cmp_ge_u32 s45, 2")
                a(f"s_cbranch_scc1 L2W_skip{L}")
            a(f"{MF32} {acc}, {vr(f+4*ln,4)}, {vr(h+4*lt,4)}, {'0' if i == 0 else acc}")
            if i == OPT:
                a.label(f"L2W_skip{L}")
            if L == 0 and i + 3 < NI:
                wreads(i + 3)
            if L == 1 and i + LA < NI:
                issue1(i + LA)
            if L == 2 and i + LA < NI:
                issue2(i + LA)
                if i + LA == opt.zbar:
                    a("s_barrier")
        if opt.fine2 and i % 4 == 3:
            stamp(a, opt)
    assert TM <= 4 and TM <= LA
    if TM == 4:
        wreads(NI - 1)
    a(f"v_lshlrev_b32 v{t0}, 4, v1")
    a(f"v_add_u32 v{t0}, s59, v{t0}")

    def pw(L):
        for q in range(4):
            p = 4 * L + q
            a(f"ds_write_b128 v{t0}, {vr(ACB+16*L+4*q,4)} offset:{(p>>1)*8192 + (p&1)*1024}")

    for L in range(4):
        lt, ln = L & 1, L >> 1
        acc = vr(ACB + 16 * L, 16)
        for k, i in enumerate(range(NI - TM, NI)):
            if L == 0:
                a.vmwait(("h", i))
                a.dswait(("r", i))
            f = WF + 8 * (i % WR)
            h = HF + 8 * (i % HR)
            a(f"{MF32} {acc}, {vr(f+4*ln,4)}, {vr(h+4*lt,4)}, {acc}")
            if L > 0 and k == 1:
                a("s_nop 9")
                pw(L - 1)
    stamp(a, opt)
    a("s_nop 7")
    a("s_nop 3")
    if TM >= 2:
        pw(3)
    else:
        for L in range(4):
            pw(L)
    a("s_waitcnt lgkmcnt(0)")
    a("s_barrier")
    stamp_flush(a, opt, "L")
    a("s_endpgm")
    for i in spins:
        a.label(f"L2W_i{i}_spin")
        a(f"ds_read2_b32 {vr(t0,2)}, v{VRH} offset0:0 offset1:16")
        a("s_waitcnt lgkmcnt(0)")
        a(f"v_min_u32 v{t0}, v{t0}, v{t1}")
        a(f"v_cmp_ge_u32 vcc, v{t0}, v6")
        a("s_mov_b32 s60, vcc_lo")
        a(f"s_bitcmp1_b32 s60, {i}")
        a(f"s_cbranch_scc1 L2W_i{i}_ok")
        if opt.wpoll and i < LA:
            a("s_cmp_lg_u32 s61, 0")
            a(f"s_cbranch_scc1 L2W_i{i}_spin")
            a("s_mov_b64 exec, 0xff")
            a("buffer_load_dwordx4 v8, s[36:39], s62 offen sc1 lds")
            a("s_mov_b64 exec, -1")
            a("s_waitcnt vmcnt(0)")
        if opt.ssleep:
            a(f"s_sleep {opt.ssleep}")
        a(f"s_branch L2W_i{i}_spin")


C_VA, C_VX, C_VB, C_VST, C_VGW, C_VFD = 2, 6, 10, 14, 15, 19
C_T0, C_T1, C_T2 = 20, 21, 22
C_K1, C_K2 = 24, 26
C_WF, C_XF, C_ACC, C_TT, C_TT2, C_CF, C_SF = 28, 52, 116, 88, 100, 212, 220


def dft32_consts(a):
    t0, t1, t2 = C_T0, C_T1, C_T2
    tc, ts = 96, 112
    a(f"v_and_b32 v{t0}, 15, v1")
    a(f"v_cvt_f32_u32 v{t0}, v{t0}")
    a(f"v_mul_f32 v{t0}, {f2u(1.0/32):#x}, v{t0}")
    a(f"v_lshrrev_b32 v{t1}, 4, v1")
    a(f"v_cvt_f32_u32 v{t1}, v{t1}")
    a(f"v_mul_f32 v{t1}, 4.0, v{t1}")
    for rho in range(2):
        if rho:
            a(f"v_add_f32 v{t0}, 0.5, v{t0}")
        a(f"v_mul_f32 v{t2}, v{t0}, v{t1}")
        for sg in range(8):
            s1c = 16 * (sg >> 2) + (sg & 3)
            a(f"v_fmamk_f32 v{tc+8*rho+sg}, v{t0}, {f2u(float(s1c)):#x}, v{t2}")
    for i in range(16):
        a(f"v_fract_f32 v{tc+i}, v{tc+i}")
    for i in range(16):
        a(f"v_sin_f32 v{ts+i}, v{tc+i}")
    for i in range(16):
        a(f"v_cos_f32 v{tc+i}, v{tc+i}")
    a("s_nop 0")
    for i in range(8):
        a(f"v_cvt_pk_bf16_f32 v{C_CF+i}, v{tc+2*i}, v{tc+2*i+1}")
        a(f"v_cvt_pk_bf16_f32 v{C_SF+i}, v{ts+2*i}, v{ts+2*i+1}")


NPK = 0


def ffn_epi(p):
    A, TT = C_ACC + 16 * p, 244
    r = []
    if p < NPK:
        r += [f"v_mul_f32 v{TT+v}, v{A+v}, v{A+v}" for v in range(8)]
        r += [f"v_fma_f32 v{TT+v}, v{TT+v}, v{C_K2}, v{C_K1}" for v in range(8)]
        r += [f"v_mul_f32 v{TT+v}, v{TT+v}, v{A+v}" for v in range(8)]
        r += [f"v_exp_f32 v{TT+v}, v{TT+v}" for v in range(8)]
        r += [f"v_mul_f32 v{A+8+v}, v{A+v}, v{A+8+v}" for v in range(8)]
        r += [f"v_add_f32 v{TT+v}, 1.0, v{TT+v}" for v in range(8)]
        r += [f"v_rcp_f32 v{TT+v}, v{TT+v}" for v in range(8)]
        r += [f"v_mul_f32 v{A+8+v}, v{A+8+v}, v{TT+v}" for v in range(8)]
        for i in (0, 2, 1, 3):
            r.append(f"v_cvt_pk_bf16_f32 v{A+i}, v{A+8+2*i}, v{A+8+2*i+1}")
        r.append(f"v_permlane16_swap_b32 v{A}, v{A+2}")
        r.append("s_nop 0")
        r.append(f"v_permlane16_swap_b32 v{A+1}, v{A+3}")
        so = "s43" if p & 1 else "s42"
        r.append(f"buffer_store_dwordx4 {vr(A,4)}, v{C_VST}, s[32:35], {so} offen offset:{(p>>1)*1024} sc1")
        return r
    for v in range(0, 8, 2):
        r.append(f"v_pk_mul_f32 {vr(TT+v,2)}, {vr(A+v,2)}, {vr(A+v,2)}")
    for v in range(0, 8, 2):
        r.append(f"v_pk_fma_f32 {vr(TT+v,2)}, {vr(TT+v,2)}, {vr(C_K2,2)}, {vr(C_K1,2)}")
    for v in range(0, 8, 2):
        r.append(f"v_pk_mul_f32 {vr(TT+v,2)}, {vr(TT+v,2)}, {vr(A+v,2)}")
    for v in range(8):
        r.append(f"v_exp_f32 v{TT+v}, v{TT+v}")
    for v in range(0, 8, 2):
        r.append(f"v_pk_mul_f32 {vr(A+8+v,2)}, {vr(A+v,2)}, {vr(A+8+v,2)}")
    for v in range(0, 8, 2):
        r.append(f"v_pk_add_f32 {vr(TT+v,2)}, {vr(TT+v,2)}, 1.0 op_sel_hi:[1,0]")
    for v in range(8):
        r.append(f"v_rcp_f32 v{TT+v}, v{TT+v}")
    for v in range(0, 8, 2):
        r.append(f"v_pk_mul_f32 {vr(A+8+v,2)}, {vr(A+8+v,2)}, {vr(TT+v,2)}")
    for i in (0, 2, 1, 3):
        r.append(f"v_cvt_pk_bf16_f32 v{A+i}, v{A+8+2*i}, v{A+8+2*i+1}")
    r.append(f"v_permlane16_swap_b32 v{A}, v{A+2}")
    r.append("s_nop 0")
    r.append(f"v_permlane16_swap_b32 v{A+1}, v{A+3}")
    so = "s43" if p & 1 else "s42"
    r.append(f"buffer_store_dwordx4 {vr(A,4)}, v{C_VST}, s[32:35], {so} offen offset:{(p>>1)*1024} sc1")
    return r


def spec_epi(p):
    A, TT = C_ACC + 16 * p, (C_TT if p & 1 else C_TT2)
    r = []
    for i in range(8):
        r.append(f"v_cvt_pk_bf16_f32 v{TT+i}, v{A+2*i}, v{A+2*i+1}")
    for i in range(4):
        r.append(f"v_cvt_pk_bf16_f32 v{TT+8+i}, -v{A+8+2*i}, -v{A+8+2*i+1}")
    pa, pb, pn = vr(TT, 4), vr(TT + 4, 4), vr(TT + 8, 4)
    for rho in range(2):
        zr = vr(A + 4 * rho, 4)
        r.append(f"{MF16} {zr}, {vr(C_CF+4*rho,4)}, {pa}, 0")
        r.append(f"{MF16} {zr}, {vr(C_SF+4*rho,4)}, {pb}, {zr}")
    for rho in range(2):
        zm = vr(A + 8 + 4 * rho, 4)
        r.append(f"{MF16} {zm}, {vr(C_SF+4*rho,4)}, {pa}, 0")
        r.append(f"{MF16} {zm}, {vr(C_CF+4*rho,4)}, {pn}, {zm}")
    return r


def spec_pack(p):
    A = C_ACC + 16 * p
    r = [f"v_cvt_pk_bf16_f32 v{A+rg}, v{A+rg}, v{A+8+rg}" for rg in range(8)]
    r += [f"ds_write_b128 v{2+(p&1)}, {vr(A+4*rho,4)} offset:{(2*(p>>1)+rho)*4096}" for rho in range(2)]
    return r


def p1_compute(a, opt, kind):
    T = {"ffn6": 6, "spec6": 6, "spec4g": 4, "ffn8": 8}[kind]
    hasg = kind == "spec4g"
    lab_kind = kind
    kind = "spec" if kind.startswith("spec") else kind
    a.ds = []
    VA, VX, VST, VGW, VFD = C_VA, C_VX, C_VST, C_VGW, C_VFD
    P = T // 2
    t0, t1, t2 = C_T0, C_T1, C_T2
    WF, XF, ACC = C_WF, C_XF, C_ACC
    GACC = ACC + 64
    a.label(f"L1C_{lab_kind}")
    a(f"s_mul_i32 s41, s41, {P}")
    for pl in range(P):
        a(f"s_add_u32 s42, s41, {pl}")
        a("s_lshl_b32 s42, s42, 5")
        a(f"v_xor_b32 v{VA+pl}, s42, v{C_VB}")
    if kind == "spec":
        a(f"v_lshrrev_b32 v{t1}, 4, v1")
        a(f"v_mul_u32_u24 v{t1}, {4*ZR_B}, v{t1}")
        a(f"v_and_b32 v{t0}, 15, v1")
        a(f"v_lshl_add_u32 v{VST}, v{t0}, 4, v{t1}")
        if hasg:
            a(f"v_lshrrev_b32 v{t0}, 4, v1")
            a(f"v_lshlrev_b32 v{t0}, 4, v{t0}")
            a(f"v_and_b32 v{t1}, 1, v1")
            a(f"v_lshl_add_u32 v{t0}, v{t1}, 10, v{t0}")
            a(f"v_add_u32 v{t2}, {GW_LDS}, v{t0}")
        srd(a, 32, 78, 79, Z_SIZE, Z_OFF)
        a("s_mul_i32 s42, s22, 96")
        a(f"s_mul_i32 s43, s21, {EP}")
        a("s_add_u32 s42, s42, s43")
        a("s_lshr_b32 s43, s45, 1")
        a("s_lshl_b32 s43, s43, 4")
        a("s_add_u32 s42, s42, s43")
        a("s_lshl_b32 s42, s42, 4")
        a("s_and_b32 s43, s45, 1")
        a(f"s_mul_i32 s43, s43, {16*ZR_B}")
        a("s_add_u32 s42, s42, s43")
    else:
        for i in range(2):
            a(f"v_mov_b32 v{C_K1+i}, {f2u(C1):#x}")
            a(f"v_mov_b32 v{C_K2+i}, {f2u(C2):#x}")
        a(f"v_lshlrev_b32 v{VST}, 4, v1")
        srd(a, 32, 78, 79, H_SIZE, H_OFF)
        a("s_lshl3_add_u32 s44, s22, s41")
        a(f"s_mul_i32 s42, s23, {HS}")
        a("s_add_u32 s42, s42, s44")
        a("s_lshl_b32 s42, s42, 10")
        a("s_xor_b32 s43, s23, 32")
        a(f"s_mul_i32 s43, s43, {HS}")
        a("s_add_u32 s43, s43, s44")
        a("s_lshl_b32 s43, s43, 10")
    stamp(a, opt)

    tail = 0 if kind == "spec" else opt.tail
    units = []
    for s in range(8):
        us = []
        if tail == 2 and s == 7:
            continue
        if tail == 2 and s == 6:
            for p in range(P):
                for s_ in (6, 7):
                    us += [dict(s=s_, p=p, frags=[(0, 0), (0, 1)]), dict(s=s_, p=p, frags=[(1, 0), (1, 1)], upd=True)]
            us[2]["open"] = True
            us[2]["bar"] = True
            us[0]["open"] = True
            us[0]["bar"] = True
            units += us
            continue
        if s == 0 and opt.split0:
            us += [dict(s=s, p=p, frags=[(0, 0), (1, 0)]) for p in range(P)]
            us += [dict(s=s, p=p, frags=[(0, 1), (1, 1)], upd=True, bar=(p == 0)) for p in range(P)]
            if hasg:
                us.append(dict(s=s, p=None))
        else:
            if hasg:
                us.append(dict(s=s, p=None))
            for p in range(P):
                us += [dict(s=s, p=p, frags=[(0, 0), (0, 1)]), dict(s=s, p=p, frags=[(1, 0), (1, 1)], upd=True)]
        us[0]["open"] = True
        us[0]["bar"] = True
        units += us
    N = len(units)
    LA = 2

    def delta(s):
        return SSZ if (s % NB) < 2 else -2 * SSZ

    def upd(reg, s):
        d = delta(s)
        return f"v_add_u32 v{reg}, {d}, v{reg}" if d > 0 else f"v_subrev_u32 v{reg}, {-d}, v{reg}"

    def side_ops(n):
        U = units[n]
        s = U["s"]
        f = WF + 8 * (n % 3)
        ops = []
        if U.get("open"):
            xb = XF + 32 * (s & 1)
            for g in range(2):
                for rt in range(2):
                    for ks in range(2):
                        ops.append((f"ds_read_b128 {vr(xb+16*g+8*rt+4*ks,4)}, v{VX+2*g+ks} offset:{rt*2048}", ("x", s)))
        if U["p"] is None:
            ops.append(("s_lshl_b32 s44, s49, 7", None))
            ops.append((f"v_add_u32 v{VGW}, s44, v{t2}", None))
            ops.append((f"ds_read_b128 {vr(f,4)}, v{VGW}", ("u", n)))
            ops.append((f"ds_read_b128 {vr(f+4,4)}, v{VGW} offset:64", ("u", n)))
            ops.append(("s_add_u32 s49, s49, 1", None))
            ops.append(("s_and_b32 s49, s49, 7", None))
        else:
            for k, (m, ks) in enumerate(U["frags"]):
                off = m * 16384 + ks * 8192
                ops.append((f"ds_read_b64_tr_b16 {vr(f+4*k,2)}, v{VA+U['p']} offset:{off}", ("u", n)))
                ops.append((f"ds_read_b64_tr_b16 {vr(f+4*k+2,2)}, v{VA+U['p']} offset:{off+1024}", ("u", n)))
        if U.get("open") and s < 7:
            ops += [(upd(VX + ks, s), None) for ks in range(4)]
        if U.get("upd") and s < 7:
            ops.append((upd(VA + U["p"], s), None))
        return ops

    def emit(op):
        if op[1] is None:
            a(op[0])
        else:
            a.dsop(op[0], op[1])

    epi = spec_epi if kind == "spec" else ffn_epi
    fill = []
    a("s_barrier")
    stamp(a, opt)
    for n in range(LA):
        for op in side_ops(n):
            emit(op)
    pend = []
    for n in range(N):
        U = units[n]
        s = U["s"]
        boundary = n + LA == N or (n + LA < N and units[n + LA].get("bar"))
        carry = len(pend)
        if boundary and carry:
            for _ in range(carry):
                emit(pend.pop(0))
            carry = 0
        if n + LA < N:
            pend += side_ops(n + LA)
        a.dswait(("u", n))
        f = WF + 8 * (n % 3)
        xb = XF + 32 * (s & 1)
        frags = U.get("frags", [(0, 0), (0, 1)])
        NM = 4 if U["p"] is None else 8
        bpos = min(opt.bpos, NM - 2)
        for j in range(NM):
            g, rt, k = j >> 2, (j >> 1) & 1, j & 1
            if opt.mord == 1 and NM == 8:
                g, rt, k = (j >> 1) & 1, j & 1, j >> 2
            if opt.mord == 2 and NM == 8:
                k = k ^ (rt & 1) if not (s == 0) else k
            m, ks = frags[k]
            if U["p"] is None:
                acc = vr(GACC + 4 * rt, 4)
            else:
                acc = vr(ACC + 16 * (2 * U["p"] + g) + 8 * m + 4 * rt, 4)
            w_, x_ = vr(f + 4 * k, 4), vr(xb + 16 * g + 8 * rt + 4 * ks, 4)
            srcc = "0" if (s == 0 and ks == 0) else acc
            if kind == "spec":
                a(f"{MF16} {acc}, {x_}, {w_}, {srcc}")
            else:
                a(f"{MF16} {acc}, {w_}, {x_}, {srcc}")
            if boundary:
                if j < bpos:
                    cnt = -(-carry // (bpos - j)) if carry else 0
                    carry -= cnt
                else:
                    cnt = 2
                if j == bpos:
                    a("s_waitcnt lgkmcnt(0)")
                    a("s_barrier")
                    if opt.fine:
                        stamp(a, opt)
            else:
                cnt = max(-(-len(pend) // (NM - j)), 1)
            cnt = min(cnt, len(pend))
            for _ in range(min(cnt, len(pend))):
                emit(pend.pop(0))
            k_ = min(cnt, 2) if opt.npk else 0
            while fill and k_ < opt.fpg and fill[0][0] <= a.n and not (opt.npk and fill[0][1].startswith("v_pk")):
                ins_ = fill.pop(0)[1]
                a(ins_)
                k_ += 2 if ins_.startswith(("v_exp", "v_rcp")) else 1
            if tail and s == 7 and U.get("upd") and j in (3, 7):
                fill += [(a.n + 9, i_) for i_ in epi(2 * U["p"] + (j >> 2))]
    assert not pend
    stamp(a, opt)
    if tail:
        while fill:
            at, ins = fill.pop(0)
            if at > a.n:
                a(f"s_nop {min(at - a.n - 1, 15)}")
                a.n = at
            a(ins)
    else:
        a("s_nop 7")
        if kind != "spec":
            hp = min(opt.hp, T - 1)
            for p in range(T):
                for ins in epi(p):
                    a(ins)
                if opt.half and p == 0:
                    srd(a, 36, 78, 79, F_SIZE, F_OFF)
                    a(f"v_mov_b32 v{t1}, 1")
                    a(f"v_lshlrev_b32 v{t2}, 7, v1")
                if opt.half and p == hp:
                    a(f"s_waitcnt vmcnt({hp - 3})")
                    a("s_mov_b64 exec, " + opt.fmask)
                    a(f"buffer_store_dword v{t1}, v{t2}, s[36:39], s63 offen sc1")
                    a("s_mov_b64 exec, -1")
        else:
            a(f"v_lshlrev_b32 v{t1}, 4, v1")
            a("s_lshl_b32 s43, s45, 10")
            a(f"s_add_u32 s43, s43, {SSZ}")
            a(f"v_add_u32 v{t0}, s43, v{t1}")
            a("s_lshl_b32 s43, s41, 13")
            a(f"v_add_u32 v2, s43, v{t0}")
            a("v_xor_b32 v3, 0x800, v2")
            a("s_lshl_b32 s43, s45, 12")
            a(f"s_add_u32 s43, s43, {SSZ}")
            a(f"v_add_u32 v{t1}, s43, v{t1}")
            if hasg:
                A, TT, ZR = GACC, C_TT, GACC + 8
                for i in range(4):
                    a(f"v_cvt_pk_bf16_f32 v{TT+i}, v{A+2*i}, v{A+2*i+1}")
                srd(a, 36, 78, 79, G_SIZE, G_OFF)
                for rho in range(2):
                    a(f"{MF16} {vr(ZR+4*rho,4)}, {vr(C_CF+4*rho,4)}, {vr(TT,4)}, 0")
                    a(f"{MF16} {vr(ZR+8+4*rho,4)}, {vr(C_SF+4*rho,4)}, {vr(TT,4)}, 0")
                for i in range(4):
                    a(f"v_lshlrev_b32 v{A+2*i}, 16, v{TT+i}")
                    a(f"v_and_b32 v{A+2*i+1}, 0xffff0000, v{TT+i}")
                for i in range(8):
                    a(f"v_mul_f32 v{A+i}, {f2u(-1.4426950408889634):#x}, v{A+i}")
                for i in range(8):
                    a(f"v_exp_f32 v{A+i}, v{A+i}")
                for i in range(8):
                    a(f"v_add_f32 v{A+i}, 1.0, v{A+i}")
                for i in range(8):
                    a(f"v_rcp_f32 v{A+i}, v{A+i}")
                for rg in range(8):
                    a(f"v_cvt_pk_bf16_f32 v{ZR+rg}, v{ZR+rg}, v{ZR+8+rg}")
                for rho in range(2):
                    a(f"ds_write_b128 v{t0}, {vr(ZR+4*rho,4)} offset:{(2*T+rho)*4096}")
                for i in range(4):
                    a(f"v_cvt_pk_bf16_f32 v{TT+i}, v{A+2*i}, v{A+2*i+1}")
                for i in range(4):
                    a(f"v_lshlrev_b32 v{A+2*i}, 16, v{TT+i}")
                    a(f"v_and_b32 v{A+2*i+1}, 0xffff0000, v{TT+i}")
                a("s_lshl_b32 s43, s23, 7")
                a("s_mov_b32 exec_lo, 0x00010001")
                a("s_mov_b32 exec_hi, 0x00010001")
                a(f"buffer_store_dwordx4 {vr(A,4)}, v1, s[36:39], s43 offen sc1")
                a(f"buffer_store_dwordx4 {vr(A+4,4)}, v1, s[36:39], s43 offen offset:64 sc1")
                a("s_mov_b64 exec, -1")
            cv = [[x for x in epi(p) if not x.startswith("v_mfma")] for p in range(T)]
            mf = [[x for x in epi(p) if x.startswith("v_mfma")] for p in range(T)]
            for ins in cv[0]:
                a(ins)
            for p in range(T):
                side = (cv[p + 1] if p + 1 < T else ["s_nop 3", "s_nop 3", "s_nop 3"]) + (spec_pack(p - 1) if p > 0 else [])
                for i, ins in enumerate(mf[p]):
                    a(ins)
                    for _ in range(-(-len(side) // (8 - i))):
                        a(side.pop(0))
            if opt.fine4:
                stamp(a, opt)
            a("s_nop 7")
            for ins in spec_pack(T - 1):
                a(ins)
            if opt.fine4:
                stamp(a, opt)
            a("s_waitcnt lgkmcnt(0)")
            a("s_barrier")
            if opt.fine4:
                stamp(a, opt)
            NG = T // 2 + (1 if hasg else 0)
            for k in range(NG):
                for w in range(4):
                    a(f"ds_read_b128 {vr(WF+16*k+4*w,4)}, v{t1} offset:{k*16384 + w*1024}")
            for k in range(NG):
                R = WF + 16 * k
                a(f"s_waitcnt lgkmcnt({4*(NG-1-k)})")
                for i in range(4):
                    for j in range(i + 1, 4):
                        a(f"v_swap_b32 v{R+4*i+j}, v{R+4*j+i}")
                if opt.fine4:
                    stamp(a, opt)
                off = 512 * k
                if hasg and k == NG - 1:
                    a("s_cmp_ge_u32 s45, 2")
                    a("s_cbranch_scc1 L1C_no256")
                    a("s_mov_b32 exec_lo, 0x00020002")
                    a("s_mov_b32 exec_hi, 0x00020002")
                    off -= 16
                for b in range(4):
                    a(f"s_add_u32 s43, s42, {b*ZR_B}")
                    a(f"buffer_store_dwordx4 {vr(R+4*b,4)}, v{VST}, s[32:35], s43 offen offset:{off} sc1")
            if hasg:
                a("s_mov_b64 exec, -1")
                a.label("L1C_no256")
            if opt.fine4:
                stamp(a, opt)
            if not opt.lateb9:
                a("s_barrier")

    stamp(a, opt)
    a("s_branch L2C")


def p2_combine(a, opt):
    VFD = C_VFD
    t0, t1, t2 = C_T0, C_T1, C_T2
    VZ, VO, VG = 23, 24, 25
    ZF, ACY, PT, BF, TR = 160, 192, 96, 208, 2
    a.label("L2C")
    a("s_and_b32 s42, s45, 1")
    a("s_lshl_b32 s42, s42, 5")
    a("s_add_u32 s42, s42, s54")
    a("s_lshr_b32 s43, s45, 1")
    a("s_lshl_b32 s43, s43, 5")
    a("s_lshl_b32 s44, s55, 6")
    a("s_add_u32 s43, s43, s44")
    a(f"v_bfe_u32 v{t0}, v1, 2, 1")
    a(f"v_lshlrev_b32 v{t0}, 4, v{t0}")
    a(f"v_and_or_b32 v{t0}, v1, 3, v{t0}")
    a(f"v_bfe_u32 v{t1}, v1, 3, 2")
    a(f"v_lshlrev_b32 v{t1}, 2, v{t1}")
    a(f"v_add3_u32 v{t0}, v{t0}, v{t1}, s43")
    a(f"v_and_b32 v{t1}, 31, v1")
    a("s_lshl_b32 s44, s42, 7")
    a(f"v_lshl_add_u32 v{VG}, v{t1}, 2, s44")
    a(f"v_lshl_add_u32 v{t1}, v{t1}, 6, s42")
    a(f"v_lshrrev_b32 v{t2}, 5, v1")
    a(f"v_lshlrev_b32 v{VO}, 10, v{t1}")
    a(f"v_lshl_add_u32 v{VO}, v{t2}, 5, v{VO}")
    a("s_lshl_b32 s44, s43, 1")
    a(f"v_add_u32 v{VO}, s44, v{VO}")
    a("s_mov_b32 s64, s54")
    a("s_cmp_lt_u32 s55, 4")
    a("s_cbranch_scc1 L2C_nomirror")
    a(f"v_sub_u32 v{t0}, 0x200, v{t0}")
    a(f"v_sub_u32 v{t1}, 0x800, v{t1}")
    a(f"v_and_b32 v{t1}, 0x7ff, v{t1}")
    a("s_sub_u32 s64, 32, s54")
    a("s_and_b32 s64, s64, 31")
    a.label("L2C_nomirror")
    a(f"v_mul_u32_u24 v{VZ}, {8*EP*16}, v{t2}")
    a(f"v_lshl_add_u32 v{VZ}, v{t0}, 4, v{VZ}")
    a(f"s_mul_i32 s64, s64, {ZR_B}")
    a(f"v_cvt_f32_u32 v26, v{t1}")
    a(f"v_mul_f32 v26, {f2u(-1.0/2048):#x}, v26")
    a(f"v_cvt_f32_u32 v27, v{t2}")
    a(f"v_mul_f32 v27, {f2u(16.0):#x}, v27")
    a("v_mul_f32 v27, v26, v27")

    def trig(o):
        for q in range(8):
            ks_, qq = (8 * o + q) >> 2, q & 3
            a(f"v_fmamk_f32 v{TR+q}, v26, {f2u(float(2*ks_ + (qq&1) + 32*(qq>>1))):#x}, v27")
        for q in range(8):
            a(f"v_fract_f32 v{TR+q}, v{TR+q}")
        for q in range(8):
            a(f"v_sin_f32 v{TR+8+q}, v{TR+q}")
        for q in range(8):
            a(f"v_cos_f32 v{TR+q}, v{TR+q}")
        a("s_nop 0")
        for q in range(8):
            a(f"v_cvt_pk_bf16_f32 v{BF+8*o+q}, v{TR+q}, v{TR+8+q}")

    a("s_bitcmp1_b32 s65, 1")
    a("s_cbranch_scc1 L2C_t23s")
    trig(2)
    trig(3)
    a.label("L2C_t23s")
    srd(a, 36, 78, 79, F_SIZE, F_OFF)
    a(f"v_mov_b32 v{t0}, {FLG}")
    a(f"v_mov_b32 v{t1}, 1")
    a(f"v_lshlrev_b32 v{t2}, 7, v1")
    a("v_mov_b32 v28, 2")
    a("s_waitcnt vmcnt(0)")
    stamp(a, opt)
    a("s_bitcmp1_b32 s65, 0")
    a("s_cbranch_scc0 L2C_noh")
    a("s_mov_b64 exec, " + opt.fmask)
    a(f"buffer_store_dword v28, v{t2}, s[36:39], s63 offen sc1")
    a.label("L2C_noh")
    a("s_bitcmp1_b32 s65, 1")
    a("s_cbranch_scc0 L2C_noz")
    a("s_mov_b64 exec, 1")
    a(f"ds_add_rtn_u32 v{VFD}, v{t0}, v{t1}")
    a("s_and_b32 s42, s22, 1")
    a("s_lshl4_add_u32 s42, s42, s21")
    a(f"s_lshl_b32 s42, s42, {opt.lr+7}")
    a("s_lshr_b32 s43, s22, 1")
    a("s_lshl_b32 s43, s43, 7")
    a("s_add_u32 s42, s42, s43")
    a("s_waitcnt lgkmcnt(0)")
    a(f"v_cmp_ne_u32 vcc, 3, v{VFD}")
    a("s_cbranch_vccnz L2C_noz")
    a(f"buffer_store_dword v28, v{t2}, s[36:39], s42 offen offset:256 sc1")
    a.label("L2C_noz")
    a("s_mov_b64 exec, -1")
    if opt.lateb9:
        a("s_bitcmp1_b32 s65, 1")
        a("s_cbranch_scc0 L2C_nob9")
        a("s_barrier")
        a.label("L2C_nob9")
    a(f"v_and_b32 v{VFD}, 15, v1")
    a(f"v_min_u32 v{VFD}, 10, v{VFD}")
    a(f"v_and_or_b32 v{VFD}, v1, 16, v{VFD}")
    a(f"s_mov_b32 s43, {RH}")
    a(f"v_lshl_add_u32 v{t0}, v{VFD}, 2, s43")
    a("v_min_u32 v28, 47, v1")
    a(f"s_mov_b32 s43, {RZ}")
    a("v_lshl_add_u32 v28, v28, 2, s43")
    a(f"s_lshl_b32 s42, s54, {opt.lr}")
    a(f"s_and_b32 s43, s55, {opt.cmask}")
    a("s_add_u32 s42, s42, s43")
    a("s_lshl_b32 s42, s42, 7")
    a(f"v_lshl_add_u32 v{t2}, v1, 4, s42")
    a(f"s_mov_b32 m0, {RH}")

    def hpoll():
        a("s_mov_b64 exec, 0xff")
        a(f"buffer_load_dwordx4 v{t2}, s[36:39], 0 offen sc1 lds")
        a("s_mov_b64 exec, -1")

    def zpoll():
        a("s_mov_b32 exec_hi, 0xffff")
        a(f"buffer_load_dword v{t2}, s[36:39], 0 offen sc1 lds")
        a("s_mov_b64 exec, -1")

    a("s_cmp_lg_u32 s45, 0")
    a("s_cbranch_scc1 L2C_rest")
    a.label("L2C_wh")
    hpoll()
    a(f"s_waitcnt vmcnt({opt.pq})")
    if opt.psleep:
        a(f"s_sleep {opt.psleep}")
    a(f"ds_read_b32 v{VFD}, v{t0}")
    a("s_waitcnt lgkmcnt(0)")
    a(f"v_cmp_ne_u32 vcc, 2, v{VFD}")
    a("s_cbranch_vccnz L2C_wh")
    a(f"v_and_b32 v{t2}, 31, v1")
    a(f"v_lshlrev_b32 v{t2}, {opt.lr+7}, v{t2}")
    a(f"v_lshrrev_b32 v{VFD}, 5, v1")
    a(f"v_lshl_add_u32 v{t2}, v{VFD}, 7, v{t2}")
    a(f"s_mov_b32 m0, {RZ}")
    a(f"v_add_u32 v{t2}, 0x100, v{t2}")
    zpoll()
    a.label("L2C_rest")
    trig(0)
    trig(1)
    a("s_bitcmp1_b32 s65, 1")
    a("s_cbranch_scc0 L2C_t23d")
    trig(2)
    trig(3)
    a.label("L2C_t23d")
    srd(a, 32, 78, 79, Z_SIZE, Z_OFF)
    srd(a, 24, 78, 79, G_SIZE, G_OFF)
    srd(a, 28, 18, 19, 2048 * 1024)
    a("s_barrier")
    a("s_branch L2C_wz1")
    a.label("L2C_wz")
    a("s_cmp_lg_u32 s45, 0")
    a("s_cbranch_scc1 L2C_wz1")
    a("s_waitcnt vmcnt(0)")
    zpoll()
    a(f"s_sleep {opt.zsleep}")
    a.label("L2C_wz1")
    a(f"ds_read_b32 v{VFD}, v28")
    a("s_waitcnt lgkmcnt(0)")
    a(f"v_cmp_ne_u32 vcc, 2, v{VFD}")
    a("s_cbranch_vccnz L2C_wz")

    def zloads():
        stamp(a, opt)
        a(f"buffer_load_dword v10, v{VG}, s[24:27], 0 offen sc1")
        for ks in range(8):
            if not opt.noz:
                a(f"buffer_load_dwordx4 {vr(ZF+4*ks,4)}, v{VZ}, s[32:35], s64 offen sc1")
            if ks < 7:
                a(f"s_add_u32 s64, s64, {EP*16}")

    zloads()
    a(f"v_lshlrev_b32 v{t0}, 4, v1")
    a("s_lshl_b32 s42, s45, 14")
    a(f"v_add_u32 v{t0}, s42, v{t0}")
    for ks in range(8):
        a(f"s_waitcnt vmcnt({7-ks})")
        acc = vr(ACY, 16)
        a(f"{MF32} {acc}, {vr(ZF+4*ks,4)}, {vr(BF+4*ks,4)}, {'0' if ks == 0 else acc}")
    a("v_sub_f32 v11, 1.0, v10")
    a("v_cvt_pk_bf16_f32 v11, v11, v11")
    a("v_and_b32 v12, 0xffff0000, v11")
    a("v_and_b32 v13, 0xffff0000, v11")
    a("s_nop 7")
    a("s_nop 1")
    for rg in range(16):
        a(f"v_mul_f32 v{ACY+rg}, v10, v{ACY+rg}")
    stamp(a, opt)
    a("s_barrier")
    for hf in range(2):
        for w in range(4):
            for q in (2 * hf, 2 * hf + 1):
                if hf == 1 and w == 3 and q == 3:
                    a("s_waitcnt lgkmcnt(7)")
                a(f"ds_read_b128 {vr(PT+16*w+4*q,4)}, v{t0} offset:{w*2048 + (q>>1)*8192 + (q&1)*1024}")
    for hf in range(2):
        if hf:
            a("s_waitcnt lgkmcnt(0)")
        rr = range(8 * hf, 8 * hf + 8, 2)
        for rg in rr:
            a(f"v_pk_add_f32 {vr(PT+rg,2)}, {vr(PT+rg,2)}, {vr(PT+16+rg,2)}")
        for rg in rr:
            a(f"v_pk_add_f32 {vr(PT+32+rg,2)}, {vr(PT+32+rg,2)}, {vr(PT+48+rg,2)}")
        for rg in rr:
            a(f"v_pk_add_f32 {vr(PT+rg,2)}, {vr(PT+rg,2)}, {vr(PT+32+rg,2)}")
        for rg in rr:
            a(f"v_pk_fma_f32 {vr(ACY+rg,2)}, {vr(PT+rg,2)}, v[12:13], {vr(ACY+rg,2)}")
        for i in range(4 * hf, 4 * hf + 4):
            a(f"v_cvt_pk_bf16_f32 v{32+i}, v{ACY+2*i}, v{ACY+2*i+1}")
        a(f"buffer_store_dwordx4 {vr(32+4*hf,4)}, v{VO}, s[28:31], 0 offen offset:{16*hf} {opt.ofl}")
    stamp(a, opt)
    stamp_flush(a, opt, "C")
    a("s_endpgm")


def compute_prologue(a, opt):
    t0, t1, t2 = C_T0, C_T1, C_T2
    if opt.pf:
        a(f"s_cmp_eq_u32 s46, {K_SPEC}")
        a("s_mov_b32 s47, 2752")
        a("s_cselect_b32 s47, 1024, s47")
        a("s_cmp_eq_u32 s22, 10")
        a("s_movk_i32 s40, 252")
        a("s_cselect_b32 s40, 188, s40")
        a(f"v_lshrrev_b32 v{t2}, 5, v1")
        a(f"v_bfe_u32 v{t0}, v1, 2, 3")
        a(f"v_lshl_add_u32 v{t0}, v{t2}, 7, v{t0}")
        a("s_lshl_b32 s44, s42, 3")
        a("s_add_u32 s44, s44, s55")
        a("s_lshl_b32 s44, s44, 3")
        a(f"v_add_u32 v{t0}, s44, v{t0}")
        a(f"v_mul_u32_u24 v{t0}, s47, v{t0}")
        a(f"v_and_b32 v{t1}, 3, v1")
        a(f"v_lshlrev_b32 v{t1}, 7, v{t1}")
        a(f"v_min_u32 v{t1}, s40, v{t1}")
        a("s_lshl_b32 s44, s22, 8")
        a(f"v_add3_u32 v{t0}, v{t0}, v{t1}, s44")
        a(f"v_and_b32 v{t1}, 31, v1")
        a(f"v_lshlrev_b32 v{t1}, 16, v{t1}")
        a(f"v_mul_u32_u24 v{t2}, 384, v{t2}")
        a("s_lshl_b32 s44, s23, 3")
        a("s_lshr_b32 s41, s2, 6")
        a("s_add_u32 s44, s44, s41")
        a("s_lshl_b32 s44, s44, 7")
        a(f"v_add3_u32 v{t1}, v{t1}, v{t2}, s44")
        a("s_lshl_b32 s40, s47, 6")
        a("s_mul_i32 s41, s40, 5")
        a("s_lshl_b32 s30, s47, 9")
        a("s_mov_b32 s31, 0x20000")
        a("s_waitcnt lgkmcnt(0)")
        srd(a, 24, 4, 5, 2048 * 1024)
        a(f"s_cmp_eq_u32 s46, {K_SPEC}")
        a("s_cselect_b64 s[12:13], s[8:9], s[12:13]")
        a("s_cselect_b64 s[14:15], s[10:11], s[14:15]")
        a("s_cmp_ge_u32 s45, 2")
        a("s_cselect_b64 s[28:29], s[14:15], s[12:13]")
        a(f"buffer_load_dword v29, v{t0}, s[28:31], s40 offen")
        a(f"buffer_load_dword v30, v{t1}, s[24:27], 0 offen offset:128")
        a(f"buffer_load_dword v31, v{t0}, s[28:31], s41 offen")
    a(f"v_lshlrev_b32 v{t0}, 3, v1")
    a(f"v_add_u32 v{t0}, {FLG}, v{t0}")
    a("v_mov_b32 v2, 0")
    a("v_mov_b32 v3, 0")
    a(f"ds_write_b64 v{t0}, v[2:3]")
    a("s_waitcnt lgkmcnt(0)")
    stamp(a, opt)
    a("s_and_b32 s63, s23, 31")
    a(f"s_lshl_b32 s63, s63, {opt.lr+5}")
    a("s_lshr_b32 s44, s23, 5")
    a("s_lshl_b32 s44, s44, 4")
    a("s_add_u32 s63, s63, s44")
    a("s_add_u32 s63, s63, s22")
    a("s_lshl_b32 s63, s63, 2")
    a(f"s_cmp_eq_u32 s46, {K_IDLE}")
    a("s_cbranch_scc1 L1C_idle")
    a(f"v_bfe_u32 v{t0}, v1, 2, 2")
    a(f"v_lshrrev_b32 v{t1}, 4, v1")
    a(f"v_lshl_add_u32 v{t1}, v{t1}, 3, v{t0}")
    a(f"v_lshlrev_b32 v{t1}, 8, v{t1}")
    a(f"v_bfe_u32 v{t0}, v1, 2, 3")
    a(f"v_lshl_add_u32 v{t1}, v{t0}, 5, v{t1}")
    a(f"v_and_b32 v{t0}, 3, v1")
    a(f"v_lshl_add_u32 v{C_VB}, v{t0}, 3, v{t1}")
    a(f"v_and_b32 v{t0}, 15, v1")
    a(f"v_lshrrev_b32 v{t1}, 1, v{t0}")
    a(f"v_lshrrev_b32 v{t2}, 4, v1")
    a(f"v_xor_b32 v{t1}, v{t1}, v{t2}")
    a(f"v_lshlrev_b32 v{t1}, 4, v{t1}")
    a(f"v_lshl_add_u32 v{t0}, v{t0}, 7, v{t1}")
    a(f"v_add_u32 v{C_VX}, s48, v{t0}")
    a(f"v_xor_b32 v{C_VX+1}, 64, v{C_VX}")
    a(f"v_xor_b32 v{C_VX+2}, 0x2000, v{C_VX}")
    a(f"v_xor_b32 v{C_VX+3}, 0x2040, v{C_VX}")
    a("s_mov_b32 s65, 1")
    a(f"s_cmp_eq_u32 s46, {K_6G}")
    a("s_cbranch_scc1 L1C_ffn6")
    a("s_cmp_lg_u32 s46, 0")
    a("s_cbranch_scc1 L1C_specs")


def idle_compute(a, opt):
    t0, t1, t2 = C_T0, C_T1, C_T2
    a.label("L1C_idle")
    a("s_mov_b32 s65, 0")
    srd(a, 24, 76, 77, 256)
    a(f"v_mov_b32 v{t1}, 0")
    a("s_cmp_lg_u32 s55, 4")
    a("s_cbranch_scc1 L1_noinit")
    srd(a, 36, 78, 79, F_SIZE, F_OFF)
    for i in range(4):
        a(f"v_mov_b32 v{32+i}, 0")
    a(f"v_lshlrev_b32 v{t0}, 4, v1")
    a("s_and_b32 s42, s2, 7")
    a("s_lshl_b32 s42, s42, 2")
    a("s_add_u32 s42, s42, s45")
    a("s_lshl_b32 s42, s42, 10")
    a(f"buffer_store_dwordx4 v[32:35], v{t0}, s[36:39], s42 offen sc1")
    a(f"v_mov_b32 v{t2}, 1")
    a.label("L1_noinit")
    if opt.tlb:
        srd(a, 32, 78, 79, 0x800000)
        srd(a, 28, 18, 19, 2048 * 1024)
        a(f"v_mul_u32_u24 v{t0}, {HS*1024}, v1")
        a(f"s_mov_b32 s42, {86*1024}")
        a(f"buffer_load_dword v249, v{t0}, s[32:35], s42 offen")
        a(f"v_min_u32 v{t0}, 36, v1")
        a(f"v_mul_u32_u24 v{t0}, {ZR_B}, v{t0}")
        a(f"v_cmp_gt_u32 vcc, 32, v1")
        a(f"v_mov_b32 v248, {0x7C0000 - (Z_OFF + ZR_B - 128)}")
        a(f"s_mov_b32 s42, {Z_OFF + ZR_B - 128}")
        a(f"v_cndmask_b32 v{t0}, v248, v{t0}, vcc")
        a(f"buffer_load_dword v248, v{t0}, s[32:35], s42 offen")
        a(f"v_lshlrev_b32 v{t0}, 15, v1")
        a(f"buffer_load_dword v247, v{t0}, s[28:31], 0 offen")
    if opt.codepf:
        a("s_getpc_b64 s[40:41]")
        a.label("L_pcref")
        a(f"s_sub_u32 s40, s40, L_pcref-{NAME}_kernel")
        a("s_subb_u32 s41, s41, 0")
        a("s_lshl2_add_u32 s42, s55, s45")
        a("s_and_b32 s42, s42, 7")
        a("s_mul_i32 s42, s42, 6144")
        a(f"v_lshl_add_u32 v{t0}, v1, 7, s42")
        a(f"v_min_u32 v{t0}, L_exit-{NAME}_kernel, v{t0}")
        a("v_mov_b32 v37, s41")
        a(f"v_add_co_u32 v36, vcc, s40, v{t0}")
        a("s_nop 1")
        a("v_addc_co_u32 v37, vcc, 0, v37, vcc")
        a("global_load_dword v250, v[36:37], off")
    a("s_waitcnt vmcnt(0)")
    a("s_cmp_lg_u32 s55, 4")
    a("s_cbranch_scc1 L1_noinit2")
    a("s_mov_b64 exec, 1")
    a(f"buffer_atomic_add v{t2}, v{t1}, s[24:27], 0 offen sc1")
    a("s_mov_b64 exec, -1")
    a.label("L1_noinit2")
    a("s_barrier")
    a("s_cmp_lg_u32 s45, 0")
    a("s_cbranch_scc1 L2C")
    a.label("L1C_idle_go")
    a("s_sleep 32")
    a(f"buffer_load_dword v{t2}, v{t1}, s[24:27], 0 offen sc1")
    a("s_waitcnt vmcnt(0)")
    a(f"v_cmp_gt_u32 vcc, 32, v{t2}")
    a("s_cbranch_vccnz L1C_idle_go")
    a("s_branch L2C")


def decode_rest(a, opt, lab):
    a("s_and_b32 s54, s2, 7")
    if opt.mir:
        a("s_and_b32 s46, s44, 1")
        a("s_lshl1_add_u32 s54, s54, s46")
        a("s_add_u32 s54, s54, 1")
        a("s_sub_u32 s46, 32, s54")
        a("s_cmp_eq_u32 s46, 16")
        a("s_cselect_b32 s46, 0, s46")
        a("s_cmp_ge_u32 s44, 2")
        a("s_cselect_b32 s54, s46, s54")
    else:
        a("s_lshl_b32 s54, s54, 2")
        a("s_add_u32 s54, s54, s44")
    a("s_cmp_eq_u32 s44, 3")
    a(f"s_cbranch_scc1 {lab}_3")
    a("s_mul_i32 s22, s42, 3")
    a("s_min_u32 s22, s22, 8")
    a("s_add_u32 s22, s22, s44")
    a("s_and_b32 s46, s42, s44")
    a("s_lshr_b32 s46, s46, 1")
    a(f"s_cbranch_scc0 {lab}_d")
    a("s_and_b32 s22, s42, 1")
    a(f"s_branch {lab}_d")
    a.label(f"{lab}_3")
    a("s_cmp_lt_u32 s55, 2")
    a("s_cselect_b32 s22, 10, 2")
    a("s_lshr_b32 s46, s55, 1")
    a("s_add_u32 s46, s46, 2")
    a(f"s_min_u32 s46, s46, {K_IDLE}")
    a.label(f"{lab}_d")


def kernel(a, opt):
    a.label(NAME + "_kernel")
    if opt.stamps:
        a("v_mov_b32 v255, 0")
        a("v_mov_b32 v253, 0")
        a("s_mov_b32 s89, 0")
        stamp(a, opt)
    a("s_load_dwordx2 s[24:25], s[0:1], 0")
    a("s_load_dwordx16 s[4:19], s[0:1], 24")
    a("s_load_dwordx4 s[76:79], s[0:1], 88")
    a("v_lshrrev_b32 v2, 6, v0")
    a("v_and_b32 v1, 63, v0")
    a("v_readfirstlane_b32 s20, v2")
    a("s_cmp_ge_u32 s2, 256")
    a("s_cbranch_scc1 L_exit")
    a("s_bfe_u32 s55, s2, 0x30003")
    a("s_bfe_u32 s42, s2, 0x20001")
    a("s_lshr_b32 s44, s2, 6")
    a("s_and_b32 s43, s55, 1")
    a("s_lshl1_add_u32 s43, s42, s43")
    a("s_cmp_eq_u32 s44, 3")
    a("s_cselect_b32 s21, s43, s55")
    a(f"s_mul_i32 s40, s44, {opt.rmul}")
    a("s_mul_i32 s43, s55, 3")
    a("s_cselect_b32 s43, s43, s40")
    if opt.r3:
        a("s_addc_u32 s49, s43, s21")
    else:
        a("s_add_u32 s49, s40, s21")
    a(f"s_and_b32 s49, s49, {opt.rotmask}")
    a("s_and_b32 s43, s2, 1")
    a("s_lshl3_add_u32 s21, s43, s21")
    a("s_and_b32 s45, s20, 3")
    a("s_and_b32 s40, s45, 1")
    a("s_lshr_b32 s41, s45, 1")
    a("s_lshl1_add_u32 s23, s21, s40")
    a("s_lshl_b32 s43, s41, 5")
    a("s_add_u32 s23, s23, s43")
    a("s_lshl_b32 s48, s45, 12")
    a("s_bitset1_b32 s48, 15")
    a("s_cmp_ge_u32 s20, 4")
    a("s_cbranch_scc1 L1_compw")
    t0, t1, t2, VX, VD = L_T0, L_T1, L_T2, L_VX, L_VD
    a(f"v_lshrrev_b32 v{t0}, 3, v1")
    a("s_lshl_b32 s43, s23, 10")
    a(f"v_lshl_add_u32 v{t0}, v{t0}, 16, s43")
    a(f"v_lshrrev_b32 v{t1}, 4, v1")
    a(f"v_and_b32 v{t2}, 7, v1")
    a(f"v_xor_b32 v{t2}, v{t1}, v{t2}")
    a(f"v_lshl_add_u32 v{VX}, v{t2}, 4, v{t0}")
    a(f"v_xor_b32 v{VX+1}, {8*65536+64:#x}, v{VX}")
    a(f"v_xor_b32 v{VX+2}, {16*65536:#x}, v{VX}")
    a(f"v_xor_b32 v{VX+3}, {24*65536+64:#x}, v{VX}")
    a("s_mov_b32 s26, 0x200000")
    a("s_mov_b32 s27, 0x20000")
    a("s_lshl_b32 s47, s49, 7")
    a("s_mov_b32 m0, s48")
    a("s_cmp_ge_u32 s2, 224")
    if opt.epf:
        a("s_cbranch_scc1 L_epf")
        a("s_waitcnt lgkmcnt(0)")
    else:
        a("s_waitcnt lgkmcnt(0)")
        a("s_cbranch_scc1 L_nox")
    for i in range(4):
        a(f"buffer_load_dwordx4 v{VX+i}, s[24:27], s47 offen lds")
        if i < 3:
            a("s_add_u32 m0, m0, 1024")
            a("s_nop 0")
    a.label("L_nox")
    stamp(a, opt)
    decode_rest(a, opt, "L_dl")
    a("s_cmp_eq_u32 s46, 0")
    a("s_cselect_b32 s43, 15, 11")
    a(f"s_cmp_eq_u32 s46, {K_S4G}")
    a("s_cselect_b32 s43, 7, s43")
    a("s_cselect_b32 s80, 0, -1")
    a("s_bitcmp1_b32 s46, 0")
    a("s_cselect_b64 s[10:11], s[4:5], s[10:11]")
    a("s_cselect_b64 s[12:13], s[6:7], s[12:13]")
    a("s_movk_i32 s47, 2752")
    a("s_cselect_b32 s47, 1024, s47")
    a("s_movk_i32 s82, 256")
    a("s_cselect_b32 s82, 192, s82")
    a("s_cmp_eq_u32 s41, 1")
    a("s_cselect_b64 s[28:29], s[12:13], s[10:11]")
    a(f"v_lshl_add_u32 v{t0}, s40, 2, v{t1}")
    a("s_mul_i32 s82, s22, s82")
    a(f"v_mul_u32_u24 v{t0}, s47, v{t0}")
    a(f"v_and_b32 v{t2}, 15, v1")
    a(f"v_add_u32 v{t0}, s82, v{t0}")
    a(f"v_lshlrev_b32 v{t1}, 1, v{t1}")
    a(f"v_xor_b32 v{t1}, v{t1}, v{t2}")
    a(f"v_xor_b32 v{t2}, 8, v{t1}")
    a(f"v_min_u32 v{t1}, s43, v{t1}")
    a(f"v_min_u32 v{t2}, s43, v{t2}")
    a(f"v_lshl_add_u32 v{VD}, v{t1}, 4, v{t0}")
    a(f"v_lshl_add_u32 v{VD+1}, v{t2}, 4, v{t0}")
    a("s_lshl_b32 s41, s41, 14")
    a("s_lshl_b32 s40, s40, 10")
    a("s_add_u32 s41, s41, s40")
    a("s_lshl1_add_u32 s56, s44, s55")
    a("s_lshl_b32 s44, s47, 3")
    a("s_lshl_b32 s30, s47, 9")
    a("s_mov_b32 s31, 0x20000")
    a("s_mov_b32 s66, 0")
    a("s_mov_b32 s67, 0")
    a("s_mul_i32 s40, s49, s44")
    if opt.sdelay:
        a("s_bitcmp1_b32 s46, 0")
        a("s_cbranch_scc0 L_nosd")
        a("s_barrier")
        a.label("L_nosd")
    a(f"s_cmp_lg_u32 s46, {K_IDLE}")
    a("s_cbranch_scc1 L1L_w")
    if opt.epf:
        a("s_branch L_idl2")
        a.label("L_epf")
        a("s_getpc_b64 s[72:73]")
        a.label("L_pcref0")
        a(f"s_sub_u32 s72, s72, L_pcref0-{NAME}_kernel")
        a("s_subb_u32 s73, s73, 0")
        a("s_lshl2_add_u32 s43, s55, s45")
        a("s_and_b32 s43, s43, 7")
        a("s_mul_i32 s43, s43, 6144")
        a("v_lshl_add_u32 v36, v1, 7, s43")
        a(f"v_min_u32 v36, L_exit-{NAME}_kernel, v36")
        a("v_mov_b32 v37, s73")
        a("v_add_co_u32 v36, vcc, s72, v36")
        a("s_nop 1")
        a("v_addc_co_u32 v37, vcc, 0, v37, vcc")
        a("global_load_dword v250, v[36:37], off")
        a("s_waitcnt lgkmcnt(0)")
        a("s_branch L_nox")
        a.label("L_idl2")
    a("v_mov_b32 v14, 0")
    a("v_mov_b32 v15, 0")
    srd(a, 68, 76, 77, 256)
    p2_setup(a, opt)
    a("s_barrier")
    a("s_branch L2W")
    p1_loader(a, opt)
    p2_worker(a, opt)
    a.label("L1_compw")
    if opt.prio:
        a(f"s_setprio {opt.prio}")
    decode_rest(a, opt, "L_dc")
    compute_prologue(a, opt)
    p1_compute(a, opt, "ffn8")
    p2_combine(a, opt)
    a.label("L1C_specs")
    a("s_mov_b32 s65, 2")
    dft32_consts(a)
    if opt.sdelay:
        a("s_barrier")
    a(f"s_cmp_eq_u32 s46, {K_S4G}")
    a("s_cbranch_scc1 L1C_spec4g")
    p1_compute(a, opt, "spec6")
    p1_compute(a, opt, "spec4g")
    p1_compute(a, opt, "ffn6")
    idle_compute(a, opt)
    a.label("L_exit")
    a("s_endpgm")


def main():
    ap = argparse.ArgumentParser()
    ap.add_argument("-o", default=f"cdna_kernels/{NAME}.s")
    ap.add_argument("--stamps", action="store_true")
    ap.add_argument("--fine", action="store_true")
    ap.add_argument("--fine2", action="store_true")
    ap.add_argument("--q", type=int, default=8)
    ap.add_argument("--rotmask", type=int, default=7)
    ap.add_argument("--hr", type=int, default=7)
    ap.add_argument("--la", type=int, default=5)
    ap.add_argument("--psleep", type=int, default=4)
    ap.add_argument("--tail", type=int, default=0)
    ap.add_argument("--fpg", type=int, default=6)
    ap.add_argument("--codepf", type=int, default=1)
    ap.add_argument("--pad", type=int, default=-1)
    ap.add_argument("--padrole", default="C")
    ap.add_argument("--prio", type=int, default=0)
    ap.add_argument("--bpos", type=int, default=3)
    ap.add_argument("--nb", type=int, default=3)
    ap.add_argument("--cmid", type=int, default=1)
    ap.add_argument("--epf", type=int, default=0)
    ap.add_argument("--sdelay", type=int, default=0)
    ap.add_argument("--mord", type=int, default=2)
    ap.add_argument("--tm", type=int, default=0)
    ap.add_argument("--r3", type=int, default=1)
    ap.add_argument("--rmul", type=int, default=3)
    ap.add_argument("--codepf2", type=int, default=0)
    ap.add_argument("--tlb", type=int, default=0)
    ap.add_argument("--padx", type=int, default=-1)
    ap.add_argument("--zlate", type=int, default=1)
    ap.add_argument("--mir", type=int, default=1)
    ap.add_argument("--zbar", type=int, default=20)
    ap.add_argument("--lateb9", type=int, default=0)
    ap.add_argument("--zsleep", type=int, default=4)
    ap.add_argument("--noz", action="store_true")
    ap.add_argument("--ofl", default="")
    ap.add_argument("--ssleep", type=int, default=0)
    ap.add_argument("--split0", type=int, default=1)
    ap.add_argument("--fmask", default="3")
    ap.add_argument("--cmask", type=int, default=1)
    ap.add_argument("--half", type=int, default=0)
    ap.add_argument("--hp", type=int, default=6)
    ap.add_argument("--wpoll", type=int, default=0)
    ap.add_argument("--spr", type=int, default=6)
    ap.add_argument("--fine4", action="store_true")
    ap.add_argument("--nost", action="store_true")
    ap.add_argument("--idledelay", type=int, default=0)
    ap.add_argument("--xrot", type=int, default=1)
    ap.add_argument("--tcb", type=int, default=2)
    ap.add_argument("--wtouch", type=int, default=1)
    ap.add_argument("--pf", type=int, default=0)
    ap.add_argument("--pq", type=int, default=1)
    ap.add_argument("--idlego", type=int, default=0)
    ap.add_argument("--nc", type=int, default=6)
    ap.add_argument("--stag", type=int, default=1)
    ap.add_argument("--thrz", type=int, default=0)
    ap.add_argument("--pace", type=int, default=0)
    ap.add_argument("--thr", type=int, default=0)
    ap.add_argument("--thr2", type=int, default=4)
    ap.add_argument("--early", type=int, default=0)
    ap.add_argument("--nowait", action="store_true")
    ap.add_argument("--fine3", action="store_true")
    ap.add_argument("--nomfma", action="store_true")
    ap.add_argument("--noidle", action="store_true")
    ap.add_argument("--fsleep", type=int, default=0)
    ap.add_argument("--noreads", action="store_true")
    ap.add_argument("--npk", type=int, default=0)
    ap.add_argument("--lr", type=int, default=3)
    ap.add_argument("--hs", type=int, default=87)
    ap.add_argument("--zpad", type=int, default=128)
    ap.add_argument("--foff", type=lambda x: int(x, 0), default=0x7B0000)
    opt = ap.parse_args()
    global HS, H_SIZE, ZR_B, Z_SIZE, F_OFF, F_SIZE
    HS = opt.hs
    H_SIZE = 64 * HS * 1024
    assert H_SIZE <= Z_OFF
    ZR_B = 16 * EP * 16 + opt.zpad
    Z_SIZE = 32 * ZR_B
    F_OFF = opt.foff
    F_SIZE = 4096 << opt.lr
    global NPK
    NPK = opt.npk
    global FSLEEP
    FSLEEP = opt.fsleep
    hdr = open(f"cdna_kernels/{NAME}.s.ref").read().split("; Override launch")[0]
    out = hdr
    out += f"; @launch grid=(256,1,1) block=(512,1,1) lds={LDS_SIZE}\n"
    out += DOC
    out += '.amdgcn_target "amdgcn-amd-amdhsa--gfx950"\n.text\n'
    a = Asm()
    kernel(a, opt)
    nm = NAME + "_kernel"
    out += f".globl {nm}\n.p2align 8\n.type {nm},@function\n" + a.text()
    out += f""".section .rodata,"a"
.p2align 6
.amdhsa_kernel {nm}
  .amdhsa_next_free_vgpr 256
  .amdhsa_next_free_sgpr 102
  .amdhsa_accum_offset 256
  .amdhsa_group_segment_fixed_size 0
  .amdhsa_kernarg_size 104
  .amdhsa_user_sgpr_count 2
  .amdhsa_user_sgpr_kernarg_segment_ptr 1
  .amdhsa_system_sgpr_workgroup_id_x 1
.end_amdhsa_kernel
"""
    open(opt.o, "w").write(out)


if __name__ == "__main__":
    main()
```

```python
import struct, sys, argparse, re

NAME = "gated_mix__spectral_fnet__geglu_ffn__prompt"
H_OFF = 0
HS = 87
H_SIZE = 64 * HS * 1024
Z_OFF = 0x580000
EP = 264
ZR_B = 16 * EP * 16 + 128
Z_SIZE = 32 * ZR_B
G_OFF = 0x7A0000
G_SIZE = 2048 * 4
F_OFF = 0x7B0000
F_SIZE = 32768
T_OFF = 0xA00000
MF16 = "v_mfma_f32_16x16x32_bf16"
MF32 = "v_mfma_f32_32x32x16_bf16"


DOC = """; ---------------------------------------------------------------------------------------------
;    spectral groups: hidden DFT a,b = x Cd, x Sd for e = 0..256 (Hermitian half), then the 32-point
; ---------------------------------------------------------------------------------------------
"""


def f2u(f):
    return struct.unpack("<I", struct.pack("<f", f))[0]


class Asm:
    def __init__(self):
        self.l = []
        self.ds = []
        self.vm = []
        self.n = 0
        self.ub = 0

    def __call__(self, s):
        if s.startswith("ds_"):
            if self.ub >= 15:
                self("s_waitcnt lgkmcnt(10)")
            self.ub += 1
        m = re.search(r"lgkmcnt\((\d+)\)", s)
        if m:
            self.ub = min(self.ub, int(m.group(1)))
        self.l.append("    " + s)
        self.n += 1

    def label(self, s):
        self.l.append(s + ":")

    def dsop(self, s, tag):
        self(s)
        self.ds.append(tag)

    def dswait(self, tag):
        idx = max(i for i, t in enumerate(self.ds) if t == tag)
        n = len(self.ds) - 1 - idx
        assert n <= 15, n
        self(f"s_waitcnt lgkmcnt({n})")

    def vmop(self, s, tag):
        self(s)
        self.vm.append(tag)

    def vmwait(self, tag):
        idx = max(i for i, t in enumerate(self.vm) if t == tag)
        n = len(self.vm) - 1 - idx
        assert n <= 63, n
        self(f"s_waitcnt vmcnt({n})")

    def text(self):
        return "\n".join(self.l) + "\n"


def vr(b, n):
    return f"v[{b}:{b+n-1}]"


def srd(a, d, lo, hi, size, add=0):
    if add:
        a(f"s_add_u32 s{d}, s{lo}, {add:#x}")
        a(f"s_addc_u32 s{d+1}, s{hi}, 0")
    else:
        a(f"s_mov_b32 s{d}, s{lo}")
        a(f"s_mov_b32 s{d+1}, s{hi}")
    a(f"s_mov_b32 s{d+2}, {size:#x}")
    a(f"s_mov_b32 s{d+3}, 0x20000")


def stamp(a, opt):
    if not opt.stamps:
        return
    a("s_memrealtime s[90:91]")
    a("s_memtime s[86:87]")
    a("s_mov_b32 s88, m0")
    a("s_waitcnt lgkmcnt(0)")
    a("s_mov_b32 m0, s89")
    a("s_add_u32 s89, s89, 1")
    a("v_writelane_b32 v255, s90, m0")
    a("v_writelane_b32 v253, s86, m0")
    a("s_mov_b32 m0, s88")


def stamp_flush(a, opt, role):
    if not opt.stamps:
        return
    if opt.pad >= 0:
        if role == opt.padrole:
            a("s_cmp_lg_u32 s46, 0")
            a("s_cbranch_scc1 Lpad_end")
            if opt.padx >= 0:
                a("s_and_b32 s92, s2, 7")
                a(f"s_cmp_lg_u32 s92, {opt.padx}")
                a("s_cbranch_scc1 Lpad_end")
            a("s_nop 4")
            a(f"v_readlane_b32 s92, v255, {opt.pad}")
            a("s_nop 4")
            a("s_add_u32 s92, s92, 4000")
            a.label("Lpad")
            a("s_memrealtime s[90:91]")
            a("s_waitcnt lgkmcnt(0)")
            a("s_sub_u32 s93, s92, s90")
            a("s_cmp_gt_i32 s93, 0")
            a("s_cbranch_scc1 Lpad")
            a.label("Lpad_end")
        return
    a("s_waitcnt vmcnt(0)")
    stamp(a, opt)
    srd(a, 92, 78, 79, 0x200000, T_OFF)
    a("s_lshl_b32 s96, s2, 3")
    a("s_add_u32 s96, s96, s20")
    a("s_lshl_b32 s96, s96, 8")
    a("v_lshlrev_b32 v254, 2, v1")
    a("buffer_store_dword v255, v254, s[92:95], s96 offen")
    a("s_add_u32 s96, s96, 0x100000")
    a("buffer_store_dword v253, v254, s[92:95], s96 offen")


C1 = -2.0 * 0.7978845608028654 * 1.4426950408889634
C2 = C1 * 0.044715
NB = 3
SSZ = 49152
FLG = 78 * 2048
RH = FLG + 256
RZ = FLG + 64
GW_LDS = FLG + 512
LDS_SIZE = 163840
assert GW_LDS + 2048 <= LDS_SIZE
K_FFN, K_SPEC, K_6G, K_IDLE, K_S4G = 0, 1, 2, 4, 3

L_VD, L_VX, L_T0, L_T1, L_T2, L_VF, L_VA = 2, 10, 16, 17, 18, 20, 21


FSLEEP = 0


def free_wait(a, lab, val):
    if FSLEEP:
        a(f"s_branch {lab}_c")
    a.label(lab)
    if FSLEEP:
        a(f"s_sleep {FSLEEP}")
        a.label(lab + "_c")
    a(f"ds_read_b32 v{L_T0}, v{L_VA}")
    a("s_waitcnt lgkmcnt(0)")
    a(f"v_cmp_ge_u32 vcc, {val}, v{L_T0}")
    a(f"s_cbranch_vccnz {lab}")


def p2_ids(a, opt):
    a("s_lshr_b32 s52, s2, 6")
    a("s_mov_b32 s51, s55")
    if opt.sw3:
        a("s_add_u32 s53, s52, 4")
        a("s_cmp_eq_u32 s55, 3")
        a("s_cselect_b32 s51, s53, s51")
        a("s_cselect_b32 s52, 3, s52")
        a("s_and_b32 s53, s55, 3")
        a("s_cmp_ge_u32 s2, 224")
        a("s_cselect_b32 s51, 3, s51")
        a("s_cselect_b32 s52, s53, s52")
    a("s_lshl1_add_u32 s56, s52, s51")
    a("s_and_b32 s54, s2, 7")
    a("s_and_b32 s53, s52, 1")
    a("s_lshl1_add_u32 s54, s54, s53")
    a("s_add_u32 s54, s54, 1")
    a("s_sub_u32 s53, 32, s54")
    a("s_cmp_eq_u32 s53, 16")
    a("s_cselect_b32 s53, 0, s53")
    a("s_cmp_ge_u32 s52, 2")
    a("s_cselect_b32 s54, s53, s54")


def p2_setup(a, opt):
    t0, t1, t2 = L_T0, L_T1, L_T2
    VW0, VW1 = 28, 29
    VH0, VH1 = 4, 5
    VRH = 7
    VRB = 22
    p2_ids(a, opt)
    a(f"s_cmp_eq_u32 s46, {K_IDLE}")
    a("s_cselect_b32 s83, 1, 0")
    if opt.xrot:
        a("s_add_u32 s56, s56, s2")
    a("s_and_b32 s56, s56, 7")
    a("s_mul_i32 s56, s56, 5")
    a("s_lshr_b32 s56, s56, 2")
    a(f"v_bfe_u32 v{t0}, v1, 4, 1")
    a(f"v_lshlrev_b32 v{t0}, 2, v{t0}")
    a(f"v_and_b32 v{t1}, 7, v1")
    a(f"v_xor_b32 v{t0}, v{t0}, v{t1}")
    a(f"v_lshrrev_b32 v{t1}, 3, v1")
    a(f"v_lshlrev_b32 v{t1}, 10, v{t1}")
    a(f"v_lshl_add_u32 v{VW0}, v{t0}, 4, v{t1}")
    a("s_lshl_b32 s42, s51, 7")
    a("s_lshl_b32 s43, s45, 14")
    a("s_add_u32 s42, s42, s43")
    a(f"v_add_u32 v{VW0}, s42, v{VW0}")
    a(f"v_add_u32 v{VW1}, 0x2000, v{VW0}")
    a("s_lshl_b32 s59, s45, 11")
    a("s_cmp_lt_u32 s45, 2")
    a("s_cselect_b32 s57, 11, 10")
    a(f"v_lshrrev_b32 v{t2}, 5, v1")
    a(f"v_bfe_u32 v{t0}, v1, 2, 2")
    a(f"v_lshl_add_u32 v{t0}, v{t2}, 3, v{t0}")
    a(f"v_lshlrev_b32 v{t0}, 7, v{t0}")
    a(f"v_bfe_u32 v{t1}, v1, 1, 1")
    a(f"v_lshl_add_u32 v{t0}, v{t1}, 3, v{t0}")
    a(f"v_and_b32 v{t1}, 1, v1")
    a(f"v_lshl_add_u32 v{t0}, v{t1}, 5, v{t0}")
    a(f"v_bfe_u32 v{t1}, v1, 4, 1")
    a(f"v_lshl_add_u32 v{t0}, v{t1}, 4, v{t0}")
    a(f"v_bfe_u32 v{t1}, v1, 3, 1")
    a(f"v_lshl_add_u32 v{t0}, v{t1}, 6, v{t0}")
    a(f"v_add_u32 v{VRB}, s59, v{t0}")
    a(f"v_xor_b32 v{VRB+1}, 64, v{VRB}")
    for k in (1, 2):
        a(f"v_add_u32 v{VRB+2*k}, {k*65536}, v{VRB}")
        a(f"v_add_u32 v{VRB+2*k+1}, {k*65536}, v{VRB+1}")
    a(f"v_lshlrev_b32 v{t0}, 4, v1")
    a(f"s_mul_i32 s42, s54, {HS*1024}")
    a("s_lshl_b32 s43, s45, 10")
    a("s_add_u32 s42, s42, s43")
    a(f"v_add_u32 v{VH0}, s42, v{t0}")
    a(f"v_add_u32 v{VH1}, {32*HS*1024}, v{VH0}")
    srd(a, 32, 78, 79, H_SIZE, H_OFF)
    a("v_cmp_gt_u32 vcc, 11, v1")
    a(f"v_subrev_u32 v{t0}, 11, v1")
    a(f"v_mov_b32 v{t1}, s57")
    a(f"v_cndmask_b32 v{t0}, v{t0}, v1, vcc")
    a(f"v_cndmask_b32 v{t1}, v{t1}, 11, vcc")
    a(f"v_cndmask_b32 v6, 2, {1 if opt.half else 2}, vcc")
    a(f"v_add_u32 v{t0}, s56, v{t0}")
    a(f"v_sub_u32 v{t1}, v{t0}, v{t1}")
    a(f"v_min_u32 v{t0}, v{t0}, v{t1}")
    a(f"v_min_u32 v{t0}, 10, v{t0}")
    a(f"v_lshlrev_b32 v{t0}, 2, v{t0}")
    a(f"v_add_u32 v{VRH}, {RH}, v{t0}")
    srd(a, 36, 78, 79, F_SIZE, F_OFF)
    a(f"s_lshl_b32 s62, s54, {opt.lr}")
    a(f"s_and_b32 s43, s51, {opt.cmask}")
    a("s_add_u32 s62, s62, s43")
    a("s_lshl_b32 s62, s62, 7")
    a("v_lshlrev_b32 v8, 4, v1")
    a("s_or_b32 s61, s45, s83")
    a("s_mov_b32 s60, 0")


def p1_loader(a, opt):
    VD, VX, t0 = L_VD, L_VX, L_T0
    Q = opt.q
    a.label("L1L_loop")
    a("s_lshl_b32 s47, s49, 7")
    a("s_add_u32 m0, s48, s67")
    a("s_mul_i32 s40, s49, s44")
    n = 0

    def after():
        nonlocal n
        n += 1
        if n == Q:
            a("s_cmp_eq_u32 s66, 0")
            a("s_cbranch_scc1 L1L_nobar")
            a(f"s_waitcnt vmcnt({Q})")
            if opt.fine:
                stamp(a, opt)
            a("s_barrier")
            a.label("L1L_nobar")

    for i in range(4):
        a(f"buffer_load_dwordx4 v{VX+i}, s[24:27], s47 offen {opt.xfl} lds")
        if i < 3:
            a("s_add_u32 m0, m0, 1024")
            a("s_nop 0")
        else:
            a.label("L1L_w")
            a("s_add_u32 m0, s41, s67")
            a("s_lshl_b32 s40, s40, 3")
        if opt.split0 and i == opt.split0 - 1:
            a("s_cmp_lg_u32 s66, 1")
            a("s_cbranch_scc1 L1L_nosp")
            a(f"s_waitcnt vmcnt({4 + opt.split0})")
            a("s_barrier")
            a.label("L1L_nosp")
        after()
    for u in range(8):
        a(f"buffer_load_dwordx4 v{VD+(u&1)}, s[28:31], s40 offen lds")
        if u < 7:
            a("s_add_u32 m0, m0, 2048")
            a("s_add_u32 s40, s40, s44")
        after()
    a("s_cmp_lg_u32 s66, 0")
    a("s_cbranch_scc1 L1L_next")
    a("v_mov_b32 v14, 0")
    a("v_mov_b32 v15, 0")
    srd(a, 68, 76, 77, 256)
    a("s_cmp_eq_u32 s45, 0")
    a(f"s_cselect_b32 s81, {opt.goit}, -1")
    a("s_cmp_eq_u32 s66, s80")
    a("s_cbranch_scc0 L1L_next")
    srd(a, 36, 16, 17, 1024)
    a(f"s_mov_b32 m0, {GW_LDS}")
    a(f"v_lshlrev_b32 v{t0}, 4, v1")
    a(f"buffer_load_dwordx4 v{t0}, s[36:39], 0 offen lds")
    srd(a, 36, 4, 5, 1024, 256 * 1024)
    a(f"s_mov_b32 m0, {GW_LDS+1024}")
    a("s_nop 0")
    a(f"buffer_load_dwordx4 v{t0}, s[36:39], 0 offen lds")
    a.label("L1L_next")
    a("s_cmp_eq_u32 s66, s81")
    a("s_cbranch_scc0 L1L_next2")
    a("buffer_load_dword v14, v15, s[68:71], 0 offen")
    a.label("L1L_next2")
    a("s_cmp_lg_u32 s66, 0")
    a("s_cbranch_scc1 L1L_next3")
    p2_setup(a, opt)
    a.label("L1L_next3")
    if opt.pairord:
        a("s_xor_b32 s49, s49, s50")
    a("s_add_u32 s49, s49, 1")
    a("s_and_b32 s49, s49, 7")
    if opt.pairord:
        a("s_xor_b32 s49, s49, s50")
    a(f"s_add_u32 s67, s67, {SSZ}")
    a(f"s_cmp_eq_u32 s67, {3*SSZ}")
    a("s_cselect_b32 s67, 0, s67")
    a("s_add_u32 s66, s66, 1")
    a("s_cmp_lt_u32 s66, 8")
    a("s_cbranch_scc1 L1L_loop")


NI_ = 22


def p2_worker(a, opt):
    HR = opt.hr
    LA = opt.la
    t0, t1, t2 = L_T0, L_T1, L_T2
    VW0, VW1 = 28, 29
    VH0, VH1 = 4, 5
    VRH = 7
    VRB = 22
    WF, ACB, HF = 32, 64, 128
    WR = 4
    assert HF + 8 * HR <= 252 and LA < HR
    a.vm, a.ds = [], []
    a.label("L2W")
    srd(a, 28, 14, 15, 1376 * 1024)
    rows = [18, 18] + list(range(12, 18)) + [18, 0, 1, 19] + list(range(2, 12))
    OPT = 11
    clsC = [i for i in range(NI_) if rows[i] < 6]
    clsD = [i for i in range(NI_) if 6 <= rows[i] < 12]
    NI = 22
    assert len(rows) == NI

    def prod(i, dst, sh):
        if i < 11:
            a(f"s_add_u32 s{dst}, s56, {i}")
            a(f"s_sub_u32 s43, s{dst}, 11")
        else:
            a(f"s_add_u32 s{dst}, s56, {i-11}")
            a(f"s_sub_u32 s43, s{dst}, s57")
        a(f"s_cselect_b32 s{dst}, s{dst}, s43")
        a(f"s_lshl_b32 s{dst}, s{dst}, {sh+1}")
        if i >= 11:
            a(f"s_add_u32 s{dst}, s{dst}, {1 << sh}")

    def wload(i):
        a(f"s_add_u32 m0, s59, {rows[i]*8192}")
        prod(i, 40, 16)
        a.vmop(f"buffer_load_dwordx4 v{VW0}, s[28:31], s40 offen lds", ("w", i))
        a("s_add_u32 m0, m0, 1024")
        a("s_nop 0")
        a.vmop(f"buffer_load_dwordx4 v{VW1}, s[28:31], s40 offen lds", ("w", i))

    def wreads(i):
        f = WF + 8 * (i % WR)
        b = VRB + 2 * (rows[i] // 8)
        o = (rows[i] % 8) * 8192
        for ln in range(2):
            a.dsop(f"ds_read_b64_tr_b16 {vr(f+4*ln,2)}, v{b+ln} offset:{o}", ("r", i))
            a.dsop(f"ds_read_b64_tr_b16 {vr(f+4*ln+2,2)}, v{b+ln} offset:{o+512}", ("r", i))

    if opt.rowtouch:
        a("s_cmp_eq_u32 s83, 0")
        a("s_cbranch_scc1 L2W_nort")
        a("s_lshl2_add_u32 s42, s55, s45")
        a("s_and_b32 s42, s42, 15")
        a("s_and_b32 s43, s2, 7")
        a("s_mul_i32 s43, s43, 22")
        a("s_add_u32 s42, s42, s43")
        a(f"v_lshlrev_b32 v{t0}, 7, v1")
        if opt.sw3:
            a("s_mov_b32 exec_lo, 0xf7f7f7f7")
            a("s_mov_b32 exec_hi, 0xf7f7f7f7")
        for k in range(11):
            a("s_sub_u32 s43, s42, 176")
            a("s_cselect_b32 s42, s42, s43")
            a("s_lshl_b32 s43, s42, 13")
            a(f"buffer_load_dword v250, v{t0}, s[28:31], s43 offen")
            a("s_add_u32 s42, s42, 16")
        a("s_mov_b64 exec, -1")
        a.label("L2W_nort")
    wload(0)
    for i in range(2, 2 + opt.nb):
        wload(i)
    a(f"s_waitcnt vmcnt({len(a.vm)})")
    a("s_or_b32 s42, s45, s83")
    a("s_cbranch_scc1 L2W_gook")
    a("v_cmp_le_u32 vcc, 32, v14")
    a("s_cbranch_vccnz L2W_gook")
    a.label("L2W_go")
    a("s_sleep 4")
    a("buffer_load_dword v14, v15, s[68:71], 0 offen sc1")
    a("s_waitcnt vmcnt(0)")
    a("v_cmp_gt_u32 vcc, 32, v14")
    a("s_cbranch_vccnz L2W_go")
    a.label("L2W_gook")
    stamp(a, opt)
    a("s_cmp_lg_u32 s83, 0")
    a("s_cbranch_scc1 L2W_nob6")
    a("s_barrier")
    a.label("L2W_nob6")
    a.vmwait(("w", 0))
    wreads(0)
    a("s_waitcnt lgkmcnt(0)")
    wload(1)
    for i in range(2 + opt.nb, 8):
        wload(i)
    if opt.tail == 2:
        a("s_and_b32 s42, s46, 5")
        a("s_cbranch_scc1 L2W_t2")
        a("s_barrier")
        a.label("L2W_t2")
    a("s_bitcmp1_b32 s46, 0")
    a("s_cbranch_scc0 L2W_c")
    a("s_barrier")
    if not opt.cmid:
        a("s_barrier")
        a("s_barrier")
    a.label("L2W_c")
    for i in clsC[:opt.nc]:
        wload(i)
    if opt.cmid:
        a("s_cmp_lg_u32 s83, 0")
        a("s_cbranch_scc1 L2W_nob7")
        a("s_barrier")
        a("s_bitcmp1_b32 s46, 0")
        a("s_cbranch_scc0 L2W_nob7")
        a("s_barrier")
    else:
        a("s_and_b32 s42, s46, 5")
        a("s_cbranch_scc1 L2W_nob7")
        a("s_barrier")
    a.label("L2W_nob7")
    a.vmwait(("w", 1))
    wreads(1)
    a("s_waitcnt lgkmcnt(0)")
    for i in [8] + clsC[opt.nc:] + clsD:
        wload(i)
        if opt.thr2:
            a("s_and_b32 s42, s46, 5")
            a(f"s_cbranch_scc1 L2W_nt{i}")
            a(f"s_waitcnt vmcnt({opt.thr2})")
            a.label(f"L2W_nt{i}")
    a("s_cmp_ge_u32 s45, 2")
    a("s_cbranch_scc1 L2W_no19")
    wload(OPT)
    a.label("L2W_no19")
    a(f"s_cmp_lg_u32 s46, {K_IDLE}")
    a("s_cbranch_scc1 L2W_nopf")
    a("s_sub_u32 s42, s55, 4")
    a("s_lshl_b32 s42, s42, 2")
    a("s_add_u32 s42, s42, s45")
    if opt.xrot:
        a("s_lshl_b32 s43, s2, 1")
        a("s_add_u32 s42, s42, s43")
        a("s_and_b32 s42, s42, 15")
    a(f"s_mul_i32 s42, s42, {96*1024}")
    a(f"v_lshrrev_b32 v{t0}, 1, v1")
    a(f"v_lshlrev_b32 v{t0}, 10, v{t0}")
    a(f"v_and_b32 v{t1}, 1, v1")
    a(f"v_lshl_add_u32 v{t0}, v{t1}, 7, v{t0}")
    for k in range(0 if opt.rowtouch else 3):
        for c in range(opt.tcb):
            a(f"buffer_load_dword v250, v{t0}, s[28:31], s42 offen offset:{256*c + (512 if opt.cbx & 4 else 0)}")
        a("s_add_u32 s42, s42, 0x8000")
    for rep in range(opt.rt3):
        a("s_waitcnt vmcnt(0)")
        a(f"s_sub_u32 s43, s42, {3*0x8000}")
        a(f"v_lshlrev_b32 v{t0}, 10, v1")
        a(f"buffer_load_dword v250, v{t0}, s[28:31], s43 offen offset:384 sc1")
        a("s_add_u32 s43, s43, 0x8000")
        a(f"buffer_load_dword v250, v{t0}, s[28:31], s43 offen offset:384 sc1")
    if opt.codepf2:
        a("s_waitcnt vmcnt(0)")
        a("s_getpc_b64 s[72:73]")
        a.label("L_pcref2")
        a(f"s_sub_u32 s72, s72, L_pcref2-{NAME}_kernel")
        a("s_subb_u32 s73, s73, 0")
        a(f"s_mov_b32 s74, L_exit-{NAME}_kernel")
        a("s_mov_b32 s75, 0x20000")
        a("s_lshl2_add_u32 s42, s55, s45")
        a("s_and_b32 s42, s42, 7")
        a("s_mul_i32 s42, s42, 6400")
        a(f"v_lshlrev_b32 v{t0}, 7, v1")
        a(f"buffer_load_dword v250, v{t0}, s[72:75], s42 offen sc1")
    if opt.stamps:
        a("s_waitcnt vmcnt(0)")
    a.label("L2W_nopf")
    stamp(a, opt)
    a.vm = []

    spins = []

    def issue1(i):
        h = HF + 8 * (i % HR)
        a(f"s_bitcmp1_b32 s60, {i}")
        a(f"s_cbranch_scc0 L2W_i{i}_spin")
        a.label(f"L2W_i{i}_ok")
        spins.append(i)
        prod(i, 40, 12)
        a.vmop(f"buffer_load_dwordx4 {vr(h,4)}, v{VH0}, s[32:35], s40 offen sc1", ("h", i))

    def issue2(i):
        h = HF + 8 * (i % HR)
        a.vmop(f"buffer_load_dwordx4 {vr(h+4,4)}, v{VH1}, s[32:35], s40 offen sc1", ("h", i))

    if opt.alw:
        a("s_branch L2W_al")
        a.l.append(".p2align 12")
        a.label("L2W_al")
    a("s_waitcnt vmcnt(0)")
    a(f"s_mov_b32 m0, {RH}")
    wreads(2)
    for i in range(LA):
        issue1(i)
        issue2(i)
        if i == 0:
            stamp(a, opt)
    TM = opt.tm
    for i in range(NI - TM):
        a.vmwait(("h", i))
        if i == 0:
            stamp(a, opt)
        if i >= 2:
            a.dswait(("r", i))
        f = WF + 8 * (i % WR)
        h = HF + 8 * (i % HR)
        for L in range(4):
            lt, ln = L & 1, L >> 1
            acc = vr(ACB + 16 * L, 16)
            if i == OPT:
                a("s_cmp_ge_u32 s45, 2")
                a(f"s_cbranch_scc1 L2W_skip{L}")
            a(f"{MF32} {acc}, {vr(f+4*ln,4)}, {vr(h+4*lt,4)}, {'0' if i == 0 else acc}")
            if i == OPT:
                a.label(f"L2W_skip{L}")
            if L == 0 and i + 3 < NI:
                wreads(i + 3)
            if L == 1 and i + LA < NI:
                issue1(i + LA)
            if L == 2 and i + LA < NI:
                issue2(i + LA)
                if i + LA == opt.zbar:
                    a("s_barrier")
        if opt.fine2 and i % 4 == 3:
            stamp(a, opt)
    assert TM <= 4 and TM <= LA
    if TM == 4:
        wreads(NI - 1)
    a(f"v_lshlrev_b32 v{t0}, 4, v1")
    a(f"v_add_u32 v{t0}, s59, v{t0}")

    def pw(L):
        for q in range(4):
            p = 4 * L + q
            a(f"ds_write_b128 v{t0}, {vr(ACB+16*L+4*q,4)} offset:{(p>>1)*8192 + (p&1)*1024}")

    for L in range(4):
        lt, ln = L & 1, L >> 1
        acc = vr(ACB + 16 * L, 16)
        for k, i in enumerate(range(NI - TM, NI)):
            if L == 0:
                a.vmwait(("h", i))
                a.dswait(("r", i))
            f = WF + 8 * (i % WR)
            h = HF + 8 * (i % HR)
            a(f"{MF32} {acc}, {vr(f+4*ln,4)}, {vr(h+4*lt,4)}, {acc}")
            if L > 0 and k == 1:
                a("s_nop 9")
                pw(L - 1)
    stamp(a, opt)
    a("s_nop 7")
    a("s_nop 3")
    if TM >= 2:
        pw(3)
    else:
        for L in range(4):
            pw(L)
    a("s_waitcnt lgkmcnt(0)")
    a("s_barrier")
    stamp_flush(a, opt, "L")
    a("s_endpgm")
    for i in spins:
        a.label(f"L2W_i{i}_spin")
        a(f"ds_read2_b32 {vr(t0,2)}, v{VRH} offset0:0 offset1:16")
        a("s_waitcnt lgkmcnt(0)")
        a(f"v_min_u32 v{t0}, v{t0}, v{t1}")
        a(f"v_cmp_ge_u32 vcc, v{t0}, v6")
        a("s_mov_b32 s60, vcc_lo")
        a(f"s_bitcmp1_b32 s60, {i}")
        a(f"s_cbranch_scc1 L2W_i{i}_ok")
        if opt.wpoll and i < LA:
            a("s_cmp_lg_u32 s61, 0")
            a(f"s_cbranch_scc1 L2W_i{i}_spin")
            a("s_mov_b64 exec, 0xff")
            a("buffer_load_dwordx4 v8, s[36:39], s62 offen sc1 lds")
            a("s_mov_b64 exec, -1")
            a("s_waitcnt vmcnt(0)")
        if opt.ssleep:
            a(f"s_sleep {opt.ssleep}")
        a(f"s_branch L2W_i{i}_spin")


C_VA, C_VX, C_VB, C_VST, C_VGW, C_VFD = 2, 6, 10, 14, 15, 19
C_T0, C_T1, C_T2 = 20, 21, 22
C_K1, C_K2 = 24, 26
C_WF, C_XF, C_ACC, C_TT, C_TT2, C_CF, C_SF = 28, 52, 116, 88, 100, 212, 220


def dft32_consts(a):
    t0, t1, t2 = C_T0, C_T1, C_T2
    tc, ts = 96, 112
    a(f"v_and_b32 v{t0}, 15, v1")
    a(f"v_cvt_f32_u32 v{t0}, v{t0}")
    a(f"v_mul_f32 v{t0}, {f2u(1.0/32):#x}, v{t0}")
    a(f"v_lshrrev_b32 v{t1}, 4, v1")
    a(f"v_cvt_f32_u32 v{t1}, v{t1}")
    a(f"v_mul_f32 v{t1}, 4.0, v{t1}")
    for rho in range(2):
        if rho:
            a(f"v_add_f32 v{t0}, 0.5, v{t0}")
        a(f"v_mul_f32 v{t2}, v{t0}, v{t1}")
        for sg in range(8):
            s1c = 16 * (sg >> 2) + (sg & 3)
            a(f"v_fmamk_f32 v{tc+8*rho+sg}, v{t0}, {f2u(float(s1c)):#x}, v{t2}")
    for i in range(16):
        a(f"v_fract_f32 v{tc+i}, v{tc+i}")
    for i in range(16):
        a(f"v_sin_f32 v{ts+i}, v{tc+i}")
    for i in range(16):
        a(f"v_cos_f32 v{tc+i}, v{tc+i}")
    a("s_nop 0")
    for i in range(8):
        a(f"v_cvt_pk_bf16_f32 v{C_CF+i}, v{tc+2*i}, v{tc+2*i+1}")
        a(f"v_cvt_pk_bf16_f32 v{C_SF+i}, v{ts+2*i}, v{ts+2*i+1}")


NPK = 0


def ffn_epi(p):
    A, TT = C_ACC + 16 * p, 244
    r = []
    if p < NPK:
        r += [f"v_mul_f32 v{TT+v}, v{A+v}, v{A+v}" for v in range(8)]
        r += [f"v_fma_f32 v{TT+v}, v{TT+v}, v{C_K2}, v{C_K1}" for v in range(8)]
        r += [f"v_mul_f32 v{TT+v}, v{TT+v}, v{A+v}" for v in range(8)]
        r += [f"v_exp_f32 v{TT+v}, v{TT+v}" for v in range(8)]
        r += [f"v_mul_f32 v{A+8+v}, v{A+v}, v{A+8+v}" for v in range(8)]
        r += [f"v_add_f32 v{TT+v}, 1.0, v{TT+v}" for v in range(8)]
        r += [f"v_rcp_f32 v{TT+v}, v{TT+v}" for v in range(8)]
        r += [f"v_mul_f32 v{A+8+v}, v{A+8+v}, v{TT+v}" for v in range(8)]
        for i in (0, 2, 1, 3):
            r.append(f"v_cvt_pk_bf16_f32 v{A+i}, v{A+8+2*i}, v{A+8+2*i+1}")
        r.append(f"v_permlane16_swap_b32 v{A}, v{A+2}")
        r.append("s_nop 0")
        r.append(f"v_permlane16_swap_b32 v{A+1}, v{A+3}")
        so = "s43" if p & 1 else "s42"
        r.append(f"buffer_store_dwordx4 {vr(A,4)}, v{C_VST}, s[32:35], {so} offen offset:{(p>>1)*1024} sc1")
        return r
    for v in range(0, 8, 2):
        r.append(f"v_pk_mul_f32 {vr(TT+v,2)}, {vr(A+v,2)}, {vr(A+v,2)}")
    for v in range(0, 8, 2):
        r.append(f"v_pk_fma_f32 {vr(TT+v,2)}, {vr(TT+v,2)}, {vr(C_K2,2)}, {vr(C_K1,2)}")
    for v in range(0, 8, 2):
        r.append(f"v_pk_mul_f32 {vr(TT+v,2)}, {vr(TT+v,2)}, {vr(A+v,2)}")
    for v in range(8):
        r.append(f"v_exp_f32 v{TT+v}, v{TT+v}")
    for v in range(0, 8, 2):
        r.append(f"v_pk_mul_f32 {vr(A+8+v,2)}, {vr(A+v,2)}, {vr(A+8+v,2)}")
    for v in range(0, 8, 2):
        r.append(f"v_pk_add_f32 {vr(TT+v,2)}, {vr(TT+v,2)}, 1.0 op_sel_hi:[1,0]")
    for v in range(8):
        r.append(f"v_rcp_f32 v{TT+v}, v{TT+v}")
    for v in range(0, 8, 2):
        r.append(f"v_pk_mul_f32 {vr(A+8+v,2)}, {vr(A+8+v,2)}, {vr(TT+v,2)}")
    for i in (0, 2, 1, 3):
        r.append(f"v_cvt_pk_bf16_f32 v{A+i}, v{A+8+2*i}, v{A+8+2*i+1}")
    r.append(f"v_permlane16_swap_b32 v{A}, v{A+2}")
    r.append("s_nop 0")
    r.append(f"v_permlane16_swap_b32 v{A+1}, v{A+3}")
    so = "s43" if p & 1 else "s42"
    r.append(f"buffer_store_dwordx4 {vr(A,4)}, v{C_VST}, s[32:35], {so} offen offset:{(p>>1)*1024} sc1")
    return r


def spec_epi(p):
    A, TT = C_ACC + 16 * p, (C_TT if p & 1 else C_TT2)
    r = []
    for i in range(8):
        r.append(f"v_cvt_pk_bf16_f32 v{TT+i}, v{A+2*i}, v{A+2*i+1}")
    for i in range(4):
        r.append(f"v_cvt_pk_bf16_f32 v{TT+8+i}, -v{A+8+2*i}, -v{A+8+2*i+1}")
    pa, pb, pn = vr(TT, 4), vr(TT + 4, 4), vr(TT + 8, 4)
    for rho in range(2):
        zr = vr(A + 4 * rho, 4)
        r.append(f"{MF16} {zr}, {vr(C_CF+4*rho,4)}, {pa}, 0")
        r.append(f"{MF16} {zr}, {vr(C_SF+4*rho,4)}, {pb}, {zr}")
    for rho in range(2):
        zm = vr(A + 8 + 4 * rho, 4)
        r.append(f"{MF16} {zm}, {vr(C_SF+4*rho,4)}, {pa}, 0")
        r.append(f"{MF16} {zm}, {vr(C_CF+4*rho,4)}, {pn}, {zm}")
    return r


def spec_pack(p):
    A = C_ACC + 16 * p
    r = [f"v_cvt_pk_bf16_f32 v{A+rg}, v{A+rg}, v{A+8+rg}" for rg in range(8)]
    r += [f"ds_write_b128 v{2+(p&1)}, {vr(A+4*rho,4)} offset:{(2*(p>>1)+rho)*4096}" for rho in range(2)]
    return r


def p1_compute(a, opt, kind):
    T = {"ffn6": 6, "spec6": 6, "spec4g": 4, "ffn8": 8}[kind]
    hasg = kind == "spec4g"
    lab_kind = kind
    kind = "spec" if kind.startswith("spec") else kind
    a.ds = []
    VA, VX, VST, VGW, VFD = C_VA, C_VX, C_VST, C_VGW, C_VFD
    P = T // 2
    t0, t1, t2 = C_T0, C_T1, C_T2
    WF, XF, ACC = C_WF, C_XF, C_ACC
    GACC = ACC + 64
    a.label(f"L1C_{lab_kind}")
    a(f"s_mul_i32 s41, s41, {P}")
    for pl in range(P):
        a(f"s_add_u32 s42, s41, {pl}")
        a("s_lshl_b32 s42, s42, 5")
        a(f"v_xor_b32 v{VA+pl}, s42, v{C_VB}")
    if kind == "spec":
        a(f"v_lshrrev_b32 v{t1}, 4, v1")
        a(f"v_mul_u32_u24 v{t1}, {4*ZR_B}, v{t1}")
        a(f"v_and_b32 v{t0}, 15, v1")
        a(f"v_lshl_add_u32 v{VST}, v{t0}, 4, v{t1}")
        if hasg:
            a(f"v_lshrrev_b32 v{t0}, 4, v1")
            a(f"v_lshlrev_b32 v{t0}, 4, v{t0}")
            a(f"v_and_b32 v{t1}, 1, v1")
            a(f"v_lshl_add_u32 v{t0}, v{t1}, 10, v{t0}")
            a(f"v_add_u32 v{t2}, {GW_LDS}, v{t0}")
        srd(a, 32, 78, 79, Z_SIZE, Z_OFF)
        a("s_mul_i32 s42, s22, 96")
        a(f"s_mul_i32 s43, s21, {EP}")
        a("s_add_u32 s42, s42, s43")
        a("s_lshr_b32 s43, s45, 1")
        a("s_lshl_b32 s43, s43, 4")
        a("s_add_u32 s42, s42, s43")
        a("s_lshl_b32 s42, s42, 4")
        a("s_and_b32 s43, s45, 1")
        a(f"s_mul_i32 s43, s43, {16*ZR_B}")
        a("s_add_u32 s42, s42, s43")
    else:
        for i in range(2):
            a(f"v_mov_b32 v{C_K1+i}, {f2u(C1):#x}")
            a(f"v_mov_b32 v{C_K2+i}, {f2u(C2):#x}")
        a(f"v_lshlrev_b32 v{VST}, 4, v1")
        srd(a, 32, 78, 79, H_SIZE, H_OFF)
        a("s_lshl3_add_u32 s44, s22, s41")
        a(f"s_mul_i32 s42, s23, {HS}")
        a("s_add_u32 s42, s42, s44")
        a("s_lshl_b32 s42, s42, 10")
        a("s_xor_b32 s43, s23, 32")
        a(f"s_mul_i32 s43, s43, {HS}")
        a("s_add_u32 s43, s43, s44")
        a("s_lshl_b32 s43, s43, 10")
    stamp(a, opt)

    tail = 0 if kind == "spec" else opt.tail
    units = []
    for s in range(8):
        us = []
        if tail == 2 and s == 7:
            continue
        if tail == 2 and s == 6:
            for p in range(P):
                for s_ in (6, 7):
                    us += [dict(s=s_, p=p, frags=[(0, 0), (0, 1)]), dict(s=s_, p=p, frags=[(1, 0), (1, 1)], upd=True)]
            us[2]["open"] = True
            us[2]["bar"] = True
            us[0]["open"] = True
            us[0]["bar"] = True
            units += us
            continue
        if s == 0 and opt.split0:
            us += [dict(s=s, p=p, frags=[(0, 0), (1, 0)]) for p in range(P)]
            us += [dict(s=s, p=p, frags=[(0, 1), (1, 1)], upd=True, bar=(p == 0)) for p in range(P)]
            if hasg:
                us.append(dict(s=s, p=None))
        else:
            if hasg:
                us.append(dict(s=s, p=None))
            for p in range(P):
                us += [dict(s=s, p=p, frags=[(0, 0), (0, 1)]), dict(s=s, p=p, frags=[(1, 0), (1, 1)], upd=True)]
        us[0]["open"] = True
        us[0]["bar"] = True
        units += us
    N = len(units)
    LA = 2

    def delta(s):
        return SSZ if (s % NB) < 2 else -2 * SSZ

    def upd(reg, s):
        d = delta(s)
        return f"v_add_u32 v{reg}, {d}, v{reg}" if d > 0 else f"v_subrev_u32 v{reg}, {-d}, v{reg}"

    def side_ops(n):
        U = units[n]
        s = U["s"]
        f = WF + 8 * (n % 3)
        ops = []
        if U.get("open"):
            xb = XF + 32 * (s & 1)
            for g in range(2):
                for rt in range(2):
                    for ks in range(2):
                        ops.append((f"ds_read_b128 {vr(xb+16*g+8*rt+4*ks,4)}, v{VX+2*g+ks} offset:{rt*2048}", ("x", s)))
        if U["p"] is None:
            ops.append(("s_lshl_b32 s44, s49, 7", None))
            ops.append((f"v_add_u32 v{VGW}, s44, v{t2}", None))
            ops.append((f"ds_read_b128 {vr(f,4)}, v{VGW}", ("u", n)))
            ops.append((f"ds_read_b128 {vr(f+4,4)}, v{VGW} offset:64", ("u", n)))
            if opt.pairord:
                ops.append(("s_xor_b32 s49, s49, s50", None))
            ops.append(("s_add_u32 s49, s49, 1", None))
            ops.append(("s_and_b32 s49, s49, 7", None))
            if opt.pairord:
                ops.append(("s_xor_b32 s49, s49, s50", None))
        else:
            for k, (m, ks) in enumerate(U["frags"]):
                off = m * 16384 + ks * 8192
                ops.append((f"ds_read_b64_tr_b16 {vr(f+4*k,2)}, v{VA+U['p']} offset:{off}", ("u", n)))
                ops.append((f"ds_read_b64_tr_b16 {vr(f+4*k+2,2)}, v{VA+U['p']} offset:{off+1024}", ("u", n)))
        if U.get("open") and s < 7:
            ops += [(upd(VX + ks, s), None) for ks in range(4)]
        if U.get("upd") and s < 7:
            ops.append((upd(VA + U["p"], s), None))
        return ops

    def emit(op):
        if op[1] is None:
            a(op[0])
        else:
            a.dsop(op[0], op[1])

    epi = spec_epi if kind == "spec" else ffn_epi
    fill = []
    a("s_barrier")
    stamp(a, opt)
    for n in range(LA):
        for op in side_ops(n):
            emit(op)
    pend = []
    for n in range(N):
        U = units[n]
        s = U["s"]
        boundary = n + LA == N or (n + LA < N and units[n + LA].get("bar"))
        carry = len(pend)
        if boundary and carry:
            for _ in range(carry):
                emit(pend.pop(0))
            carry = 0
        if n + LA < N:
            pend += side_ops(n + LA)
        a.dswait(("u", n))
        f = WF + 8 * (n % 3)
        xb = XF + 32 * (s & 1)
        frags = U.get("frags", [(0, 0), (0, 1)])
        NM = 4 if U["p"] is None else 8
        bpos = min(opt.bpos, NM - 2)
        for j in range(NM):
            g, rt, k = j >> 2, (j >> 1) & 1, j & 1
            if opt.mord == 1 and NM == 8:
                g, rt, k = (j >> 1) & 1, j & 1, j >> 2
            if opt.mord == 2 and NM == 8:
                k = k ^ (rt & 1) if not (s == 0) else k
            m, ks = frags[k]
            if U["p"] is None:
                acc = vr(GACC + 4 * rt, 4)
            else:
                acc = vr(ACC + 16 * (2 * U["p"] + g) + 8 * m + 4 * rt, 4)
            w_, x_ = vr(f + 4 * k, 4), vr(xb + 16 * g + 8 * rt + 4 * ks, 4)
            srcc = "0" if (s == 0 and ks == 0) else acc
            if kind == "spec":
                a(f"{MF16} {acc}, {x_}, {w_}, {srcc}")
            else:
                a(f"{MF16} {acc}, {w_}, {x_}, {srcc}")
            if boundary:
                if j < bpos:
                    cnt = -(-carry // (bpos - j)) if carry else 0
                    carry -= cnt
                else:
                    cnt = 2
                if j == bpos:
                    a("s_waitcnt lgkmcnt(0)")
                    a("s_barrier")
                    if opt.fine:
                        stamp(a, opt)
            else:
                cnt = max(-(-len(pend) // (NM - j)), 1)
            cnt = min(cnt, len(pend))
            for _ in range(min(cnt, len(pend))):
                emit(pend.pop(0))
            k_ = min(cnt, 2) if opt.npk else 0
            while fill and k_ < opt.fpg and fill[0][0] <= a.n and not (opt.npk and fill[0][1].startswith("v_pk")):
                ins_ = fill.pop(0)[1]
                a(ins_)
                k_ += 2 if ins_.startswith(("v_exp", "v_rcp")) else 1
            if tail and s == 7 and U.get("upd") and j in (3, 7):
                fill += [(a.n + 9, i_) for i_ in epi(2 * U["p"] + (j >> 2))]
    assert not pend
    stamp(a, opt)
    if tail:
        while fill:
            at, ins = fill.pop(0)
            if at > a.n:
                a(f"s_nop {min(at - a.n - 1, 15)}")
                a.n = at
            a(ins)
    else:
        a("s_nop 7")
        if kind != "spec":
            hp = min(opt.hp, T - 1)
            for p in range(T):
                for ins in epi(p):
                    a(ins)
                if opt.half and p == 0:
                    srd(a, 36, 78, 79, F_SIZE, F_OFF)
                    a(f"v_mov_b32 v{t1}, 1")
                    a(f"v_lshlrev_b32 v{t2}, 7, v1")
                if opt.half and p == hp:
                    a(f"s_waitcnt vmcnt({hp - 3})")
                    a("s_mov_b64 exec, " + opt.fmask)
                    a(f"buffer_store_dword v{t1}, v{t2}, s[36:39], s63 offen sc1")
                    a("s_mov_b64 exec, -1")
        else:
            a(f"v_lshlrev_b32 v{t1}, 4, v1")
            a("s_lshl_b32 s43, s45, 10")
            a(f"s_add_u32 s43, s43, {SSZ}")
            a(f"v_add_u32 v{t0}, s43, v{t1}")
            a("s_lshl_b32 s43, s41, 13")
            a(f"v_add_u32 v2, s43, v{t0}")
            a("v_xor_b32 v3, 0x800, v2")
            a("s_lshl_b32 s43, s45, 12")
            a(f"s_add_u32 s43, s43, {SSZ}")
            a(f"v_add_u32 v{t1}, s43, v{t1}")
            if hasg:
                A, TT, ZR = GACC, C_TT, GACC + 8
                for i in range(4):
                    a(f"v_cvt_pk_bf16_f32 v{TT+i}, v{A+2*i}, v{A+2*i+1}")
                srd(a, 36, 78, 79, G_SIZE, G_OFF)
                for rho in range(2):
                    a(f"{MF16} {vr(ZR+4*rho,4)}, {vr(C_CF+4*rho,4)}, {vr(TT,4)}, 0")
                    a(f"{MF16} {vr(ZR+8+4*rho,4)}, {vr(C_SF+4*rho,4)}, {vr(TT,4)}, 0")
                for i in range(4):
                    a(f"v_lshlrev_b32 v{A+2*i}, 16, v{TT+i}")
                    a(f"v_and_b32 v{A+2*i+1}, 0xffff0000, v{TT+i}")
                for i in range(8):
                    a(f"v_mul_f32 v{A+i}, {f2u(-1.4426950408889634):#x}, v{A+i}")
                for i in range(8):
                    a(f"v_exp_f32 v{A+i}, v{A+i}")
                for i in range(8):
                    a(f"v_add_f32 v{A+i}, 1.0, v{A+i}")
                for i in range(8):
                    a(f"v_rcp_f32 v{A+i}, v{A+i}")
                for rg in range(8):
                    a(f"v_cvt_pk_bf16_f32 v{ZR+rg}, v{ZR+rg}, v{ZR+8+rg}")
                for rho in range(2):
                    a(f"ds_write_b128 v{t0}, {vr(ZR+4*rho,4)} offset:{(2*T+rho)*4096}")
                for i in range(4):
                    a(f"v_cvt_pk_bf16_f32 v{TT+i}, v{A+2*i}, v{A+2*i+1}")
                for i in range(4):
                    a(f"v_lshlrev_b32 v{A+2*i}, 16, v{TT+i}")
                    a(f"v_and_b32 v{A+2*i+1}, 0xffff0000, v{TT+i}")
                a("s_lshl_b32 s43, s23, 7")
                a("s_mov_b32 exec_lo, 0x00010001")
                a("s_mov_b32 exec_hi, 0x00010001")
                a(f"buffer_store_dwordx4 {vr(A,4)}, v1, s[36:39], s43 offen sc1")
                a(f"buffer_store_dwordx4 {vr(A+4,4)}, v1, s[36:39], s43 offen offset:64 sc1")
                a("s_mov_b64 exec, -1")
            cv = [[x for x in epi(p) if not x.startswith("v_mfma")] for p in range(T)]
            mf = [[x for x in epi(p) if x.startswith("v_mfma")] for p in range(T)]
            for ins in cv[0]:
                a(ins)
            for p in range(T):
                side = (cv[p + 1] if p + 1 < T else ["s_nop 3", "s_nop 3", "s_nop 3"]) + (spec_pack(p - 1) if p > 0 else [])
                for i, ins in enumerate(mf[p]):
                    a(ins)
                    for _ in range(-(-len(side) // (8 - i))):
                        a(side.pop(0))
            if opt.fine4:
                stamp(a, opt)
            a("s_nop 7")
            for ins in spec_pack(T - 1):
                a(ins)
            if opt.fine4:
                stamp(a, opt)
            a("s_waitcnt lgkmcnt(0)")
            a("s_barrier")
            if opt.fine4:
                stamp(a, opt)
            NG = T // 2 + (1 if hasg else 0)
            for k in range(NG):
                for w in range(4):
                    a(f"ds_read_b128 {vr(WF+16*k+4*w,4)}, v{t1} offset:{k*16384 + w*1024}")
            for k in range(NG):
                R = WF + 16 * k
                a(f"s_waitcnt lgkmcnt({4*(NG-1-k)})")
                for i in range(4):
                    for j in range(i + 1, 4):
                        a(f"v_swap_b32 v{R+4*i+j}, v{R+4*j+i}")
                if opt.fine4:
                    stamp(a, opt)
                off = 512 * k
                if hasg and k == NG - 1:
                    a("s_cmp_ge_u32 s45, 2")
                    a("s_cbranch_scc1 L1C_no256")
                    a("s_mov_b32 exec_lo, 0x00020002")
                    a("s_mov_b32 exec_hi, 0x00020002")
                    off -= 16
                for b in range(4):
                    a(f"s_add_u32 s43, s42, {b*ZR_B}")
                    a(f"buffer_store_dwordx4 {vr(R+4*b,4)}, v{VST}, s[32:35], s43 offen offset:{off} sc1")
            if hasg:
                a("s_mov_b64 exec, -1")
                a.label("L1C_no256")
            if opt.fine4:
                stamp(a, opt)
            if not opt.lateb9:
                a("s_barrier")

    stamp(a, opt)
    a("s_branch L2C")


def p2_combine(a, opt):
    VFD = C_VFD
    t0, t1, t2 = C_T0, C_T1, C_T2
    VZ, VO, VG = 23, 24, 25
    ZF, ACY, PT, BF, TR = 160, 192, 96, 208, 2
    a.label("L2C")
    a("s_and_b32 s42, s45, 1")
    a("s_lshl_b32 s42, s42, 5")
    a("s_add_u32 s42, s42, s54")
    a("s_lshr_b32 s43, s45, 1")
    a("s_lshl_b32 s43, s43, 5")
    a("s_lshl_b32 s44, s51, 6")
    a("s_add_u32 s43, s43, s44")
    a(f"v_bfe_u32 v{t0}, v1, 2, 1")
    a(f"v_lshlrev_b32 v{t0}, 4, v{t0}")
    a(f"v_and_or_b32 v{t0}, v1, 3, v{t0}")
    a(f"v_bfe_u32 v{t1}, v1, 3, 2")
    a(f"v_lshlrev_b32 v{t1}, 2, v{t1}")
    a(f"v_add3_u32 v{t0}, v{t0}, v{t1}, s43")
    a(f"v_and_b32 v{t1}, 31, v1")
    a("s_lshl_b32 s44, s42, 7")
    a(f"v_lshl_add_u32 v{VG}, v{t1}, 2, s44")
    a(f"v_lshl_add_u32 v{t1}, v{t1}, 6, s42")
    a(f"v_lshrrev_b32 v{t2}, 5, v1")
    a(f"v_lshlrev_b32 v{VO}, 10, v{t1}")
    a(f"v_lshl_add_u32 v{VO}, v{t2}, 5, v{VO}")
    a("s_lshl_b32 s44, s43, 1")
    a(f"v_add_u32 v{VO}, s44, v{VO}")
    a("s_mov_b32 s64, s54")
    a("s_cmp_lt_u32 s51, 4")
    a("s_cbranch_scc1 L2C_nomirror")
    a(f"v_sub_u32 v{t0}, 0x200, v{t0}")
    a(f"v_sub_u32 v{t1}, 0x800, v{t1}")
    a(f"v_and_b32 v{t1}, 0x7ff, v{t1}")
    a("s_sub_u32 s64, 32, s54")
    a("s_and_b32 s64, s64, 31")
    a.label("L2C_nomirror")
    a(f"v_mul_u32_u24 v{VZ}, {8*EP*16}, v{t2}")
    a(f"v_lshl_add_u32 v{VZ}, v{t0}, 4, v{VZ}")
    a(f"s_mul_i32 s64, s64, {ZR_B}")
    a(f"v_cvt_f32_u32 v26, v{t1}")
    a(f"v_mul_f32 v26, {f2u(-1.0/2048):#x}, v26")
    a(f"v_cvt_f32_u32 v27, v{t2}")
    a(f"v_mul_f32 v27, {f2u(16.0):#x}, v27")
    a("v_mul_f32 v27, v26, v27")

    def trig(o):
        for q in range(8):
            ks_, qq = (8 * o + q) >> 2, q & 3
            a(f"v_fmamk_f32 v{TR+q}, v26, {f2u(float(2*ks_ + (qq&1) + 32*(qq>>1))):#x}, v27")
        for q in range(8):
            a(f"v_fract_f32 v{TR+q}, v{TR+q}")
        for q in range(8):
            a(f"v_sin_f32 v{TR+8+q}, v{TR+q}")
        for q in range(8):
            a(f"v_cos_f32 v{TR+q}, v{TR+q}")
        a("s_nop 0")
        for q in range(8):
            a(f"v_cvt_pk_bf16_f32 v{BF+8*o+q}, v{TR+q}, v{TR+8+q}")

    a("s_bitcmp1_b32 s65, 1")
    a("s_cbranch_scc1 L2C_t23s")
    trig(2)
    trig(3)
    a.label("L2C_t23s")
    srd(a, 36, 78, 79, F_SIZE, F_OFF)
    a(f"v_mov_b32 v{t0}, {FLG}")
    a(f"v_mov_b32 v{t1}, 1")
    a(f"v_lshlrev_b32 v{t2}, 7, v1")
    a("v_mov_b32 v28, 2")
    a("s_waitcnt vmcnt(0)")
    stamp(a, opt)
    a("s_bitcmp1_b32 s65, 0")
    a("s_cbranch_scc0 L2C_noh")
    a("s_mov_b64 exec, " + opt.fmask)
    a(f"buffer_store_dword v28, v{t2}, s[36:39], s63 offen sc1")
    a.label("L2C_noh")
    a("s_bitcmp1_b32 s65, 1")
    a("s_cbranch_scc0 L2C_noz")
    a("s_mov_b64 exec, 1")
    a(f"ds_add_rtn_u32 v{VFD}, v{t0}, v{t1}")
    a("s_and_b32 s42, s22, 1")
    a("s_lshl4_add_u32 s42, s42, s21")
    a(f"s_lshl_b32 s42, s42, {opt.lr+7}")
    a("s_lshr_b32 s43, s22, 1")
    a("s_lshl_b32 s43, s43, 7")
    a("s_add_u32 s42, s42, s43")
    a("s_waitcnt lgkmcnt(0)")
    a(f"v_cmp_ne_u32 vcc, 3, v{VFD}")
    a("s_cbranch_vccnz L2C_noz")
    a(f"buffer_store_dword v28, v{t2}, s[36:39], s42 offen offset:256 sc1")
    a.label("L2C_noz")
    a("s_mov_b64 exec, -1")
    if opt.lateb9:
        a("s_bitcmp1_b32 s65, 1")
        a("s_cbranch_scc0 L2C_nob9")
        a("s_barrier")
        a.label("L2C_nob9")
    a(f"v_and_b32 v{VFD}, 15, v1")
    a(f"v_min_u32 v{VFD}, 10, v{VFD}")
    a(f"v_and_or_b32 v{VFD}, v1, 16, v{VFD}")
    a(f"s_mov_b32 s43, {RH}")
    a(f"v_lshl_add_u32 v{t0}, v{VFD}, 2, s43")
    a("v_min_u32 v28, 47, v1")
    a(f"s_mov_b32 s43, {RZ}")
    a("v_lshl_add_u32 v28, v28, 2, s43")
    a(f"s_lshl_b32 s42, s54, {opt.lr}")
    a(f"s_and_b32 s43, s51, {opt.cmask}")
    a("s_add_u32 s42, s42, s43")
    a("s_lshl_b32 s42, s42, 7")
    a(f"v_lshl_add_u32 v{t2}, v1, 4, s42")
    a(f"s_mov_b32 m0, {RH}")

    def hpoll():
        a("s_mov_b64 exec, 0xff")
        a(f"buffer_load_dwordx4 v{t2}, s[36:39], 0 offen sc1 lds")
        a("s_mov_b64 exec, -1")

    def zpoll():
        a("s_mov_b32 exec_hi, 0xffff")
        a(f"buffer_load_dword v{t2}, s[36:39], 0 offen sc1 lds")
        a("s_mov_b64 exec, -1")

    a("s_cmp_lg_u32 s45, 0")
    a("s_cbranch_scc1 L2C_rest")
    a.label("L2C_wh")
    hpoll()
    a(f"s_waitcnt vmcnt({opt.pq})")
    if opt.psleep:
        a(f"s_sleep {opt.psleep}")
    a(f"ds_read_b32 v{VFD}, v{t0}")
    a("s_waitcnt lgkmcnt(0)")
    a(f"v_cmp_ne_u32 vcc, 2, v{VFD}")
    a("s_cbranch_vccnz L2C_wh")
    a(f"v_and_b32 v{t2}, 31, v1")
    a(f"v_lshlrev_b32 v{t2}, {opt.lr+7}, v{t2}")
    a(f"v_lshrrev_b32 v{VFD}, 5, v1")
    a(f"v_lshl_add_u32 v{t2}, v{VFD}, 7, v{t2}")
    a(f"s_mov_b32 m0, {RZ}")
    a(f"v_add_u32 v{t2}, 0x100, v{t2}")
    zpoll()
    a.label("L2C_rest")
    trig(0)
    trig(1)
    a("s_bitcmp1_b32 s65, 1")
    a("s_cbranch_scc0 L2C_t23d")
    trig(2)
    trig(3)
    a.label("L2C_t23d")
    srd(a, 32, 78, 79, Z_SIZE, Z_OFF)
    srd(a, 24, 78, 79, G_SIZE, G_OFF)
    srd(a, 28, 18, 19, 2048 * 1024)
    a("s_barrier")
    a("s_branch L2C_wz1")
    a.label("L2C_wz")
    a("s_cmp_lg_u32 s45, 0")
    a("s_cbranch_scc1 L2C_wz1")
    a("s_waitcnt vmcnt(0)")
    zpoll()
    a(f"s_sleep {opt.zsleep}")
    a.label("L2C_wz1")
    a(f"ds_read_b32 v{VFD}, v28")
    a("s_waitcnt lgkmcnt(0)")
    a(f"v_cmp_ne_u32 vcc, 2, v{VFD}")
    a("s_cbranch_vccnz L2C_wz")

    def zloads():
        stamp(a, opt)
        a(f"buffer_load_dword v10, v{VG}, s[24:27], 0 offen sc1")
        for ks in range(8):
            if not opt.noz:
                a(f"buffer_load_dwordx4 {vr(ZF+4*ks,4)}, v{VZ}, s[32:35], s64 offen sc1")
            if ks < 7:
                a(f"s_add_u32 s64, s64, {EP*16}")

    zloads()
    a(f"v_lshlrev_b32 v{t0}, 4, v1")
    a("s_lshl_b32 s42, s45, 14")
    a(f"v_add_u32 v{t0}, s42, v{t0}")
    for ks in range(8):
        a(f"s_waitcnt vmcnt({7-ks})")
        acc = vr(ACY, 16)
        a(f"{MF32} {acc}, {vr(ZF+4*ks,4)}, {vr(BF+4*ks,4)}, {'0' if ks == 0 else acc}")
    a("v_sub_f32 v11, 1.0, v10")
    a("v_cvt_pk_bf16_f32 v11, v11, v11")
    a("v_and_b32 v12, 0xffff0000, v11")
    a("v_and_b32 v13, 0xffff0000, v11")
    a("s_nop 7")
    a("s_nop 1")
    for rg in range(16):
        a(f"v_mul_f32 v{ACY+rg}, v10, v{ACY+rg}")
    stamp(a, opt)
    a("s_barrier")
    for hf in range(2):
        for w in range(4):
            for q in (2 * hf, 2 * hf + 1):
                if hf == 1 and w == 3 and q == 3:
                    a("s_waitcnt lgkmcnt(7)")
                a(f"ds_read_b128 {vr(PT+16*w+4*q,4)}, v{t0} offset:{w*2048 + (q>>1)*8192 + (q&1)*1024}")
    for hf in range(2):
        if hf:
            a("s_waitcnt lgkmcnt(0)")
        rr = range(8 * hf, 8 * hf + 8, 2)
        for rg in rr:
            a(f"v_pk_add_f32 {vr(PT+rg,2)}, {vr(PT+rg,2)}, {vr(PT+16+rg,2)}")
        for rg in rr:
            a(f"v_pk_add_f32 {vr(PT+32+rg,2)}, {vr(PT+32+rg,2)}, {vr(PT+48+rg,2)}")
        for rg in rr:
            a(f"v_pk_add_f32 {vr(PT+rg,2)}, {vr(PT+rg,2)}, {vr(PT+32+rg,2)}")
        for rg in rr:
            a(f"v_pk_fma_f32 {vr(ACY+rg,2)}, {vr(PT+rg,2)}, v[12:13], {vr(ACY+rg,2)}")
        for i in range(4 * hf, 4 * hf + 4):
            a(f"v_cvt_pk_bf16_f32 v{32+i}, v{ACY+2*i}, v{ACY+2*i+1}")
        a(f"buffer_store_dwordx4 {vr(32+4*hf,4)}, v{VO}, s[28:31], 0 offen offset:{16*hf} {opt.ofl}")
    stamp(a, opt)
    stamp_flush(a, opt, "C")
    a("s_endpgm")


def compute_prologue(a, opt):
    t0, t1, t2 = C_T0, C_T1, C_T2
    if opt.pf:
        a(f"s_cmp_eq_u32 s46, {K_SPEC}")
        a("s_mov_b32 s47, 2752")
        a("s_cselect_b32 s47, 1024, s47")
        a("s_cmp_eq_u32 s22, 10")
        a("s_movk_i32 s40, 252")
        a("s_cselect_b32 s40, 188, s40")
        a(f"v_lshrrev_b32 v{t2}, 5, v1")
        a(f"v_bfe_u32 v{t0}, v1, 2, 3")
        a(f"v_lshl_add_u32 v{t0}, v{t2}, 7, v{t0}")
        a("s_lshl_b32 s44, s42, 3")
        a("s_add_u32 s44, s44, s55")
        a("s_lshl_b32 s44, s44, 3")
        a(f"v_add_u32 v{t0}, s44, v{t0}")
        a(f"v_mul_u32_u24 v{t0}, s47, v{t0}")
        a(f"v_and_b32 v{t1}, 3, v1")
        a(f"v_lshlrev_b32 v{t1}, 7, v{t1}")
        a(f"v_min_u32 v{t1}, s40, v{t1}")
        a("s_lshl_b32 s44, s22, 8")
        a(f"v_add3_u32 v{t0}, v{t0}, v{t1}, s44")
        a(f"v_and_b32 v{t1}, 31, v1")
        a(f"v_lshlrev_b32 v{t1}, 16, v{t1}")
        a(f"v_mul_u32_u24 v{t2}, 384, v{t2}")
        a("s_lshl_b32 s44, s23, 3")
        a("s_lshr_b32 s41, s2, 6")
        a("s_add_u32 s44, s44, s41")
        a("s_lshl_b32 s44, s44, 7")
        a(f"v_add3_u32 v{t1}, v{t1}, v{t2}, s44")
        a("s_lshl_b32 s40, s47, 6")
        a("s_mul_i32 s41, s40, 5")
        a("s_lshl_b32 s30, s47, 9")
        a("s_mov_b32 s31, 0x20000")
        a("s_waitcnt lgkmcnt(0)")
        srd(a, 24, 4, 5, 2048 * 1024)
        a(f"s_cmp_eq_u32 s46, {K_SPEC}")
        a("s_cselect_b64 s[12:13], s[8:9], s[12:13]")
        a("s_cselect_b64 s[14:15], s[10:11], s[14:15]")
        a("s_cmp_ge_u32 s45, 2")
        a("s_cselect_b64 s[28:29], s[14:15], s[12:13]")
        a(f"buffer_load_dword v29, v{t0}, s[28:31], s40 offen")
        a(f"buffer_load_dword v30, v{t1}, s[24:27], 0 offen offset:128")
        a(f"buffer_load_dword v31, v{t0}, s[28:31], s41 offen")
    a(f"v_lshlrev_b32 v{t0}, 3, v1")
    a(f"v_add_u32 v{t0}, {FLG}, v{t0}")
    a("v_mov_b32 v2, 0")
    a("v_mov_b32 v3, 0")
    a(f"ds_write_b64 v{t0}, v[2:3]")
    a("s_waitcnt lgkmcnt(0)")
    stamp(a, opt)
    a("s_and_b32 s63, s23, 31")
    a(f"s_lshl_b32 s63, s63, {opt.lr+5}")
    a("s_lshr_b32 s44, s23, 5")
    a("s_lshl_b32 s44, s44, 4")
    a("s_add_u32 s63, s63, s44")
    a("s_add_u32 s63, s63, s22")
    a("s_lshl_b32 s63, s63, 2")
    a(f"s_cmp_eq_u32 s46, {K_IDLE}")
    a("s_cbranch_scc1 L1C_idle")
    a(f"v_bfe_u32 v{t0}, v1, 2, 2")
    a(f"v_lshrrev_b32 v{t1}, 4, v1")
    a(f"v_lshl_add_u32 v{t1}, v{t1}, 3, v{t0}")
    a(f"v_lshlrev_b32 v{t1}, 8, v{t1}")
    a(f"v_bfe_u32 v{t0}, v1, 2, 3")
    a(f"v_lshl_add_u32 v{t1}, v{t0}, 5, v{t1}")
    a(f"v_and_b32 v{t0}, 3, v1")
    a(f"v_lshl_add_u32 v{C_VB}, v{t0}, 3, v{t1}")
    a(f"v_and_b32 v{t0}, 15, v1")
    a(f"v_lshrrev_b32 v{t1}, 1, v{t0}")
    a(f"v_lshrrev_b32 v{t2}, 4, v1")
    a(f"v_xor_b32 v{t1}, v{t1}, v{t2}")
    a(f"v_lshlrev_b32 v{t1}, 4, v{t1}")
    a(f"v_lshl_add_u32 v{t0}, v{t0}, 7, v{t1}")
    a(f"v_add_u32 v{C_VX}, s48, v{t0}")
    a(f"v_xor_b32 v{C_VX+1}, 64, v{C_VX}")
    a(f"v_xor_b32 v{C_VX+2}, 0x2000, v{C_VX}")
    a(f"v_xor_b32 v{C_VX+3}, 0x2040, v{C_VX}")
    if opt.pp:
        a.l.append("@@DISPATCH@@")
    a("s_mov_b32 s65, 1")
    a(f"s_cmp_eq_u32 s46, {K_6G}")
    a("s_cbranch_scc1 L1C_ffn6")
    a("s_cmp_lg_u32 s46, 0")
    a("s_cbranch_scc1 L1C_specs")


def idle_compute(a, opt):
    t0, t1, t2 = C_T0, C_T1, C_T2
    a.label("L1C_idle")
    a("s_mov_b32 s65, 0")
    srd(a, 24, 76, 77, 256)
    a(f"v_mov_b32 v{t1}, 0")
    a("s_cmp_lg_u32 s55, 4")
    a("s_cbranch_scc1 L1_noinit")
    srd(a, 36, 78, 79, F_SIZE, F_OFF)
    for i in range(4):
        a(f"v_mov_b32 v{32+i}, 0")
    a(f"v_lshlrev_b32 v{t0}, 4, v1")
    a("s_and_b32 s42, s2, 7")
    a("s_lshl_b32 s42, s42, 2")
    a("s_add_u32 s42, s42, s45")
    a("s_lshl_b32 s42, s42, 10")
    a(f"buffer_store_dwordx4 v[32:35], v{t0}, s[36:39], s42 offen sc1")
    a(f"v_mov_b32 v{t2}, 1")
    a.label("L1_noinit")
    if opt.tlb:
        srd(a, 32, 78, 79, 0x800000)
        srd(a, 28, 18, 19, 2048 * 1024)
        a(f"v_mul_u32_u24 v{t0}, {HS*1024}, v1")
        a(f"s_mov_b32 s42, {86*1024}")
        a(f"buffer_load_dword v249, v{t0}, s[32:35], s42 offen")
        a(f"v_min_u32 v{t0}, 36, v1")
        a(f"v_mul_u32_u24 v{t0}, {ZR_B}, v{t0}")
        a(f"v_cmp_gt_u32 vcc, 32, v1")
        a(f"v_mov_b32 v248, {0x7C0000 - (Z_OFF + ZR_B - 128)}")
        a(f"s_mov_b32 s42, {Z_OFF + ZR_B - 128}")
        a(f"v_cndmask_b32 v{t0}, v248, v{t0}, vcc")
        a(f"buffer_load_dword v248, v{t0}, s[32:35], s42 offen")
        a(f"v_lshlrev_b32 v{t0}, 15, v1")
        a(f"buffer_load_dword v247, v{t0}, s[28:31], 0 offen")
    if opt.codepf:
        a("s_getpc_b64 s[40:41]")
        a.label("L_pcref")
        a(f"s_sub_u32 s40, s40, L_pcref-{NAME}_kernel")
        a("s_subb_u32 s41, s41, 0")
        a("s_lshl2_add_u32 s42, s55, s45")
        a("s_and_b32 s42, s42, 7")
        a("s_mul_i32 s42, s42, 6400")
        a(f"v_lshl_add_u32 v{t0}, v1, 7, s42")
        a(f"v_min_u32 v{t0}, L_exit-{NAME}_kernel, v{t0}")
        a("v_mov_b32 v37, s41")
        a(f"v_add_co_u32 v36, vcc, s40, v{t0}")
        a("s_nop 1")
        a("v_addc_co_u32 v37, vcc, 0, v37, vcc")
        a("global_load_dword v250, v[36:37], off")
    a("s_waitcnt vmcnt(0)")
    a("s_cmp_lg_u32 s55, 4")
    a("s_cbranch_scc1 L1_noinit2")
    a("s_mov_b64 exec, 1")
    a(f"buffer_atomic_add v{t2}, v{t1}, s[24:27], 0 offen sc1")
    a("s_mov_b64 exec, -1")
    a.label("L1_noinit2")
    a("s_barrier")
    a("s_cmp_lg_u32 s45, 0")
    a("s_cbranch_scc1 L2C")
    a.label("L1C_idle_go")
    a(f"s_sleep {opt.gosleep}")
    a(f"buffer_load_dword v{t2}, v{t1}, s[24:27], 0 offen sc1")
    a("s_waitcnt vmcnt(0)")
    a(f"v_cmp_gt_u32 vcc, 32, v{t2}")
    a("s_cbranch_vccnz L1C_idle_go")
    a("s_branch L2C")


def decode_rest(a, opt, lab):
    a("s_cmp_eq_u32 s44, 3")
    a(f"s_cbranch_scc1 {lab}_3")
    a("s_mul_i32 s22, s42, 3")
    a("s_min_u32 s22, s22, 8")
    a("s_add_u32 s22, s22, s44")
    a("s_and_b32 s46, s42, s44")
    a("s_lshr_b32 s46, s46, 1")
    a(f"s_cbranch_scc0 {lab}_d")
    a("s_and_b32 s22, s42, 1")
    a(f"s_branch {lab}_d")
    a.label(f"{lab}_3")
    a("s_cmp_lt_u32 s55, 2")
    a("s_cselect_b32 s22, 10, 2")
    a("s_lshr_b32 s46, s55, 1")
    a("s_add_u32 s46, s46, 2")
    a(f"s_min_u32 s46, s46, {K_IDLE}")
    a.label(f"{lab}_d")


def kernel(a, opt):
    a.label(NAME + "_kernel")
    if opt.stamps:
        a("v_mov_b32 v255, 0")
        a("v_mov_b32 v253, 0")
        a("s_mov_b32 s89, 0")
        stamp(a, opt)
    a("s_load_dwordx2 s[24:25], s[0:1], 0")
    a("s_load_dwordx16 s[4:19], s[0:1], 24")
    a("s_load_dwordx4 s[76:79], s[0:1], 88")
    a("v_lshrrev_b32 v2, 6, v0")
    a("v_and_b32 v1, 63, v0")
    a("v_readfirstlane_b32 s20, v2")
    a("s_cmp_ge_u32 s2, 256")
    a("s_cbranch_scc1 L_exit")
    a("s_bfe_u32 s55, s2, 0x30003")
    a("s_bfe_u32 s42, s2, 0x20001")
    a("s_lshr_b32 s44, s2, 6")
    a("s_and_b32 s43, s55, 1")
    a("s_lshl1_add_u32 s43, s42, s43")
    a("s_cmp_eq_u32 s44, 3")
    a("s_cselect_b32 s21, s43, s55")
    if opt.q3:
        if opt.rmul:
            a(f"s_mul_i32 s40, s44, {opt.rmul}")
            a("s_mul_i32 s43, s42, 2")
            a("s_add_u32 s40, s40, s43")
            a("s_cmp_eq_u32 s44, 3")
        else:
            a(f"s_mul_i32 s40, s42, {opt.q3}")
    else:
        a(f"s_mul_i32 s40, s44, {opt.rmul}")
    a("s_mul_i32 s43, s55, 3")
    a("s_cselect_b32 s43, s43, s40")
    if opt.r3:
        a("s_addc_u32 s49, s43, s21")
    else:
        a("s_add_u32 s49, s40, s21")
    if opt.qmul == 1:
        a("s_add_u32 s49, s49, s42")
    if opt.qmul == 2:
        a("s_lshl1_add_u32 s49, s42, s49")
    a(f"s_and_b32 s49, s49, {opt.rotmask}")
    a("s_and_b32 s43, s2, 1")
    a("s_lshl3_add_u32 s21, s43, s21")
    a("s_and_b32 s45, s20, 3")
    a("s_and_b32 s40, s45, 1")
    a("s_lshr_b32 s41, s45, 1")
    a("s_lshl1_add_u32 s23, s21, s40")
    a("s_lshl_b32 s43, s41, 5")
    a("s_add_u32 s23, s23, s43")
    a("s_lshl_b32 s48, s45, 12")
    a("s_bitset1_b32 s48, 15")
    a("s_cmp_ge_u32 s20, 4")
    a("s_cbranch_scc1 L1_compw")
    t0, t1, t2, VX, VD = L_T0, L_T1, L_T2, L_VX, L_VD
    a(f"v_lshrrev_b32 v{t0}, 3, v1")
    a("s_lshl_b32 s43, s23, 10")
    a(f"v_lshl_add_u32 v{t0}, v{t0}, 16, s43")
    a(f"v_lshrrev_b32 v{t1}, 4, v1")
    a(f"v_and_b32 v{t2}, 7, v1")
    a(f"v_xor_b32 v{t2}, v{t1}, v{t2}")
    a(f"v_lshl_add_u32 v{VX}, v{t2}, 4, v{t0}")
    a(f"v_xor_b32 v{VX+1}, {8*65536+64:#x}, v{VX}")
    a(f"v_xor_b32 v{VX+2}, {16*65536:#x}, v{VX}")
    a(f"v_xor_b32 v{VX+3}, {24*65536+64:#x}, v{VX}")
    a("s_mov_b32 s26, 0x200000")
    a("s_mov_b32 s27, 0x20000")
    a("s_lshl_b32 s47, s49, 7")
    a("s_mov_b32 m0, s48")
    a("s_cmp_ge_u32 s2, 224")
    if opt.epf:
        a("s_cbranch_scc1 L_epf")
        a("s_waitcnt lgkmcnt(0)")
    else:
        a("s_waitcnt lgkmcnt(0)")
        a("s_cbranch_scc1 L_nox")
    for i in range(4):
        a(f"buffer_load_dwordx4 v{VX+i}, s[24:27], s47 offen {opt.xfl} lds")
        if i < 3:
            a("s_add_u32 m0, m0, 1024")
            a("s_nop 0")
    a.label("L_nox")
    stamp(a, opt)
    decode_rest(a, opt, "L_dl")
    a("s_cmp_eq_u32 s46, 0")
    a("s_cselect_b32 s43, 15, 11")
    a(f"s_cmp_eq_u32 s46, {K_S4G}")
    a("s_cselect_b32 s43, 7, s43")
    a("s_cselect_b32 s80, 0, -1")
    a("s_bitcmp1_b32 s46, 0")
    a("s_cselect_b64 s[10:11], s[4:5], s[10:11]")
    a("s_cselect_b64 s[12:13], s[6:7], s[12:13]")
    a("s_movk_i32 s47, 2752")
    a("s_cselect_b32 s47, 1024, s47")
    a("s_movk_i32 s82, 256")
    a("s_cselect_b32 s82, 192, s82")
    a("s_cmp_eq_u32 s41, 1")
    a("s_cselect_b64 s[28:29], s[12:13], s[10:11]")
    a(f"v_lshl_add_u32 v{t0}, s40, 2, v{t1}")
    a("s_mul_i32 s82, s22, s82")
    a(f"v_mul_u32_u24 v{t0}, s47, v{t0}")
    a(f"v_and_b32 v{t2}, 15, v1")
    a(f"v_add_u32 v{t0}, s82, v{t0}")
    a(f"v_lshlrev_b32 v{t1}, 1, v{t1}")
    a(f"v_xor_b32 v{t1}, v{t1}, v{t2}")
    a(f"v_xor_b32 v{t2}, 8, v{t1}")
    a(f"v_min_u32 v{t1}, s43, v{t1}")
    a(f"v_min_u32 v{t2}, s43, v{t2}")
    a(f"v_lshl_add_u32 v{VD}, v{t1}, 4, v{t0}")
    a(f"v_lshl_add_u32 v{VD+1}, v{t2}, 4, v{t0}")
    a("s_lshl_b32 s41, s41, 14")
    a("s_lshl_b32 s40, s40, 10")
    a("s_add_u32 s41, s41, s40")
    a("s_lshl_b32 s44, s47, 3")
    a("s_lshl_b32 s30, s47, 9")
    a("s_mov_b32 s31, 0x20000")
    a("s_mov_b32 s66, 0")
    a("s_mov_b32 s67, 0")
    a("s_mul_i32 s40, s49, s44")
    if opt.sdelay:
        a("s_bitcmp1_b32 s46, 0")
        a("s_cbranch_scc0 L_nosd")
        a("s_barrier")
        a.label("L_nosd")
    a(f"s_cmp_lg_u32 s46, {K_IDLE}")
    a("s_cbranch_scc1 L1L_w")
    if opt.epf:
        a("s_branch L_idl2")
        a.label("L_epf")
        a("s_getpc_b64 s[72:73]")
        a.label("L_pcref0")
        a(f"s_sub_u32 s72, s72, L_pcref0-{NAME}_kernel")
        a("s_subb_u32 s73, s73, 0")
        a("s_lshl2_add_u32 s43, s55, s45")
        a("s_and_b32 s43, s43, 7")
        a("s_mul_i32 s43, s43, 6400")
        a("v_lshl_add_u32 v36, v1, 7, s43")
        a(f"v_min_u32 v36, L_exit-{NAME}_kernel, v36")
        a("v_mov_b32 v37, s73")
        a("v_add_co_u32 v36, vcc, s72, v36")
        a("s_nop 1")
        a("v_addc_co_u32 v37, vcc, 0, v37, vcc")
        a("global_load_dword v250, v[36:37], off")
        a("s_waitcnt lgkmcnt(0)")
        a("s_branch L_nox")
        a.label("L_idl2")
    a("v_mov_b32 v14, 0")
    a("v_mov_b32 v15, 0")
    srd(a, 68, 76, 77, 256)
    p2_setup(a, opt)
    a("s_barrier")
    a("s_branch L2W")
    p1_loader(a, opt)
    p2_worker(a, opt)
    if opt.al:
        a.l.append(f".p2align {opt.al}")
    a.label("L1_compw")
    for _ in range(opt.ph):
        a("s_nop 0")
    if opt.prio:
        a(f"s_setprio {opt.prio}")
    decode_rest(a, opt, "L_dc")
    p2_ids(a, opt)
    compute_prologue(a, opt)
    p1_compute(a, opt, "ffn8")
    p2_combine(a, opt)
    a.label("L1C_specs")
    a("s_mov_b32 s65, 2")
    dft32_consts(a)
    if opt.sdelay:
        a("s_barrier")
    a(f"s_cmp_eq_u32 s46, {K_S4G}")
    a("s_cbranch_scc1 L1C_spec4g")
    p1_compute(a, opt, "spec6")
    p1_compute(a, opt, "spec4g")
    p1_compute(a, opt, "ffn6")
    idle_compute(a, opt)
    a.label("L_exit")
    a("s_endpgm")


def page_pads(out, opt):
    import subprocess
    regions = {"ffn8": ("L1C_ffn8", "L2C"), "L2C": ("L2C", "L1C_specs"), "spec6": ("L1C_spec6", "L1C_spec4g"),
               "spec4g": ("L1C_spec4g", "L1C_ffn6"), "ffn6": ("L1C_ffn6", "L1C_idle")}
    NPK = 4

    def dispatch(pads):
        d = ["    s_mov_b64 exec, 0"]
        for kd, nm in ((0, "ffn8"), (K_SPEC, "spec6"), (K_6G, "ffn6"), (K_S4G, "spec4g")):
            lst = (pads.get(nm, []) + pads.get("L2C", []))
            assert len(lst) <= NPK, lst
            lst = lst + ["L_hopret"] * (NPK - len(lst))
            d += [f"    s_cmp_lg_u32 s46, {kd}", f"    s_cbranch_scc1 L_pp{kd}"]
            for w, p in enumerate(lst[:3]):
                d += [f"    s_cmp_eq_u32 s45, {w}", f"    s_cbranch_scc1 {p}"]
            d += [f"    s_branch {lst[3]}", f"L_pp{kd}:"]
        d += ["L_hopret:", "    s_mov_b64 exec, -1"]
        return "\n".join(d)

    lines = out.split("\n")
    pads = {}
    done = set()
    while True:
        txt = "\n".join(lines).replace("@@DISPATCH@@", dispatch(pads))
        open("pp.s", "w").write(txt)
        subprocess.check_call(["clang", "-x", "assembler", "-target", "amdgcn-amd-amdhsa", "-mcpu=gfx950", "-c", "pp.s", "-o", "pp.o"])
        dis = subprocess.check_output(["llvm-objdump", "-d", "--mcpu=gfx950", "pp.o"], text=True).split("\n")
        i0 = next(i for i, l in enumerate(dis) if l.endswith("<L1C_ffn8>:"))
        addrs = [int(l.split("// ")[1].split(":")[0], 16) for l in dis[i0:] if "// " in l]
        j0 = lines.index("L1C_ffn8:")
        idx = [j for j in range(j0, len(lines)) if lines[j].startswith("    ")]
        new = None
        for n in range(1, min(len(idx), len(addrs))):
            pg = addrs[n] >> 12
            if pg != addrs[n - 1] >> 12 and pg not in done:
                new = (idx[n], pg)
                break
        if new is None:
            return txt
        j, pg = new
        done.add(pg)
        for nm, (b, e) in regions.items():
            if lines.index(b + ":") < j < lines.index(e + ":"):
                pads.setdefault(nm, []).append(f"L_pg{pg}")
                lines[j:j] = [f"L_pg{pg}:", "    s_cbranch_execz L_hopret"]


def main():
    ap = argparse.ArgumentParser()
    ap.add_argument("-o", default=f"cdna_kernels/{NAME}.s")
    ap.add_argument("--stamps", action="store_true")
    ap.add_argument("--fine", action="store_true")
    ap.add_argument("--fine2", action="store_true")
    ap.add_argument("--q", type=int, default=8)
    ap.add_argument("--rotmask", type=int, default=7)
    ap.add_argument("--hr", type=int, default=7)
    ap.add_argument("--la", type=int, default=5)
    ap.add_argument("--psleep", type=int, default=4)
    ap.add_argument("--tail", type=int, default=0)
    ap.add_argument("--fpg", type=int, default=6)
    ap.add_argument("--codepf", type=int, default=1)
    ap.add_argument("--pad", type=int, default=-1)
    ap.add_argument("--padrole", default="C")
    ap.add_argument("--prio", type=int, default=0)
    ap.add_argument("--bpos", type=int, default=3)
    ap.add_argument("--nb", type=int, default=3)
    ap.add_argument("--pairord", type=int, default=0)
    ap.add_argument("--qmul", type=int, default=0)
    ap.add_argument("--q3", type=int, default=2)
    ap.add_argument("--al", type=int, default=12)
    ap.add_argument("--ph", type=int, default=0)
    ap.add_argument("--pp", type=int, default=1)
    ap.add_argument("--alw", type=int, default=1)
    ap.add_argument("--rt3", type=int, default=0)
    ap.add_argument("--rowtouch", type=int, default=1)
    ap.add_argument("--cbx", type=int, default=0)
    ap.add_argument("--xfl", default="")
    ap.add_argument("--sw3", type=int, default=1)
    ap.add_argument("--goit", type=int, default=7)
    ap.add_argument("--gosleep", type=int, default=100)
    ap.add_argument("--cmid", type=int, default=1)
    ap.add_argument("--epf", type=int, default=1)
    ap.add_argument("--sdelay", type=int, default=0)
    ap.add_argument("--mord", type=int, default=2)
    ap.add_argument("--tm", type=int, default=0)
    ap.add_argument("--r3", type=int, default=1)
    ap.add_argument("--rmul", type=int, default=0)
    ap.add_argument("--codepf2", type=int, default=0)
    ap.add_argument("--tlb", type=int, default=0)
    ap.add_argument("--padx", type=int, default=-1)
    ap.add_argument("--zlate", type=int, default=1)
    ap.add_argument("--mir", type=int, default=1)
    ap.add_argument("--zbar", type=int, default=20)
    ap.add_argument("--lateb9", type=int, default=1)
    ap.add_argument("--zsleep", type=int, default=4)
    ap.add_argument("--noz", action="store_true")
    ap.add_argument("--ofl", default="")
    ap.add_argument("--ssleep", type=int, default=0)
    ap.add_argument("--split0", type=int, default=1)
    ap.add_argument("--fmask", default="3")
    ap.add_argument("--cmask", type=int, default=1)
    ap.add_argument("--half", type=int, default=0)
    ap.add_argument("--hp", type=int, default=6)
    ap.add_argument("--wpoll", type=int, default=0)
    ap.add_argument("--spr", type=int, default=6)
    ap.add_argument("--fine4", action="store_true")
    ap.add_argument("--nost", action="store_true")
    ap.add_argument("--idledelay", type=int, default=0)
    ap.add_argument("--xrot", type=int, default=1)
    ap.add_argument("--tcb", type=int, default=2)
    ap.add_argument("--wtouch", type=int, default=1)
    ap.add_argument("--pf", type=int, default=0)
    ap.add_argument("--pq", type=int, default=1)
    ap.add_argument("--idlego", type=int, default=0)
    ap.add_argument("--nc", type=int, default=6)
    ap.add_argument("--stag", type=int, default=1)
    ap.add_argument("--thrz", type=int, default=0)
    ap.add_argument("--pace", type=int, default=0)
    ap.add_argument("--thr", type=int, default=0)
    ap.add_argument("--thr2", type=int, default=4)
    ap.add_argument("--early", type=int, default=0)
    ap.add_argument("--nowait", action="store_true")
    ap.add_argument("--fine3", action="store_true")
    ap.add_argument("--nomfma", action="store_true")
    ap.add_argument("--noidle", action="store_true")
    ap.add_argument("--fsleep", type=int, default=0)
    ap.add_argument("--noreads", action="store_true")
    ap.add_argument("--npk", type=int, default=0)
    ap.add_argument("--lr", type=int, default=3)
    ap.add_argument("--hs", type=int, default=87)
    ap.add_argument("--zpad", type=int, default=128)
    ap.add_argument("--foff", type=lambda x: int(x, 0), default=0x7B0000)
    opt = ap.parse_args()
    global HS, H_SIZE, ZR_B, Z_SIZE, F_OFF, F_SIZE
    HS = opt.hs
    H_SIZE = 64 * HS * 1024
    assert H_SIZE <= Z_OFF
    ZR_B = 16 * EP * 16 + opt.zpad
    Z_SIZE = 32 * ZR_B
    F_OFF = opt.foff
    F_SIZE = 4096 << opt.lr
    global NPK
    NPK = opt.npk
    global FSLEEP
    FSLEEP = opt.fsleep
    hdr = open(f"cdna_kernels/{NAME}.s.ref").read().split("; Override launch")[0]
    out = hdr
    out += f"; @launch grid=(256,1,1) block=(512,1,1) lds={LDS_SIZE}\n"
    out += DOC
    out += '.amdgcn_target "amdgcn-amd-amdhsa--gfx950"\n.text\n'
    a = Asm()
    kernel(a, opt)
    nm = NAME + "_kernel"
    out += f".globl {nm}\n.p2align 8\n.type {nm},@function\n" + a.text()
    out += f""".section .rodata,"a"
.p2align 6
.amdhsa_kernel {nm}
  .amdhsa_next_free_vgpr 256
  .amdhsa_next_free_sgpr 102
  .amdhsa_accum_offset 256
  .amdhsa_group_segment_fixed_size 0
  .amdhsa_kernarg_size 104
  .amdhsa_user_sgpr_count 2
  .amdhsa_user_sgpr_kernarg_segment_ptr 1
  .amdhsa_system_sgpr_workgroup_id_x 1
.end_amdhsa_kernel
"""
    if opt.pp:
        out = page_pads(out, opt)
    open(opt.o, "w").write(out)


if __name__ == "__main__":
    main()
```

```python
import struct, sys, argparse, re

NAME = "gated_mix__spectral_fnet__geglu_ffn__prompt"
H_OFF = 0
HS = 87
H_SIZE = 64 * HS * 1024
Z_OFF = 0x580000
EP = 264
ZR_B = 16 * EP * 16 + 128
Z_SIZE = 32 * ZR_B
G_OFF = 0x7A0000
G_SIZE = 2048 * 4
F_OFF = 0x7B0000
F_SIZE = 32768
T_OFF = 0xA00000
MF16 = "v_mfma_f32_16x16x32_bf16"
MF32 = "v_mfma_f32_32x32x16_bf16"


DOC = """; ---------------------------------------------------------------------------------------------
;    spectral groups: hidden DFT a,b = x Cd, x Sd for e = 0..256 (Hermitian half), then the 32-point
; ---------------------------------------------------------------------------------------------
"""


def f2u(f):
    return struct.unpack("<I", struct.pack("<f", f))[0]


class Asm:
    def __init__(self):
        self.l = []
        self.ds = []
        self.vm = []
        self.n = 0
        self.ub = 0

    def __call__(self, s):
        if s.startswith("ds_"):
            if self.ub >= 15:
                self("s_waitcnt lgkmcnt(10)")
            self.ub += 1
        m = re.search(r"lgkmcnt\((\d+)\)", s)
        if m:
            self.ub = min(self.ub, int(m.group(1)))
        self.l.append("    " + s)
        self.n += 1

    def label(self, s):
        self.l.append(s + ":")

    def dsop(self, s, tag):
        self(s)
        self.ds.append(tag)

    def dswait(self, tag):
        idx = max(i for i, t in enumerate(self.ds) if t == tag)
        n = len(self.ds) - 1 - idx
        assert n <= 15, n
        self(f"s_waitcnt lgkmcnt({n})")

    def vmop(self, s, tag):
        self(s)
        self.vm.append(tag)

    def vmwait(self, tag):
        idx = max(i for i, t in enumerate(self.vm) if t == tag)
        n = len(self.vm) - 1 - idx
        assert n <= 63, n
        self(f"s_waitcnt vmcnt({n})")

    def text(self):
        return "\n".join(self.l) + "\n"


def vr(b, n):
    return f"v[{b}:{b+n-1}]"


def srd(a, d, lo, hi, size, add=0):
    if add:
        a(f"s_add_u32 s{d}, s{lo}, {add:#x}")
        a(f"s_addc_u32 s{d+1}, s{hi}, 0")
    else:
        a(f"s_mov_b32 s{d}, s{lo}")
        a(f"s_mov_b32 s{d+1}, s{hi}")
    a(f"s_mov_b32 s{d+2}, {size:#x}")
    a(f"s_mov_b32 s{d+3}, 0x20000")


def stamp(a, opt):
    if not opt.stamps:
        return
    a("s_memrealtime s[90:91]")
    a("s_memtime s[86:87]")
    a("s_mov_b32 s88, m0")
    a("s_waitcnt lgkmcnt(0)")
    a("s_mov_b32 m0, s89")
    a("s_add_u32 s89, s89, 1")
    a("v_writelane_b32 v255, s90, m0")
    a("v_writelane_b32 v253, s86, m0")
    a("s_mov_b32 m0, s88")


def stamp_flush(a, opt, role):
    if not opt.stamps:
        return
    if opt.pad >= 0:
        if role == opt.padrole:
            a("s_cmp_lg_u32 s46, 0")
            a("s_cbranch_scc1 Lpad_end")
            if opt.padx >= 0:
                a("s_and_b32 s92, s2, 7")
                a(f"s_cmp_lg_u32 s92, {opt.padx}")
                a("s_cbranch_scc1 Lpad_end")
            a("s_nop 4")
            a(f"v_readlane_b32 s92, v255, {opt.pad}")
            a("s_nop 4")
            a("s_add_u32 s92, s92, 4000")
            a.label("Lpad")
            a("s_memrealtime s[90:91]")
            a("s_waitcnt lgkmcnt(0)")
            a("s_sub_u32 s93, s92, s90")
            a("s_cmp_gt_i32 s93, 0")
            a("s_cbranch_scc1 Lpad")
            a.label("Lpad_end")
        return
    a("s_waitcnt vmcnt(0)")
    stamp(a, opt)
    srd(a, 92, 78, 79, 0x200000, T_OFF)
    a("s_lshl_b32 s96, s2, 3")
    a("s_add_u32 s96, s96, s20")
    a("s_lshl_b32 s96, s96, 8")
    a("v_lshlrev_b32 v254, 2, v1")
    a("buffer_store_dword v255, v254, s[92:95], s96 offen")
    a("s_add_u32 s96, s96, 0x100000")
    a("buffer_store_dword v253, v254, s[92:95], s96 offen")


C1 = -2.0 * 0.7978845608028654 * 1.4426950408889634
C2 = C1 * 0.044715
NB = 3
SSZ = 49152
FLG = 78 * 2048
RH = FLG + 256
RZ = FLG + 64
GW_LDS = FLG + 512
LDS_SIZE = 163840
assert GW_LDS + 2048 <= LDS_SIZE
K_FFN, K_SPEC, K_6G, K_IDLE, K_S4G = 0, 1, 2, 4, 3

L_VD, L_VX, L_T0, L_T1, L_T2, L_VF, L_VA = 2, 10, 16, 17, 18, 20, 21


FSLEEP = 0


def free_wait(a, lab, val):
    if FSLEEP:
        a(f"s_branch {lab}_c")
    a.label(lab)
    if FSLEEP:
        a(f"s_sleep {FSLEEP}")
        a.label(lab + "_c")
    a(f"ds_read_b32 v{L_T0}, v{L_VA}")
    a("s_waitcnt lgkmcnt(0)")
    a(f"v_cmp_ge_u32 vcc, {val}, v{L_T0}")
    a(f"s_cbranch_vccnz {lab}")


def p2_ids(a, opt):
    a("s_lshr_b32 s52, s2, 6")
    a("s_mov_b32 s51, s55")
    if opt.sw3:
        a("s_add_u32 s53, s52, 4")
        a("s_cmp_eq_u32 s55, 3")
        a("s_cselect_b32 s51, s53, s51")
        a("s_cselect_b32 s52, 3, s52")
        a("s_and_b32 s53, s55, 3")
        a("s_cmp_ge_u32 s2, 224")
        a("s_cselect_b32 s51, 3, s51")
        a("s_cselect_b32 s52, s53, s52")
    a("s_lshl1_add_u32 s56, s52, s51")
    a("s_and_b32 s54, s2, 7")
    a("s_and_b32 s53, s52, 1")
    a("s_lshl1_add_u32 s54, s54, s53")
    a("s_add_u32 s54, s54, 1")
    a("s_sub_u32 s53, 32, s54")
    a("s_cmp_eq_u32 s53, 16")
    a("s_cselect_b32 s53, 0, s53")
    a("s_cmp_ge_u32 s52, 2")
    a("s_cselect_b32 s54, s53, s54")


def p2_setup(a, opt):
    t0, t1, t2 = L_T0, L_T1, L_T2
    VW0, VW1 = 28, 29
    VH0, VH1 = 4, 5
    VRH = 7
    VRB = 22
    p2_ids(a, opt)
    a(f"s_cmp_eq_u32 s46, {K_IDLE}")
    a("s_cselect_b32 s83, 1, 0")
    if opt.xrot:
        a("s_add_u32 s56, s56, s2")
    a("s_and_b32 s56, s56, 7")
    a("s_mul_i32 s56, s56, 5")
    a("s_lshr_b32 s56, s56, 2")
    a(f"v_bfe_u32 v{t0}, v1, 4, 1")
    a(f"v_lshlrev_b32 v{t0}, 2, v{t0}")
    a(f"v_and_b32 v{t1}, 7, v1")
    a(f"v_xor_b32 v{t0}, v{t0}, v{t1}")
    a(f"v_lshrrev_b32 v{t1}, 3, v1")
    a(f"v_lshlrev_b32 v{t1}, 10, v{t1}")
    a(f"v_lshl_add_u32 v{VW0}, v{t0}, 4, v{t1}")
    a("s_lshl_b32 s42, s51, 7")
    a("s_lshl_b32 s43, s45, 14")
    a("s_add_u32 s42, s42, s43")
    a(f"v_add_u32 v{VW0}, s42, v{VW0}")
    a(f"v_add_u32 v{VW1}, 0x2000, v{VW0}")
    a("s_lshl_b32 s59, s45, 11")
    a("s_cmp_lt_u32 s45, 2")
    a("s_cselect_b32 s57, 11, 10")
    a(f"v_lshrrev_b32 v{t2}, 5, v1")
    a(f"v_bfe_u32 v{t0}, v1, 2, 2")
    a(f"v_lshl_add_u32 v{t0}, v{t2}, 3, v{t0}")
    a(f"v_lshlrev_b32 v{t0}, 7, v{t0}")
    a(f"v_bfe_u32 v{t1}, v1, 1, 1")
    a(f"v_lshl_add_u32 v{t0}, v{t1}, 3, v{t0}")
    a(f"v_and_b32 v{t1}, 1, v1")
    a(f"v_lshl_add_u32 v{t0}, v{t1}, 5, v{t0}")
    a(f"v_bfe_u32 v{t1}, v1, 4, 1")
    a(f"v_lshl_add_u32 v{t0}, v{t1}, 4, v{t0}")
    a(f"v_bfe_u32 v{t1}, v1, 3, 1")
    a(f"v_lshl_add_u32 v{t0}, v{t1}, 6, v{t0}")
    a(f"v_add_u32 v{VRB}, s59, v{t0}")
    a(f"v_xor_b32 v{VRB+1}, 64, v{VRB}")
    for k in (1, 2):
        a(f"v_add_u32 v{VRB+2*k}, {k*65536}, v{VRB}")
        a(f"v_add_u32 v{VRB+2*k+1}, {k*65536}, v{VRB+1}")
    a(f"v_lshlrev_b32 v{t0}, 4, v1")
    a(f"s_mul_i32 s42, s54, {HS*1024}")
    a("s_lshl_b32 s43, s45, 10")
    a("s_add_u32 s42, s42, s43")
    a(f"v_add_u32 v{VH0}, s42, v{t0}")
    a(f"v_add_u32 v{VH1}, {32*HS*1024}, v{VH0}")
    srd(a, 32, 78, 79, H_SIZE, H_OFF)
    a("v_cmp_gt_u32 vcc, 11, v1")
    a(f"v_subrev_u32 v{t0}, 11, v1")
    a(f"v_mov_b32 v{t1}, s57")
    a(f"v_cndmask_b32 v{t0}, v{t0}, v1, vcc")
    a(f"v_cndmask_b32 v{t1}, v{t1}, 11, vcc")
    a(f"v_cndmask_b32 v6, 2, {1 if opt.half else 2}, vcc")
    a(f"v_add_u32 v{t0}, s56, v{t0}")
    a(f"v_sub_u32 v{t1}, v{t0}, v{t1}")
    a(f"v_min_u32 v{t0}, v{t0}, v{t1}")
    a(f"v_min_u32 v{t0}, 10, v{t0}")
    a(f"v_lshlrev_b32 v{t0}, 2, v{t0}")
    a(f"v_add_u32 v{VRH}, {RH}, v{t0}")
    srd(a, 36, 78, 79, F_SIZE, F_OFF)
    a(f"s_lshl_b32 s62, s54, {opt.lr}")
    a(f"s_and_b32 s43, s51, {opt.cmask}")
    a("s_add_u32 s62, s62, s43")
    a("s_lshl_b32 s62, s62, 7")
    a("v_lshlrev_b32 v8, 4, v1")
    a("s_or_b32 s61, s45, s83")
    a("s_mov_b32 s60, 0")


def p1_loader(a, opt):
    VD, VX, t0 = L_VD, L_VX, L_T0
    Q = opt.q
    a.label("L1L_loop")
    a("s_lshl_b32 s47, s49, 7")
    a("s_add_u32 m0, s48, s67")
    a("s_mul_i32 s40, s49, s44")
    n = 0

    def after():
        nonlocal n
        n += 1
        if n == Q:
            a("s_cmp_eq_u32 s66, 0")
            a("s_cbranch_scc1 L1L_nobar")
            a(f"s_waitcnt vmcnt({Q})")
            if opt.fine:
                stamp(a, opt)
            a("s_barrier")
            a.label("L1L_nobar")

    for i in range(4):
        a(f"buffer_load_dwordx4 v{VX+i}, s[24:27], s47 offen {opt.xfl} lds")
        if i < 3:
            a("s_add_u32 m0, m0, 1024")
            a("s_nop 0")
        else:
            a.label("L1L_w")
            a("s_add_u32 m0, s41, s67")
            a("s_lshl_b32 s40, s40, 3")
        if opt.split0 and i == opt.split0 - 1:
            a("s_cmp_lg_u32 s66, 1")
            a("s_cbranch_scc1 L1L_nosp")
            a(f"s_waitcnt vmcnt({4 + opt.split0})")
            a("s_barrier")
            a.label("L1L_nosp")
        after()
    for u in range(8):
        a(f"buffer_load_dwordx4 v{VD+(u&1)}, s[28:31], s40 offen lds")
        if u < 7:
            a("s_add_u32 m0, m0, 2048")
            a("s_add_u32 s40, s40, s44")
        after()
    a("s_cmp_lg_u32 s66, 0")
    a("s_cbranch_scc1 L1L_next")
    a("v_mov_b32 v14, 0")
    a("v_mov_b32 v15, 0")
    srd(a, 68, 76, 77, 256)
    a("s_cmp_eq_u32 s45, 0")
    a(f"s_cselect_b32 s81, {opt.goit}, -1")
    a("s_cmp_eq_u32 s66, s80")
    a("s_cbranch_scc0 L1L_next")
    srd(a, 36, 16, 17, 1024)
    a(f"s_mov_b32 m0, {GW_LDS}")
    a(f"v_lshlrev_b32 v{t0}, 4, v1")
    a(f"buffer_load_dwordx4 v{t0}, s[36:39], 0 offen lds")
    srd(a, 36, 4, 5, 1024, 256 * 1024)
    a(f"s_mov_b32 m0, {GW_LDS+1024}")
    a("s_nop 0")
    a(f"buffer_load_dwordx4 v{t0}, s[36:39], 0 offen lds")
    a.label("L1L_next")
    a("s_cmp_eq_u32 s66, s81")
    a("s_cbranch_scc0 L1L_next2")
    a("buffer_load_dword v14, v15, s[68:71], 0 offen")
    a.label("L1L_next2")
    a("s_cmp_lg_u32 s66, 0")
    a("s_cbranch_scc1 L1L_next3")
    p2_setup(a, opt)
    a.label("L1L_next3")
    if opt.pairord:
        a("s_xor_b32 s49, s49, s50")
    a("s_add_u32 s49, s49, 1")
    a("s_and_b32 s49, s49, 7")
    if opt.pairord:
        a("s_xor_b32 s49, s49, s50")
    a(f"s_add_u32 s67, s67, {SSZ}")
    a(f"s_cmp_eq_u32 s67, {3*SSZ}")
    a("s_cselect_b32 s67, 0, s67")
    a("s_add_u32 s66, s66, 1")
    a("s_cmp_lt_u32 s66, 8")
    a("s_cbranch_scc1 L1L_loop")


NI_ = 22


def p2_worker(a, opt):
    HR = opt.hr
    LA = opt.la
    t0, t1, t2 = L_T0, L_T1, L_T2
    VW0, VW1 = 28, 29
    VH0, VH1 = 4, 5
    VRH = 7
    VRB = 22
    WF, ACB, HF = 32, 64, 128
    WR = 4
    assert HF + 8 * HR <= 252 and LA < HR
    a.vm, a.ds = [], []
    a.label("L2W")
    srd(a, 28, 14, 15, 1376 * 1024)
    rows = [18, 18] + list(range(12, 18)) + [18, 0, 1, 19] + list(range(2, 12))
    OPT = 11
    clsC = [i for i in range(NI_) if rows[i] < 6]
    clsD = [i for i in range(NI_) if 6 <= rows[i] < 12]
    NI = 22
    assert len(rows) == NI

    def prod(i, dst, sh):
        if i < 11:
            a(f"s_add_u32 s{dst}, s56, {i}")
            a(f"s_sub_u32 s43, s{dst}, 11")
        else:
            a(f"s_add_u32 s{dst}, s56, {i-11}")
            a(f"s_sub_u32 s43, s{dst}, s57")
        a(f"s_cselect_b32 s{dst}, s{dst}, s43")
        a(f"s_lshl_b32 s{dst}, s{dst}, {sh+1}")
        if i >= 11:
            a(f"s_add_u32 s{dst}, s{dst}, {1 << sh}")

    def wload(i):
        a(f"s_add_u32 m0, s59, {rows[i]*8192}")
        prod(i, 40, 16)
        a.vmop(f"buffer_load_dwordx4 v{VW0}, s[28:31], s40 offen lds", ("w", i))
        a("s_add_u32 m0, m0, 1024")
        a("s_nop 0")
        a.vmop(f"buffer_load_dwordx4 v{VW1}, s[28:31], s40 offen lds", ("w", i))

    def wreads(i):
        f = WF + 8 * (i % WR)
        b = VRB + 2 * (rows[i] // 8)
        o = (rows[i] % 8) * 8192
        for ln in range(2):
            a.dsop(f"ds_read_b64_tr_b16 {vr(f+4*ln,2)}, v{b+ln} offset:{o}", ("r", i))
            a.dsop(f"ds_read_b64_tr_b16 {vr(f+4*ln+2,2)}, v{b+ln} offset:{o+512}", ("r", i))

    if opt.rowtouch:
        a("s_cmp_eq_u32 s83, 0")
        a("s_cbranch_scc1 L2W_nort")
        a("s_lshl2_add_u32 s42, s55, s45")
        a("s_and_b32 s42, s42, 15")
        a("s_and_b32 s43, s2, 7")
        a("s_mul_i32 s43, s43, 22")
        a("s_add_u32 s42, s42, s43")
        a(f"v_lshlrev_b32 v{t0}, 7, v1")
        if opt.sw3 and opt.skip3:
            a("s_mov_b32 exec_lo, 0xf7f7f7f7")
            a("s_mov_b32 exec_hi, 0xf7f7f7f7")
        for k in range(11):
            a("s_sub_u32 s43, s42, 176")
            a("s_cselect_b32 s42, s42, s43")
            a("s_lshl_b32 s43, s42, 13")
            a(f"buffer_load_dword v250, v{t0}, s[28:31], s43 offen")
            a("s_add_u32 s42, s42, 16")
        a("s_mov_b64 exec, -1")
        a.label("L2W_nort")
    wload(0)
    for i in range(2, 2 + opt.nb):
        wload(i)
    a(f"s_waitcnt vmcnt({len(a.vm)})")
    a("s_or_b32 s42, s45, s83")
    a("s_cbranch_scc1 L2W_gook")
    a("v_cmp_le_u32 vcc, 32, v14")
    a("s_cbranch_vccnz L2W_gook")
    a.label("L2W_go")
    a("s_sleep 4")
    a("buffer_load_dword v14, v15, s[68:71], 0 offen sc1")
    a("s_waitcnt vmcnt(0)")
    a("v_cmp_gt_u32 vcc, 32, v14")
    a("s_cbranch_vccnz L2W_go")
    a.label("L2W_gook")
    stamp(a, opt)
    a("s_cmp_lg_u32 s83, 0")
    a("s_cbranch_scc1 L2W_nob6")
    a("s_barrier")
    a.label("L2W_nob6")
    a.vmwait(("w", 0))
    wreads(0)
    a("s_waitcnt lgkmcnt(0)")
    wload(1)
    for i in range(2 + opt.nb, 8):
        wload(i)
    if opt.tail == 2:
        a("s_and_b32 s42, s46, 5")
        a("s_cbranch_scc1 L2W_t2")
        a("s_barrier")
        a.label("L2W_t2")
    a("s_bitcmp1_b32 s46, 0")
    a("s_cbranch_scc0 L2W_c")
    a("s_barrier")
    if not opt.cmid:
        a("s_barrier")
        a("s_barrier")
    a.label("L2W_c")
    for i in clsC[:opt.nc]:
        wload(i)
    if opt.cmid:
        a("s_cmp_lg_u32 s83, 0")
        a("s_cbranch_scc1 L2W_nob7")
        a("s_barrier")
        a("s_bitcmp1_b32 s46, 0")
        a("s_cbranch_scc0 L2W_nob7")
        a("s_barrier")
    else:
        a("s_and_b32 s42, s46, 5")
        a("s_cbranch_scc1 L2W_nob7")
        a("s_barrier")
    a.label("L2W_nob7")
    a.vmwait(("w", 1))
    wreads(1)
    a("s_waitcnt lgkmcnt(0)")
    for i in [8] + clsC[opt.nc:] + clsD:
        wload(i)
        if opt.thr2:
            a("s_and_b32 s42, s46, 5")
            a(f"s_cbranch_scc1 L2W_nt{i}")
            a(f"s_waitcnt vmcnt({opt.thr2})")
            a.label(f"L2W_nt{i}")
    a("s_cmp_ge_u32 s45, 2")
    a("s_cbranch_scc1 L2W_no19")
    wload(OPT)
    a.label("L2W_no19")
    a(f"s_cmp_lg_u32 s46, {K_IDLE}")
    a("s_cbranch_scc1 L2W_nopf")
    a("s_sub_u32 s42, s55, 4")
    a("s_lshl_b32 s42, s42, 2")
    a("s_add_u32 s42, s42, s45")
    if opt.xrot:
        a("s_lshl_b32 s43, s2, 1")
        a("s_add_u32 s42, s42, s43")
        a("s_and_b32 s42, s42, 15")
    a(f"s_mul_i32 s42, s42, {96*1024}")
    a(f"v_lshrrev_b32 v{t0}, 1, v1")
    a(f"v_lshlrev_b32 v{t0}, 10, v{t0}")
    a(f"v_and_b32 v{t1}, 1, v1")
    a(f"v_lshl_add_u32 v{t0}, v{t1}, 7, v{t0}")
    for k in range(0 if opt.rowtouch else 3):
        for c in range(opt.tcb):
            a(f"buffer_load_dword v250, v{t0}, s[28:31], s42 offen offset:{256*c + (512 if opt.cbx & 4 else 0)}")
        a("s_add_u32 s42, s42, 0x8000")
    for rep in range(opt.rt3):
        a("s_waitcnt vmcnt(0)")
        a(f"s_sub_u32 s43, s42, {3*0x8000}")
        a(f"v_lshlrev_b32 v{t0}, 10, v1")
        a(f"buffer_load_dword v250, v{t0}, s[28:31], s43 offen offset:384 sc1")
        a("s_add_u32 s43, s43, 0x8000")
        a(f"buffer_load_dword v250, v{t0}, s[28:31], s43 offen offset:384 sc1")
    if opt.codepf2:
        a("s_waitcnt vmcnt(0)")
        a("s_getpc_b64 s[72:73]")
        a.label("L_pcref2")
        a(f"s_sub_u32 s72, s72, L_pcref2-{NAME}_kernel")
        a("s_subb_u32 s73, s73, 0")
        a(f"s_mov_b32 s74, L_exit-{NAME}_kernel")
        a("s_mov_b32 s75, 0x20000")
        a("s_lshl2_add_u32 s42, s55, s45")
        a("s_and_b32 s42, s42, 7")
        a("s_mul_i32 s42, s42, 6400")
        a(f"v_lshlrev_b32 v{t0}, 7, v1")
        a(f"buffer_load_dword v250, v{t0}, s[72:75], s42 offen sc1")
    if opt.stamps:
        a("s_waitcnt vmcnt(0)")
    a.label("L2W_nopf")
    stamp(a, opt)
    a.vm = []

    spins = []

    def issue1(i):
        h = HF + 8 * (i % HR)
        a(f"s_bitcmp1_b32 s60, {i}")
        a(f"s_cbranch_scc0 L2W_i{i}_spin")
        a.label(f"L2W_i{i}_ok")
        spins.append(i)
        prod(i, 40, 12)
        a.vmop(f"buffer_load_dwordx4 {vr(h,4)}, v{VH0}, s[32:35], s40 offen sc1", ("h", i))

    def issue2(i):
        h = HF + 8 * (i % HR)
        a.vmop(f"buffer_load_dwordx4 {vr(h+4,4)}, v{VH1}, s[32:35], s40 offen sc1", ("h", i))

    if opt.alw:
        a("s_branch L2W_al")
        a.l.append(".p2align 12")
        a.label("L2W_al")
    a("s_waitcnt vmcnt(0)")
    a(f"s_mov_b32 m0, {RH}")
    wreads(2)
    for i in range(LA):
        issue1(i)
        issue2(i)
        if i == 0:
            stamp(a, opt)
    TM = opt.tm
    for i in range(NI - TM):
        a.vmwait(("h", i))
        if i == 0:
            stamp(a, opt)
        if i >= 2:
            a.dswait(("r", i))
        f = WF + 8 * (i % WR)
        h = HF + 8 * (i % HR)
        for L in range(4):
            lt, ln = L & 1, L >> 1
            acc = vr(ACB + 16 * L, 16)
            if i == OPT:
                a("s_cmp_ge_u32 s45, 2")
                a(f"s_cbranch_scc1 L2W_skip{L}")
            a(f"{MF32} {acc}, {vr(f+4*ln,4)}, {vr(h+4*lt,4)}, {'0' if i == 0 else acc}")
            if i == OPT:
                a.label(f"L2W_skip{L}")
            if L == 0 and i + 3 < NI:
                wreads(i + 3)
            if L == 1 and i + LA < NI:
                issue1(i + LA)
            if L == 2 and i + LA < NI:
                issue2(i + LA)
                if i + LA == opt.zbar:
                    a("s_barrier")
        if opt.fine2 and i % 4 == 3:
            stamp(a, opt)
    assert TM <= 4 and TM <= LA
    if TM == 4:
        wreads(NI - 1)
    a(f"v_lshlrev_b32 v{t0}, 4, v1")
    a(f"v_add_u32 v{t0}, s59, v{t0}")

    def pw(L):
        for q in range(4):
            p = 4 * L + q
            a(f"ds_write_b128 v{t0}, {vr(ACB+16*L+4*q,4)} offset:{(p>>1)*8192 + (p&1)*1024}")

    for L in range(4):
        lt, ln = L & 1, L >> 1
        acc = vr(ACB + 16 * L, 16)
        for k, i in enumerate(range(NI - TM, NI)):
            if L == 0:
                a.vmwait(("h", i))
                a.dswait(("r", i))
            f = WF + 8 * (i % WR)
            h = HF + 8 * (i % HR)
            a(f"{MF32} {acc}, {vr(f+4*ln,4)}, {vr(h+4*lt,4)}, {acc}")
            if L > 0 and k == 1:
                a("s_nop 9")
                pw(L - 1)
    stamp(a, opt)
    a("s_nop 7")
    a("s_nop 3")
    if TM >= 2:
        pw(3)
    else:
        for L in range(4):
            pw(L)
    a("s_waitcnt lgkmcnt(0)")
    a("s_barrier")
    stamp_flush(a, opt, "L")
    a("s_endpgm")
    for i in spins:
        a.label(f"L2W_i{i}_spin")
        a(f"ds_read2_b32 {vr(t0,2)}, v{VRH} offset0:0 offset1:16")
        a("s_waitcnt lgkmcnt(0)")
        a(f"v_min_u32 v{t0}, v{t0}, v{t1}")
        a(f"v_cmp_ge_u32 vcc, v{t0}, v6")
        a("s_mov_b32 s60, vcc_lo")
        a(f"s_bitcmp1_b32 s60, {i}")
        a(f"s_cbranch_scc1 L2W_i{i}_ok")
        if opt.wpoll and i < LA:
            a("s_cmp_lg_u32 s61, 0")
            a(f"s_cbranch_scc1 L2W_i{i}_spin")
            a("s_mov_b64 exec, 0xff")
            a("buffer_load_dwordx4 v8, s[36:39], s62 offen sc1 lds")
            a("s_mov_b64 exec, -1")
            a("s_waitcnt vmcnt(0)")
        if opt.ssleep:
            a(f"s_sleep {opt.ssleep}")
        a(f"s_branch L2W_i{i}_spin")


C_VA, C_VX, C_VB, C_VST, C_VGW, C_VFD = 2, 6, 10, 14, 15, 19
C_T0, C_T1, C_T2 = 20, 21, 22
C_K1, C_K2 = 24, 26
C_WF, C_XF, C_ACC, C_TT, C_TT2, C_CF, C_SF = 28, 52, 116, 88, 100, 212, 220


def dft32_consts(a):
    t0, t1, t2 = C_T0, C_T1, C_T2
    tc, ts = 96, 112
    a(f"v_and_b32 v{t0}, 15, v1")
    a(f"v_cvt_f32_u32 v{t0}, v{t0}")
    a(f"v_mul_f32 v{t0}, {f2u(1.0/32):#x}, v{t0}")
    a(f"v_lshrrev_b32 v{t1}, 4, v1")
    a(f"v_cvt_f32_u32 v{t1}, v{t1}")
    a(f"v_mul_f32 v{t1}, 4.0, v{t1}")
    for rho in range(2):
        if rho:
            a(f"v_add_f32 v{t0}, 0.5, v{t0}")
        a(f"v_mul_f32 v{t2}, v{t0}, v{t1}")
        for sg in range(8):
            s1c = 16 * (sg >> 2) + (sg & 3)
            a(f"v_fmamk_f32 v{tc+8*rho+sg}, v{t0}, {f2u(float(s1c)):#x}, v{t2}")
    for i in range(16):
        a(f"v_fract_f32 v{tc+i}, v{tc+i}")
    for i in range(16):
        a(f"v_sin_f32 v{ts+i}, v{tc+i}")
    for i in range(16):
        a(f"v_cos_f32 v{tc+i}, v{tc+i}")
    a("s_nop 0")
    for i in range(8):
        a(f"v_cvt_pk_bf16_f32 v{C_CF+i}, v{tc+2*i}, v{tc+2*i+1}")
        a(f"v_cvt_pk_bf16_f32 v{C_SF+i}, v{ts+2*i}, v{ts+2*i+1}")


NPK = 0


def ffn_epi(p):
    A, TT = C_ACC + 16 * p, 244
    r = []
    if p < NPK:
        r += [f"v_mul_f32 v{TT+v}, v{A+v}, v{A+v}" for v in range(8)]
        r += [f"v_fma_f32 v{TT+v}, v{TT+v}, v{C_K2}, v{C_K1}" for v in range(8)]
        r += [f"v_mul_f32 v{TT+v}, v{TT+v}, v{A+v}" for v in range(8)]
        r += [f"v_exp_f32 v{TT+v}, v{TT+v}" for v in range(8)]
        r += [f"v_mul_f32 v{A+8+v}, v{A+v}, v{A+8+v}" for v in range(8)]
        r += [f"v_add_f32 v{TT+v}, 1.0, v{TT+v}" for v in range(8)]
        r += [f"v_rcp_f32 v{TT+v}, v{TT+v}" for v in range(8)]
        r += [f"v_mul_f32 v{A+8+v}, v{A+8+v}, v{TT+v}" for v in range(8)]
        for i in (0, 2, 1, 3):
            r.append(f"v_cvt_pk_bf16_f32 v{A+i}, v{A+8+2*i}, v{A+8+2*i+1}")
        r.append(f"v_permlane16_swap_b32 v{A}, v{A+2}")
        r.append("s_nop 0")
        r.append(f"v_permlane16_swap_b32 v{A+1}, v{A+3}")
        so = "s43" if p & 1 else "s42"
        r.append(f"buffer_store_dwordx4 {vr(A,4)}, v{C_VST}, s[32:35], {so} offen offset:{(p>>1)*1024} sc1")
        return r
    for v in range(0, 8, 2):
        r.append(f"v_pk_mul_f32 {vr(TT+v,2)}, {vr(A+v,2)}, {vr(A+v,2)}")
    for v in range(0, 8, 2):
        r.append(f"v_pk_fma_f32 {vr(TT+v,2)}, {vr(TT+v,2)}, {vr(C_K2,2)}, {vr(C_K1,2)}")
    for v in range(0, 8, 2):
        r.append(f"v_pk_mul_f32 {vr(TT+v,2)}, {vr(TT+v,2)}, {vr(A+v,2)}")
    for v in range(8):
        r.append(f"v_exp_f32 v{TT+v}, v{TT+v}")
    for v in range(0, 8, 2):
        r.append(f"v_pk_mul_f32 {vr(A+8+v,2)}, {vr(A+v,2)}, {vr(A+8+v,2)}")
    for v in range(0, 8, 2):
        r.append(f"v_pk_add_f32 {vr(TT+v,2)}, {vr(TT+v,2)}, 1.0 op_sel_hi:[1,0]")
    for v in range(8):
        r.append(f"v_rcp_f32 v{TT+v}, v{TT+v}")
    for v in range(0, 8, 2):
        r.append(f"v_pk_mul_f32 {vr(A+8+v,2)}, {vr(A+8+v,2)}, {vr(TT+v,2)}")
    for i in (0, 2, 1, 3):
        r.append(f"v_cvt_pk_bf16_f32 v{A+i}, v{A+8+2*i}, v{A+8+2*i+1}")
    r.append(f"v_permlane16_swap_b32 v{A}, v{A+2}")
    r.append("s_nop 0")
    r.append(f"v_permlane16_swap_b32 v{A+1}, v{A+3}")
    so = "s43" if p & 1 else "s42"
    r.append(f"buffer_store_dwordx4 {vr(A,4)}, v{C_VST}, s[32:35], {so} offen offset:{(p>>1)*1024} sc1")
    return r


def spec_epi(p):
    A, TT = C_ACC + 16 * p, (C_TT if p & 1 else C_TT2)
    r = []
    for i in range(8):
        r.append(f"v_cvt_pk_bf16_f32 v{TT+i}, v{A+2*i}, v{A+2*i+1}")
    for i in range(4):
        r.append(f"v_cvt_pk_bf16_f32 v{TT+8+i}, -v{A+8+2*i}, -v{A+8+2*i+1}")
    pa, pb, pn = vr(TT, 4), vr(TT + 4, 4), vr(TT + 8, 4)
    for rho in range(2):
        zr = vr(A + 4 * rho, 4)
        r.append(f"{MF16} {zr}, {vr(C_CF+4*rho,4)}, {pa}, 0")
        r.append(f"{MF16} {zr}, {vr(C_SF+4*rho,4)}, {pb}, {zr}")
    for rho in range(2):
        zm = vr(A + 8 + 4 * rho, 4)
        r.append(f"{MF16} {zm}, {vr(C_SF+4*rho,4)}, {pa}, 0")
        r.append(f"{MF16} {zm}, {vr(C_CF+4*rho,4)}, {pn}, {zm}")
    return r


def spec_pack(p):
    A = C_ACC + 16 * p
    r = [f"v_cvt_pk_bf16_f32 v{A+rg}, v{A+rg}, v{A+8+rg}" for rg in range(8)]
    r += [f"ds_write_b128 v{2+(p&1)}, {vr(A+4*rho,4)} offset:{(2*(p>>1)+rho)*4096}" for rho in range(2)]
    return r


def p1_compute(a, opt, kind):
    T = {"ffn6": 6, "spec6": 6, "spec4g": 4, "ffn8": 8}[kind]
    hasg = kind == "spec4g"
    lab_kind = kind
    kind = "spec" if kind.startswith("spec") else kind
    a.ds = []
    VA, VX, VST, VGW, VFD = C_VA, C_VX, C_VST, C_VGW, C_VFD
    P = T // 2
    t0, t1, t2 = C_T0, C_T1, C_T2
    WF, XF, ACC = C_WF, C_XF, C_ACC
    GACC = ACC + 64
    a.label(f"L1C_{lab_kind}")
    a(f"s_mul_i32 s41, s41, {P}")
    for pl in range(P):
        a(f"s_add_u32 s42, s41, {pl}")
        a("s_lshl_b32 s42, s42, 5")
        a(f"v_xor_b32 v{VA+pl}, s42, v{C_VB}")
    if kind == "spec":
        a(f"v_lshrrev_b32 v{t1}, 4, v1")
        a(f"v_mul_u32_u24 v{t1}, {4*ZR_B}, v{t1}")
        a(f"v_and_b32 v{t0}, 15, v1")
        a(f"v_lshl_add_u32 v{VST}, v{t0}, 4, v{t1}")
        if hasg:
            a(f"v_lshrrev_b32 v{t0}, 4, v1")
            a(f"v_lshlrev_b32 v{t0}, 4, v{t0}")
            a(f"v_and_b32 v{t1}, 1, v1")
            a(f"v_lshl_add_u32 v{t0}, v{t1}, 10, v{t0}")
            a(f"v_add_u32 v{t2}, {GW_LDS}, v{t0}")
        srd(a, 32, 78, 79, Z_SIZE, Z_OFF)
        a("s_mul_i32 s42, s22, 96")
        a(f"s_mul_i32 s43, s21, {EP}")
        a("s_add_u32 s42, s42, s43")
        a("s_lshr_b32 s43, s45, 1")
        a("s_lshl_b32 s43, s43, 4")
        a("s_add_u32 s42, s42, s43")
        a("s_lshl_b32 s42, s42, 4")
        a("s_and_b32 s43, s45, 1")
        a(f"s_mul_i32 s43, s43, {16*ZR_B}")
        a("s_add_u32 s42, s42, s43")
    else:
        for i in range(2):
            a(f"v_mov_b32 v{C_K1+i}, {f2u(C1):#x}")
            a(f"v_mov_b32 v{C_K2+i}, {f2u(C2):#x}")
        a(f"v_lshlrev_b32 v{VST}, 4, v1")
        srd(a, 32, 78, 79, H_SIZE, H_OFF)
        a("s_lshl3_add_u32 s44, s22, s41")
        a(f"s_mul_i32 s42, s23, {HS}")
        a("s_add_u32 s42, s42, s44")
        a("s_lshl_b32 s42, s42, 10")
        a("s_xor_b32 s43, s23, 32")
        a(f"s_mul_i32 s43, s43, {HS}")
        a("s_add_u32 s43, s43, s44")
        a("s_lshl_b32 s43, s43, 10")
    stamp(a, opt)

    tail = 0 if kind == "spec" else opt.tail
    units = []
    for s in range(8):
        us = []
        if tail == 2 and s == 7:
            continue
        if tail == 2 and s == 6:
            for p in range(P):
                for s_ in (6, 7):
                    us += [dict(s=s_, p=p, frags=[(0, 0), (0, 1)]), dict(s=s_, p=p, frags=[(1, 0), (1, 1)], upd=True)]
            us[2]["open"] = True
            us[2]["bar"] = True
            us[0]["open"] = True
            us[0]["bar"] = True
            units += us
            continue
        if s == 0 and opt.split0:
            us += [dict(s=s, p=p, frags=[(0, 0), (1, 0)]) for p in range(P)]
            us += [dict(s=s, p=p, frags=[(0, 1), (1, 1)], upd=True, bar=(p == 0)) for p in range(P)]
            if hasg:
                us.append(dict(s=s, p=None))
        else:
            if hasg:
                us.append(dict(s=s, p=None))
            for p in range(P):
                us += [dict(s=s, p=p, frags=[(0, 0), (0, 1)]), dict(s=s, p=p, frags=[(1, 0), (1, 1)], upd=True)]
        us[0]["open"] = True
        us[0]["bar"] = True
        units += us
    N = len(units)
    LA = 2

    def delta(s):
        return SSZ if (s % NB) < 2 else -2 * SSZ

    def upd(reg, s):
        d = delta(s)
        return f"v_add_u32 v{reg}, {d}, v{reg}" if d > 0 else f"v_subrev_u32 v{reg}, {-d}, v{reg}"

    def side_ops(n):
        U = units[n]
        s = U["s"]
        f = WF + 8 * (n % 3)
        ops = []
        if U.get("open"):
            xb = XF + 32 * (s & 1)
            for g in range(2):
                for rt in range(2):
                    for ks in range(2):
                        ops.append((f"ds_read_b128 {vr(xb+16*g+8*rt+4*ks,4)}, v{VX+2*g+ks} offset:{rt*2048}", ("x", s)))
        if U["p"] is None:
            ops.append(("s_lshl_b32 s44, s49, 7", None))
            ops.append((f"v_add_u32 v{VGW}, s44, v{t2}", None))
            ops.append((f"ds_read_b128 {vr(f,4)}, v{VGW}", ("u", n)))
            ops.append((f"ds_read_b128 {vr(f+4,4)}, v{VGW} offset:64", ("u", n)))
            if opt.pairord:
                ops.append(("s_xor_b32 s49, s49, s50", None))
            ops.append(("s_add_u32 s49, s49, 1", None))
            ops.append(("s_and_b32 s49, s49, 7", None))
            if opt.pairord:
                ops.append(("s_xor_b32 s49, s49, s50", None))
        else:
            for k, (m, ks) in enumerate(U["frags"]):
                off = m * 16384 + ks * 8192
                ops.append((f"ds_read_b64_tr_b16 {vr(f+4*k,2)}, v{VA+U['p']} offset:{off}", ("u", n)))
                ops.append((f"ds_read_b64_tr_b16 {vr(f+4*k+2,2)}, v{VA+U['p']} offset:{off+1024}", ("u", n)))
        if U.get("open") and s < 7:
            ops += [(upd(VX + ks, s), None) for ks in range(4)]
        if U.get("upd") and s < 7:
            ops.append((upd(VA + U["p"], s), None))
        return ops

    def emit(op):
        if op[1] is None:
            a(op[0])
        else:
            a.dsop(op[0], op[1])

    epi = spec_epi if kind == "spec" else ffn_epi
    fill = []
    a("s_barrier")
    stamp(a, opt)
    for n in range(LA):
        for op in side_ops(n):
            emit(op)
    pend = []
    for n in range(N):
        U = units[n]
        s = U["s"]
        boundary = n + LA == N or (n + LA < N and units[n + LA].get("bar"))
        carry = len(pend)
        if boundary and carry:
            for _ in range(carry):
                emit(pend.pop(0))
            carry = 0
        if n + LA < N:
            pend += side_ops(n + LA)
        a.dswait(("u", n))
        f = WF + 8 * (n % 3)
        xb = XF + 32 * (s & 1)
        frags = U.get("frags", [(0, 0), (0, 1)])
        NM = 4 if U["p"] is None else 8
        bpos = min(opt.bpos, NM - 2)
        for j in range(NM):
            g, rt, k = j >> 2, (j >> 1) & 1, j & 1
            if opt.mord == 1 and NM == 8:
                g, rt, k = (j >> 1) & 1, j & 1, j >> 2
            if opt.mord == 2 and NM == 8:
                k = k ^ (rt & 1) if not (s == 0) else k
            m, ks = frags[k]
            if U["p"] is None:
                acc = vr(GACC + 4 * rt, 4)
            else:
                acc = vr(ACC + 16 * (2 * U["p"] + g) + 8 * m + 4 * rt, 4)
            w_, x_ = vr(f + 4 * k, 4), vr(xb + 16 * g + 8 * rt + 4 * ks, 4)
            srcc = "0" if (s == 0 and ks == 0) else acc
            if kind == "spec":
                a(f"{MF16} {acc}, {x_}, {w_}, {srcc}")
            else:
                a(f"{MF16} {acc}, {w_}, {x_}, {srcc}")
            if boundary:
                if j < bpos:
                    cnt = -(-carry // (bpos - j)) if carry else 0
                    carry -= cnt
                else:
                    cnt = 2
                if j == bpos:
                    a("s_waitcnt lgkmcnt(0)")
                    a("s_barrier")
                    if opt.fine:
                        stamp(a, opt)
            else:
                cnt = max(-(-len(pend) // (NM - j)), 1)
            cnt = min(cnt, len(pend))
            for _ in range(min(cnt, len(pend))):
                emit(pend.pop(0))
            k_ = min(cnt, 2) if opt.npk else 0
            while fill and k_ < opt.fpg and fill[0][0] <= a.n and not (opt.npk and fill[0][1].startswith("v_pk")):
                ins_ = fill.pop(0)[1]
                a(ins_)
                k_ += 2 if ins_.startswith(("v_exp", "v_rcp")) else 1
            if tail and s == 7 and U.get("upd") and j in (3, 7):
                fill += [(a.n + 9, i_) for i_ in epi(2 * U["p"] + (j >> 2))]
    assert not pend
    stamp(a, opt)
    if tail:
        while fill:
            at, ins = fill.pop(0)
            if at > a.n:
                a(f"s_nop {min(at - a.n - 1, 15)}")
                a.n = at
            a(ins)
    else:
        a("s_nop 7")
        if kind != "spec":
            hp = min(opt.hp, T - 1)
            for p in range(T):
                for ins in epi(p):
                    a(ins)
                if opt.half and p == 0:
                    srd(a, 36, 78, 79, F_SIZE, F_OFF)
                    a(f"v_mov_b32 v{t1}, 1")
                    a(f"v_lshlrev_b32 v{t2}, 7, v1")
                if opt.half and p == hp:
                    a(f"s_waitcnt vmcnt({hp - 3})")
                    a("s_mov_b64 exec, " + opt.fmask)
                    a(f"buffer_store_dword v{t1}, v{t2}, s[36:39], s63 offen sc1")
                    a("s_mov_b64 exec, -1")
        else:
            a(f"v_lshlrev_b32 v{t1}, 4, v1")
            a("s_lshl_b32 s43, s45, 10")
            a(f"s_add_u32 s43, s43, {SSZ}")
            a(f"v_add_u32 v{t0}, s43, v{t1}")
            a("s_lshl_b32 s43, s41, 13")
            a(f"v_add_u32 v2, s43, v{t0}")
            a("v_xor_b32 v3, 0x800, v2")
            a("s_lshl_b32 s43, s45, 12")
            a(f"s_add_u32 s43, s43, {SSZ}")
            a(f"v_add_u32 v{t1}, s43, v{t1}")
            if hasg:
                A, TT, ZR = GACC, C_TT, GACC + 8
                for i in range(4):
                    a(f"v_cvt_pk_bf16_f32 v{TT+i}, v{A+2*i}, v{A+2*i+1}")
                srd(a, 36, 78, 79, G_SIZE, G_OFF)
                for rho in range(2):
                    a(f"{MF16} {vr(ZR+4*rho,4)}, {vr(C_CF+4*rho,4)}, {vr(TT,4)}, 0")
                    a(f"{MF16} {vr(ZR+8+4*rho,4)}, {vr(C_SF+4*rho,4)}, {vr(TT,4)}, 0")
                for i in range(4):
                    a(f"v_lshlrev_b32 v{A+2*i}, 16, v{TT+i}")
                    a(f"v_and_b32 v{A+2*i+1}, 0xffff0000, v{TT+i}")
                for i in range(8):
                    a(f"v_mul_f32 v{A+i}, {f2u(-1.4426950408889634):#x}, v{A+i}")
                for i in range(8):
                    a(f"v_exp_f32 v{A+i}, v{A+i}")
                for i in range(8):
                    a(f"v_add_f32 v{A+i}, 1.0, v{A+i}")
                for i in range(8):
                    a(f"v_rcp_f32 v{A+i}, v{A+i}")
                for rg in range(8):
                    a(f"v_cvt_pk_bf16_f32 v{ZR+rg}, v{ZR+rg}, v{ZR+8+rg}")
                for rho in range(2):
                    a(f"ds_write_b128 v{t0}, {vr(ZR+4*rho,4)} offset:{(2*T+rho)*4096}")
                for i in range(4):
                    a(f"v_cvt_pk_bf16_f32 v{TT+i}, v{A+2*i}, v{A+2*i+1}")
                for i in range(4):
                    a(f"v_lshlrev_b32 v{A+2*i}, 16, v{TT+i}")
                    a(f"v_and_b32 v{A+2*i+1}, 0xffff0000, v{TT+i}")
                a("s_lshl_b32 s43, s23, 7")
                a("s_mov_b32 exec_lo, 0x00010001")
                a("s_mov_b32 exec_hi, 0x00010001")
                a(f"buffer_store_dwordx4 {vr(A,4)}, v1, s[36:39], s43 offen sc1")
                a(f"buffer_store_dwordx4 {vr(A+4,4)}, v1, s[36:39], s43 offen offset:64 sc1")
                a("s_mov_b64 exec, -1")
            cv = [[x for x in epi(p) if not x.startswith("v_mfma")] for p in range(T)]
            mf = [[x for x in epi(p) if x.startswith("v_mfma")] for p in range(T)]
            for ins in cv[0]:
                a(ins)
            for p in range(T):
                side = (cv[p + 1] if p + 1 < T else ["s_nop 3", "s_nop 3", "s_nop 3"]) + (spec_pack(p - 1) if p > 0 else [])
                for i, ins in enumerate(mf[p]):
                    a(ins)
                    for _ in range(-(-len(side) // (8 - i))):
                        a(side.pop(0))
            if opt.fine4:
                stamp(a, opt)
            a("s_nop 7")
            for ins in spec_pack(T - 1):
                a(ins)
            if opt.fine4:
                stamp(a, opt)
            a("s_waitcnt lgkmcnt(0)")
            a("s_barrier")
            if opt.fine4:
                stamp(a, opt)
            NG = T // 2 + (1 if hasg else 0)
            for k in range(NG):
                for w in range(4):
                    a(f"ds_read_b128 {vr(WF+16*k+4*w,4)}, v{t1} offset:{k*16384 + w*1024}")
            for k in range(NG):
                R = WF + 16 * k
                a(f"s_waitcnt lgkmcnt({4*(NG-1-k)})")
                for i in range(4):
                    for j in range(i + 1, 4):
                        a(f"v_swap_b32 v{R+4*i+j}, v{R+4*j+i}")
                if opt.fine4:
                    stamp(a, opt)
                off = 512 * k
                if hasg and k == NG - 1:
                    a("s_cmp_ge_u32 s45, 2")
                    a("s_cbranch_scc1 L1C_no256")
                    a("s_mov_b32 exec_lo, 0x00020002")
                    a("s_mov_b32 exec_hi, 0x00020002")
                    off -= 16
                for b in range(4):
                    a(f"s_add_u32 s43, s42, {b*ZR_B}")
                    a(f"buffer_store_dwordx4 {vr(R+4*b,4)}, v{VST}, s[32:35], s43 offen offset:{off} sc1")
            if hasg:
                a("s_mov_b64 exec, -1")
                a.label("L1C_no256")
            if opt.fine4:
                stamp(a, opt)
            if not opt.lateb9:
                a("s_barrier")

    stamp(a, opt)
    a("s_branch L2C")


def p2_combine(a, opt):
    VFD = C_VFD
    t0, t1, t2 = C_T0, C_T1, C_T2
    VZ, VO, VG = 23, 24, 25
    ZF, ACY, PT, BF, TR = 160, 192, 96, 208, 2
    a.label("L2C")
    a("s_and_b32 s42, s45, 1")
    a("s_lshl_b32 s42, s42, 5")
    a("s_add_u32 s42, s42, s54")
    a("s_lshr_b32 s43, s45, 1")
    a("s_lshl_b32 s43, s43, 5")
    a("s_lshl_b32 s44, s51, 6")
    a("s_add_u32 s43, s43, s44")
    a(f"v_bfe_u32 v{t0}, v1, 2, 1")
    a(f"v_lshlrev_b32 v{t0}, 4, v{t0}")
    a(f"v_and_or_b32 v{t0}, v1, 3, v{t0}")
    a(f"v_bfe_u32 v{t1}, v1, 3, 2")
    a(f"v_lshlrev_b32 v{t1}, 2, v{t1}")
    a(f"v_add3_u32 v{t0}, v{t0}, v{t1}, s43")
    a(f"v_and_b32 v{t1}, 31, v1")
    a("s_lshl_b32 s44, s42, 7")
    a(f"v_lshl_add_u32 v{VG}, v{t1}, 2, s44")
    a(f"v_lshl_add_u32 v{t1}, v{t1}, 6, s42")
    a(f"v_lshrrev_b32 v{t2}, 5, v1")
    a(f"v_lshlrev_b32 v{VO}, 10, v{t1}")
    a(f"v_lshl_add_u32 v{VO}, v{t2}, 5, v{VO}")
    a("s_lshl_b32 s44, s43, 1")
    a(f"v_add_u32 v{VO}, s44, v{VO}")
    a("s_mov_b32 s64, s54")
    a("s_cmp_lt_u32 s51, 4")
    a("s_cbranch_scc1 L2C_nomirror")
    a(f"v_sub_u32 v{t0}, 0x200, v{t0}")
    a(f"v_sub_u32 v{t1}, 0x800, v{t1}")
    a(f"v_and_b32 v{t1}, 0x7ff, v{t1}")
    a("s_sub_u32 s64, 32, s54")
    a("s_and_b32 s64, s64, 31")
    a.label("L2C_nomirror")
    a(f"v_mul_u32_u24 v{VZ}, {8*EP*16}, v{t2}")
    a(f"v_lshl_add_u32 v{VZ}, v{t0}, 4, v{VZ}")
    a(f"s_mul_i32 s64, s64, {ZR_B}")
    a(f"v_cvt_f32_u32 v26, v{t1}")
    a(f"v_mul_f32 v26, {f2u(-1.0/2048):#x}, v26")
    a(f"v_cvt_f32_u32 v27, v{t2}")
    a(f"v_mul_f32 v27, {f2u(16.0):#x}, v27")
    a("v_mul_f32 v27, v26, v27")

    def trig(o):
        for q in range(8):
            ks_, qq = (8 * o + q) >> 2, q & 3
            a(f"v_fmamk_f32 v{TR+q}, v26, {f2u(float(2*ks_ + (qq&1) + 32*(qq>>1))):#x}, v27")
        for q in range(8):
            a(f"v_fract_f32 v{TR+q}, v{TR+q}")
        for q in range(8):
            a(f"v_sin_f32 v{TR+8+q}, v{TR+q}")
        for q in range(8):
            a(f"v_cos_f32 v{TR+q}, v{TR+q}")
        a("s_nop 0")
        for q in range(8):
            a(f"v_cvt_pk_bf16_f32 v{BF+8*o+q}, v{TR+q}, v{TR+8+q}")

    a("s_bitcmp1_b32 s65, 1")
    a("s_cbranch_scc1 L2C_t23s")
    trig(2)
    trig(3)
    a.label("L2C_t23s")
    srd(a, 36, 78, 79, F_SIZE, F_OFF)
    a(f"v_mov_b32 v{t0}, {FLG}")
    a(f"v_mov_b32 v{t1}, 1")
    a(f"v_lshlrev_b32 v{t2}, 7, v1")
    a("v_mov_b32 v28, 2")
    a("s_waitcnt vmcnt(0)")
    stamp(a, opt)
    a("s_bitcmp1_b32 s65, 0")
    a("s_cbranch_scc0 L2C_noh")
    a("s_mov_b64 exec, " + opt.fmask)
    a(f"buffer_store_dword v28, v{t2}, s[36:39], s63 offen sc1")
    a.label("L2C_noh")
    a("s_bitcmp1_b32 s65, 1")
    a("s_cbranch_scc0 L2C_noz")
    a("s_mov_b64 exec, 1")
    a(f"ds_add_rtn_u32 v{VFD}, v{t0}, v{t1}")
    a("s_and_b32 s42, s22, 1")
    a("s_lshl4_add_u32 s42, s42, s21")
    a(f"s_lshl_b32 s42, s42, {opt.lr+7}")
    a("s_lshr_b32 s43, s22, 1")
    a("s_lshl_b32 s43, s43, 7")
    a("s_add_u32 s42, s42, s43")
    a("s_waitcnt lgkmcnt(0)")
    a(f"v_cmp_ne_u32 vcc, 3, v{VFD}")
    a("s_cbranch_vccnz L2C_noz")
    a(f"buffer_store_dword v28, v{t2}, s[36:39], s42 offen offset:256 sc1")
    a.label("L2C_noz")
    a("s_mov_b64 exec, -1")
    if opt.lateb9:
        a("s_bitcmp1_b32 s65, 1")
        a("s_cbranch_scc0 L2C_nob9")
        a("s_barrier")
        a.label("L2C_nob9")
    a(f"v_and_b32 v{VFD}, 15, v1")
    a(f"v_min_u32 v{VFD}, 10, v{VFD}")
    a(f"v_and_or_b32 v{VFD}, v1, 16, v{VFD}")
    a(f"s_mov_b32 s43, {RH}")
    a(f"v_lshl_add_u32 v{t0}, v{VFD}, 2, s43")
    a("v_min_u32 v28, 47, v1")
    a(f"s_mov_b32 s43, {RZ}")
    a("v_lshl_add_u32 v28, v28, 2, s43")
    a(f"s_lshl_b32 s42, s54, {opt.lr}")
    a(f"s_and_b32 s43, s51, {opt.cmask}")
    a("s_add_u32 s42, s42, s43")
    a("s_lshl_b32 s42, s42, 7")
    a(f"v_lshl_add_u32 v{t2}, v1, 4, s42")
    a(f"s_mov_b32 m0, {RH}")

    def hpoll():
        a("s_mov_b64 exec, 0xff")
        a(f"buffer_load_dwordx4 v{t2}, s[36:39], 0 offen sc1 lds")
        a("s_mov_b64 exec, -1")

    def zpoll():
        a("s_mov_b32 exec_hi, 0xffff")
        a(f"buffer_load_dword v{t2}, s[36:39], 0 offen sc1 lds")
        a("s_mov_b64 exec, -1")

    a("s_cmp_lg_u32 s45, 0")
    a("s_cbranch_scc1 L2C_rest")
    a.label("L2C_wh")
    hpoll()
    a(f"s_waitcnt vmcnt({opt.pq})")
    if opt.psleep:
        a(f"s_sleep {opt.psleep}")
    a(f"ds_read_b32 v{VFD}, v{t0}")
    a("s_waitcnt lgkmcnt(0)")
    a(f"v_cmp_ne_u32 vcc, 2, v{VFD}")
    a("s_cbranch_vccnz L2C_wh")
    a(f"v_and_b32 v{t2}, 31, v1")
    a(f"v_lshlrev_b32 v{t2}, {opt.lr+7}, v{t2}")
    a(f"v_lshrrev_b32 v{VFD}, 5, v1")
    a(f"v_lshl_add_u32 v{t2}, v{VFD}, 7, v{t2}")
    a(f"s_mov_b32 m0, {RZ}")
    a(f"v_add_u32 v{t2}, 0x100, v{t2}")
    zpoll()
    a.label("L2C_rest")
    trig(0)
    trig(1)
    a("s_bitcmp1_b32 s65, 1")
    a("s_cbranch_scc0 L2C_t23d")
    trig(2)
    trig(3)
    a.label("L2C_t23d")
    srd(a, 32, 78, 79, Z_SIZE, Z_OFF)
    srd(a, 24, 78, 79, G_SIZE, G_OFF)
    srd(a, 28, 18, 19, 2048 * 1024)
    a("s_barrier")
    a("s_branch L2C_wz1")
    a.label("L2C_wz")
    a("s_cmp_lg_u32 s45, 0")
    a("s_cbranch_scc1 L2C_wz1")
    a("s_waitcnt vmcnt(0)")
    zpoll()
    a(f"s_sleep {opt.zsleep}")
    a.label("L2C_wz1")
    a(f"ds_read_b32 v{VFD}, v28")
    a("s_waitcnt lgkmcnt(0)")
    a(f"v_cmp_ne_u32 vcc, 2, v{VFD}")
    a("s_cbranch_vccnz L2C_wz")

    def zloads():
        stamp(a, opt)
        a(f"buffer_load_dword v10, v{VG}, s[24:27], 0 offen sc1")
        for ks in range(8):
            if not opt.noz:
                a(f"buffer_load_dwordx4 {vr(ZF+4*ks,4)}, v{VZ}, s[32:35], s64 offen sc1")
            if ks < 7:
                a(f"s_add_u32 s64, s64, {EP*16}")

    zloads()
    a(f"v_lshlrev_b32 v{t0}, 4, v1")
    a("s_lshl_b32 s42, s45, 14")
    a(f"v_add_u32 v{t0}, s42, v{t0}")
    for ks in range(8):
        a(f"s_waitcnt vmcnt({7-ks})")
        acc = vr(ACY, 16)
        a(f"{MF32} {acc}, {vr(ZF+4*ks,4)}, {vr(BF+4*ks,4)}, {'0' if ks == 0 else acc}")
    a("v_sub_f32 v11, 1.0, v10")
    a("v_cvt_pk_bf16_f32 v11, v11, v11")
    a("v_and_b32 v12, 0xffff0000, v11")
    a("v_and_b32 v13, 0xffff0000, v11")
    a("s_nop 7")
    a("s_nop 1")
    for rg in range(16):
        a(f"v_mul_f32 v{ACY+rg}, v10, v{ACY+rg}")
    stamp(a, opt)
    a("s_barrier")
    for hf in range(2):
        for w in range(4):
            for q in (2 * hf, 2 * hf + 1):
                if hf == 1 and w == 3 and q == 3:
                    a("s_waitcnt lgkmcnt(7)")
                a(f"ds_read_b128 {vr(PT+16*w+4*q,4)}, v{t0} offset:{w*2048 + (q>>1)*8192 + (q&1)*1024}")
    for hf in range(2):
        if hf:
            a("s_waitcnt lgkmcnt(0)")
        rr = range(8 * hf, 8 * hf + 8, 2)
        for rg in rr:
            a(f"v_pk_add_f32 {vr(PT+rg,2)}, {vr(PT+rg,2)}, {vr(PT+16+rg,2)}")
        for rg in rr:
            a(f"v_pk_add_f32 {vr(PT+32+rg,2)}, {vr(PT+32+rg,2)}, {vr(PT+48+rg,2)}")
        for rg in rr:
            a(f"v_pk_add_f32 {vr(PT+rg,2)}, {vr(PT+rg,2)}, {vr(PT+32+rg,2)}")
        for rg in rr:
            a(f"v_pk_fma_f32 {vr(ACY+rg,2)}, {vr(PT+rg,2)}, v[12:13], {vr(ACY+rg,2)}")
        for i in range(4 * hf, 4 * hf + 4):
            a(f"v_cvt_pk_bf16_f32 v{32+i}, v{ACY+2*i}, v{ACY+2*i+1}")
        a(f"buffer_store_dwordx4 {vr(32+4*hf,4)}, v{VO}, s[28:31], 0 offen offset:{16*hf} {opt.ofl}")
    stamp(a, opt)
    stamp_flush(a, opt, "C")
    a("s_endpgm")


def compute_prologue(a, opt):
    t0, t1, t2 = C_T0, C_T1, C_T2
    if opt.pf:
        a(f"s_cmp_eq_u32 s46, {K_SPEC}")
        a("s_mov_b32 s47, 2752")
        a("s_cselect_b32 s47, 1024, s47")
        a("s_cmp_eq_u32 s22, 10")
        a("s_movk_i32 s40, 252")
        a("s_cselect_b32 s40, 188, s40")
        a(f"v_lshrrev_b32 v{t2}, 5, v1")
        a(f"v_bfe_u32 v{t0}, v1, 2, 3")
        a(f"v_lshl_add_u32 v{t0}, v{t2}, 7, v{t0}")
        a("s_lshl_b32 s44, s42, 3")
        a("s_add_u32 s44, s44, s55")
        a("s_lshl_b32 s44, s44, 3")
        a(f"v_add_u32 v{t0}, s44, v{t0}")
        a(f"v_mul_u32_u24 v{t0}, s47, v{t0}")
        a(f"v_and_b32 v{t1}, 3, v1")
        a(f"v_lshlrev_b32 v{t1}, 7, v{t1}")
        a(f"v_min_u32 v{t1}, s40, v{t1}")
        a("s_lshl_b32 s44, s22, 8")
        a(f"v_add3_u32 v{t0}, v{t0}, v{t1}, s44")
        a(f"v_and_b32 v{t1}, 31, v1")
        a(f"v_lshlrev_b32 v{t1}, 16, v{t1}")
        a(f"v_mul_u32_u24 v{t2}, 384, v{t2}")
        a("s_lshl_b32 s44, s23, 3")
        a("s_lshr_b32 s41, s2, 6")
        a("s_add_u32 s44, s44, s41")
        a("s_lshl_b32 s44, s44, 7")
        a(f"v_add3_u32 v{t1}, v{t1}, v{t2}, s44")
        a("s_lshl_b32 s40, s47, 6")
        a("s_mul_i32 s41, s40, 5")
        a("s_lshl_b32 s30, s47, 9")
        a("s_mov_b32 s31, 0x20000")
        a("s_waitcnt lgkmcnt(0)")
        srd(a, 24, 4, 5, 2048 * 1024)
        a(f"s_cmp_eq_u32 s46, {K_SPEC}")
        a("s_cselect_b64 s[12:13], s[8:9], s[12:13]")
        a("s_cselect_b64 s[14:15], s[10:11], s[14:15]")
        a("s_cmp_ge_u32 s45, 2")
        a("s_cselect_b64 s[28:29], s[14:15], s[12:13]")
        a(f"buffer_load_dword v29, v{t0}, s[28:31], s40 offen")
        a(f"buffer_load_dword v30, v{t1}, s[24:27], 0 offen offset:128")
        a(f"buffer_load_dword v31, v{t0}, s[28:31], s41 offen")
    a(f"v_lshlrev_b32 v{t0}, 3, v1")
    a(f"v_add_u32 v{t0}, {FLG}, v{t0}")
    a("v_mov_b32 v2, 0")
    a("v_mov_b32 v3, 0")
    a(f"ds_write_b64 v{t0}, v[2:3]")
    a("s_waitcnt lgkmcnt(0)")
    stamp(a, opt)
    a("s_and_b32 s63, s23, 31")
    a(f"s_lshl_b32 s63, s63, {opt.lr+5}")
    a("s_lshr_b32 s44, s23, 5")
    a("s_lshl_b32 s44, s44, 4")
    a("s_add_u32 s63, s63, s44")
    a("s_add_u32 s63, s63, s22")
    a("s_lshl_b32 s63, s63, 2")
    a(f"s_cmp_eq_u32 s46, {K_IDLE}")
    a("s_cbranch_scc1 L1C_idle")
    a(f"v_bfe_u32 v{t0}, v1, 2, 2")
    a(f"v_lshrrev_b32 v{t1}, 4, v1")
    a(f"v_lshl_add_u32 v{t1}, v{t1}, 3, v{t0}")
    a(f"v_lshlrev_b32 v{t1}, 8, v{t1}")
    a(f"v_bfe_u32 v{t0}, v1, 2, 3")
    a(f"v_lshl_add_u32 v{t1}, v{t0}, 5, v{t1}")
    a(f"v_and_b32 v{t0}, 3, v1")
    a(f"v_lshl_add_u32 v{C_VB}, v{t0}, 3, v{t1}")
    a(f"v_and_b32 v{t0}, 15, v1")
    a(f"v_lshrrev_b32 v{t1}, 1, v{t0}")
    a(f"v_lshrrev_b32 v{t2}, 4, v1")
    a(f"v_xor_b32 v{t1}, v{t1}, v{t2}")
    a(f"v_lshlrev_b32 v{t1}, 4, v{t1}")
    a(f"v_lshl_add_u32 v{t0}, v{t0}, 7, v{t1}")
    a(f"v_add_u32 v{C_VX}, s48, v{t0}")
    a(f"v_xor_b32 v{C_VX+1}, 64, v{C_VX}")
    a(f"v_xor_b32 v{C_VX+2}, 0x2000, v{C_VX}")
    a(f"v_xor_b32 v{C_VX+3}, 0x2040, v{C_VX}")
    if opt.pp:
        a.l.append("@@DISPATCH@@")
    a("s_mov_b32 s65, 1")
    a(f"s_cmp_eq_u32 s46, {K_6G}")
    a("s_cbranch_scc1 L1C_ffn6")
    a("s_cmp_lg_u32 s46, 0")
    a("s_cbranch_scc1 L1C_specs")


def idle_compute(a, opt):
    t0, t1, t2 = C_T0, C_T1, C_T2
    a.label("L1C_idle")
    a("s_mov_b32 s65, 0")
    srd(a, 24, 76, 77, 256)
    a(f"v_mov_b32 v{t1}, 0")
    a("s_cmp_lg_u32 s55, 4")
    a("s_cbranch_scc1 L1_noinit")
    srd(a, 36, 78, 79, F_SIZE, F_OFF)
    for i in range(4):
        a(f"v_mov_b32 v{32+i}, 0")
    a(f"v_lshlrev_b32 v{t0}, 4, v1")
    a("s_and_b32 s42, s2, 7")
    a("s_lshl_b32 s42, s42, 2")
    a("s_add_u32 s42, s42, s45")
    a("s_lshl_b32 s42, s42, 10")
    a(f"buffer_store_dwordx4 v[32:35], v{t0}, s[36:39], s42 offen sc1")
    a(f"v_mov_b32 v{t2}, 1")
    a.label("L1_noinit")
    if opt.tlb:
        srd(a, 32, 78, 79, 0x800000)
        srd(a, 28, 18, 19, 2048 * 1024)
        a(f"v_mul_u32_u24 v{t0}, {HS*1024}, v1")
        a(f"s_mov_b32 s42, {86*1024}")
        a(f"buffer_load_dword v249, v{t0}, s[32:35], s42 offen")
        a(f"v_min_u32 v{t0}, 36, v1")
        a(f"v_mul_u32_u24 v{t0}, {ZR_B}, v{t0}")
        a(f"v_cmp_gt_u32 vcc, 32, v1")
        a(f"v_mov_b32 v248, {0x7C0000 - (Z_OFF + ZR_B - 128)}")
        a(f"s_mov_b32 s42, {Z_OFF + ZR_B - 128}")
        a(f"v_cndmask_b32 v{t0}, v248, v{t0}, vcc")
        a(f"buffer_load_dword v248, v{t0}, s[32:35], s42 offen")
        a(f"v_lshlrev_b32 v{t0}, 15, v1")
        a(f"buffer_load_dword v247, v{t0}, s[28:31], 0 offen")
    if opt.codepf:
        a("s_getpc_b64 s[40:41]")
        a.label("L_pcref")
        a(f"s_sub_u32 s40, s40, L_pcref-{NAME}_kernel")
        a("s_subb_u32 s41, s41, 0")
        a("s_lshl2_add_u32 s42, s55, s45")
        a("s_and_b32 s42, s42, 7")
        a("s_mul_i32 s42, s42, 6400")
        a(f"v_lshl_add_u32 v{t0}, v1, 7, s42")
        a(f"v_min_u32 v{t0}, L_exit-{NAME}_kernel, v{t0}")
        a("v_mov_b32 v37, s41")
        a(f"v_add_co_u32 v36, vcc, s40, v{t0}")
        a("s_nop 1")
        a("v_addc_co_u32 v37, vcc, 0, v37, vcc")
        a("global_load_dword v250, v[36:37], off")
    a("s_waitcnt vmcnt(0)")
    a("s_cmp_lg_u32 s55, 4")
    a("s_cbranch_scc1 L1_noinit2")
    a("s_mov_b64 exec, 1")
    a(f"buffer_atomic_add v{t2}, v{t1}, s[24:27], 0 offen sc1")
    a("s_mov_b64 exec, -1")
    a.label("L1_noinit2")
    a("s_barrier")
    a("s_cmp_lg_u32 s45, 0")
    a("s_cbranch_scc1 L2C")
    a.label("L1C_idle_go")
    a(f"s_sleep {opt.gosleep}")
    a(f"buffer_load_dword v{t2}, v{t1}, s[24:27], 0 offen sc1")
    a("s_waitcnt vmcnt(0)")
    a(f"v_cmp_gt_u32 vcc, 32, v{t2}")
    a("s_cbranch_vccnz L1C_idle_go")
    a("s_branch L2C")


def decode_rest(a, opt, lab):
    a("s_cmp_eq_u32 s44, 3")
    a(f"s_cbranch_scc1 {lab}_3")
    a("s_mul_i32 s22, s42, 3")
    a("s_min_u32 s22, s22, 8")
    a("s_add_u32 s22, s22, s44")
    a("s_and_b32 s46, s42, s44")
    a("s_lshr_b32 s46, s46, 1")
    a(f"s_cbranch_scc0 {lab}_d")
    a("s_and_b32 s22, s42, 1")
    a(f"s_branch {lab}_d")
    a.label(f"{lab}_3")
    a("s_cmp_lt_u32 s55, 2")
    a("s_cselect_b32 s22, 10, 2")
    a("s_lshr_b32 s46, s55, 1")
    a("s_add_u32 s46, s46, 2")
    a(f"s_min_u32 s46, s46, {K_IDLE}")
    a.label(f"{lab}_d")


def kernel(a, opt):
    a.label(NAME + "_kernel")
    if opt.stamps:
        a("v_mov_b32 v255, 0")
        a("v_mov_b32 v253, 0")
        a("s_mov_b32 s89, 0")
        stamp(a, opt)
    a("s_load_dwordx2 s[24:25], s[0:1], 0")
    a("s_load_dwordx16 s[4:19], s[0:1], 24")
    a("s_load_dwordx4 s[76:79], s[0:1], 88")
    a("v_lshrrev_b32 v2, 6, v0")
    a("v_and_b32 v1, 63, v0")
    a("v_readfirstlane_b32 s20, v2")
    a("s_cmp_ge_u32 s2, 256")
    a("s_cbranch_scc1 L_exit")
    a("s_bfe_u32 s55, s2, 0x30003")
    a("s_bfe_u32 s42, s2, 0x20001")
    a("s_lshr_b32 s44, s2, 6")
    a("s_and_b32 s43, s55, 1")
    a("s_lshl1_add_u32 s43, s42, s43")
    a("s_cmp_eq_u32 s44, 3")
    a("s_cselect_b32 s21, s43, s55")
    if opt.q3:
        if opt.rmul:
            a(f"s_mul_i32 s40, s44, {opt.rmul}")
            a("s_mul_i32 s43, s42, 2")
            a("s_add_u32 s40, s40, s43")
            a("s_cmp_eq_u32 s44, 3")
        else:
            a(f"s_mul_i32 s40, s42, {opt.q3}")
    else:
        a(f"s_mul_i32 s40, s44, {opt.rmul}")
    a("s_mul_i32 s43, s55, 3")
    a("s_cselect_b32 s43, s43, s40")
    if opt.r3:
        a("s_addc_u32 s49, s43, s21")
    else:
        a("s_add_u32 s49, s40, s21")
    if opt.qmul == 1:
        a("s_add_u32 s49, s49, s42")
    if opt.qmul == 2:
        a("s_lshl1_add_u32 s49, s42, s49")
    if opt.pirot:
        a("s_add_u32 s43, s55, s42")
        a("s_and_b32 s40, s2, 1")
        a("s_lshl1_add_u32 s43, s43, s40")
        a("s_cmp_eq_u32 s44, 3")
        a("s_cselect_b32 s49, s49, s43")
    a(f"s_and_b32 s49, s49, {opt.rotmask}")
    if opt.pairord:
        a(f"s_and_b32 s50, s49, {opt.pairord}")
    a("s_and_b32 s43, s2, 1")
    a("s_lshl3_add_u32 s21, s43, s21")
    a("s_and_b32 s45, s20, 3")
    a("s_and_b32 s40, s45, 1")
    a("s_lshr_b32 s41, s45, 1")
    a("s_lshl1_add_u32 s23, s21, s40")
    a("s_lshl_b32 s43, s41, 5")
    a("s_add_u32 s23, s23, s43")
    a("s_lshl_b32 s48, s45, 12")
    a("s_bitset1_b32 s48, 15")
    a("s_cmp_ge_u32 s20, 4")
    a("s_cbranch_scc1 L1_compw")
    t0, t1, t2, VX, VD = L_T0, L_T1, L_T2, L_VX, L_VD
    a(f"v_lshrrev_b32 v{t0}, 3, v1")
    a("s_lshl_b32 s43, s23, 10")
    a(f"v_lshl_add_u32 v{t0}, v{t0}, 16, s43")
    a(f"v_lshrrev_b32 v{t1}, 4, v1")
    a(f"v_and_b32 v{t2}, 7, v1")
    a(f"v_xor_b32 v{t2}, v{t1}, v{t2}")
    a(f"v_lshl_add_u32 v{VX}, v{t2}, 4, v{t0}")
    a(f"v_xor_b32 v{VX+1}, {8*65536+64:#x}, v{VX}")
    a(f"v_xor_b32 v{VX+2}, {16*65536:#x}, v{VX}")
    a(f"v_xor_b32 v{VX+3}, {24*65536+64:#x}, v{VX}")
    a("s_mov_b32 s26, 0x200000")
    a("s_mov_b32 s27, 0x20000")
    a("s_lshl_b32 s47, s49, 7")
    a("s_mov_b32 m0, s48")
    a("s_cmp_ge_u32 s2, 224")
    if opt.epf:
        a("s_cbranch_scc1 L_epf")
        a("s_waitcnt lgkmcnt(0)")
    else:
        a("s_waitcnt lgkmcnt(0)")
        a("s_cbranch_scc1 L_nox")
    for i in range(4):
        a(f"buffer_load_dwordx4 v{VX+i}, s[24:27], s47 offen {opt.xfl} lds")
        if i < 3:
            a("s_add_u32 m0, m0, 1024")
            a("s_nop 0")
    a.label("L_nox")
    stamp(a, opt)
    decode_rest(a, opt, "L_dl")
    a("s_cmp_eq_u32 s46, 0")
    a("s_cselect_b32 s43, 15, 11")
    a(f"s_cmp_eq_u32 s46, {K_S4G}")
    a("s_cselect_b32 s43, 7, s43")
    a("s_cselect_b32 s80, 0, -1")
    a("s_bitcmp1_b32 s46, 0")
    a("s_cselect_b64 s[10:11], s[4:5], s[10:11]")
    a("s_cselect_b64 s[12:13], s[6:7], s[12:13]")
    a("s_movk_i32 s47, 2752")
    a("s_cselect_b32 s47, 1024, s47")
    a("s_movk_i32 s82, 256")
    a("s_cselect_b32 s82, 192, s82")
    a("s_cmp_eq_u32 s41, 1")
    a("s_cselect_b64 s[28:29], s[12:13], s[10:11]")
    a(f"v_lshl_add_u32 v{t0}, s40, 2, v{t1}")
    a("s_mul_i32 s82, s22, s82")
    a(f"v_mul_u32_u24 v{t0}, s47, v{t0}")
    a(f"v_and_b32 v{t2}, 15, v1")
    a(f"v_add_u32 v{t0}, s82, v{t0}")
    a(f"v_lshlrev_b32 v{t1}, 1, v{t1}")
    a(f"v_xor_b32 v{t1}, v{t1}, v{t2}")
    a(f"v_xor_b32 v{t2}, 8, v{t1}")
    a(f"v_min_u32 v{t1}, s43, v{t1}")
    a(f"v_min_u32 v{t2}, s43, v{t2}")
    a(f"v_lshl_add_u32 v{VD}, v{t1}, 4, v{t0}")
    a(f"v_lshl_add_u32 v{VD+1}, v{t2}, 4, v{t0}")
    a("s_lshl_b32 s41, s41, 14")
    a("s_lshl_b32 s40, s40, 10")
    a("s_add_u32 s41, s41, s40")
    a("s_lshl_b32 s44, s47, 3")
    a("s_lshl_b32 s30, s47, 9")
    a("s_mov_b32 s31, 0x20000")
    a("s_mov_b32 s66, 0")
    a("s_mov_b32 s67, 0")
    a("s_mul_i32 s40, s49, s44")
    if opt.sdelay:
        a("s_bitcmp1_b32 s46, 0")
        a("s_cbranch_scc0 L_nosd")
        a("s_barrier")
        a.label("L_nosd")
    a(f"s_cmp_lg_u32 s46, {K_IDLE}")
    a("s_cbranch_scc1 L1L_w")
    if opt.epf:
        a("s_branch L_idl2")
        a.label("L_epf")
        a("s_getpc_b64 s[72:73]")
        a.label("L_pcref0")
        a(f"s_sub_u32 s72, s72, L_pcref0-{NAME}_kernel")
        a("s_subb_u32 s73, s73, 0")
        a("s_lshl2_add_u32 s43, s55, s45")
        a("s_and_b32 s43, s43, 7")
        a("s_mul_i32 s43, s43, 6400")
        a("v_lshl_add_u32 v36, v1, 7, s43")
        a(f"v_min_u32 v36, L_exit-{NAME}_kernel, v36")
        a("v_mov_b32 v37, s73")
        a("v_add_co_u32 v36, vcc, s72, v36")
        a("s_nop 1")
        a("v_addc_co_u32 v37, vcc, 0, v37, vcc")
        a("global_load_dword v250, v[36:37], off")
        if opt.xt:
            a("s_lshl2_add_u32 s43, s55, s45")
            a("s_bfe_u32 s72, s43, 0x30001")
            a("s_and_b32 s43, s43, 1")
            a("s_and_b32 s73, s2, 1")
            a("s_lshl3_add_u32 s73, s73, s72")
            a("s_lshl4_add_u32 s73, s43, s73")
            a("s_lshl_b32 s73, s73, 11")
            a("s_lshl1_add_u32 s72, s42, s72")
            a("v_and_b32 v38, 31, v1")
            a("v_lshlrev_b32 v38, 16, v38")
            a("v_lshrrev_b32 v39, 5, v1")
            a("v_lshl_add_u32 v38, v39, 10, v38")
            a("s_waitcnt lgkmcnt(0)")
            for k in range(opt.xt):
                a("s_add_u32 s72, s72, 1")
                a("s_and_b32 s72, s72, 7")
                a("s_lshl_b32 s74, s72, 7")
                a("s_add_u32 s74, s74, s73")
                a(f"buffer_load_dword v{249-k}, v38, s[24:27], s74 offen")
        a("s_waitcnt lgkmcnt(0)")
        a("s_branch L_nox")
        a.label("L_idl2")
    a("v_mov_b32 v14, 0")
    a("v_mov_b32 v15, 0")
    srd(a, 68, 76, 77, 256)
    p2_setup(a, opt)
    a("s_barrier")
    a("s_branch L2W")
    p1_loader(a, opt)
    p2_worker(a, opt)
    if opt.al:
        a.l.append(f".p2align {opt.al}")
    a.label("L1_compw")
    for _ in range(opt.ph):
        a("s_nop 0")
    if opt.prio:
        a(f"s_setprio {opt.prio}")
    decode_rest(a, opt, "L_dc")
    p2_ids(a, opt)
    compute_prologue(a, opt)
    p1_compute(a, opt, "ffn8")
    p2_combine(a, opt)
    a.label("L1C_specs")
    a("s_mov_b32 s65, 2")
    dft32_consts(a)
    if opt.sdelay:
        a("s_barrier")
    a(f"s_cmp_eq_u32 s46, {K_S4G}")
    a("s_cbranch_scc1 L1C_spec4g")
    p1_compute(a, opt, "spec6")
    p1_compute(a, opt, "spec4g")
    p1_compute(a, opt, "ffn6")
    idle_compute(a, opt)
    a.label("L_exit")
    a("s_endpgm")


def page_pads(out, opt):
    import subprocess
    regions = {"ffn8": ("L1C_ffn8", "L2C"), "L2C": ("L2C", "L1C_specs"), "spec6": ("L1C_spec6", "L1C_spec4g"),
               "spec4g": ("L1C_spec4g", "L1C_ffn6"), "ffn6": ("L1C_ffn6", "L1C_idle")}
    NPK = 4

    def dispatch(pads):
        d = ["    s_mov_b64 exec, 0"]
        for kd, nm in ((0, "ffn8"), (K_SPEC, "spec6"), (K_6G, "ffn6"), (K_S4G, "spec4g")):
            lst = (pads.get(nm, []) + pads.get("L2C", []))
            assert len(lst) <= NPK, lst
            lst = lst + ["L_hopret"] * (NPK - len(lst))
            d += [f"    s_cmp_lg_u32 s46, {kd}", f"    s_cbranch_scc1 L_pp{kd}"]
            for w, p in enumerate(lst[:3]):
                d += [f"    s_cmp_eq_u32 s45, {w}", f"    s_cbranch_scc1 {p}"]
            d += [f"    s_branch {lst[3]}", f"L_pp{kd}:"]
        d += ["L_hopret:", "    s_mov_b64 exec, -1"]
        return "\n".join(d)

    lines = out.split("\n")
    pads = {}
    done = set()
    while True:
        txt = "\n".join(lines).replace("@@DISPATCH@@", dispatch(pads))
        open("pp.s", "w").write(txt)
        subprocess.check_call(["clang", "-x", "assembler", "-target", "amdgcn-amd-amdhsa", "-mcpu=gfx950", "-c", "pp.s", "-o", "pp.o"])
        dis = subprocess.check_output(["llvm-objdump", "-d", "--mcpu=gfx950", "pp.o"], text=True).split("\n")
        i0 = next(i for i, l in enumerate(dis) if l.endswith("<L1C_ffn8>:"))
        addrs = [int(l.split("// ")[1].split(":")[0], 16) for l in dis[i0:] if "// " in l]
        j0 = lines.index("L1C_ffn8:")
        idx = [j for j in range(j0, len(lines)) if lines[j].startswith("    ")]
        new = None
        for n in range(1, min(len(idx), len(addrs))):
            pg = addrs[n] >> 12
            if pg != addrs[n - 1] >> 12 and pg not in done:
                new = (idx[n], pg)
                break
        if new is None:
            return txt
        j, pg = new
        done.add(pg)
        for nm, (b, e) in regions.items():
            if lines.index(b + ":") < j < lines.index(e + ":"):
                pads.setdefault(nm, []).append(f"L_pg{pg}")
                lines[j:j] = [f"L_pg{pg}:", "    s_cbranch_execz L_hopret"]


def main():
    ap = argparse.ArgumentParser()
    ap.add_argument("-o", default=f"cdna_kernels/{NAME}.s")
    ap.add_argument("--stamps", action="store_true")
    ap.add_argument("--fine", action="store_true")
    ap.add_argument("--fine2", action="store_true")
    ap.add_argument("--q", type=int, default=8)
    ap.add_argument("--rotmask", type=int, default=7)
    ap.add_argument("--hr", type=int, default=7)
    ap.add_argument("--la", type=int, default=5)
    ap.add_argument("--psleep", type=int, default=4)
    ap.add_argument("--tail", type=int, default=0)
    ap.add_argument("--fpg", type=int, default=6)
    ap.add_argument("--codepf", type=int, default=1)
    ap.add_argument("--pad", type=int, default=-1)
    ap.add_argument("--padrole", default="C")
    ap.add_argument("--prio", type=int, default=0)
    ap.add_argument("--bpos", type=int, default=3)
    ap.add_argument("--nb", type=int, default=5)
    ap.add_argument("--pairord", type=int, default=0)
    ap.add_argument("--qmul", type=int, default=0)
    ap.add_argument("--q3", type=int, default=2)
    ap.add_argument("--al", type=int, default=12)
    ap.add_argument("--ph", type=int, default=0)
    ap.add_argument("--pp", type=int, default=0)
    ap.add_argument("--alw", type=int, default=1)
    ap.add_argument("--rt3", type=int, default=0)
    ap.add_argument("--rowtouch", type=int, default=1)
    ap.add_argument("--cbx", type=int, default=0)
    ap.add_argument("--xfl", default="")
    ap.add_argument("--sw3", type=int, default=1)
    ap.add_argument("--goit", type=int, default=7)
    ap.add_argument("--gosleep", type=int, default=100)
    ap.add_argument("--pirot", type=int, default=0)
    ap.add_argument("--xt", type=int, default=0)
    ap.add_argument("--skip3", type=int, default=1)
    ap.add_argument("--cmid", type=int, default=1)
    ap.add_argument("--epf", type=int, default=1)
    ap.add_argument("--sdelay", type=int, default=0)
    ap.add_argument("--mord", type=int, default=2)
    ap.add_argument("--tm", type=int, default=0)
    ap.add_argument("--r3", type=int, default=1)
    ap.add_argument("--rmul", type=int, default=0)
    ap.add_argument("--codepf2", type=int, default=0)
    ap.add_argument("--tlb", type=int, default=0)
    ap.add_argument("--padx", type=int, default=-1)
    ap.add_argument("--zlate", type=int, default=1)
    ap.add_argument("--mir", type=int, default=1)
    ap.add_argument("--zbar", type=int, default=20)
    ap.add_argument("--lateb9", type=int, default=1)
    ap.add_argument("--zsleep", type=int, default=4)
    ap.add_argument("--noz", action="store_true")
    ap.add_argument("--ofl", default="")
    ap.add_argument("--ssleep", type=int, default=0)
    ap.add_argument("--split0", type=int, default=1)
    ap.add_argument("--fmask", default="3")
    ap.add_argument("--cmask", type=int, default=1)
    ap.add_argument("--half", type=int, default=0)
    ap.add_argument("--hp", type=int, default=6)
    ap.add_argument("--wpoll", type=int, default=0)
    ap.add_argument("--spr", type=int, default=6)
    ap.add_argument("--fine4", action="store_true")
    ap.add_argument("--nost", action="store_true")
    ap.add_argument("--idledelay", type=int, default=0)
    ap.add_argument("--xrot", type=int, default=1)
    ap.add_argument("--tcb", type=int, default=2)
    ap.add_argument("--wtouch", type=int, default=1)
    ap.add_argument("--pf", type=int, default=0)
    ap.add_argument("--pq", type=int, default=1)
    ap.add_argument("--idlego", type=int, default=0)
    ap.add_argument("--nc", type=int, default=6)
    ap.add_argument("--stag", type=int, default=1)
    ap.add_argument("--thrz", type=int, default=0)
    ap.add_argument("--pace", type=int, default=0)
    ap.add_argument("--thr", type=int, default=0)
    ap.add_argument("--thr2", type=int, default=4)
    ap.add_argument("--early", type=int, default=0)
    ap.add_argument("--nowait", action="store_true")
    ap.add_argument("--fine3", action="store_true")
    ap.add_argument("--nomfma", action="store_true")
    ap.add_argument("--noidle", action="store_true")
    ap.add_argument("--fsleep", type=int, default=0)
    ap.add_argument("--noreads", action="store_true")
    ap.add_argument("--npk", type=int, default=0)
    ap.add_argument("--lr", type=int, default=3)
    ap.add_argument("--hs", type=int, default=87)
    ap.add_argument("--zpad", type=int, default=128)
    ap.add_argument("--foff", type=lambda x: int(x, 0), default=0x7B0000)
    opt = ap.parse_args()
    global HS, H_SIZE, ZR_B, Z_SIZE, F_OFF, F_SIZE
    HS = opt.hs
    H_SIZE = 64 * HS * 1024
    assert H_SIZE <= Z_OFF
    ZR_B = 16 * EP * 16 + opt.zpad
    Z_SIZE = 32 * ZR_B
    F_OFF = opt.foff
    F_SIZE = 4096 << opt.lr
    global NPK
    NPK = opt.npk
    global FSLEEP
    FSLEEP = opt.fsleep
    hdr = open(f"cdna_kernels/{NAME}.s.ref").read().split("; Override launch")[0]
    out = hdr
    out += f"; @launch grid=(256,1,1) block=(512,1,1) lds={LDS_SIZE}\n"
    out += DOC
    out += '.amdgcn_target "amdgcn-amd-amdhsa--gfx950"\n.text\n'
    a = Asm()
    kernel(a, opt)
    nm = NAME + "_kernel"
    out += f".globl {nm}\n.p2align 8\n.type {nm},@function\n" + a.text()
    out += f""".section .rodata,"a"
.p2align 6
.amdhsa_kernel {nm}
  .amdhsa_next_free_vgpr 256
  .amdhsa_next_free_sgpr 102
  .amdhsa_accum_offset 256
  .amdhsa_group_segment_fixed_size 0
  .amdhsa_kernarg_size 104
  .amdhsa_user_sgpr_count 2
  .amdhsa_user_sgpr_kernarg_segment_ptr 1
  .amdhsa_system_sgpr_workgroup_id_x 1
.end_amdhsa_kernel
"""
    if opt.pp:
        out = page_pads(out, opt)
    open(opt.o, "w").write(out)


if __name__ == "__main__":
    main()
```

```python
import struct, sys, argparse, re

NAME = "gated_mix__spectral_fnet__geglu_ffn__prompt"
H_OFF = 0
HS = 87
H_SIZE = 64 * HS * 1024
Z_OFF = 0x580000
EP = 264
ZR_B = 16 * EP * 16 + 128
Z_SIZE = 32 * ZR_B
G_OFF = 0x7A0000
G_SIZE = 2048 * 4
F_OFF = 0x7B0000
F_SIZE = 32768
T_OFF = 0xA00000
MF16 = "v_mfma_f32_16x16x32_bf16"
MF32 = "v_mfma_f32_32x32x16_bf16"


DOC = """; ---------------------------------------------------------------------------------------------
;    spectral groups: hidden DFT a,b = x Cd, x Sd for e = 0..256 (Hermitian half), then the 32-point
; ---------------------------------------------------------------------------------------------
"""


def f2u(f):
    return struct.unpack("<I", struct.pack("<f", f))[0]


class Asm:
    def __init__(self):
        self.l = []
        self.ds = []
        self.vm = []
        self.n = 0
        self.ub = 0

    def __call__(self, s):
        if s.startswith("ds_"):
            if self.ub >= 15:
                self("s_waitcnt lgkmcnt(10)")
            self.ub += 1
        m = re.search(r"lgkmcnt\((\d+)\)", s)
        if m:
            self.ub = min(self.ub, int(m.group(1)))
        self.l.append("    " + s)
        self.n += 1

    def label(self, s):
        self.l.append(s + ":")

    def dsop(self, s, tag):
        self(s)
        self.ds.append(tag)

    def dswait(self, tag):
        idx = max(i for i, t in enumerate(self.ds) if t == tag)
        n = len(self.ds) - 1 - idx
        assert n <= 15, n
        self(f"s_waitcnt lgkmcnt({n})")

    def vmop(self, s, tag):
        self(s)
        self.vm.append(tag)

    def vmwait(self, tag):
        idx = max(i for i, t in enumerate(self.vm) if t == tag)
        n = len(self.vm) - 1 - idx
        assert n <= 63, n
        self(f"s_waitcnt vmcnt({n})")

    def text(self):
        return "\n".join(self.l) + "\n"


def vr(b, n):
    return f"v[{b}:{b+n-1}]"


def srd(a, d, lo, hi, size, add=0):
    if add:
        a(f"s_add_u32 s{d}, s{lo}, {add:#x}")
        a(f"s_addc_u32 s{d+1}, s{hi}, 0")
    else:
        a(f"s_mov_b32 s{d}, s{lo}")
        a(f"s_mov_b32 s{d+1}, s{hi}")
    a(f"s_mov_b32 s{d+2}, {size:#x}")
    a(f"s_mov_b32 s{d+3}, 0x20000")


def stamp(a, opt):
    if not opt.stamps:
        return
    a("s_memrealtime s[90:91]")
    a("s_memtime s[86:87]")
    a("s_mov_b32 s88, m0")
    a("s_waitcnt lgkmcnt(0)")
    a("s_mov_b32 m0, s89")
    a("s_add_u32 s89, s89, 1")
    a("v_writelane_b32 v255, s90, m0")
    a("v_writelane_b32 v253, s86, m0")
    a("s_mov_b32 m0, s88")


def stamp_flush(a, opt, role):
    if not opt.stamps:
        return
    if opt.pad >= 0:
        if role == opt.padrole:
            a("s_cmp_lg_u32 s46, 0")
            a("s_cbranch_scc1 Lpad_end")
            if opt.padx >= 0:
                a("s_and_b32 s92, s2, 7")
                a(f"s_cmp_lg_u32 s92, {opt.padx}")
                a("s_cbranch_scc1 Lpad_end")
            a("s_nop 4")
            a(f"v_readlane_b32 s92, v255, {opt.pad}")
            a("s_nop 4")
            a("s_add_u32 s92, s92, 4000")
            a.label("Lpad")
            a("s_memrealtime s[90:91]")
            a("s_waitcnt lgkmcnt(0)")
            a("s_sub_u32 s93, s92, s90")
            a("s_cmp_gt_i32 s93, 0")
            a("s_cbranch_scc1 Lpad")
            a.label("Lpad_end")
        return
    a("s_waitcnt vmcnt(0)")
    stamp(a, opt)
    srd(a, 92, 78, 79, 0x200000, T_OFF)
    a("s_lshl_b32 s96, s2, 3")
    a("s_add_u32 s96, s96, s20")
    a("s_lshl_b32 s96, s96, 8")
    a("v_lshlrev_b32 v254, 2, v1")
    a("buffer_store_dword v255, v254, s[92:95], s96 offen")
    a("s_add_u32 s96, s96, 0x100000")
    a("buffer_store_dword v253, v254, s[92:95], s96 offen")


C1 = -2.0 * 0.7978845608028654 * 1.4426950408889634
C2 = C1 * 0.044715
NB = 3
SSZ = 49152
FLG = 78 * 2048
RH = FLG + 256
RZ = FLG + 64
GW_LDS = FLG + 512
LDS_SIZE = 163840
assert GW_LDS + 2048 <= LDS_SIZE
K_FFN, K_SPEC, K_6G, K_IDLE, K_S4G = 0, 1, 2, 4, 3

L_VD, L_VX, L_T0, L_T1, L_T2, L_VF, L_VA = 2, 10, 16, 17, 18, 20, 21


FSLEEP = 0


def free_wait(a, lab, val):
    if FSLEEP:
        a(f"s_branch {lab}_c")
    a.label(lab)
    if FSLEEP:
        a(f"s_sleep {FSLEEP}")
        a.label(lab + "_c")
    a(f"ds_read_b32 v{L_T0}, v{L_VA}")
    a("s_waitcnt lgkmcnt(0)")
    a(f"v_cmp_ge_u32 vcc, {val}, v{L_T0}")
    a(f"s_cbranch_vccnz {lab}")


def p2_ids(a, opt):
    if opt.map84:
        a("s_lshr_b32 s52, s2, 5")
        a("s_and_b32 s53, s55, 3")
        a("s_lshl1_add_u32 s56, s53, s52")
        a("s_lshl_b32 s53, s53, 2")
        a("s_bitcmp1_b32 s2, 0")
        a("s_mov_b32 s51, 0x7610")
        a("s_cselect_b32 s51, 0x5432, s51")
        a("s_lshr_b32 s51, s51, s53")
        a("s_and_b32 s51, s51, 7")
        a("s_bfe_u32 s54, s2, 0x20001")
        a("s_and_b32 s53, s52, 3")
        a("s_lshl2_add_u32 s54, s54, s53")
        a("s_add_u32 s54, s54, 1")
        a("s_sub_u32 s53, 32, s54")
        a("s_cmp_eq_u32 s53, 16")
        a("s_cselect_b32 s53, 0, s53")
        a("s_cmp_ge_u32 s52, 4")
        a("s_cselect_b32 s54, s53, s54")
        return
    a("s_lshr_b32 s52, s2, 6")
    a("s_mov_b32 s51, s55")
    if opt.sw3:
        a("s_add_u32 s53, s52, 4")
        a("s_cmp_eq_u32 s55, 3")
        a("s_cselect_b32 s51, s53, s51")
        a("s_cselect_b32 s52, 3, s52")
        a("s_and_b32 s53, s55, 3")
        a("s_cmp_ge_u32 s2, 224")
        a("s_cselect_b32 s51, 3, s51")
        a("s_cselect_b32 s52, s53, s52")
    a("s_lshl1_add_u32 s56, s52, s51")
    a("s_and_b32 s54, s2, 7")
    a("s_and_b32 s53, s52, 1")
    a("s_lshl1_add_u32 s54, s54, s53")
    a("s_add_u32 s54, s54, 1")
    a("s_sub_u32 s53, 32, s54")
    a("s_cmp_eq_u32 s53, 16")
    a("s_cselect_b32 s53, 0, s53")
    a("s_cmp_ge_u32 s52, 2")
    a("s_cselect_b32 s54, s53, s54")


def p2_setup(a, opt):
    t0, t1, t2 = L_T0, L_T1, L_T2
    VW0, VW1 = 28, 29
    VH0, VH1 = 4, 5
    VRH = 7
    VRB = 22
    p2_ids(a, opt)
    a(f"s_cmp_eq_u32 s46, {K_IDLE}")
    a("s_cselect_b32 s83, 1, 0")
    if opt.xrot:
        a("s_add_u32 s56, s56, s2")
    a("s_and_b32 s56, s56, 7")
    a("s_mul_i32 s56, s56, 5")
    a("s_lshr_b32 s56, s56, 2")
    a(f"v_bfe_u32 v{t0}, v1, 4, 1")
    a(f"v_lshlrev_b32 v{t0}, 2, v{t0}")
    a(f"v_and_b32 v{t1}, 7, v1")
    a(f"v_xor_b32 v{t0}, v{t0}, v{t1}")
    a(f"v_lshrrev_b32 v{t1}, 3, v1")
    a(f"v_lshlrev_b32 v{t1}, 10, v{t1}")
    a(f"v_lshl_add_u32 v{VW0}, v{t0}, 4, v{t1}")
    a("s_lshl_b32 s42, s51, 7")
    a("s_lshl_b32 s43, s45, 14")
    a("s_add_u32 s42, s42, s43")
    a(f"v_add_u32 v{VW0}, s42, v{VW0}")
    a(f"v_add_u32 v{VW1}, 0x2000, v{VW0}")
    a("s_lshl_b32 s59, s45, 11")
    a("s_cmp_lt_u32 s45, 2")
    a("s_cselect_b32 s57, 11, 10")
    a(f"v_lshrrev_b32 v{t2}, 5, v1")
    a(f"v_bfe_u32 v{t0}, v1, 2, 2")
    a(f"v_lshl_add_u32 v{t0}, v{t2}, 3, v{t0}")
    a(f"v_lshlrev_b32 v{t0}, 7, v{t0}")
    a(f"v_bfe_u32 v{t1}, v1, 1, 1")
    a(f"v_lshl_add_u32 v{t0}, v{t1}, 3, v{t0}")
    a(f"v_and_b32 v{t1}, 1, v1")
    a(f"v_lshl_add_u32 v{t0}, v{t1}, 5, v{t0}")
    a(f"v_bfe_u32 v{t1}, v1, 4, 1")
    a(f"v_lshl_add_u32 v{t0}, v{t1}, 4, v{t0}")
    a(f"v_bfe_u32 v{t1}, v1, 3, 1")
    a(f"v_lshl_add_u32 v{t0}, v{t1}, 6, v{t0}")
    a(f"v_add_u32 v{VRB}, s59, v{t0}")
    a(f"v_xor_b32 v{VRB+1}, 64, v{VRB}")
    for k in (1, 2):
        a(f"v_add_u32 v{VRB+2*k}, {k*65536}, v{VRB}")
        a(f"v_add_u32 v{VRB+2*k+1}, {k*65536}, v{VRB+1}")
    a(f"v_lshlrev_b32 v{t0}, 4, v1")
    a(f"s_mul_i32 s42, s54, {HS*1024}")
    a("s_lshl_b32 s43, s45, 10")
    a("s_add_u32 s42, s42, s43")
    a(f"v_add_u32 v{VH0}, s42, v{t0}")
    a(f"v_add_u32 v{VH1}, {32*HS*1024}, v{VH0}")
    srd(a, 32, 78, 79, H_SIZE, H_OFF)
    a("v_cmp_gt_u32 vcc, 11, v1")
    a(f"v_subrev_u32 v{t0}, 11, v1")
    a(f"v_mov_b32 v{t1}, s57")
    a(f"v_cndmask_b32 v{t0}, v{t0}, v1, vcc")
    a(f"v_cndmask_b32 v{t1}, v{t1}, 11, vcc")
    a(f"v_cndmask_b32 v6, 2, {1 if opt.half else 2}, vcc")
    a(f"v_add_u32 v{t0}, s56, v{t0}")
    a(f"v_sub_u32 v{t1}, v{t0}, v{t1}")
    a(f"v_min_u32 v{t0}, v{t0}, v{t1}")
    a(f"v_min_u32 v{t0}, 10, v{t0}")
    a(f"v_lshlrev_b32 v{t0}, 2, v{t0}")
    a(f"v_add_u32 v{VRH}, {RH}, v{t0}")
    srd(a, 36, 78, 79, F_SIZE, F_OFF)
    a(f"s_mul_i32 s62, s54, {opt.rl}")
    a(f"s_and_b32 s43, s{2 if opt.map84 else 51}, {opt.cmask}")
    a("s_add_u32 s62, s62, s43")
    a("s_lshl_b32 s62, s62, 7")
    a("v_lshlrev_b32 v8, 4, v1")
    a("s_or_b32 s61, s45, s83")
    a("s_mov_b32 s60, 0")


def p1_loader(a, opt):
    VD, VX, t0 = L_VD, L_VX, L_T0
    Q = opt.q
    a.label("L1L_loop")
    a("s_lshl_b32 s47, s49, 7")
    a("s_add_u32 m0, s48, s67")
    a("s_mul_i32 s40, s49, s44")
    n = 0

    def after():
        nonlocal n
        n += 1
        if n == Q:
            a("s_cmp_eq_u32 s66, 0")
            a("s_cbranch_scc1 L1L_nobar")
            a(f"s_waitcnt vmcnt({Q})")
            if opt.fine:
                stamp(a, opt)
            a("s_barrier")
            a.label("L1L_nobar")

    for i in range(4):
        a(f"buffer_load_dwordx4 v{VX+i}, s[24:27], s47 offen {opt.xfl} lds")
        if i < 3:
            a("s_add_u32 m0, m0, 1024")
            a("s_nop 0")
        else:
            a.label("L1L_w")
            a("s_add_u32 m0, s41, s67")
            a("s_lshl_b32 s40, s40, 3")
        if opt.split0 and i == opt.split0 - 1:
            a("s_cmp_lg_u32 s66, 1")
            a("s_cbranch_scc1 L1L_nosp")
            a(f"s_waitcnt vmcnt({4 + opt.split0})")
            a("s_barrier")
            a.label("L1L_nosp")
        after()
    for u in range(8):
        a(f"buffer_load_dwordx4 v{VD+(u&1)}, s[28:31], s40 offen lds")
        if u < 7:
            a("s_add_u32 m0, m0, 2048")
            a("s_add_u32 s40, s40, s44")
        after()
    a("s_cmp_lg_u32 s66, 0")
    a("s_cbranch_scc1 L1L_next")
    a("v_mov_b32 v14, 0")
    a("v_mov_b32 v15, 0")
    srd(a, 68, 76, 77, 256)
    a("s_cmp_eq_u32 s45, 0")
    a(f"s_cselect_b32 s81, {opt.goit}, -1")
    a("s_cmp_eq_u32 s66, s80")
    a("s_cbranch_scc0 L1L_next")
    srd(a, 36, 16, 17, 1024)
    a(f"s_mov_b32 m0, {GW_LDS}")
    a(f"v_lshlrev_b32 v{t0}, 4, v1")
    a(f"buffer_load_dwordx4 v{t0}, s[36:39], 0 offen lds")
    srd(a, 36, 4, 5, 1024, 256 * 1024)
    a(f"s_mov_b32 m0, {GW_LDS+1024}")
    a("s_nop 0")
    a(f"buffer_load_dwordx4 v{t0}, s[36:39], 0 offen lds")
    a.label("L1L_next")
    a("s_cmp_eq_u32 s66, s81")
    a("s_cbranch_scc0 L1L_next2")
    a("buffer_load_dword v14, v15, s[68:71], 0 offen")
    a.label("L1L_next2")
    a("s_cmp_lg_u32 s66, 0")
    a("s_cbranch_scc1 L1L_next3")
    p2_setup(a, opt)
    a.label("L1L_next3")
    if opt.pairord:
        a("s_xor_b32 s49, s49, s50")
    a("s_add_u32 s49, s49, 1")
    a("s_and_b32 s49, s49, 7")
    if opt.pairord:
        a("s_xor_b32 s49, s49, s50")
    a(f"s_add_u32 s67, s67, {SSZ}")
    a(f"s_cmp_eq_u32 s67, {3*SSZ}")
    a("s_cselect_b32 s67, 0, s67")
    a("s_add_u32 s66, s66, 1")
    a("s_cmp_lt_u32 s66, 8")
    a("s_cbranch_scc1 L1L_loop")


NI_ = 22


def p2_worker(a, opt):
    HR = opt.hr
    LA = opt.la
    t0, t1, t2 = L_T0, L_T1, L_T2
    VW0, VW1 = 28, 29
    VH0, VH1 = 4, 5
    VRH = 7
    VRB = 22
    WF, ACB, HF = 32, 64, 128
    WR = 4
    assert HF + 8 * HR <= 252 and LA < HR
    a.vm, a.ds = [], []
    a.label("L2W")
    srd(a, 28, 14, 15, 1376 * 1024)
    rows = [18, 18] + list(range(12, 18)) + [18, 0, 1, 19] + list(range(2, 12))
    OPT = 11
    clsC = [i for i in range(NI_) if rows[i] < 6]
    clsD = [i for i in range(NI_) if 6 <= rows[i] < 12]
    NI = 22
    assert len(rows) == NI

    def prod(i, dst, sh):
        if i < 11:
            a(f"s_add_u32 s{dst}, s56, {i}")
            a(f"s_sub_u32 s43, s{dst}, 11")
        else:
            a(f"s_add_u32 s{dst}, s56, {i-11}")
            a(f"s_sub_u32 s43, s{dst}, s57")
        a(f"s_cselect_b32 s{dst}, s{dst}, s43")
        a(f"s_lshl_b32 s{dst}, s{dst}, {sh+1}")
        if i >= 11:
            a(f"s_add_u32 s{dst}, s{dst}, {1 << sh}")

    def wload(i):
        a(f"s_add_u32 m0, s59, {rows[i]*8192}")
        prod(i, 40, 16)
        a.vmop(f"buffer_load_dwordx4 v{VW0}, s[28:31], s40 offen lds", ("w", i))
        a("s_add_u32 m0, m0, 1024")
        a("s_nop 0")
        a.vmop(f"buffer_load_dwordx4 v{VW1}, s[28:31], s40 offen lds", ("w", i))

    def wreads(i):
        f = WF + 8 * (i % WR)
        b = VRB + 2 * (rows[i] // 8)
        o = (rows[i] % 8) * 8192
        for ln in range(2):
            a.dsop(f"ds_read_b64_tr_b16 {vr(f+4*ln,2)}, v{b+ln} offset:{o}", ("r", i))
            a.dsop(f"ds_read_b64_tr_b16 {vr(f+4*ln+2,2)}, v{b+ln} offset:{o+512}", ("r", i))

    if opt.rowtouch:
        a("s_cmp_eq_u32 s83, 0")
        a("s_cbranch_scc1 L2W_nort")
        a("s_lshl2_add_u32 s42, s55, s45")
        a("s_and_b32 s42, s42, 15")
        a("s_and_b32 s43, s2, 7")
        a("s_mul_i32 s43, s43, 22")
        a("s_add_u32 s42, s42, s43")
        a(f"v_lshlrev_b32 v{t0}, 7, v1")
        if opt.sw3 and opt.skip3:
            a("s_mov_b32 exec_lo, 0xf7f7f7f7")
            a("s_mov_b32 exec_hi, 0xf7f7f7f7")
        for k in range(11):
            a("s_sub_u32 s43, s42, 176")
            a("s_cselect_b32 s42, s42, s43")
            a("s_lshl_b32 s43, s42, 13")
            a(f"buffer_load_dword v250, v{t0}, s[28:31], s43 offen")
            a("s_add_u32 s42, s42, 16")
        a("s_mov_b64 exec, -1")
        a.label("L2W_nort")
    wload(0)
    for i in range(2, 2 + opt.nb):
        wload(i)
    a(f"s_waitcnt vmcnt({len(a.vm)})")
    a("s_or_b32 s42, s45, s83")
    a("s_cbranch_scc1 L2W_gook")
    a("v_cmp_le_u32 vcc, 32, v14")
    a("s_cbranch_vccnz L2W_gook")
    a.label("L2W_go")
    a("s_sleep 4")
    a("buffer_load_dword v14, v15, s[68:71], 0 offen sc1")
    a("s_waitcnt vmcnt(0)")
    a("v_cmp_gt_u32 vcc, 32, v14")
    a("s_cbranch_vccnz L2W_go")
    a.label("L2W_gook")
    stamp(a, opt)
    a("s_cmp_lg_u32 s83, 0")
    a("s_cbranch_scc1 L2W_nob6")
    a("s_barrier")
    a.label("L2W_nob6")
    a.vmwait(("w", 0))
    wreads(0)
    a("s_waitcnt lgkmcnt(0)")
    wload(1)
    for i in range(2 + opt.nb, 8):
        wload(i)
    if opt.tail == 2:
        a("s_and_b32 s42, s46, 5")
        a("s_cbranch_scc1 L2W_t2")
        a("s_barrier")
        a.label("L2W_t2")
    a("s_bitcmp1_b32 s46, 0")
    a("s_cbranch_scc0 L2W_c")
    a("s_barrier")
    if not opt.cmid:
        a("s_barrier")
        a("s_barrier")
    a.label("L2W_c")
    for i in clsC[:opt.nc]:
        wload(i)
    if opt.cmid:
        a("s_cmp_lg_u32 s83, 0")
        a("s_cbranch_scc1 L2W_nob7")
        a("s_barrier")
        a("s_bitcmp1_b32 s46, 0")
        a("s_cbranch_scc0 L2W_nob7")
        a("s_barrier")
    else:
        a("s_and_b32 s42, s46, 5")
        a("s_cbranch_scc1 L2W_nob7")
        a("s_barrier")
    a.label("L2W_nob7")
    a.vmwait(("w", 1))
    wreads(1)
    a("s_waitcnt lgkmcnt(0)")
    for i in [8] + clsC[opt.nc:] + clsD:
        wload(i)
        if opt.thr2:
            a("s_and_b32 s42, s46, 5")
            a(f"s_cbranch_scc1 L2W_nt{i}")
            a(f"s_waitcnt vmcnt({opt.thr2})")
            a.label(f"L2W_nt{i}")
    a("s_cmp_ge_u32 s45, 2")
    a("s_cbranch_scc1 L2W_no19")
    wload(OPT)
    a.label("L2W_no19")
    a(f"s_cmp_lg_u32 s46, {K_IDLE}")
    a("s_cbranch_scc1 L2W_nopf")
    a("s_sub_u32 s42, s55, 4")
    a("s_lshl_b32 s42, s42, 2")
    a("s_add_u32 s42, s42, s45")
    if opt.xrot:
        a("s_lshl_b32 s43, s2, 1")
        a("s_add_u32 s42, s42, s43")
        a("s_and_b32 s42, s42, 15")
    a(f"s_mul_i32 s42, s42, {96*1024}")
    a(f"v_lshrrev_b32 v{t0}, 1, v1")
    a(f"v_lshlrev_b32 v{t0}, 10, v{t0}")
    a(f"v_and_b32 v{t1}, 1, v1")
    a(f"v_lshl_add_u32 v{t0}, v{t1}, 7, v{t0}")
    for k in range(0 if (opt.rowtouch or opt.map84) else 3):
        for c in range(opt.tcb):
            a(f"buffer_load_dword v250, v{t0}, s[28:31], s42 offen offset:{256*c + (512 if opt.cbx & 4 else 0)}")
        a("s_add_u32 s42, s42, 0x8000")
    for rep in range(opt.rt3):
        a("s_waitcnt vmcnt(0)")
        a(f"s_sub_u32 s43, s42, {3*0x8000}")
        a(f"v_lshlrev_b32 v{t0}, 10, v1")
        a(f"buffer_load_dword v250, v{t0}, s[28:31], s43 offen offset:384 sc1")
        a("s_add_u32 s43, s43, 0x8000")
        a(f"buffer_load_dword v250, v{t0}, s[28:31], s43 offen offset:384 sc1")
    if opt.codepf2:
        a("s_waitcnt vmcnt(0)")
        a("s_getpc_b64 s[72:73]")
        a.label("L_pcref2")
        a(f"s_sub_u32 s72, s72, L_pcref2-{NAME}_kernel")
        a("s_subb_u32 s73, s73, 0")
        a(f"s_mov_b32 s74, L_exit-{NAME}_kernel")
        a("s_mov_b32 s75, 0x20000")
        a("s_lshl2_add_u32 s42, s55, s45")
        a("s_and_b32 s42, s42, 7")
        a("s_mul_i32 s42, s42, 6400")
        a(f"v_lshlrev_b32 v{t0}, 7, v1")
        a(f"buffer_load_dword v250, v{t0}, s[72:75], s42 offen sc1")
    a("s_waitcnt vmcnt(0)")
    a("s_barrier")
    a.label("L2W_nopf")
    stamp(a, opt)
    a.vm = []

    spins = []

    def issue1(i):
        h = HF + 8 * (i % HR)
        a(f"s_bitcmp1_b32 s60, {i}")
        a(f"s_cbranch_scc0 L2W_i{i}_spin")
        a.label(f"L2W_i{i}_ok")
        spins.append(i)
        prod(i, 40, 12)
        a.vmop(f"buffer_load_dwordx4 {vr(h,4)}, v{VH0}, s[32:35], s40 offen sc1", ("h", i))

    def issue2(i):
        h = HF + 8 * (i % HR)
        a.vmop(f"buffer_load_dwordx4 {vr(h+4,4)}, v{VH1}, s[32:35], s40 offen sc1", ("h", i))

    if opt.alw:
        a("s_branch L2W_al")
        a.l.append(".p2align 12")
        a.label("L2W_al")
    a("s_waitcnt vmcnt(0)")
    a(f"s_mov_b32 m0, {RH}")
    wreads(2)
    for i in range(LA):
        issue1(i)
        issue2(i)
        if i == 0:
            stamp(a, opt)
    TM = opt.tm
    for i in range(NI - TM):
        a.vmwait(("h", i))
        if i == 0:
            stamp(a, opt)
        if i >= 2:
            a.dswait(("r", i))
        f = WF + 8 * (i % WR)
        h = HF + 8 * (i % HR)
        for L in range(4):
            lt, ln = L & 1, L >> 1
            acc = vr(ACB + 16 * L, 16)
            if i == OPT:
                a("s_cmp_ge_u32 s45, 2")
                a(f"s_cbranch_scc1 L2W_skip{L}")
            a(f"{MF32} {acc}, {vr(f+4*ln,4)}, {vr(h+4*lt,4)}, {'0' if i == 0 else acc}")
            if i == OPT:
                a.label(f"L2W_skip{L}")
            if L == 0 and i + 3 < NI:
                wreads(i + 3)
            if L == 1 and i + LA < NI:
                issue1(i + LA)
            if L == 2 and i + LA < NI:
                issue2(i + LA)
                if i + LA == opt.zbar:
                    a("s_barrier")
        if opt.fine2 and i % 4 == 3:
            stamp(a, opt)
    assert TM <= 4 and TM <= LA
    if TM == 4:
        wreads(NI - 1)
    a(f"v_lshlrev_b32 v{t0}, 4, v1")
    a(f"v_add_u32 v{t0}, s59, v{t0}")

    def pw(L):
        for q in range(4):
            p = 4 * L + q
            a(f"ds_write_b128 v{t0}, {vr(ACB+16*L+4*q,4)} offset:{(p>>1)*8192 + (p&1)*1024}")

    for L in range(4):
        lt, ln = L & 1, L >> 1
        acc = vr(ACB + 16 * L, 16)
        for k, i in enumerate(range(NI - TM, NI)):
            if L == 0:
                a.vmwait(("h", i))
                a.dswait(("r", i))
            f = WF + 8 * (i % WR)
            h = HF + 8 * (i % HR)
            a(f"{MF32} {acc}, {vr(f+4*ln,4)}, {vr(h+4*lt,4)}, {acc}")
            if L > 0 and k == 1:
                a("s_nop 9")
                pw(L - 1)
    stamp(a, opt)
    a("s_nop 7")
    a("s_nop 3")
    if TM >= 2:
        pw(3)
    else:
        for L in range(4):
            pw(L)
    a("s_waitcnt lgkmcnt(0)")
    a("s_barrier")
    stamp_flush(a, opt, "L")
    a("s_endpgm")
    for i in spins:
        a.label(f"L2W_i{i}_spin")
        a(f"ds_read2_b32 {vr(t0,2)}, v{VRH} offset0:0 offset1:16")
        a("s_waitcnt lgkmcnt(0)")
        a(f"v_min_u32 v{t0}, v{t0}, v{t1}")
        a(f"v_cmp_ge_u32 vcc, v{t0}, v6")
        a("s_mov_b32 s60, vcc_lo")
        a(f"s_bitcmp1_b32 s60, {i}")
        a(f"s_cbranch_scc1 L2W_i{i}_ok")
        if opt.wpoll and i < LA:
            a("s_cmp_lg_u32 s61, 0")
            a(f"s_cbranch_scc1 L2W_i{i}_spin")
            a("s_mov_b64 exec, 0xff")
            a("buffer_load_dwordx4 v8, s[36:39], s62 offen sc1 lds")
            a("s_mov_b64 exec, -1")
            a("s_waitcnt vmcnt(0)")
        if opt.ssleep:
            a(f"s_sleep {opt.ssleep}")
        a(f"s_branch L2W_i{i}_spin")


C_VA, C_VX, C_VB, C_VST, C_VGW, C_VFD = 2, 6, 10, 14, 15, 19
C_T0, C_T1, C_T2 = 20, 21, 22
C_K1, C_K2 = 24, 26
C_WF, C_XF, C_ACC, C_TT, C_TT2, C_CF, C_SF = 28, 52, 116, 88, 100, 212, 220


def dft32_consts(a):
    t0, t1, t2 = C_T0, C_T1, C_T2
    tc, ts = 96, 112
    a(f"v_and_b32 v{t0}, 15, v1")
    a(f"v_cvt_f32_u32 v{t0}, v{t0}")
    a(f"v_mul_f32 v{t0}, {f2u(1.0/32):#x}, v{t0}")
    a(f"v_lshrrev_b32 v{t1}, 4, v1")
    a(f"v_cvt_f32_u32 v{t1}, v{t1}")
    a(f"v_mul_f32 v{t1}, 4.0, v{t1}")
    for rho in range(2):
        if rho:
            a(f"v_add_f32 v{t0}, 0.5, v{t0}")
        a(f"v_mul_f32 v{t2}, v{t0}, v{t1}")
        for sg in range(8):
            s1c = 16 * (sg >> 2) + (sg & 3)
            a(f"v_fmamk_f32 v{tc+8*rho+sg}, v{t0}, {f2u(float(s1c)):#x}, v{t2}")
    for i in range(16):
        a(f"v_fract_f32 v{tc+i}, v{tc+i}")
    for i in range(16):
        a(f"v_sin_f32 v{ts+i}, v{tc+i}")
    for i in range(16):
        a(f"v_cos_f32 v{tc+i}, v{tc+i}")
    a("s_nop 0")
    for i in range(8):
        a(f"v_cvt_pk_bf16_f32 v{C_CF+i}, v{tc+2*i}, v{tc+2*i+1}")
        a(f"v_cvt_pk_bf16_f32 v{C_SF+i}, v{ts+2*i}, v{ts+2*i+1}")


NPK = 0


def ffn_epi(p):
    A, TT = C_ACC + 16 * p, 244
    r = []
    if p < NPK:
        r += [f"v_mul_f32 v{TT+v}, v{A+v}, v{A+v}" for v in range(8)]
        r += [f"v_fma_f32 v{TT+v}, v{TT+v}, v{C_K2}, v{C_K1}" for v in range(8)]
        r += [f"v_mul_f32 v{TT+v}, v{TT+v}, v{A+v}" for v in range(8)]
        r += [f"v_exp_f32 v{TT+v}, v{TT+v}" for v in range(8)]
        r += [f"v_mul_f32 v{A+8+v}, v{A+v}, v{A+8+v}" for v in range(8)]
        r += [f"v_add_f32 v{TT+v}, 1.0, v{TT+v}" for v in range(8)]
        r += [f"v_rcp_f32 v{TT+v}, v{TT+v}" for v in range(8)]
        r += [f"v_mul_f32 v{A+8+v}, v{A+8+v}, v{TT+v}" for v in range(8)]
        for i in (0, 2, 1, 3):
            r.append(f"v_cvt_pk_bf16_f32 v{A+i}, v{A+8+2*i}, v{A+8+2*i+1}")
        r.append(f"v_permlane16_swap_b32 v{A}, v{A+2}")
        r.append("s_nop 0")
        r.append(f"v_permlane16_swap_b32 v{A+1}, v{A+3}")
        so = "s43" if p & 1 else "s42"
        r.append(f"buffer_store_dwordx4 {vr(A,4)}, v{C_VST}, s[32:35], {so} offen offset:{(p>>1)*1024} sc1")
        return r
    for v in range(0, 8, 2):
        r.append(f"v_pk_mul_f32 {vr(TT+v,2)}, {vr(A+v,2)}, {vr(A+v,2)}")
    for v in range(0, 8, 2):
        r.append(f"v_pk_fma_f32 {vr(TT+v,2)}, {vr(TT+v,2)}, {vr(C_K2,2)}, {vr(C_K1,2)}")
    for v in range(0, 8, 2):
        r.append(f"v_pk_mul_f32 {vr(TT+v,2)}, {vr(TT+v,2)}, {vr(A+v,2)}")
    for v in range(8):
        r.append(f"v_exp_f32 v{TT+v}, v{TT+v}")
    for v in range(0, 8, 2):
        r.append(f"v_pk_mul_f32 {vr(A+8+v,2)}, {vr(A+v,2)}, {vr(A+8+v,2)}")
    for v in range(0, 8, 2):
        r.append(f"v_pk_add_f32 {vr(TT+v,2)}, {vr(TT+v,2)}, 1.0 op_sel_hi:[1,0]")
    for v in range(8):
        r.append(f"v_rcp_f32 v{TT+v}, v{TT+v}")
    for v in range(0, 8, 2):
        r.append(f"v_pk_mul_f32 {vr(A+8+v,2)}, {vr(A+8+v,2)}, {vr(TT+v,2)}")
    for i in (0, 2, 1, 3):
        r.append(f"v_cvt_pk_bf16_f32 v{A+i}, v{A+8+2*i}, v{A+8+2*i+1}")
    r.append(f"v_permlane16_swap_b32 v{A}, v{A+2}")
    r.append("s_nop 0")
    r.append(f"v_permlane16_swap_b32 v{A+1}, v{A+3}")
    so = "s43" if p & 1 else "s42"
    r.append(f"buffer_store_dwordx4 {vr(A,4)}, v{C_VST}, s[32:35], {so} offen offset:{(p>>1)*1024} sc1")
    return r


def spec_epi(p):
    A, TT = C_ACC + 16 * p, (C_TT if p & 1 else C_TT2)
    r = []
    for i in range(8):
        r.append(f"v_cvt_pk_bf16_f32 v{TT+i}, v{A+2*i}, v{A+2*i+1}")
    for i in range(4):
        r.append(f"v_cvt_pk_bf16_f32 v{TT+8+i}, -v{A+8+2*i}, -v{A+8+2*i+1}")
    pa, pb, pn = vr(TT, 4), vr(TT + 4, 4), vr(TT + 8, 4)
    for rho in range(2):
        zr = vr(A + 4 * rho, 4)
        r.append(f"{MF16} {zr}, {vr(C_CF+4*rho,4)}, {pa}, 0")
        r.append(f"{MF16} {zr}, {vr(C_SF+4*rho,4)}, {pb}, {zr}")
    for rho in range(2):
        zm = vr(A + 8 + 4 * rho, 4)
        r.append(f"{MF16} {zm}, {vr(C_SF+4*rho,4)}, {pa}, 0")
        r.append(f"{MF16} {zm}, {vr(C_CF+4*rho,4)}, {pn}, {zm}")
    return r


def spec_pack(p):
    A = C_ACC + 16 * p
    r = [f"v_cvt_pk_bf16_f32 v{A+rg}, v{A+rg}, v{A+8+rg}" for rg in range(8)]
    r += [f"ds_write_b128 v{2+(p&1)}, {vr(A+4*rho,4)} offset:{(2*(p>>1)+rho)*4096}" for rho in range(2)]
    return r


def p1_compute(a, opt, kind):
    T = {"ffn6": 6, "spec6": 6, "spec4g": 4, "ffn8": 8}[kind]
    hasg = kind == "spec4g"
    lab_kind = kind
    kind = "spec" if kind.startswith("spec") else kind
    a.ds = []
    VA, VX, VST, VGW, VFD = C_VA, C_VX, C_VST, C_VGW, C_VFD
    P = T // 2
    t0, t1, t2 = C_T0, C_T1, C_T2
    WF, XF, ACC = C_WF, C_XF, C_ACC
    GACC = ACC + 64
    a.label(f"L1C_{lab_kind}")
    a(f"s_mul_i32 s41, s41, {P}")
    for pl in range(P):
        a(f"s_add_u32 s42, s41, {pl}")
        a("s_lshl_b32 s42, s42, 5")
        a(f"v_xor_b32 v{VA+pl}, s42, v{C_VB}")
    if kind == "spec":
        a(f"v_lshrrev_b32 v{t1}, 4, v1")
        a(f"v_mul_u32_u24 v{t1}, {4*ZR_B}, v{t1}")
        a(f"v_and_b32 v{t0}, 15, v1")
        a(f"v_lshl_add_u32 v{VST}, v{t0}, 4, v{t1}")
        if hasg:
            a(f"v_lshrrev_b32 v{t0}, 4, v1")
            a(f"v_lshlrev_b32 v{t0}, 4, v{t0}")
            a(f"v_and_b32 v{t1}, 1, v1")
            a(f"v_lshl_add_u32 v{t0}, v{t1}, 10, v{t0}")
            a(f"v_add_u32 v{t2}, {GW_LDS}, v{t0}")
        srd(a, 32, 78, 79, Z_SIZE, Z_OFF)
        a("s_mul_i32 s42, s22, 96")
        a(f"s_mul_i32 s43, s21, {EP}")
        a("s_add_u32 s42, s42, s43")
        a("s_lshr_b32 s43, s45, 1")
        a("s_lshl_b32 s43, s43, 4")
        a("s_add_u32 s42, s42, s43")
        a("s_lshl_b32 s42, s42, 4")
        a("s_and_b32 s43, s45, 1")
        a(f"s_mul_i32 s43, s43, {16*ZR_B}")
        a("s_add_u32 s42, s42, s43")
    else:
        for i in range(2):
            a(f"v_mov_b32 v{C_K1+i}, {f2u(C1):#x}")
            a(f"v_mov_b32 v{C_K2+i}, {f2u(C2):#x}")
        a(f"v_lshlrev_b32 v{VST}, 4, v1")
        srd(a, 32, 78, 79, H_SIZE, H_OFF)
        a("s_lshl3_add_u32 s44, s22, s41")
        a(f"s_mul_i32 s42, s23, {HS}")
        a("s_add_u32 s42, s42, s44")
        a("s_lshl_b32 s42, s42, 10")
        a("s_xor_b32 s43, s23, 32")
        a(f"s_mul_i32 s43, s43, {HS}")
        a("s_add_u32 s43, s43, s44")
        a("s_lshl_b32 s43, s43, 10")
        if opt.pre:
            a(f"v_mov_b32 v{t0}, s42")
            a(f"v_mov_b32 v{t1}, s43")
            a("v_cmp_gt_u32 vcc, 32, v1")
            a("v_and_b32 v11, 31, v1")
            a(f"v_min_u32 v11, {8*P-1}, v11")
            a(f"v_cndmask_b32 v{t0}, v{t1}, v{t0}, vcc")
            a(f"v_lshl_add_u32 v11, v11, 7, v{t0}")
    stamp(a, opt)

    tail = 0 if kind == "spec" else opt.tail
    units = []
    for s in range(8):
        us = []
        if tail == 2 and s == 7:
            continue
        if tail == 2 and s == 6:
            for p in range(P):
                for s_ in (6, 7):
                    us += [dict(s=s_, p=p, frags=[(0, 0), (0, 1)]), dict(s=s_, p=p, frags=[(1, 0), (1, 1)], upd=True)]
            us[2]["open"] = True
            us[2]["bar"] = True
            us[0]["open"] = True
            us[0]["bar"] = True
            units += us
            continue
        if s == 0 and opt.split0:
            us += [dict(s=s, p=p, frags=[(0, 0), (1, 0)]) for p in range(P)]
            us += [dict(s=s, p=p, frags=[(0, 1), (1, 1)], upd=True, bar=(p == 0)) for p in range(P)]
            if hasg:
                us.append(dict(s=s, p=None))
        else:
            if hasg:
                us.append(dict(s=s, p=None))
            for p in range(P):
                us += [dict(s=s, p=p, frags=[(0, 0), (0, 1)]), dict(s=s, p=p, frags=[(1, 0), (1, 1)], upd=True)]
        us[0]["open"] = True
        us[0]["bar"] = True
        units += us
    N = len(units)
    LA = 2

    def delta(s):
        return SSZ if (s % NB) < 2 else -2 * SSZ

    def upd(reg, s):
        d = delta(s)
        return f"v_add_u32 v{reg}, {d}, v{reg}" if d > 0 else f"v_subrev_u32 v{reg}, {-d}, v{reg}"

    def side_ops(n):
        U = units[n]
        s = U["s"]
        f = WF + 8 * (n % 3)
        ops = []
        if U.get("open"):
            xb = XF + 32 * (s & 1)
            for g in range(2):
                for rt in range(2):
                    for ks in range(2):
                        ops.append((f"ds_read_b128 {vr(xb+16*g+8*rt+4*ks,4)}, v{VX+2*g+ks} offset:{rt*2048}", ("x", s)))
        if U["p"] is None:
            ops.append(("s_lshl_b32 s44, s49, 7", None))
            ops.append((f"v_add_u32 v{VGW}, s44, v{t2}", None))
            ops.append((f"ds_read_b128 {vr(f,4)}, v{VGW}", ("u", n)))
            ops.append((f"ds_read_b128 {vr(f+4,4)}, v{VGW} offset:64", ("u", n)))
            if opt.pairord:
                ops.append(("s_xor_b32 s49, s49, s50", None))
            ops.append(("s_add_u32 s49, s49, 1", None))
            ops.append(("s_and_b32 s49, s49, 7", None))
            if opt.pairord:
                ops.append(("s_xor_b32 s49, s49, s50", None))
        else:
            for k, (m, ks) in enumerate(U["frags"]):
                off = m * 16384 + ks * 8192
                ops.append((f"ds_read_b64_tr_b16 {vr(f+4*k,2)}, v{VA+U['p']} offset:{off}", ("u", n)))
                ops.append((f"ds_read_b64_tr_b16 {vr(f+4*k+2,2)}, v{VA+U['p']} offset:{off+1024}", ("u", n)))
        if U.get("open") and s < 7:
            ops += [(upd(VX + ks, s), None) for ks in range(4)]
        if U.get("upd") and s < 7:
            ops.append((upd(VA + U["p"], s), None))
        if opt.pre and kind != "spec" and s == opt.pre and U.get("upd") and U["p"] == P - 1:
            ops.append(("buffer_load_dword v12, v11, s[32:35], 0 offen", None))
        return ops

    def emit(op):
        if op[1] is None:
            a(op[0])
        else:
            a.dsop(op[0], op[1])

    epi = spec_epi if kind == "spec" else ffn_epi
    fill = []
    a("s_barrier")
    stamp(a, opt)
    for n in range(LA):
        for op in side_ops(n):
            emit(op)
    pend = []
    for n in range(N):
        U = units[n]
        s = U["s"]
        boundary = n + LA == N or (n + LA < N and units[n + LA].get("bar"))
        carry = len(pend)
        if boundary and carry:
            for _ in range(carry):
                emit(pend.pop(0))
            carry = 0
        if n + LA < N:
            pend += side_ops(n + LA)
        a.dswait(("u", n))
        f = WF + 8 * (n % 3)
        xb = XF + 32 * (s & 1)
        frags = U.get("frags", [(0, 0), (0, 1)])
        NM = 4 if U["p"] is None else 8
        bpos = min(opt.bpos, NM - 2)
        for j in range(NM):
            g, rt, k = j >> 2, (j >> 1) & 1, j & 1
            if opt.mord == 1 and NM == 8:
                g, rt, k = (j >> 1) & 1, j & 1, j >> 2
            if opt.mord == 2 and NM == 8:
                k = k ^ (rt & 1) if not (s == 0) else k
            m, ks = frags[k]
            if U["p"] is None:
                acc = vr(GACC + 4 * rt, 4)
            else:
                acc = vr(ACC + 16 * (2 * U["p"] + g) + 8 * m + 4 * rt, 4)
            w_, x_ = vr(f + 4 * k, 4), vr(xb + 16 * g + 8 * rt + 4 * ks, 4)
            srcc = "0" if (s == 0 and ks == 0) else acc
            if kind == "spec":
                a(f"{MF16} {acc}, {x_}, {w_}, {srcc}")
            else:
                a(f"{MF16} {acc}, {w_}, {x_}, {srcc}")
            if boundary:
                if j < bpos:
                    cnt = -(-carry // (bpos - j)) if carry else 0
                    carry -= cnt
                else:
                    cnt = 2
                if j == bpos:
                    a("s_waitcnt lgkmcnt(0)")
                    a("s_barrier")
                    if opt.fine:
                        stamp(a, opt)
            else:
                cnt = max(-(-len(pend) // (NM - j)), 1)
            cnt = min(cnt, len(pend))
            for _ in range(min(cnt, len(pend))):
                emit(pend.pop(0))
            k_ = min(cnt, 2) if opt.npk else 0
            while fill and k_ < opt.fpg and fill[0][0] <= a.n and not (opt.npk and fill[0][1].startswith("v_pk")):
                ins_ = fill.pop(0)[1]
                a(ins_)
                k_ += 2 if ins_.startswith(("v_exp", "v_rcp")) else 1
            if tail and s == 7 and U.get("upd") and j in (3, 7):
                fill += [(a.n + 9, i_) for i_ in epi(2 * U["p"] + (j >> 2))]
    assert not pend
    stamp(a, opt)
    if tail:
        while fill:
            at, ins = fill.pop(0)
            if at > a.n:
                a(f"s_nop {min(at - a.n - 1, 15)}")
                a.n = at
            a(ins)
    else:
        a("s_nop 7")
        if kind != "spec":
            hp = min(opt.hp, T - 1)
            for p in range(T):
                for ins in epi(p):
                    a(ins)
                if opt.half and p == 0:
                    srd(a, 36, 78, 79, F_SIZE, F_OFF)
                    a(f"v_mov_b32 v{t1}, 1")
                    a(f"v_lshlrev_b32 v{t2}, 7, v1")
                if opt.half and p == hp:
                    a(f"s_waitcnt vmcnt({hp - 3})")
                    a("s_mov_b64 exec, " + opt.fmask)
                    a(f"buffer_store_dword v{t1}, v{t2}, s[36:39], s63 offen sc1")
                    a("s_mov_b64 exec, -1")
        else:
            a(f"v_lshlrev_b32 v{t1}, 4, v1")
            a("s_lshl_b32 s43, s45, 10")
            a(f"s_add_u32 s43, s43, {SSZ}")
            a(f"v_add_u32 v{t0}, s43, v{t1}")
            a("s_lshl_b32 s43, s41, 13")
            a(f"v_add_u32 v2, s43, v{t0}")
            a("v_xor_b32 v3, 0x800, v2")
            a("s_lshl_b32 s43, s45, 12")
            a(f"s_add_u32 s43, s43, {SSZ}")
            a(f"v_add_u32 v{t1}, s43, v{t1}")
            if hasg:
                A, TT, ZR = GACC, C_TT, GACC + 8
                for i in range(4):
                    a(f"v_cvt_pk_bf16_f32 v{TT+i}, v{A+2*i}, v{A+2*i+1}")
                srd(a, 36, 78, 79, G_SIZE, G_OFF)
                for rho in range(2):
                    a(f"{MF16} {vr(ZR+4*rho,4)}, {vr(C_CF+4*rho,4)}, {vr(TT,4)}, 0")
                    a(f"{MF16} {vr(ZR+8+4*rho,4)}, {vr(C_SF+4*rho,4)}, {vr(TT,4)}, 0")
                for i in range(4):
                    a(f"v_lshlrev_b32 v{A+2*i}, 16, v{TT+i}")
                    a(f"v_and_b32 v{A+2*i+1}, 0xffff0000, v{TT+i}")
                for i in range(8):
                    a(f"v_mul_f32 v{A+i}, {f2u(-1.4426950408889634):#x}, v{A+i}")
                for i in range(8):
                    a(f"v_exp_f32 v{A+i}, v{A+i}")
                for i in range(8):
                    a(f"v_add_f32 v{A+i}, 1.0, v{A+i}")
                for i in range(8):
                    a(f"v_rcp_f32 v{A+i}, v{A+i}")
                for rg in range(8):
                    a(f"v_cvt_pk_bf16_f32 v{ZR+rg}, v{ZR+rg}, v{ZR+8+rg}")
                for rho in range(2):
                    a(f"ds_write_b128 v{t0}, {vr(ZR+4*rho,4)} offset:{(2*T+rho)*4096}")
                for i in range(4):
                    a(f"v_cvt_pk_bf16_f32 v{TT+i}, v{A+2*i}, v{A+2*i+1}")
                for i in range(4):
                    a(f"v_lshlrev_b32 v{A+2*i}, 16, v{TT+i}")
                    a(f"v_and_b32 v{A+2*i+1}, 0xffff0000, v{TT+i}")
                a("s_lshl_b32 s43, s23, 7")
                a("s_mov_b32 exec_lo, 0x00010001")
                a("s_mov_b32 exec_hi, 0x00010001")
                a(f"buffer_store_dwordx4 {vr(A,4)}, v1, s[36:39], s43 offen sc1")
                a(f"buffer_store_dwordx4 {vr(A+4,4)}, v1, s[36:39], s43 offen offset:64 sc1")
                a("s_mov_b64 exec, -1")
            cv = [[x for x in epi(p) if not x.startswith("v_mfma")] for p in range(T)]
            mf = [[x for x in epi(p) if x.startswith("v_mfma")] for p in range(T)]
            for ins in cv[0]:
                a(ins)
            for p in range(T):
                side = (cv[p + 1] if p + 1 < T else ["s_nop 3", "s_nop 3", "s_nop 3"]) + (spec_pack(p - 1) if p > 0 else [])
                for i, ins in enumerate(mf[p]):
                    a(ins)
                    for _ in range(-(-len(side) // (8 - i))):
                        a(side.pop(0))
            if opt.fine4:
                stamp(a, opt)
            a("s_nop 7")
            for ins in spec_pack(T - 1):
                a(ins)
            if opt.fine4:
                stamp(a, opt)
            a("s_waitcnt lgkmcnt(0)")
            a("s_barrier")
            if opt.fine4:
                stamp(a, opt)
            NG = T // 2 + (1 if hasg else 0)
            for k in range(NG):
                for w in range(4):
                    a(f"ds_read_b128 {vr(WF+16*k+4*w,4)}, v{t1} offset:{k*16384 + w*1024}")
            for k in range(NG):
                R = WF + 16 * k
                a(f"s_waitcnt lgkmcnt({4*(NG-1-k)})")
                for i in range(4):
                    for j in range(i + 1, 4):
                        a(f"v_swap_b32 v{R+4*i+j}, v{R+4*j+i}")
                if opt.fine4:
                    stamp(a, opt)
                off = 512 * k
                if hasg and k == NG - 1:
                    a("s_cmp_ge_u32 s45, 2")
                    a("s_cbranch_scc1 L1C_no256")
                    a("s_mov_b32 exec_lo, 0x00020002")
                    a("s_mov_b32 exec_hi, 0x00020002")
                    off -= 16
                for b in range(4):
                    a(f"s_add_u32 s43, s42, {b*ZR_B}")
                    a(f"buffer_store_dwordx4 {vr(R+4*b,4)}, v{VST}, s[32:35], s43 offen offset:{off} sc1")
            if hasg:
                a("s_mov_b64 exec, -1")
                a.label("L1C_no256")
            if opt.fine4:
                stamp(a, opt)
            if not opt.lateb9:
                a("s_barrier")

    stamp(a, opt)
    a("s_branch L2C")


def p2_combine(a, opt):
    VFD = C_VFD
    t0, t1, t2 = C_T0, C_T1, C_T2
    VZ, VO, VG = 23, 24, 25
    ZF, ACY, PT, BF, TR = 160, 192, 96, 208, 2
    a.label("L2C")
    a("s_and_b32 s42, s45, 1")
    a("s_lshl_b32 s42, s42, 5")
    a("s_add_u32 s42, s42, s54")
    a("s_lshr_b32 s43, s45, 1")
    a("s_lshl_b32 s43, s43, 5")
    a("s_lshl_b32 s44, s51, 6")
    a("s_add_u32 s43, s43, s44")
    a(f"v_bfe_u32 v{t0}, v1, 2, 1")
    a(f"v_lshlrev_b32 v{t0}, 4, v{t0}")
    a(f"v_and_or_b32 v{t0}, v1, 3, v{t0}")
    a(f"v_bfe_u32 v{t1}, v1, 3, 2")
    a(f"v_lshlrev_b32 v{t1}, 2, v{t1}")
    a(f"v_add3_u32 v{t0}, v{t0}, v{t1}, s43")
    a(f"v_and_b32 v{t1}, 31, v1")
    a("s_lshl_b32 s44, s42, 7")
    a(f"v_lshl_add_u32 v{VG}, v{t1}, 2, s44")
    a(f"v_lshl_add_u32 v{t1}, v{t1}, 6, s42")
    a(f"v_lshrrev_b32 v{t2}, 5, v1")
    a(f"v_lshlrev_b32 v{VO}, 10, v{t1}")
    a(f"v_lshl_add_u32 v{VO}, v{t2}, 5, v{VO}")
    a("s_lshl_b32 s44, s43, 1")
    a(f"v_add_u32 v{VO}, s44, v{VO}")
    a("s_mov_b32 s64, s54")
    a("s_cmp_lt_u32 s51, 4")
    a("s_cbranch_scc1 L2C_nomirror")
    a(f"v_sub_u32 v{t0}, 0x200, v{t0}")
    a(f"v_sub_u32 v{t1}, 0x800, v{t1}")
    a(f"v_and_b32 v{t1}, 0x7ff, v{t1}")
    a("s_sub_u32 s64, 32, s54")
    a("s_and_b32 s64, s64, 31")
    a.label("L2C_nomirror")
    a(f"v_mul_u32_u24 v{VZ}, {8*EP*16}, v{t2}")
    a(f"v_lshl_add_u32 v{VZ}, v{t0}, 4, v{VZ}")
    a(f"s_mul_i32 s64, s64, {ZR_B}")
    a(f"v_cvt_f32_u32 v26, v{t1}")
    a(f"v_mul_f32 v26, {f2u(-1.0/2048):#x}, v26")
    a(f"v_cvt_f32_u32 v27, v{t2}")
    a(f"v_mul_f32 v27, {f2u(16.0):#x}, v27")
    a("v_mul_f32 v27, v26, v27")

    def trig(o):
        for q in range(8):
            ks_, qq = (8 * o + q) >> 2, q & 3
            a(f"v_fmamk_f32 v{TR+q}, v26, {f2u(float(2*ks_ + (qq&1) + 32*(qq>>1))):#x}, v27")
        for q in range(8):
            a(f"v_fract_f32 v{TR+q}, v{TR+q}")
        for q in range(8):
            a(f"v_sin_f32 v{TR+8+q}, v{TR+q}")
        for q in range(8):
            a(f"v_cos_f32 v{TR+q}, v{TR+q}")
        a("s_nop 0")
        for q in range(8):
            a(f"v_cvt_pk_bf16_f32 v{BF+8*o+q}, v{TR+q}, v{TR+8+q}")

    a("s_bitcmp1_b32 s65, 1")
    a("s_cbranch_scc1 L2C_t23s")
    trig(2)
    trig(3)
    a.label("L2C_t23s")
    srd(a, 36, 78, 79, F_SIZE, F_OFF)
    a(f"v_mov_b32 v{t0}, {FLG}")
    a(f"v_mov_b32 v{t1}, 1")
    a(f"v_lshlrev_b32 v{t2}, 7, v1")
    a("v_mov_b32 v28, 2")
    a("s_waitcnt vmcnt(0)")
    stamp(a, opt)
    a("s_bitcmp1_b32 s65, 0")
    a("s_cbranch_scc0 L2C_noh")
    a("s_mov_b64 exec, " + opt.fmask)
    a(f"buffer_store_dword v28, v{t2}, s[36:39], s63 offen sc1")
    a.label("L2C_noh")
    a("s_bitcmp1_b32 s65, 1")
    a("s_cbranch_scc0 L2C_noz")
    a("s_mov_b64 exec, 1")
    a(f"ds_add_rtn_u32 v{VFD}, v{t0}, v{t1}")
    a("s_and_b32 s42, s22, 1")
    a("s_lshl4_add_u32 s42, s42, s21")
    a(f"s_mul_i32 s42, s42, {opt.rl*128}")
    a("s_lshr_b32 s43, s22, 1")
    a("s_lshl_b32 s43, s43, 7")
    a("s_add_u32 s42, s42, s43")
    a("s_waitcnt lgkmcnt(0)")
    a(f"v_cmp_ne_u32 vcc, 3, v{VFD}")
    a("s_cbranch_vccnz L2C_noz")
    a(f"buffer_store_dword v28, v{t2}, s[36:39], s42 offen offset:256 sc1")
    a.label("L2C_noz")
    a("s_mov_b64 exec, -1")
    if opt.lateb9:
        a("s_bitcmp1_b32 s65, 1")
        a("s_cbranch_scc0 L2C_nob9")
        a("s_barrier")
        a.label("L2C_nob9")
    a(f"v_and_b32 v{VFD}, 15, v1")
    a(f"v_min_u32 v{VFD}, 10, v{VFD}")
    a(f"v_and_or_b32 v{VFD}, v1, 16, v{VFD}")
    a(f"s_mov_b32 s43, {RH}")
    a(f"v_lshl_add_u32 v{t0}, v{VFD}, 2, s43")
    a("v_min_u32 v28, 47, v1")
    a(f"s_mov_b32 s43, {RZ}")
    a("v_lshl_add_u32 v28, v28, 2, s43")
    a(f"s_mul_i32 s42, s54, {opt.rl}")
    a(f"s_and_b32 s43, s{2 if opt.map84 else 51}, {opt.cmask}")
    a("s_add_u32 s42, s42, s43")
    a("s_lshl_b32 s42, s42, 7")
    a(f"v_lshl_add_u32 v{t2}, v1, 4, s42")
    a(f"s_mov_b32 m0, {RH}")

    def hpoll():
        a("s_mov_b64 exec, 0xff")
        a(f"buffer_load_dwordx4 v{t2}, s[36:39], 0 offen sc1 lds")
        a("s_mov_b64 exec, -1")

    def zpoll():
        a("s_mov_b32 exec_hi, 0xffff")
        a(f"buffer_load_dword v{t2}, s[36:39], 0 offen sc1 lds")
        a("s_mov_b64 exec, -1")

    a("s_cmp_lg_u32 s45, 0")
    a("s_cbranch_scc1 L2C_rest")
    a.label("L2C_wh")
    hpoll()
    a(f"s_waitcnt vmcnt({opt.pq})")
    if opt.psleep:
        a(f"s_sleep {opt.psleep}")
    a(f"ds_read_b32 v{VFD}, v{t0}")
    a("s_waitcnt lgkmcnt(0)")
    a(f"v_cmp_ne_u32 vcc, 2, v{VFD}")
    a("s_cbranch_vccnz L2C_wh")
    a(f"v_and_b32 v{t2}, 31, v1")
    a(f"v_mul_u32_u24 v{t2}, {opt.rl*128}, v{t2}")
    a(f"v_lshrrev_b32 v{VFD}, 5, v1")
    a(f"v_lshl_add_u32 v{t2}, v{VFD}, 7, v{t2}")
    a(f"s_mov_b32 m0, {RZ}")
    a(f"v_add_u32 v{t2}, 0x100, v{t2}")
    zpoll()
    a.label("L2C_rest")
    trig(0)
    trig(1)
    a("s_bitcmp1_b32 s65, 1")
    a("s_cbranch_scc0 L2C_t23d")
    trig(2)
    trig(3)
    a.label("L2C_t23d")
    srd(a, 32, 78, 79, Z_SIZE, Z_OFF)
    srd(a, 24, 78, 79, G_SIZE, G_OFF)
    srd(a, 28, 18, 19, 2048 * 1024)
    a("s_barrier")
    a("s_branch L2C_wz1")
    a.label("L2C_wz")
    a("s_cmp_lg_u32 s45, 0")
    a("s_cbranch_scc1 L2C_wz1")
    a("s_waitcnt vmcnt(0)")
    zpoll()
    a(f"s_sleep {opt.zsleep}")
    a.label("L2C_wz1")
    a(f"ds_read_b32 v{VFD}, v28")
    a("s_waitcnt lgkmcnt(0)")
    a(f"v_cmp_ne_u32 vcc, 2, v{VFD}")
    a("s_cbranch_vccnz L2C_wz")

    def zloads():
        stamp(a, opt)
        a(f"buffer_load_dword v10, v{VG}, s[24:27], 0 offen sc1")
        for ks in range(8):
            if not opt.noz:
                a(f"buffer_load_dwordx4 {vr(ZF+4*ks,4)}, v{VZ}, s[32:35], s64 offen sc1")
            if ks < 7:
                a(f"s_add_u32 s64, s64, {EP*16}")

    zloads()
    a(f"v_lshlrev_b32 v{t0}, 4, v1")
    a("s_lshl_b32 s42, s45, 14")
    a(f"v_add_u32 v{t0}, s42, v{t0}")
    for ks in range(8):
        a(f"s_waitcnt vmcnt({7-ks})")
        acc = vr(ACY, 16)
        a(f"{MF32} {acc}, {vr(ZF+4*ks,4)}, {vr(BF+4*ks,4)}, {'0' if ks == 0 else acc}")
    a("v_sub_f32 v11, 1.0, v10")
    a("v_cvt_pk_bf16_f32 v11, v11, v11")
    a("v_and_b32 v12, 0xffff0000, v11")
    a("v_and_b32 v13, 0xffff0000, v11")
    a("s_nop 7")
    a("s_nop 1")
    for rg in range(16):
        a(f"v_mul_f32 v{ACY+rg}, v10, v{ACY+rg}")
    stamp(a, opt)
    a("s_barrier")
    for hf in range(2):
        for w in range(4):
            for q in (2 * hf, 2 * hf + 1):
                if hf == 1 and w == 3 and q == 3:
                    a("s_waitcnt lgkmcnt(7)")
                a(f"ds_read_b128 {vr(PT+16*w+4*q,4)}, v{t0} offset:{w*2048 + (q>>1)*8192 + (q&1)*1024}")
    for hf in range(2):
        if hf:
            a("s_waitcnt lgkmcnt(0)")
        rr = range(8 * hf, 8 * hf + 8, 2)
        for rg in rr:
            a(f"v_pk_add_f32 {vr(PT+rg,2)}, {vr(PT+rg,2)}, {vr(PT+16+rg,2)}")
        for rg in rr:
            a(f"v_pk_add_f32 {vr(PT+32+rg,2)}, {vr(PT+32+rg,2)}, {vr(PT+48+rg,2)}")
        for rg in rr:
            a(f"v_pk_add_f32 {vr(PT+rg,2)}, {vr(PT+rg,2)}, {vr(PT+32+rg,2)}")
        for rg in rr:
            a(f"v_pk_fma_f32 {vr(ACY+rg,2)}, {vr(PT+rg,2)}, v[12:13], {vr(ACY+rg,2)}")
        for i in range(4 * hf, 4 * hf + 4):
            a(f"v_cvt_pk_bf16_f32 v{32+i}, v{ACY+2*i}, v{ACY+2*i+1}")
        a(f"buffer_store_dwordx4 {vr(32+4*hf,4)}, v{VO}, s[28:31], 0 offen offset:{16*hf} {opt.ofl}")
    stamp(a, opt)
    stamp_flush(a, opt, "C")
    a("s_endpgm")


def compute_prologue(a, opt):
    t0, t1, t2 = C_T0, C_T1, C_T2
    if opt.pf:
        a(f"s_cmp_eq_u32 s46, {K_SPEC}")
        a("s_mov_b32 s47, 2752")
        a("s_cselect_b32 s47, 1024, s47")
        a("s_cmp_eq_u32 s22, 10")
        a("s_movk_i32 s40, 252")
        a("s_cselect_b32 s40, 188, s40")
        a(f"v_lshrrev_b32 v{t2}, 5, v1")
        a(f"v_bfe_u32 v{t0}, v1, 2, 3")
        a(f"v_lshl_add_u32 v{t0}, v{t2}, 7, v{t0}")
        a("s_lshl_b32 s44, s42, 3")
        a("s_add_u32 s44, s44, s55")
        a("s_lshl_b32 s44, s44, 3")
        a(f"v_add_u32 v{t0}, s44, v{t0}")
        a(f"v_mul_u32_u24 v{t0}, s47, v{t0}")
        a(f"v_and_b32 v{t1}, 3, v1")
        a(f"v_lshlrev_b32 v{t1}, 7, v{t1}")
        a(f"v_min_u32 v{t1}, s40, v{t1}")
        a("s_lshl_b32 s44, s22, 8")
        a(f"v_add3_u32 v{t0}, v{t0}, v{t1}, s44")
        a(f"v_and_b32 v{t1}, 31, v1")
        a(f"v_lshlrev_b32 v{t1}, 16, v{t1}")
        a(f"v_mul_u32_u24 v{t2}, 384, v{t2}")
        a("s_lshl_b32 s44, s23, 3")
        a("s_lshr_b32 s41, s2, 6")
        a("s_add_u32 s44, s44, s41")
        a("s_lshl_b32 s44, s44, 7")
        a(f"v_add3_u32 v{t1}, v{t1}, v{t2}, s44")
        a("s_lshl_b32 s40, s47, 6")
        a("s_mul_i32 s41, s40, 5")
        a("s_lshl_b32 s30, s47, 9")
        a("s_mov_b32 s31, 0x20000")
        a("s_waitcnt lgkmcnt(0)")
        srd(a, 24, 4, 5, 2048 * 1024)
        a(f"s_cmp_eq_u32 s46, {K_SPEC}")
        a("s_cselect_b64 s[12:13], s[8:9], s[12:13]")
        a("s_cselect_b64 s[14:15], s[10:11], s[14:15]")
        a("s_cmp_ge_u32 s45, 2")
        a("s_cselect_b64 s[28:29], s[14:15], s[12:13]")
        a(f"buffer_load_dword v29, v{t0}, s[28:31], s40 offen")
        a(f"buffer_load_dword v30, v{t1}, s[24:27], 0 offen offset:128")
        a(f"buffer_load_dword v31, v{t0}, s[28:31], s41 offen")
    a(f"v_lshlrev_b32 v{t0}, 3, v1")
    a(f"v_add_u32 v{t0}, {FLG}, v{t0}")
    a("v_mov_b32 v2, 0")
    a("v_mov_b32 v3, 0")
    a(f"ds_write_b64 v{t0}, v[2:3]")
    a("s_waitcnt lgkmcnt(0)")
    stamp(a, opt)
    a("s_and_b32 s63, s23, 31")
    a(f"s_mul_i32 s63, s63, {opt.rl*32}")
    a("s_lshr_b32 s44, s23, 5")
    a("s_lshl_b32 s44, s44, 4")
    a("s_add_u32 s63, s63, s44")
    a("s_add_u32 s63, s63, s22")
    a("s_lshl_b32 s63, s63, 2")
    a(f"s_cmp_eq_u32 s46, {K_IDLE}")
    a("s_cbranch_scc1 L1C_idle")
    a(f"v_bfe_u32 v{t0}, v1, 2, 2")
    a(f"v_lshrrev_b32 v{t1}, 4, v1")
    a(f"v_lshl_add_u32 v{t1}, v{t1}, 3, v{t0}")
    a(f"v_lshlrev_b32 v{t1}, 8, v{t1}")
    a(f"v_bfe_u32 v{t0}, v1, 2, 3")
    a(f"v_lshl_add_u32 v{t1}, v{t0}, 5, v{t1}")
    a(f"v_and_b32 v{t0}, 3, v1")
    a(f"v_lshl_add_u32 v{C_VB}, v{t0}, 3, v{t1}")
    a(f"v_and_b32 v{t0}, 15, v1")
    a(f"v_lshrrev_b32 v{t1}, 1, v{t0}")
    a(f"v_lshrrev_b32 v{t2}, 4, v1")
    a(f"v_xor_b32 v{t1}, v{t1}, v{t2}")
    a(f"v_lshlrev_b32 v{t1}, 4, v{t1}")
    a(f"v_lshl_add_u32 v{t0}, v{t0}, 7, v{t1}")
    a(f"v_add_u32 v{C_VX}, s48, v{t0}")
    a(f"v_xor_b32 v{C_VX+1}, 64, v{C_VX}")
    a(f"v_xor_b32 v{C_VX+2}, 0x2000, v{C_VX}")
    a(f"v_xor_b32 v{C_VX+3}, 0x2040, v{C_VX}")
    if opt.pp:
        a.l.append("@@DISPATCH@@")
    a("s_mov_b32 s65, 1")
    a(f"s_cmp_eq_u32 s46, {K_6G}")
    a("s_cbranch_scc1 L1C_ffn6")
    a("s_cmp_lg_u32 s46, 0")
    a("s_cbranch_scc1 L1C_specs")


def idle_compute(a, opt):
    t0, t1, t2 = C_T0, C_T1, C_T2
    a.label("L1C_idle")
    a("s_mov_b32 s65, 0")
    srd(a, 24, 76, 77, 256)
    a(f"v_mov_b32 v{t1}, 0")
    a("s_cmp_lg_u32 s55, 4")
    a("s_cbranch_scc1 L1_noinit")
    srd(a, 36, 78, 79, F_SIZE, F_OFF)
    for i in range(4):
        a(f"v_mov_b32 v{32+i}, 0")
    a(f"v_lshlrev_b32 v{t0}, 4, v1")
    a("s_and_b32 s42, s2, 7")
    a("s_lshl_b32 s42, s42, 2")
    a("s_add_u32 s42, s42, s45")
    a(f"s_mul_i32 s42, s42, {opt.rl*128}")
    a(f"buffer_store_dwordx4 v[32:35], v{t0}, s[36:39], s42 offen sc1")
    a(f"v_mov_b32 v{t2}, 1")
    a.label("L1_noinit")
    if opt.tlb:
        srd(a, 32, 78, 79, 0x800000)
        srd(a, 28, 18, 19, 2048 * 1024)
        a(f"v_mul_u32_u24 v{t0}, {HS*1024}, v1")
        a(f"s_mov_b32 s42, {86*1024}")
        a(f"buffer_load_dword v249, v{t0}, s[32:35], s42 offen")
        a(f"v_min_u32 v{t0}, 36, v1")
        a(f"v_mul_u32_u24 v{t0}, {ZR_B}, v{t0}")
        a(f"v_cmp_gt_u32 vcc, 32, v1")
        a(f"v_mov_b32 v248, {0x7C0000 - (Z_OFF + ZR_B - 128)}")
        a(f"s_mov_b32 s42, {Z_OFF + ZR_B - 128}")
        a(f"v_cndmask_b32 v{t0}, v248, v{t0}, vcc")
        a(f"buffer_load_dword v248, v{t0}, s[32:35], s42 offen")
        a(f"v_lshlrev_b32 v{t0}, 15, v1")
        a(f"buffer_load_dword v247, v{t0}, s[28:31], 0 offen")
    if opt.codepf:
        a("s_getpc_b64 s[40:41]")
        a.label("L_pcref")
        a(f"s_sub_u32 s40, s40, L_pcref-{NAME}_kernel")
        a("s_subb_u32 s41, s41, 0")
        a("s_lshl2_add_u32 s42, s55, s45")
        a("s_and_b32 s42, s42, 7")
        a("s_mul_i32 s42, s42, 6400")
        a(f"v_lshl_add_u32 v{t0}, v1, 7, s42")
        a(f"v_min_u32 v{t0}, L_exit-{NAME}_kernel, v{t0}")
        a("v_mov_b32 v37, s41")
        a(f"v_add_co_u32 v36, vcc, s40, v{t0}")
        a("s_nop 1")
        a("v_addc_co_u32 v37, vcc, 0, v37, vcc")
        a("global_load_dword v250, v[36:37], off")
    a("s_waitcnt vmcnt(0)")
    a("s_cmp_lg_u32 s55, 4")
    a("s_cbranch_scc1 L1_noinit2")
    a("s_mov_b64 exec, 1")
    a(f"buffer_atomic_add v{t2}, v{t1}, s[24:27], 0 offen sc1")
    a("s_mov_b64 exec, -1")
    a.label("L1_noinit2")
    a("s_barrier")
    a("s_barrier")
    a("s_cmp_lg_u32 s45, 0")
    a("s_cbranch_scc1 L2C")
    a.label("L1C_idle_go")
    a(f"buffer_load_dword v{t2}, v{t1}, s[24:27], 0 offen sc1")
    a("s_waitcnt vmcnt(0)")
    a(f"v_cmp_gt_u32 vcc, 32, v{t2}")
    a("s_cbranch_vccz L2C")
    a("s_sleep 8")
    a("s_branch L1C_idle_go")


def decode_rest(a, opt, lab):
    a("s_cmp_eq_u32 s44, 3")
    a(f"s_cbranch_scc1 {lab}_3")
    a("s_mul_i32 s22, s42, 3")
    a("s_min_u32 s22, s22, 8")
    a("s_add_u32 s22, s22, s44")
    a("s_and_b32 s46, s42, s44")
    a("s_lshr_b32 s46, s46, 1")
    a(f"s_cbranch_scc0 {lab}_d")
    a("s_and_b32 s22, s42, 1")
    a(f"s_branch {lab}_d")
    a.label(f"{lab}_3")
    a("s_cmp_lt_u32 s55, 2")
    a("s_cselect_b32 s22, 10, 2")
    a("s_lshr_b32 s46, s55, 1")
    a("s_add_u32 s46, s46, 2")
    a(f"s_min_u32 s46, s46, {K_IDLE}")
    a.label(f"{lab}_d")


def kernel(a, opt):
    a.label(NAME + "_kernel")
    if opt.stamps:
        a("v_mov_b32 v255, 0")
        a("v_mov_b32 v253, 0")
        a("s_mov_b32 s89, 0")
        stamp(a, opt)
    a("s_load_dwordx2 s[24:25], s[0:1], 0")
    a("s_load_dwordx16 s[4:19], s[0:1], 24")
    a("s_load_dwordx4 s[76:79], s[0:1], 88")
    a("v_lshrrev_b32 v2, 6, v0")
    a("v_and_b32 v1, 63, v0")
    a("v_readfirstlane_b32 s20, v2")
    a("s_cmp_ge_u32 s2, 256")
    a("s_cbranch_scc1 L_exit")
    a("s_bfe_u32 s55, s2, 0x30003")
    a("s_bfe_u32 s42, s2, 0x20001")
    a("s_lshr_b32 s44, s2, 6")
    a("s_and_b32 s43, s55, 1")
    a("s_lshl1_add_u32 s43, s42, s43")
    a("s_cmp_eq_u32 s44, 3")
    a("s_cselect_b32 s21, s43, s55")
    if opt.q3:
        if opt.rmul:
            a(f"s_mul_i32 s40, s44, {opt.rmul}")
            a("s_mul_i32 s43, s42, 2")
            a("s_add_u32 s40, s40, s43")
            a("s_cmp_eq_u32 s44, 3")
        else:
            a(f"s_mul_i32 s40, s42, {opt.q3}")
    else:
        a(f"s_mul_i32 s40, s44, {opt.rmul}")
    a("s_mul_i32 s43, s55, 3")
    a("s_cselect_b32 s43, s43, s40")
    if opt.r3:
        a("s_addc_u32 s49, s43, s21")
    else:
        a("s_add_u32 s49, s40, s21")
    if opt.qmul == 1:
        a("s_add_u32 s49, s49, s42")
    if opt.qmul == 2:
        a("s_lshl1_add_u32 s49, s42, s49")
    if opt.pirot:
        a("s_add_u32 s43, s55, s42")
        a("s_and_b32 s40, s2, 1")
        a("s_lshl1_add_u32 s43, s43, s40")
        a("s_cmp_eq_u32 s44, 3")
        a("s_cselect_b32 s49, s49, s43")
    a(f"s_and_b32 s49, s49, {opt.rotmask}")
    if opt.pairord:
        a(f"s_and_b32 s50, s49, {opt.pairord}")
    a("s_and_b32 s43, s2, 1")
    a("s_lshl3_add_u32 s21, s43, s21")
    a("s_and_b32 s45, s20, 3")
    a("s_and_b32 s40, s45, 1")
    a("s_lshr_b32 s41, s45, 1")
    a("s_lshl1_add_u32 s23, s21, s40")
    a("s_lshl_b32 s43, s41, 5")
    a("s_add_u32 s23, s23, s43")
    a("s_lshl_b32 s48, s45, 12")
    a("s_bitset1_b32 s48, 15")
    a("s_cmp_ge_u32 s20, 4")
    a("s_cbranch_scc1 L1_compw")
    t0, t1, t2, VX, VD = L_T0, L_T1, L_T2, L_VX, L_VD
    a(f"v_lshrrev_b32 v{t0}, 3, v1")
    a("s_lshl_b32 s43, s23, 10")
    a(f"v_lshl_add_u32 v{t0}, v{t0}, 16, s43")
    a(f"v_lshrrev_b32 v{t1}, 4, v1")
    a(f"v_and_b32 v{t2}, 7, v1")
    a(f"v_xor_b32 v{t2}, v{t1}, v{t2}")
    a(f"v_lshl_add_u32 v{VX}, v{t2}, 4, v{t0}")
    a(f"v_xor_b32 v{VX+1}, {8*65536+64:#x}, v{VX}")
    a(f"v_xor_b32 v{VX+2}, {16*65536:#x}, v{VX}")
    a(f"v_xor_b32 v{VX+3}, {24*65536+64:#x}, v{VX}")
    a("s_mov_b32 s26, 0x200000")
    a("s_mov_b32 s27, 0x20000")
    a("s_lshl_b32 s47, s49, 7")
    a("s_mov_b32 m0, s48")
    a("s_cmp_ge_u32 s2, 224")
    if opt.epf:
        a("s_cbranch_scc1 L_epf")
        a("s_waitcnt lgkmcnt(0)")
    else:
        a("s_waitcnt lgkmcnt(0)")
        a("s_cbranch_scc1 L_nox")
    for i in range(4):
        a(f"buffer_load_dwordx4 v{VX+i}, s[24:27], s47 offen {opt.xfl} lds")
        if i < 3:
            a("s_add_u32 m0, m0, 1024")
            a("s_nop 0")
    a.label("L_nox")
    stamp(a, opt)
    decode_rest(a, opt, "L_dl")
    a("s_cmp_eq_u32 s46, 0")
    a("s_cselect_b32 s43, 15, 11")
    a(f"s_cmp_eq_u32 s46, {K_S4G}")
    a("s_cselect_b32 s43, 7, s43")
    a("s_cselect_b32 s80, 0, -1")
    a("s_bitcmp1_b32 s46, 0")
    a("s_cselect_b64 s[10:11], s[4:5], s[10:11]")
    a("s_cselect_b64 s[12:13], s[6:7], s[12:13]")
    a("s_movk_i32 s47, 2752")
    a("s_cselect_b32 s47, 1024, s47")
    a("s_movk_i32 s82, 256")
    a("s_cselect_b32 s82, 192, s82")
    a("s_cmp_eq_u32 s41, 1")
    a("s_cselect_b64 s[28:29], s[12:13], s[10:11]")
    a(f"v_lshl_add_u32 v{t0}, s40, 2, v{t1}")
    a("s_mul_i32 s82, s22, s82")
    a(f"v_mul_u32_u24 v{t0}, s47, v{t0}")
    a(f"v_and_b32 v{t2}, 15, v1")
    a(f"v_add_u32 v{t0}, s82, v{t0}")
    a(f"v_lshlrev_b32 v{t1}, 1, v{t1}")
    a(f"v_xor_b32 v{t1}, v{t1}, v{t2}")
    a(f"v_xor_b32 v{t2}, 8, v{t1}")
    a(f"v_min_u32 v{t1}, s43, v{t1}")
    a(f"v_min_u32 v{t2}, s43, v{t2}")
    a(f"v_lshl_add_u32 v{VD}, v{t1}, 4, v{t0}")
    a(f"v_lshl_add_u32 v{VD+1}, v{t2}, 4, v{t0}")
    a("s_lshl_b32 s41, s41, 14")
    a("s_lshl_b32 s40, s40, 10")
    a("s_add_u32 s41, s41, s40")
    a("s_lshl_b32 s44, s47, 3")
    a("s_lshl_b32 s30, s47, 9")
    a("s_mov_b32 s31, 0x20000")
    a("s_mov_b32 s66, 0")
    a("s_mov_b32 s67, 0")
    a("s_mul_i32 s40, s49, s44")
    if opt.sdelay:
        a("s_bitcmp1_b32 s46, 0")
        a("s_cbranch_scc0 L_nosd")
        a("s_barrier")
        a.label("L_nosd")
    a(f"s_cmp_lg_u32 s46, {K_IDLE}")
    a("s_cbranch_scc1 L1L_w")
    if opt.epf:
        a("s_branch L_idl2")
        a.label("L_epf")
        a("s_getpc_b64 s[72:73]")
        a.label("L_pcref0")
        a(f"s_sub_u32 s72, s72, L_pcref0-{NAME}_kernel")
        a("s_subb_u32 s73, s73, 0")
        a("s_lshl2_add_u32 s43, s55, s45")
        a("s_and_b32 s43, s43, 7")
        a("s_mul_i32 s43, s43, 6400")
        a("v_lshl_add_u32 v36, v1, 7, s43")
        a(f"v_min_u32 v36, L_exit-{NAME}_kernel, v36")
        a("v_mov_b32 v37, s73")
        a("v_add_co_u32 v36, vcc, s72, v36")
        a("s_nop 1")
        a("v_addc_co_u32 v37, vcc, 0, v37, vcc")
        a("global_load_dword v250, v[36:37], off")
        if opt.xt:
            a("s_lshl2_add_u32 s43, s55, s45")
            a("s_bfe_u32 s72, s43, 0x30001")
            a("s_and_b32 s43, s43, 1")
            a("s_and_b32 s73, s2, 1")
            a("s_lshl3_add_u32 s73, s73, s72")
            a("s_lshl4_add_u32 s73, s43, s73")
            a("s_lshl_b32 s73, s73, 11")
            a("s_lshl1_add_u32 s72, s42, s72")
            a("v_and_b32 v38, 31, v1")
            a("v_lshlrev_b32 v38, 16, v38")
            a("v_lshrrev_b32 v39, 5, v1")
            a("v_lshl_add_u32 v38, v39, 10, v38")
            a("s_waitcnt lgkmcnt(0)")
            for k in range(opt.xt):
                a("s_add_u32 s72, s72, 1")
                a("s_and_b32 s72, s72, 7")
                a("s_lshl_b32 s74, s72, 7")
                a("s_add_u32 s74, s74, s73")
                a(f"buffer_load_dword v{249-k}, v38, s[24:27], s74 offen")
        a("s_waitcnt lgkmcnt(0)")
        a("s_branch L_nox")
        a.label("L_idl2")
    a("v_mov_b32 v14, 0")
    a("v_mov_b32 v15, 0")
    srd(a, 68, 76, 77, 256)
    p2_setup(a, opt)
    a("s_barrier")
    a("s_branch L2W")
    p1_loader(a, opt)
    p2_worker(a, opt)
    if opt.al:
        a.l.append(f".p2align {opt.al}")
    a.label("L1_compw")
    for _ in range(opt.ph):
        a("s_nop 0")
    if opt.prio:
        a(f"s_setprio {opt.prio}")
    decode_rest(a, opt, "L_dc")
    p2_ids(a, opt)
    compute_prologue(a, opt)
    p1_compute(a, opt, "ffn8")
    p2_combine(a, opt)
    a.label("L1C_specs")
    a("s_mov_b32 s65, 2")
    dft32_consts(a)
    if opt.sdelay:
        a("s_barrier")
    a(f"s_cmp_eq_u32 s46, {K_S4G}")
    a("s_cbranch_scc1 L1C_spec4g")
    p1_compute(a, opt, "spec6")
    p1_compute(a, opt, "spec4g")
    p1_compute(a, opt, "ffn6")
    idle_compute(a, opt)
    a.label("L_exit")
    a("s_endpgm")


def page_pads(out, opt):
    import subprocess
    regions = {"ffn8": ("L1C_ffn8", "L2C"), "L2C": ("L2C", "L1C_specs"), "spec6": ("L1C_spec6", "L1C_spec4g"),
               "spec4g": ("L1C_spec4g", "L1C_ffn6"), "ffn6": ("L1C_ffn6", "L1C_idle")}
    NPK = 4

    def dispatch(pads):
        d = ["    s_mov_b64 exec, 0"]
        for kd, nm in ((0, "ffn8"), (K_SPEC, "spec6"), (K_6G, "ffn6"), (K_S4G, "spec4g")):
            lst = (pads.get(nm, []) + pads.get("L2C", []))
            assert len(lst) <= NPK, lst
            lst = lst + ["L_hopret"] * (NPK - len(lst))
            d += [f"    s_cmp_lg_u32 s46, {kd}", f"    s_cbranch_scc1 L_pp{kd}"]
            for w, p in enumerate(lst[:3]):
                d += [f"    s_cmp_eq_u32 s45, {w}", f"    s_cbranch_scc1 {p}"]
            d += [f"    s_branch {lst[3]}", f"L_pp{kd}:"]
        d += ["L_hopret:", "    s_mov_b64 exec, -1"]
        return "\n".join(d)

    lines = out.split("\n")
    pads = {}
    done = set()
    while True:
        txt = "\n".join(lines).replace("@@DISPATCH@@", dispatch(pads))
        open("pp.s", "w").write(txt)
        subprocess.check_call(["clang", "-x", "assembler", "-target", "amdgcn-amd-amdhsa", "-mcpu=gfx950", "-c", "pp.s", "-o", "pp.o"])
        dis = subprocess.check_output(["llvm-objdump", "-d", "--mcpu=gfx950", "pp.o"], text=True).split("\n")
        i0 = next(i for i, l in enumerate(dis) if l.endswith("<L1C_ffn8>:"))
        addrs = [int(l.split("// ")[1].split(":")[0], 16) for l in dis[i0:] if "// " in l]
        j0 = lines.index("L1C_ffn8:")
        idx = [j for j in range(j0, len(lines)) if lines[j].startswith("    ")]
        new = None
        for n in range(1, min(len(idx), len(addrs))):
            pg = addrs[n] >> 12
            if pg != addrs[n - 1] >> 12 and pg not in done:
                new = (idx[n], pg)
                break
        if new is None:
            return txt
        j, pg = new
        done.add(pg)
        for nm, (b, e) in regions.items():
            if lines.index(b + ":") < j < lines.index(e + ":"):
                pads.setdefault(nm, []).append(f"L_pg{pg}")
                lines[j:j] = [f"L_pg{pg}:", "    s_cbranch_execz L_hopret"]


def main():
    ap = argparse.ArgumentParser()
    ap.add_argument("-o", default=f"cdna_kernels/{NAME}.s")
    ap.add_argument("--stamps", action="store_true")
    ap.add_argument("--fine", action="store_true")
    ap.add_argument("--fine2", action="store_true")
    ap.add_argument("--q", type=int, default=8)
    ap.add_argument("--rotmask", type=int, default=7)
    ap.add_argument("--hr", type=int, default=7)
    ap.add_argument("--la", type=int, default=5)
    ap.add_argument("--psleep", type=int, default=4)
    ap.add_argument("--tail", type=int, default=0)
    ap.add_argument("--fpg", type=int, default=6)
    ap.add_argument("--codepf", type=int, default=1)
    ap.add_argument("--pad", type=int, default=-1)
    ap.add_argument("--padrole", default="C")
    ap.add_argument("--prio", type=int, default=0)
    ap.add_argument("--bpos", type=int, default=3)
    ap.add_argument("--nb", type=int, default=5)
    ap.add_argument("--pairord", type=int, default=0)
    ap.add_argument("--qmul", type=int, default=0)
    ap.add_argument("--q3", type=int, default=2)
    ap.add_argument("--al", type=int, default=12)
    ap.add_argument("--ph", type=int, default=0)
    ap.add_argument("--pp", type=int, default=0)
    ap.add_argument("--alw", type=int, default=1)
    ap.add_argument("--rt3", type=int, default=0)
    ap.add_argument("--rowtouch", type=int, default=0)
    ap.add_argument("--cbx", type=int, default=0)
    ap.add_argument("--xfl", default="")
    ap.add_argument("--sw3", type=int, default=0)
    ap.add_argument("--goit", type=int, default=7)
    ap.add_argument("--gosleep", type=int, default=100)
    ap.add_argument("--pirot", type=int, default=0)
    ap.add_argument("--xt", type=int, default=1)
    ap.add_argument("--skip3", type=int, default=1)
    ap.add_argument("--map84", type=int, default=0)
    ap.add_argument("--pre", type=int, default=0)
    ap.add_argument("--rl", type=int, default=8)
    ap.add_argument("--cmid", type=int, default=1)
    ap.add_argument("--epf", type=int, default=1)
    ap.add_argument("--sdelay", type=int, default=0)
    ap.add_argument("--mord", type=int, default=2)
    ap.add_argument("--tm", type=int, default=0)
    ap.add_argument("--r3", type=int, default=1)
    ap.add_argument("--rmul", type=int, default=0)
    ap.add_argument("--codepf2", type=int, default=0)
    ap.add_argument("--tlb", type=int, default=0)
    ap.add_argument("--padx", type=int, default=-1)
    ap.add_argument("--zlate", type=int, default=1)
    ap.add_argument("--mir", type=int, default=1)
    ap.add_argument("--zbar", type=int, default=20)
    ap.add_argument("--lateb9", type=int, default=1)
    ap.add_argument("--zsleep", type=int, default=4)
    ap.add_argument("--noz", action="store_true")
    ap.add_argument("--ofl", default="")
    ap.add_argument("--ssleep", type=int, default=0)
    ap.add_argument("--split0", type=int, default=1)
    ap.add_argument("--fmask", default="3")
    ap.add_argument("--cmask", type=int, default=1)
    ap.add_argument("--half", type=int, default=0)
    ap.add_argument("--hp", type=int, default=6)
    ap.add_argument("--wpoll", type=int, default=0)
    ap.add_argument("--spr", type=int, default=6)
    ap.add_argument("--fine4", action="store_true")
    ap.add_argument("--nost", action="store_true")
    ap.add_argument("--idledelay", type=int, default=0)
    ap.add_argument("--xrot", type=int, default=1)
    ap.add_argument("--tcb", type=int, default=2)
    ap.add_argument("--wtouch", type=int, default=1)
    ap.add_argument("--pf", type=int, default=0)
    ap.add_argument("--pq", type=int, default=1)
    ap.add_argument("--idlego", type=int, default=0)
    ap.add_argument("--nc", type=int, default=6)
    ap.add_argument("--stag", type=int, default=1)
    ap.add_argument("--thrz", type=int, default=0)
    ap.add_argument("--pace", type=int, default=0)
    ap.add_argument("--thr", type=int, default=0)
    ap.add_argument("--thr2", type=int, default=4)
    ap.add_argument("--early", type=int, default=0)
    ap.add_argument("--nowait", action="store_true")
    ap.add_argument("--fine3", action="store_true")
    ap.add_argument("--nomfma", action="store_true")
    ap.add_argument("--noidle", action="store_true")
    ap.add_argument("--fsleep", type=int, default=0)
    ap.add_argument("--noreads", action="store_true")
    ap.add_argument("--npk", type=int, default=0)
    ap.add_argument("--lr", type=int, default=3)
    ap.add_argument("--hs", type=int, default=87)
    ap.add_argument("--zpad", type=int, default=128)
    ap.add_argument("--foff", type=lambda x: int(x, 0), default=0x800000)
    opt = ap.parse_args()
    global HS, H_SIZE, ZR_B, Z_SIZE, F_OFF, F_SIZE
    HS = opt.hs
    H_SIZE = 64 * HS * 1024
    assert H_SIZE <= Z_OFF
    ZR_B = 16 * EP * 16 + opt.zpad
    Z_SIZE = 32 * ZR_B
    F_OFF = opt.foff
    F_SIZE = 32 * 128 * opt.rl
    global NPK
    NPK = opt.npk
    global FSLEEP
    FSLEEP = opt.fsleep
    hdr = open(f"cdna_kernels/{NAME}.s.ref").read().split("; Override launch")[0]
    out = hdr
    out += f"; @launch grid=(256,1,1) block=(512,1,1) lds={LDS_SIZE}\n"
    out += DOC
    out += '.amdgcn_target "amdgcn-amd-amdhsa--gfx950"\n.text\n'
    a = Asm()
    kernel(a, opt)
    nm = NAME + "_kernel"
    out += f".globl {nm}\n.p2align 8\n.type {nm},@function\n" + a.text()
    out += f""".section .rodata,"a"
.p2align 6
.amdhsa_kernel {nm}
  .amdhsa_next_free_vgpr 256
  .amdhsa_next_free_sgpr 102
  .amdhsa_accum_offset 256
  .amdhsa_group_segment_fixed_size 0
  .amdhsa_kernarg_size 104
  .amdhsa_user_sgpr_count 2
  .amdhsa_user_sgpr_kernarg_segment_ptr 1
  .amdhsa_system_sgpr_workgroup_id_x 1
.end_amdhsa_kernel
"""
    if opt.pp:
        out = page_pads(out, opt)
    open(opt.o, "w").write(out)


if __name__ == "__main__":
    main()
```

```python
import struct, sys, argparse, re

NAME = "gated_mix__spectral_fnet__geglu_ffn__prompt"
H_OFF = 0
HS = 87
H_SIZE = 64 * HS * 1024
Z_OFF = 0x580000
EP = 264
ZR_B = 16 * EP * 16 + 128
Z_SIZE = 32 * ZR_B
G_OFF = 0x7A0000
G_SIZE = 2048 * 4
F_OFF = 0x7B0000
F_SIZE = 32768
T_OFF = 0xA00000
MF16 = "v_mfma_f32_16x16x32_bf16"
MF32 = "v_mfma_f32_32x32x16_bf16"


DOC = """; ---------------------------------------------------------------------------------------------
;    spectral groups: hidden DFT a,b = x Cd, x Sd for e = 0..256 (Hermitian half), then the 32-point
; ---------------------------------------------------------------------------------------------
"""


def f2u(f):
    return struct.unpack("<I", struct.pack("<f", f))[0]


class Asm:
    def __init__(self):
        self.l = []
        self.ds = []
        self.vm = []
        self.n = 0
        self.ub = 0

    def __call__(self, s):
        if s.startswith("ds_"):
            if self.ub >= 15:
                self("s_waitcnt lgkmcnt(10)")
            self.ub += 1
        m = re.search(r"lgkmcnt\((\d+)\)", s)
        if m:
            self.ub = min(self.ub, int(m.group(1)))
        self.l.append("    " + s)
        self.n += 1

    def label(self, s):
        self.l.append(s + ":")

    def dsop(self, s, tag):
        self(s)
        self.ds.append(tag)

    def dswait(self, tag):
        idx = max(i for i, t in enumerate(self.ds) if t == tag)
        n = len(self.ds) - 1 - idx
        assert n <= 15, n
        self(f"s_waitcnt lgkmcnt({n})")

    def vmop(self, s, tag):
        self(s)
        self.vm.append(tag)

    def vmwait(self, tag):
        idx = max(i for i, t in enumerate(self.vm) if t == tag)
        n = len(self.vm) - 1 - idx
        assert n <= 63, n
        self(f"s_waitcnt vmcnt({n})")

    def text(self):
        return "\n".join(self.l) + "\n"


def vr(b, n):
    return f"v[{b}:{b+n-1}]"


def srd(a, d, lo, hi, size, add=0):
    if add:
        a(f"s_add_u32 s{d}, s{lo}, {add:#x}")
        a(f"s_addc_u32 s{d+1}, s{hi}, 0")
    else:
        a(f"s_mov_b32 s{d}, s{lo}")
        a(f"s_mov_b32 s{d+1}, s{hi}")
    a(f"s_mov_b32 s{d+2}, {size:#x}")
    a(f"s_mov_b32 s{d+3}, 0x20000")


def stamp(a, opt):
    if not opt.stamps:
        return
    a("s_memrealtime s[90:91]")
    a("s_memtime s[86:87]")
    a("s_mov_b32 s88, m0")
    a("s_waitcnt lgkmcnt(0)")
    a("s_mov_b32 m0, s89")
    a("s_add_u32 s89, s89, 1")
    a("v_writelane_b32 v255, s90, m0")
    a("v_writelane_b32 v253, s86, m0")
    a("s_mov_b32 m0, s88")


def stamp_flush(a, opt, role):
    if not opt.stamps:
        return
    if opt.pad >= 0:
        if role == opt.padrole:
            a("s_cmp_lg_u32 s46, 0")
            a("s_cbranch_scc1 Lpad_end")
            if opt.padx >= 0:
                a("s_and_b32 s92, s2, 7")
                a(f"s_cmp_lg_u32 s92, {opt.padx}")
                a("s_cbranch_scc1 Lpad_end")
            a("s_nop 4")
            a(f"v_readlane_b32 s92, v255, {opt.pad}")
            a("s_nop 4")
            a("s_add_u32 s92, s92, 4000")
            a.label("Lpad")
            a("s_memrealtime s[90:91]")
            a("s_waitcnt lgkmcnt(0)")
            a("s_sub_u32 s93, s92, s90")
            a("s_cmp_gt_i32 s93, 0")
            a("s_cbranch_scc1 Lpad")
            a.label("Lpad_end")
        return
    a("s_waitcnt vmcnt(0)")
    stamp(a, opt)
    srd(a, 92, 78, 79, 0x200000, T_OFF)
    a("s_lshl_b32 s96, s2, 3")
    a("s_add_u32 s96, s96, s20")
    a("s_lshl_b32 s96, s96, 8")
    a("v_lshlrev_b32 v254, 2, v1")
    a("buffer_store_dword v255, v254, s[92:95], s96 offen")
    a("s_add_u32 s96, s96, 0x100000")
    a("buffer_store_dword v253, v254, s[92:95], s96 offen")


C1 = -2.0 * 0.7978845608028654 * 1.4426950408889634
C2 = C1 * 0.044715
NB = 3
SSZ = 49152
FLG = 78 * 2048
RH = FLG + 256
RZ = FLG + 64
GW_LDS = FLG + 512
LDS_SIZE = 163840
assert GW_LDS + 2048 <= LDS_SIZE
K_FFN, K_SPEC, K_6G, K_IDLE, K_S4G = 0, 1, 2, 4, 3

L_VD, L_VX, L_T0, L_T1, L_T2, L_VF, L_VA = 2, 10, 16, 17, 18, 20, 21


FSLEEP = 0


def free_wait(a, lab, val):
    if FSLEEP:
        a(f"s_branch {lab}_c")
    a.label(lab)
    if FSLEEP:
        a(f"s_sleep {FSLEEP}")
        a.label(lab + "_c")
    a(f"ds_read_b32 v{L_T0}, v{L_VA}")
    a("s_waitcnt lgkmcnt(0)")
    a(f"v_cmp_ge_u32 vcc, {val}, v{L_T0}")
    a(f"s_cbranch_vccnz {lab}")


def p2_ids(a, opt):
    if opt.map84:
        a("s_lshr_b32 s52, s2, 5")
        a("s_and_b32 s53, s55, 3")
        a("s_lshl1_add_u32 s56, s53, s52")
        a("s_lshl_b32 s53, s53, 2")
        a("s_bitcmp1_b32 s2, 0")
        a("s_mov_b32 s51, 0x7610")
        a("s_cselect_b32 s51, 0x5432, s51")
        a("s_lshr_b32 s51, s51, s53")
        a("s_and_b32 s51, s51, 7")
        a("s_bfe_u32 s54, s2, 0x20001")
        a("s_and_b32 s53, s52, 3")
        a("s_lshl2_add_u32 s54, s54, s53")
        a("s_add_u32 s54, s54, 1")
        a("s_sub_u32 s53, 32, s54")
        a("s_cmp_eq_u32 s53, 16")
        a("s_cselect_b32 s53, 0, s53")
        a("s_cmp_ge_u32 s52, 4")
        a("s_cselect_b32 s54, s53, s54")
        return
    a("s_lshr_b32 s52, s2, 6")
    a("s_mov_b32 s51, s55")
    if opt.sw3:
        a("s_add_u32 s53, s52, 4")
        a("s_cmp_eq_u32 s55, 3")
        a("s_cselect_b32 s51, s53, s51")
        a("s_cselect_b32 s52, 3, s52")
        a("s_and_b32 s53, s55, 3")
        a("s_cmp_ge_u32 s2, 224")
        a("s_cselect_b32 s51, 3, s51")
        a("s_cselect_b32 s52, s53, s52")
    a("s_lshl1_add_u32 s56, s52, s51")
    a("s_and_b32 s54, s2, 7")
    a("s_and_b32 s53, s52, 1")
    a("s_lshl1_add_u32 s54, s54, s53")
    a("s_add_u32 s54, s54, 1")
    a("s_sub_u32 s53, 32, s54")
    a("s_cmp_eq_u32 s53, 16")
    a("s_cselect_b32 s53, 0, s53")
    a("s_cmp_ge_u32 s52, 2")
    a("s_cselect_b32 s54, s53, s54")


def p2_setup(a, opt):
    t0, t1, t2 = L_T0, L_T1, L_T2
    VW0, VW1 = 28, 29
    VH0, VH1 = 4, 5
    VRH = 7
    VRB = 22
    p2_ids(a, opt)
    a(f"s_cmp_eq_u32 s46, {K_IDLE}")
    a("s_cselect_b32 s83, 1, 0")
    if opt.xrot:
        a("s_add_u32 s56, s56, s2")
    a("s_and_b32 s56, s56, 7")
    a("s_mul_i32 s56, s56, 5")
    a("s_lshr_b32 s56, s56, 2")
    a(f"v_bfe_u32 v{t0}, v1, 4, 1")
    a(f"v_lshlrev_b32 v{t0}, 2, v{t0}")
    a(f"v_and_b32 v{t1}, 7, v1")
    a(f"v_xor_b32 v{t0}, v{t0}, v{t1}")
    a(f"v_lshrrev_b32 v{t1}, 3, v1")
    a(f"v_lshlrev_b32 v{t1}, 10, v{t1}")
    a(f"v_lshl_add_u32 v{VW0}, v{t0}, 4, v{t1}")
    a("s_lshl_b32 s42, s51, 7")
    a("s_lshl_b32 s43, s45, 14")
    a("s_add_u32 s42, s42, s43")
    a(f"v_add_u32 v{VW0}, s42, v{VW0}")
    a(f"v_add_u32 v{VW1}, 0x2000, v{VW0}")
    a("s_lshl_b32 s59, s45, 11")
    a("s_cmp_lt_u32 s45, 2")
    a("s_cselect_b32 s57, 11, 10")
    a(f"v_lshrrev_b32 v{t2}, 5, v1")
    a(f"v_bfe_u32 v{t0}, v1, 2, 2")
    a(f"v_lshl_add_u32 v{t0}, v{t2}, 3, v{t0}")
    a(f"v_lshlrev_b32 v{t0}, 7, v{t0}")
    a(f"v_bfe_u32 v{t1}, v1, 1, 1")
    a(f"v_lshl_add_u32 v{t0}, v{t1}, 3, v{t0}")
    a(f"v_and_b32 v{t1}, 1, v1")
    a(f"v_lshl_add_u32 v{t0}, v{t1}, 5, v{t0}")
    a(f"v_bfe_u32 v{t1}, v1, 4, 1")
    a(f"v_lshl_add_u32 v{t0}, v{t1}, 4, v{t0}")
    a(f"v_bfe_u32 v{t1}, v1, 3, 1")
    a(f"v_lshl_add_u32 v{t0}, v{t1}, 6, v{t0}")
    a(f"v_add_u32 v{VRB}, s59, v{t0}")
    a(f"v_xor_b32 v{VRB+1}, 64, v{VRB}")
    for k in (1, 2):
        a(f"v_add_u32 v{VRB+2*k}, {k*65536}, v{VRB}")
        a(f"v_add_u32 v{VRB+2*k+1}, {k*65536}, v{VRB+1}")
    a(f"v_lshlrev_b32 v{t0}, 4, v1")
    a(f"s_mul_i32 s42, s54, {HS*1024}")
    a("s_lshl_b32 s43, s45, 10")
    a("s_add_u32 s42, s42, s43")
    a(f"v_add_u32 v{VH0}, s42, v{t0}")
    a(f"v_add_u32 v{VH1}, {32*HS*1024}, v{VH0}")
    srd(a, 32, 78, 79, H_SIZE, H_OFF)
    a("v_cmp_gt_u32 vcc, 11, v1")
    a(f"v_subrev_u32 v{t0}, 11, v1")
    a(f"v_mov_b32 v{t1}, s57")
    a(f"v_cndmask_b32 v{t0}, v{t0}, v1, vcc")
    a(f"v_cndmask_b32 v{t1}, v{t1}, 11, vcc")
    a(f"v_cndmask_b32 v6, 2, {1 if opt.half else 2}, vcc")
    a(f"v_add_u32 v{t0}, s56, v{t0}")
    a(f"v_sub_u32 v{t1}, v{t0}, v{t1}")
    a(f"v_min_u32 v{t0}, v{t0}, v{t1}")
    a(f"v_min_u32 v{t0}, 10, v{t0}")
    a(f"v_lshlrev_b32 v{t0}, 2, v{t0}")
    a(f"v_add_u32 v{VRH}, {RH}, v{t0}")
    srd(a, 36, 78, 79, F_SIZE, F_OFF)
    a(f"s_mul_i32 s62, s54, {opt.rl}")
    a(f"s_and_b32 s43, s{2 if opt.map84 else 51}, {opt.cmask}")
    a("s_add_u32 s62, s62, s43")
    a("s_lshl_b32 s62, s62, 7")
    a("v_lshlrev_b32 v8, 4, v1")
    a("s_or_b32 s61, s45, s83")
    a("s_mov_b32 s60, 0")


def p1_loader(a, opt):
    VD, VX, t0 = L_VD, L_VX, L_T0
    Q = opt.q
    a.label("L1L_loop")
    a("s_lshl_b32 s47, s49, 7")
    a("s_add_u32 m0, s48, s67")
    a("s_mul_i32 s40, s49, s44")
    n = 0

    def after():
        nonlocal n
        n += 1
        if n == Q:
            a("s_cmp_eq_u32 s66, 0")
            a("s_cbranch_scc1 L1L_nobar")
            a(f"s_waitcnt vmcnt({Q})")
            if opt.fine:
                stamp(a, opt)
            a("s_barrier")
            a.label("L1L_nobar")

    for i in range(4):
        a(f"buffer_load_dwordx4 v{VX+i}, s[24:27], s47 offen {opt.xfl} lds")
        if i < 3:
            a("s_add_u32 m0, m0, 1024")
            a("s_nop 0")
        else:
            a.label("L1L_w")
            a("s_add_u32 m0, s41, s67")
            a("s_lshl_b32 s40, s40, 3")
        if opt.split0 and i == opt.split0 - 1:
            a("s_cmp_lg_u32 s66, 1")
            a("s_cbranch_scc1 L1L_nosp")
            a(f"s_waitcnt vmcnt({4 + opt.split0})")
            a("s_barrier")
            a.label("L1L_nosp")
        after()
    for u in range(8):
        a(f"buffer_load_dwordx4 v{VD+(u&1)}, s[28:31], s40 offen lds")
        if u < 7:
            a("s_add_u32 m0, m0, 2048")
            a("s_add_u32 s40, s40, s44")
        after()
    a("s_cmp_lg_u32 s66, 0")
    a("s_cbranch_scc1 L1L_next")
    a("v_mov_b32 v14, 0")
    a("v_mov_b32 v15, 0")
    srd(a, 68, 76, 77, 256)
    a("s_cmp_eq_u32 s66, s80")
    a("s_cbranch_scc0 L1L_next")
    srd(a, 36, 16, 17, 1024)
    a(f"s_mov_b32 m0, {GW_LDS}")
    a(f"v_lshlrev_b32 v{t0}, 4, v1")
    a(f"buffer_load_dwordx4 v{t0}, s[36:39], 0 offen lds")
    srd(a, 36, 4, 5, 1024, 256 * 1024)
    a(f"s_mov_b32 m0, {GW_LDS+1024}")
    a("s_nop 0")
    a(f"buffer_load_dwordx4 v{t0}, s[36:39], 0 offen lds")
    a.label("L1L_next")
    a("s_cmp_lg_u32 s66, 0")
    a("s_cbranch_scc1 L1L_next3")
    p2_setup(a, opt)
    a.label("L1L_next3")
    if opt.pairord:
        a("s_xor_b32 s49, s49, s50")
    a("s_add_u32 s49, s49, 1")
    a("s_and_b32 s49, s49, 7")
    if opt.pairord:
        a("s_xor_b32 s49, s49, s50")
    a(f"s_add_u32 s67, s67, {SSZ}")
    a(f"s_cmp_eq_u32 s67, {3*SSZ}")
    a("s_cselect_b32 s67, 0, s67")
    a("s_add_u32 s66, s66, 1")
    a("s_cmp_lt_u32 s66, 8")
    a("s_cbranch_scc1 L1L_loop")


NI_ = 22


def p2_worker(a, opt):
    HR = opt.hr
    LA = opt.la
    t0, t1, t2 = L_T0, L_T1, L_T2
    VW0, VW1 = 28, 29
    VH0, VH1 = 4, 5
    VRH = 7
    VRB = 22
    WF, ACB, HF = 32, 64, 128
    WR = 4
    assert HF + 8 * HR <= 252 and LA < HR
    a.vm, a.ds = [], []
    a.label("L2W")
    srd(a, 28, 14, 15, 1376 * 1024)
    rows = [18, 18] + list(range(12, 18)) + [18, 0, 1, 19] + list(range(2, 12))
    OPT = 11
    clsC = [i for i in range(NI_) if rows[i] < 6]
    clsD = [i for i in range(NI_) if 6 <= rows[i] < 12]
    NI = 22
    assert len(rows) == NI

    def prod(i, dst, sh):
        if i < 11:
            a(f"s_add_u32 s{dst}, s56, {i}")
            a(f"s_sub_u32 s43, s{dst}, 11")
        else:
            a(f"s_add_u32 s{dst}, s56, {i-11}")
            a(f"s_sub_u32 s43, s{dst}, s57")
        a(f"s_cselect_b32 s{dst}, s{dst}, s43")
        a(f"s_lshl_b32 s{dst}, s{dst}, {sh+1}")
        if i >= 11:
            a(f"s_add_u32 s{dst}, s{dst}, {1 << sh}")

    def wload(i):
        a(f"s_add_u32 m0, s59, {rows[i]*8192}")
        prod(i, 40, 16)
        a.vmop(f"buffer_load_dwordx4 v{VW0}, s[28:31], s40 offen lds", ("w", i))
        a("s_add_u32 m0, m0, 1024")
        a("s_nop 0")
        a.vmop(f"buffer_load_dwordx4 v{VW1}, s[28:31], s40 offen lds", ("w", i))

    def wreads(i):
        f = WF + 8 * (i % WR)
        b = VRB + 2 * (rows[i] // 8)
        o = (rows[i] % 8) * 8192
        for ln in range(2):
            a.dsop(f"ds_read_b64_tr_b16 {vr(f+4*ln,2)}, v{b+ln} offset:{o}", ("r", i))
            a.dsop(f"ds_read_b64_tr_b16 {vr(f+4*ln+2,2)}, v{b+ln} offset:{o+512}", ("r", i))

    if opt.rowtouch:
        a("s_cmp_eq_u32 s83, 0")
        a("s_cbranch_scc1 L2W_nort")
        a("s_lshl2_add_u32 s42, s55, s45")
        a("s_and_b32 s42, s42, 15")
        a("s_and_b32 s43, s2, 7")
        a("s_mul_i32 s43, s43, 22")
        a("s_add_u32 s42, s42, s43")
        a(f"v_lshlrev_b32 v{t0}, 7, v1")
        if opt.sw3 and opt.skip3:
            a("s_mov_b32 exec_lo, 0xf7f7f7f7")
            a("s_mov_b32 exec_hi, 0xf7f7f7f7")
        for k in range(11):
            a("s_sub_u32 s43, s42, 176")
            a("s_cselect_b32 s42, s42, s43")
            a("s_lshl_b32 s43, s42, 13")
            a(f"buffer_load_dword v250, v{t0}, s[28:31], s43 offen")
            a("s_add_u32 s42, s42, 16")
        a("s_mov_b64 exec, -1")
        a.label("L2W_nort")
    wload(0)
    for i in range(2, 2 + opt.nb):
        wload(i)
    a(f"s_waitcnt vmcnt({len(a.vm)})")
    stamp(a, opt)
    a("s_cmp_lg_u32 s83, 0")
    a("s_cbranch_scc1 L2W_nob6")
    a("s_barrier")
    a("s_cmp_lg_u32 s45, 0")
    a("s_cbranch_scc1 L2W_nob6")
    a("buffer_load_dword v14, v15, s[68:71], 0 offen sc1")
    a.label("L2W_nob6")
    ngo = len(a.vm)
    a.vmwait(("w", 0))
    wreads(0)
    a("s_waitcnt lgkmcnt(0)")
    wload(1)
    for i in range(2 + opt.nb, 8):
        wload(i)
    if opt.tail == 2:
        a("s_and_b32 s42, s46, 5")
        a("s_cbranch_scc1 L2W_t2")
        a("s_barrier")
        a.label("L2W_t2")
    a("s_bitcmp1_b32 s46, 0")
    a("s_cbranch_scc0 L2W_c")
    a("s_barrier")
    if not opt.cmid:
        a("s_barrier")
        a("s_barrier")
    a.label("L2W_c")
    for i in clsC[:opt.nc]:
        wload(i)
    a("s_or_b32 s42, s45, s83")
    a("s_cbranch_scc1 L2W_gook")
    a(f"s_waitcnt vmcnt({len(a.vm) - ngo})")
    a("v_cmp_le_u32 vcc, 32, v14")
    a("s_cbranch_vccnz L2W_gook")
    a.label("L2W_go")
    a("s_sleep 4")
    a("buffer_load_dword v14, v15, s[68:71], 0 offen sc1")
    a("s_waitcnt vmcnt(0)")
    a("v_cmp_gt_u32 vcc, 32, v14")
    a("s_cbranch_vccnz L2W_go")
    a.label("L2W_gook")
    assert opt.cmid
    if opt.cmid:
        a("s_cmp_lg_u32 s83, 0")
        a("s_cbranch_scc1 L2W_nob7")
        a("s_barrier")
        a("s_bitcmp1_b32 s46, 0")
        a("s_cbranch_scc0 L2W_nob7")
        a("s_barrier")
    else:
        a("s_and_b32 s42, s46, 5")
        a("s_cbranch_scc1 L2W_nob7")
        a("s_barrier")
    a.label("L2W_nob7")
    a.vmwait(("w", 1))
    wreads(1)
    a("s_waitcnt lgkmcnt(0)")
    for i in [8] + clsC[opt.nc:] + clsD:
        wload(i)
        if opt.thr2:
            a("s_and_b32 s42, s46, 5")
            a(f"s_cbranch_scc1 L2W_nt{i}")
            a(f"s_waitcnt vmcnt({opt.thr2})")
            a.label(f"L2W_nt{i}")
    a("s_cmp_ge_u32 s45, 2")
    a("s_cbranch_scc1 L2W_no19")
    wload(OPT)
    a.label("L2W_no19")
    a(f"s_cmp_lg_u32 s46, {K_IDLE}")
    a("s_cbranch_scc1 L2W_nopf")
    a("s_sub_u32 s42, s55, 4")
    a("s_lshl_b32 s42, s42, 2")
    a("s_add_u32 s42, s42, s45")
    if opt.xrot:
        a("s_lshl_b32 s43, s2, 1")
        a("s_add_u32 s42, s42, s43")
        a("s_and_b32 s42, s42, 15")
    a(f"s_mul_i32 s42, s42, {96*1024}")
    a(f"v_lshrrev_b32 v{t0}, 1, v1")
    a(f"v_lshlrev_b32 v{t0}, 10, v{t0}")
    a(f"v_and_b32 v{t1}, 1, v1")
    a(f"v_lshl_add_u32 v{t0}, v{t1}, 7, v{t0}")
    for k in range(0 if (opt.rowtouch or opt.map84) else 3):
        for c in range(opt.tcb):
            a(f"buffer_load_dword v250, v{t0}, s[28:31], s42 offen offset:{256*c + (512 if opt.cbx & 4 else 0)}")
        a("s_add_u32 s42, s42, 0x8000")
    for rep in range(opt.rt3):
        a("s_waitcnt vmcnt(0)")
        a(f"s_sub_u32 s43, s42, {3*0x8000}")
        a(f"v_lshlrev_b32 v{t0}, 10, v1")
        a(f"buffer_load_dword v250, v{t0}, s[28:31], s43 offen offset:384 sc1")
        a("s_add_u32 s43, s43, 0x8000")
        a(f"buffer_load_dword v250, v{t0}, s[28:31], s43 offen offset:384 sc1")
    if opt.codepf2:
        a("s_waitcnt vmcnt(0)")
        a("s_getpc_b64 s[72:73]")
        a.label("L_pcref2")
        a(f"s_sub_u32 s72, s72, L_pcref2-{NAME}_kernel")
        a("s_subb_u32 s73, s73, 0")
        a(f"s_mov_b32 s74, L_exit-{NAME}_kernel")
        a("s_mov_b32 s75, 0x20000")
        a("s_lshl2_add_u32 s42, s55, s45")
        a("s_and_b32 s42, s42, 7")
        a("s_mul_i32 s42, s42, 6400")
        a(f"v_lshlrev_b32 v{t0}, 7, v1")
        a(f"buffer_load_dword v250, v{t0}, s[72:75], s42 offen sc1")
    a("s_waitcnt vmcnt(0)")
    a("s_barrier")
    a.label("L2W_nopf")
    stamp(a, opt)
    a.vm = []

    spins = []

    def issue1(i):
        h = HF + 8 * (i % HR)
        a(f"s_bitcmp1_b32 s60, {i}")
        a(f"s_cbranch_scc0 L2W_i{i}_spin")
        a.label(f"L2W_i{i}_ok")
        spins.append(i)
        prod(i, 40, 12)
        a.vmop(f"buffer_load_dwordx4 {vr(h,4)}, v{VH0}, s[32:35], s40 offen sc1", ("h", i))

    def issue2(i):
        h = HF + 8 * (i % HR)
        a.vmop(f"buffer_load_dwordx4 {vr(h+4,4)}, v{VH1}, s[32:35], s40 offen sc1", ("h", i))

    if opt.alw:
        a("s_branch L2W_al")
        a.l.append(".p2align 12")
        a.label("L2W_al")
    a("s_waitcnt vmcnt(0)")
    a(f"s_mov_b32 m0, {RH}")
    wreads(2)
    for i in range(LA):
        issue1(i)
        issue2(i)
        if i == 0:
            stamp(a, opt)
    TM = opt.tm
    for i in range(NI - TM):
        a.vmwait(("h", i))
        if i == 0:
            stamp(a, opt)
        if i >= 2:
            a.dswait(("r", i))
        f = WF + 8 * (i % WR)
        h = HF + 8 * (i % HR)
        for L in range(4):
            lt, ln = L & 1, L >> 1
            acc = vr(ACB + 16 * L, 16)
            if i == OPT:
                a("s_cmp_ge_u32 s45, 2")
                a(f"s_cbranch_scc1 L2W_skip{L}")
            a(f"{MF32} {acc}, {vr(f+4*ln,4)}, {vr(h+4*lt,4)}, {'0' if i == 0 else acc}")
            if i == OPT:
                a.label(f"L2W_skip{L}")
            if L == 0 and i + 3 < NI:
                wreads(i + 3)
            if L == 1 and i + LA < NI:
                issue1(i + LA)
            if L == 2 and i + LA < NI:
                issue2(i + LA)
                if i + LA == opt.zbar:
                    a("s_barrier")
        if opt.fine2 and i % 4 == 3:
            stamp(a, opt)
    assert TM <= 4 and TM <= LA
    if TM == 4:
        wreads(NI - 1)
    a(f"v_lshlrev_b32 v{t0}, 4, v1")
    a(f"v_add_u32 v{t0}, s59, v{t0}")

    def pw(L):
        for q in range(4):
            p = 4 * L + q
            a(f"ds_write_b128 v{t0}, {vr(ACB+16*L+4*q,4)} offset:{(p>>1)*8192 + (p&1)*1024}")

    for L in range(4):
        lt, ln = L & 1, L >> 1
        acc = vr(ACB + 16 * L, 16)
        for k, i in enumerate(range(NI - TM, NI)):
            if L == 0:
                a.vmwait(("h", i))
                a.dswait(("r", i))
            f = WF + 8 * (i % WR)
            h = HF + 8 * (i % HR)
            a(f"{MF32} {acc}, {vr(f+4*ln,4)}, {vr(h+4*lt,4)}, {acc}")
            if L > 0 and k == 1:
                a("s_nop 9")
                pw(L - 1)
    stamp(a, opt)
    a("s_nop 7")
    a("s_nop 3")
    if TM >= 2:
        pw(3)
    else:
        for L in range(4):
            pw(L)
    a("s_waitcnt lgkmcnt(0)")
    a("s_barrier")
    stamp_flush(a, opt, "L")
    a("s_endpgm")
    for i in spins:
        a.label(f"L2W_i{i}_spin")
        a(f"ds_read2_b32 {vr(t0,2)}, v{VRH} offset0:0 offset1:16")
        a("s_waitcnt lgkmcnt(0)")
        a(f"v_min_u32 v{t0}, v{t0}, v{t1}")
        a(f"v_cmp_ge_u32 vcc, v{t0}, v6")
        a("s_mov_b32 s60, vcc_lo")
        a(f"s_bitcmp1_b32 s60, {i}")
        a(f"s_cbranch_scc1 L2W_i{i}_ok")
        if opt.wpoll and i < LA:
            a("s_cmp_lg_u32 s61, 0")
            a(f"s_cbranch_scc1 L2W_i{i}_spin")
            a("s_mov_b64 exec, 0xff")
            a("buffer_load_dwordx4 v8, s[36:39], s62 offen sc1 lds")
            a("s_mov_b64 exec, -1")
            a("s_waitcnt vmcnt(0)")
        if opt.ssleep:
            a(f"s_sleep {opt.ssleep}")
        a(f"s_branch L2W_i{i}_spin")


C_VA, C_VX, C_VB, C_VST, C_VGW, C_VFD = 2, 6, 10, 14, 15, 19
C_T0, C_T1, C_T2 = 20, 21, 22
C_K1, C_K2 = 24, 26
C_WF, C_XF, C_ACC, C_TT, C_TT2, C_CF, C_SF = 28, 52, 116, 88, 100, 212, 220


def dft32_consts(a):
    t0, t1, t2 = C_T0, C_T1, C_T2
    tc, ts = 96, 112
    a(f"v_and_b32 v{t0}, 15, v1")
    a(f"v_cvt_f32_u32 v{t0}, v{t0}")
    a(f"v_mul_f32 v{t0}, {f2u(1.0/32):#x}, v{t0}")
    a(f"v_lshrrev_b32 v{t1}, 4, v1")
    a(f"v_cvt_f32_u32 v{t1}, v{t1}")
    a(f"v_mul_f32 v{t1}, 4.0, v{t1}")
    for rho in range(2):
        if rho:
            a(f"v_add_f32 v{t0}, 0.5, v{t0}")
        a(f"v_mul_f32 v{t2}, v{t0}, v{t1}")
        for sg in range(8):
            s1c = 16 * (sg >> 2) + (sg & 3)
            a(f"v_fmamk_f32 v{tc+8*rho+sg}, v{t0}, {f2u(float(s1c)):#x}, v{t2}")
    for i in range(16):
        a(f"v_fract_f32 v{tc+i}, v{tc+i}")
    for i in range(16):
        a(f"v_sin_f32 v{ts+i}, v{tc+i}")
    for i in range(16):
        a(f"v_cos_f32 v{tc+i}, v{tc+i}")
    a("s_nop 0")
    for i in range(8):
        a(f"v_cvt_pk_bf16_f32 v{C_CF+i}, v{tc+2*i}, v{tc+2*i+1}")
        a(f"v_cvt_pk_bf16_f32 v{C_SF+i}, v{ts+2*i}, v{ts+2*i+1}")


NPK = 0


def ffn_epi(p):
    A, TT = C_ACC + 16 * p, 244
    r = []
    if p < NPK:
        r += [f"v_mul_f32 v{TT+v}, v{A+v}, v{A+v}" for v in range(8)]
        r += [f"v_fma_f32 v{TT+v}, v{TT+v}, v{C_K2}, v{C_K1}" for v in range(8)]
        r += [f"v_mul_f32 v{TT+v}, v{TT+v}, v{A+v}" for v in range(8)]
        r += [f"v_exp_f32 v{TT+v}, v{TT+v}" for v in range(8)]
        r += [f"v_mul_f32 v{A+8+v}, v{A+v}, v{A+8+v}" for v in range(8)]
        r += [f"v_add_f32 v{TT+v}, 1.0, v{TT+v}" for v in range(8)]
        r += [f"v_rcp_f32 v{TT+v}, v{TT+v}" for v in range(8)]
        r += [f"v_mul_f32 v{A+8+v}, v{A+8+v}, v{TT+v}" for v in range(8)]
        for i in (0, 2, 1, 3):
            r.append(f"v_cvt_pk_bf16_f32 v{A+i}, v{A+8+2*i}, v{A+8+2*i+1}")
        r.append(f"v_permlane16_swap_b32 v{A}, v{A+2}")
        r.append("s_nop 0")
        r.append(f"v_permlane16_swap_b32 v{A+1}, v{A+3}")
        so = "s43" if p & 1 else "s42"
        r.append(f"buffer_store_dwordx4 {vr(A,4)}, v{C_VST}, s[32:35], {so} offen offset:{(p>>1)*1024} sc1")
        return r
    for v in range(0, 8, 2):
        r.append(f"v_pk_mul_f32 {vr(TT+v,2)}, {vr(A+v,2)}, {vr(A+v,2)}")
    for v in range(0, 8, 2):
        r.append(f"v_pk_fma_f32 {vr(TT+v,2)}, {vr(TT+v,2)}, {vr(C_K2,2)}, {vr(C_K1,2)}")
    for v in range(0, 8, 2):
        r.append(f"v_pk_mul_f32 {vr(TT+v,2)}, {vr(TT+v,2)}, {vr(A+v,2)}")
    for v in range(8):
        r.append(f"v_exp_f32 v{TT+v}, v{TT+v}")
    for v in range(0, 8, 2):
        r.append(f"v_pk_mul_f32 {vr(A+8+v,2)}, {vr(A+v,2)}, {vr(A+8+v,2)}")
    for v in range(0, 8, 2):
        r.append(f"v_pk_add_f32 {vr(TT+v,2)}, {vr(TT+v,2)}, 1.0 op_sel_hi:[1,0]")
    for v in range(8):
        r.append(f"v_rcp_f32 v{TT+v}, v{TT+v}")
    for v in range(0, 8, 2):
        r.append(f"v_pk_mul_f32 {vr(A+8+v,2)}, {vr(A+8+v,2)}, {vr(TT+v,2)}")
    for i in (0, 2, 1, 3):
        r.append(f"v_cvt_pk_bf16_f32 v{A+i}, v{A+8+2*i}, v{A+8+2*i+1}")
    r.append(f"v_permlane16_swap_b32 v{A}, v{A+2}")
    r.append("s_nop 0")
    r.append(f"v_permlane16_swap_b32 v{A+1}, v{A+3}")
    so = "s43" if p & 1 else "s42"
    r.append(f"buffer_store_dwordx4 {vr(A,4)}, v{C_VST}, s[32:35], {so} offen offset:{(p>>1)*1024} sc1")
    return r


def spec_epi(p):
    A, TT = C_ACC + 16 * p, (C_TT if p & 1 else C_TT2)
    r = []
    for i in range(8):
        r.append(f"v_cvt_pk_bf16_f32 v{TT+i}, v{A+2*i}, v{A+2*i+1}")
    for i in range(4):
        r.append(f"v_cvt_pk_bf16_f32 v{TT+8+i}, -v{A+8+2*i}, -v{A+8+2*i+1}")
    pa, pb, pn = vr(TT, 4), vr(TT + 4, 4), vr(TT + 8, 4)
    for rho in range(2):
        zr = vr(A + 4 * rho, 4)
        r.append(f"{MF16} {zr}, {vr(C_CF+4*rho,4)}, {pa}, 0")
        r.append(f"{MF16} {zr}, {vr(C_SF+4*rho,4)}, {pb}, {zr}")
    for rho in range(2):
        zm = vr(A + 8 + 4 * rho, 4)
        r.append(f"{MF16} {zm}, {vr(C_SF+4*rho,4)}, {pa}, 0")
        r.append(f"{MF16} {zm}, {vr(C_CF+4*rho,4)}, {pn}, {zm}")
    return r


def spec_pack(p):
    A = C_ACC + 16 * p
    r = [f"v_cvt_pk_bf16_f32 v{A+rg}, v{A+rg}, v{A+8+rg}" for rg in range(8)]
    r += [f"ds_write_b128 v{2+(p&1)}, {vr(A+4*rho,4)} offset:{(2*(p>>1)+rho)*4096}" for rho in range(2)]
    return r


def p1_compute(a, opt, kind):
    T = {"ffn6": 6, "spec6": 6, "spec4g": 4, "ffn8": 8}[kind]
    hasg = kind == "spec4g"
    lab_kind = kind
    kind = "spec" if kind.startswith("spec") else kind
    a.ds = []
    VA, VX, VST, VGW, VFD = C_VA, C_VX, C_VST, C_VGW, C_VFD
    P = T // 2
    t0, t1, t2 = C_T0, C_T1, C_T2
    WF, XF, ACC = C_WF, C_XF, C_ACC
    GACC = ACC + 64
    a.label(f"L1C_{lab_kind}")
    a(f"s_mul_i32 s41, s41, {P}")
    for pl in range(P):
        a(f"s_add_u32 s42, s41, {pl}")
        a("s_lshl_b32 s42, s42, 5")
        a(f"v_xor_b32 v{VA+pl}, s42, v{C_VB}")
    if kind == "spec":
        a(f"v_lshrrev_b32 v{t1}, 4, v1")
        a(f"v_mul_u32_u24 v{t1}, {4*ZR_B}, v{t1}")
        a(f"v_and_b32 v{t0}, 15, v1")
        a(f"v_lshl_add_u32 v{VST}, v{t0}, 4, v{t1}")
        if hasg:
            a(f"v_lshrrev_b32 v{t0}, 4, v1")
            a(f"v_lshlrev_b32 v{t0}, 4, v{t0}")
            a(f"v_and_b32 v{t1}, 1, v1")
            a(f"v_lshl_add_u32 v{t0}, v{t1}, 10, v{t0}")
            a(f"v_add_u32 v{t2}, {GW_LDS}, v{t0}")
        srd(a, 32, 78, 79, Z_SIZE, Z_OFF)
        a("s_mul_i32 s42, s22, 96")
        a(f"s_mul_i32 s43, s21, {EP}")
        a("s_add_u32 s42, s42, s43")
        a("s_lshr_b32 s43, s45, 1")
        a("s_lshl_b32 s43, s43, 4")
        a("s_add_u32 s42, s42, s43")
        a("s_lshl_b32 s42, s42, 4")
        a("s_and_b32 s43, s45, 1")
        a(f"s_mul_i32 s43, s43, {16*ZR_B}")
        a("s_add_u32 s42, s42, s43")
    else:
        for i in range(2):
            a(f"v_mov_b32 v{C_K1+i}, {f2u(C1):#x}")
            a(f"v_mov_b32 v{C_K2+i}, {f2u(C2):#x}")
        a(f"v_lshlrev_b32 v{VST}, 4, v1")
        srd(a, 32, 78, 79, H_SIZE, H_OFF)
        a("s_lshl3_add_u32 s44, s22, s41")
        a(f"s_mul_i32 s42, s23, {HS}")
        a("s_add_u32 s42, s42, s44")
        a("s_lshl_b32 s42, s42, 10")
        a("s_xor_b32 s43, s23, 32")
        a(f"s_mul_i32 s43, s43, {HS}")
        a("s_add_u32 s43, s43, s44")
        a("s_lshl_b32 s43, s43, 10")
        if opt.pre:
            a(f"v_mov_b32 v{t0}, s42")
            a(f"v_mov_b32 v{t1}, s43")
            a("v_cmp_gt_u32 vcc, 32, v1")
            a("v_and_b32 v11, 31, v1")
            a(f"v_min_u32 v11, {8*P-1}, v11")
            a(f"v_cndmask_b32 v{t0}, v{t1}, v{t0}, vcc")
            a(f"v_lshl_add_u32 v11, v11, 7, v{t0}")
    stamp(a, opt)

    tail = 0 if kind == "spec" else opt.tail
    units = []
    for s in range(8):
        us = []
        if tail == 2 and s == 7:
            continue
        if tail == 2 and s == 6:
            for p in range(P):
                for s_ in (6, 7):
                    us += [dict(s=s_, p=p, frags=[(0, 0), (0, 1)]), dict(s=s_, p=p, frags=[(1, 0), (1, 1)], upd=True)]
            us[2]["open"] = True
            us[2]["bar"] = True
            us[0]["open"] = True
            us[0]["bar"] = True
            units += us
            continue
        if s == 0 and opt.split0:
            us += [dict(s=s, p=p, frags=[(0, 0), (1, 0)]) for p in range(P)]
            us += [dict(s=s, p=p, frags=[(0, 1), (1, 1)], upd=True, bar=(p == 0)) for p in range(P)]
            if hasg:
                us.append(dict(s=s, p=None))
        else:
            if hasg:
                us.append(dict(s=s, p=None))
            for p in range(P):
                us += [dict(s=s, p=p, frags=[(0, 0), (0, 1)]), dict(s=s, p=p, frags=[(1, 0), (1, 1)], upd=True)]
        us[0]["open"] = True
        us[0]["bar"] = True
        units += us
    N = len(units)
    LA = 2

    def delta(s):
        return SSZ if (s % NB) < 2 else -2 * SSZ

    def upd(reg, s):
        d = delta(s)
        return f"v_add_u32 v{reg}, {d}, v{reg}" if d > 0 else f"v_subrev_u32 v{reg}, {-d}, v{reg}"

    def side_ops(n):
        U = units[n]
        s = U["s"]
        f = WF + 8 * (n % 3)
        ops = []
        if U.get("open"):
            xb = XF + 32 * (s & 1)
            for g in range(2):
                for rt in range(2):
                    for ks in range(2):
                        ops.append((f"ds_read_b128 {vr(xb+16*g+8*rt+4*ks,4)}, v{VX+2*g+ks} offset:{rt*2048}", ("x", s)))
        if U["p"] is None:
            ops.append(("s_lshl_b32 s44, s49, 7", None))
            ops.append((f"v_add_u32 v{VGW}, s44, v{t2}", None))
            ops.append((f"ds_read_b128 {vr(f,4)}, v{VGW}", ("u", n)))
            ops.append((f"ds_read_b128 {vr(f+4,4)}, v{VGW} offset:64", ("u", n)))
            if opt.pairord:
                ops.append(("s_xor_b32 s49, s49, s50", None))
            ops.append(("s_add_u32 s49, s49, 1", None))
            ops.append(("s_and_b32 s49, s49, 7", None))
            if opt.pairord:
                ops.append(("s_xor_b32 s49, s49, s50", None))
        else:
            for k, (m, ks) in enumerate(U["frags"]):
                off = m * 16384 + ks * 8192
                ops.append((f"ds_read_b64_tr_b16 {vr(f+4*k,2)}, v{VA+U['p']} offset:{off}", ("u", n)))
                ops.append((f"ds_read_b64_tr_b16 {vr(f+4*k+2,2)}, v{VA+U['p']} offset:{off+1024}", ("u", n)))
        if U.get("open") and s < 7:
            ops += [(upd(VX + ks, s), None) for ks in range(4)]
        if U.get("upd") and s < 7:
            ops.append((upd(VA + U["p"], s), None))
        if opt.pre and kind != "spec" and s == opt.pre and U.get("upd") and U["p"] == P - 1:
            ops.append(("buffer_load_dword v12, v11, s[32:35], 0 offen", None))
        return ops

    def emit(op):
        if op[1] is None:
            a(op[0])
        else:
            a.dsop(op[0], op[1])

    epi = spec_epi if kind == "spec" else ffn_epi
    fill = []
    a("s_barrier")
    stamp(a, opt)
    for n in range(LA):
        for op in side_ops(n):
            emit(op)
    pend = []
    for n in range(N):
        U = units[n]
        s = U["s"]
        boundary = n + LA == N or (n + LA < N and units[n + LA].get("bar"))
        carry = len(pend)
        if boundary and carry:
            for _ in range(carry):
                emit(pend.pop(0))
            carry = 0
        if n + LA < N:
            pend += side_ops(n + LA)
        a.dswait(("u", n))
        f = WF + 8 * (n % 3)
        xb = XF + 32 * (s & 1)
        frags = U.get("frags", [(0, 0), (0, 1)])
        NM = 4 if U["p"] is None else 8
        bpos = min(opt.bpos, NM - 2)
        for j in range(NM):
            g, rt, k = j >> 2, (j >> 1) & 1, j & 1
            if opt.mord == 1 and NM == 8:
                g, rt, k = (j >> 1) & 1, j & 1, j >> 2
            if opt.mord == 2 and NM == 8:
                k = k ^ (rt & 1) if not (s == 0) else k
            m, ks = frags[k]
            if U["p"] is None:
                acc = vr(GACC + 4 * rt, 4)
            else:
                acc = vr(ACC + 16 * (2 * U["p"] + g) + 8 * m + 4 * rt, 4)
            w_, x_ = vr(f + 4 * k, 4), vr(xb + 16 * g + 8 * rt + 4 * ks, 4)
            srcc = "0" if (s == 0 and ks == 0) else acc
            if kind == "spec":
                a(f"{MF16} {acc}, {x_}, {w_}, {srcc}")
            else:
                a(f"{MF16} {acc}, {w_}, {x_}, {srcc}")
            if boundary:
                if j < bpos:
                    cnt = -(-carry // (bpos - j)) if carry else 0
                    carry -= cnt
                else:
                    cnt = 2
                if j == bpos:
                    a("s_waitcnt lgkmcnt(0)")
                    a("s_barrier")
                    if opt.fine:
                        stamp(a, opt)
            else:
                cnt = max(-(-len(pend) // (NM - j)), 1)
            cnt = min(cnt, len(pend))
            for _ in range(min(cnt, len(pend))):
                emit(pend.pop(0))
            k_ = min(cnt, 2) if opt.npk else 0
            while fill and k_ < opt.fpg and fill[0][0] <= a.n and not (opt.npk and fill[0][1].startswith("v_pk")):
                ins_ = fill.pop(0)[1]
                a(ins_)
                k_ += 2 if ins_.startswith(("v_exp", "v_rcp")) else 1
            if tail and s == 7 and U.get("upd") and j in (3, 7):
                fill += [(a.n + 9, i_) for i_ in epi(2 * U["p"] + (j >> 2))]
    assert not pend
    stamp(a, opt)
    if tail:
        while fill:
            at, ins = fill.pop(0)
            if at > a.n:
                a(f"s_nop {min(at - a.n - 1, 15)}")
                a.n = at
            a(ins)
    else:
        a("s_nop 7")
        if kind != "spec":
            hp = min(opt.hp, T - 1)
            for p in range(T):
                for ins in epi(p):
                    a(ins)
                if opt.half and p == 0:
                    srd(a, 36, 78, 79, F_SIZE, F_OFF)
                    a(f"v_mov_b32 v{t1}, 1")
                    a(f"v_lshlrev_b32 v{t2}, 7, v1")
                if opt.half and p == hp:
                    a(f"s_waitcnt vmcnt({hp - 3})")
                    a("s_mov_b64 exec, " + opt.fmask)
                    a(f"buffer_store_dword v{t1}, v{t2}, s[36:39], s63 offen sc1")
                    a("s_mov_b64 exec, -1")
        else:
            a(f"v_lshlrev_b32 v{t1}, 4, v1")
            a("s_lshl_b32 s43, s45, 10")
            a(f"s_add_u32 s43, s43, {SSZ}")
            a(f"v_add_u32 v{t0}, s43, v{t1}")
            a("s_lshl_b32 s43, s41, 13")
            a(f"v_add_u32 v2, s43, v{t0}")
            a("v_xor_b32 v3, 0x800, v2")
            a("s_lshl_b32 s43, s45, 12")
            a(f"s_add_u32 s43, s43, {SSZ}")
            a(f"v_add_u32 v{t1}, s43, v{t1}")
            if hasg:
                A, TT, ZR = GACC, C_TT, GACC + 8
                for i in range(4):
                    a(f"v_cvt_pk_bf16_f32 v{TT+i}, v{A+2*i}, v{A+2*i+1}")
                srd(a, 36, 78, 79, G_SIZE, G_OFF)
                for rho in range(2):
                    a(f"{MF16} {vr(ZR+4*rho,4)}, {vr(C_CF+4*rho,4)}, {vr(TT,4)}, 0")
                    a(f"{MF16} {vr(ZR+8+4*rho,4)}, {vr(C_SF+4*rho,4)}, {vr(TT,4)}, 0")
                for i in range(4):
                    a(f"v_lshlrev_b32 v{A+2*i}, 16, v{TT+i}")
                    a(f"v_and_b32 v{A+2*i+1}, 0xffff0000, v{TT+i}")
                for i in range(8):
                    a(f"v_mul_f32 v{A+i}, {f2u(-1.4426950408889634):#x}, v{A+i}")
                for i in range(8):
                    a(f"v_exp_f32 v{A+i}, v{A+i}")
                for i in range(8):
                    a(f"v_add_f32 v{A+i}, 1.0, v{A+i}")
                for i in range(8):
                    a(f"v_rcp_f32 v{A+i}, v{A+i}")
                for rg in range(8):
                    a(f"v_cvt_pk_bf16_f32 v{ZR+rg}, v{ZR+rg}, v{ZR+8+rg}")
                for rho in range(2):
                    a(f"ds_write_b128 v{t0}, {vr(ZR+4*rho,4)} offset:{(2*T+rho)*4096}")
                for i in range(4):
                    a(f"v_cvt_pk_bf16_f32 v{TT+i}, v{A+2*i}, v{A+2*i+1}")
                for i in range(4):
                    a(f"v_lshlrev_b32 v{A+2*i}, 16, v{TT+i}")
                    a(f"v_and_b32 v{A+2*i+1}, 0xffff0000, v{TT+i}")
                a("s_lshl_b32 s43, s23, 7")
                a("s_mov_b32 exec_lo, 0x00010001")
                a("s_mov_b32 exec_hi, 0x00010001")
                a(f"buffer_store_dwordx4 {vr(A,4)}, v1, s[36:39], s43 offen sc1")
                a(f"buffer_store_dwordx4 {vr(A+4,4)}, v1, s[36:39], s43 offen offset:64 sc1")
                a("s_mov_b64 exec, -1")
            cv = [[x for x in epi(p) if not x.startswith("v_mfma")] for p in range(T)]
            mf = [[x for x in epi(p) if x.startswith("v_mfma")] for p in range(T)]
            for ins in cv[0]:
                a(ins)
            for p in range(T):
                side = (cv[p + 1] if p + 1 < T else ["s_nop 3", "s_nop 3", "s_nop 3"]) + (spec_pack(p - 1) if p > 0 else [])
                for i, ins in enumerate(mf[p]):
                    a(ins)
                    for _ in range(-(-len(side) // (8 - i))):
                        a(side.pop(0))
            if opt.fine4:
                stamp(a, opt)
            a("s_nop 7")
            for ins in spec_pack(T - 1):
                a(ins)
            if opt.fine4:
                stamp(a, opt)
            a("s_waitcnt lgkmcnt(0)")
            a("s_barrier")
            if opt.fine4:
                stamp(a, opt)
            NG = T // 2 + (1 if hasg else 0)
            for k in range(NG):
                for w in range(4):
                    a(f"ds_read_b128 {vr(WF+16*k+4*w,4)}, v{t1} offset:{k*16384 + w*1024}")
            for k in range(NG):
                R = WF + 16 * k
                a(f"s_waitcnt lgkmcnt({4*(NG-1-k)})")
                for i in range(4):
                    for j in range(i + 1, 4):
                        a(f"v_swap_b32 v{R+4*i+j}, v{R+4*j+i}")
                if opt.fine4:
                    stamp(a, opt)
                off = 512 * k
                if hasg and k == NG - 1:
                    a("s_cmp_ge_u32 s45, 2")
                    a("s_cbranch_scc1 L1C_no256")
                    a("s_mov_b32 exec_lo, 0x00020002")
                    a("s_mov_b32 exec_hi, 0x00020002")
                    off -= 16
                for b in range(4):
                    a(f"s_add_u32 s43, s42, {b*ZR_B}")
                    a(f"buffer_store_dwordx4 {vr(R+4*b,4)}, v{VST}, s[32:35], s43 offen offset:{off} sc1")
            if hasg:
                a("s_mov_b64 exec, -1")
                a.label("L1C_no256")
            if opt.fine4:
                stamp(a, opt)
            if not opt.lateb9:
                a("s_barrier")

    stamp(a, opt)
    a("s_branch L2C")


def p2_combine(a, opt):
    VFD = C_VFD
    t0, t1, t2 = C_T0, C_T1, C_T2
    VZ, VO, VG = 23, 24, 25
    ZF, ACY, PT, BF, TR = 160, 192, 96, 208, 2
    a.label("L2C")
    a("s_and_b32 s42, s45, 1")
    a("s_lshl_b32 s42, s42, 5")
    a("s_add_u32 s42, s42, s54")
    a("s_lshr_b32 s43, s45, 1")
    a("s_lshl_b32 s43, s43, 5")
    a("s_lshl_b32 s44, s51, 6")
    a("s_add_u32 s43, s43, s44")
    a(f"v_bfe_u32 v{t0}, v1, 2, 1")
    a(f"v_lshlrev_b32 v{t0}, 4, v{t0}")
    a(f"v_and_or_b32 v{t0}, v1, 3, v{t0}")
    a(f"v_bfe_u32 v{t1}, v1, 3, 2")
    a(f"v_lshlrev_b32 v{t1}, 2, v{t1}")
    a(f"v_add3_u32 v{t0}, v{t0}, v{t1}, s43")
    a(f"v_and_b32 v{t1}, 31, v1")
    a("s_lshl_b32 s44, s42, 7")
    a(f"v_lshl_add_u32 v{VG}, v{t1}, 2, s44")
    a(f"v_lshl_add_u32 v{t1}, v{t1}, 6, s42")
    a(f"v_lshrrev_b32 v{t2}, 5, v1")
    a(f"v_lshlrev_b32 v{VO}, 10, v{t1}")
    a(f"v_lshl_add_u32 v{VO}, v{t2}, 5, v{VO}")
    a("s_lshl_b32 s44, s43, 1")
    a(f"v_add_u32 v{VO}, s44, v{VO}")
    a("s_mov_b32 s64, s54")
    a("s_cmp_lt_u32 s51, 4")
    a("s_cbranch_scc1 L2C_nomirror")
    a(f"v_sub_u32 v{t0}, 0x200, v{t0}")
    a(f"v_sub_u32 v{t1}, 0x800, v{t1}")
    a(f"v_and_b32 v{t1}, 0x7ff, v{t1}")
    a("s_sub_u32 s64, 32, s54")
    a("s_and_b32 s64, s64, 31")
    a.label("L2C_nomirror")
    a(f"v_mul_u32_u24 v{VZ}, {8*EP*16}, v{t2}")
    a(f"v_lshl_add_u32 v{VZ}, v{t0}, 4, v{VZ}")
    a(f"s_mul_i32 s64, s64, {ZR_B}")
    a(f"v_cvt_f32_u32 v26, v{t1}")
    a(f"v_mul_f32 v26, {f2u(-1.0/2048):#x}, v26")
    a(f"v_cvt_f32_u32 v27, v{t2}")
    a(f"v_mul_f32 v27, {f2u(16.0):#x}, v27")
    a("v_mul_f32 v27, v26, v27")

    def trig(o):
        for q in range(8):
            ks_, qq = (8 * o + q) >> 2, q & 3
            a(f"v_fmamk_f32 v{TR+q}, v26, {f2u(float(2*ks_ + (qq&1) + 32*(qq>>1))):#x}, v27")
        for q in range(8):
            a(f"v_fract_f32 v{TR+q}, v{TR+q}")
        for q in range(8):
            a(f"v_sin_f32 v{TR+8+q}, v{TR+q}")
        for q in range(8):
            a(f"v_cos_f32 v{TR+q}, v{TR+q}")
        a("s_nop 0")
        for q in range(8):
            a(f"v_cvt_pk_bf16_f32 v{BF+8*o+q}, v{TR+q}, v{TR+8+q}")

    a("s_bitcmp1_b32 s65, 1")
    a("s_cbranch_scc1 L2C_t23s")
    trig(2)
    trig(3)
    a.label("L2C_t23s")
    srd(a, 36, 78, 79, F_SIZE, F_OFF)
    a(f"v_mov_b32 v{t0}, {FLG}")
    a(f"v_mov_b32 v{t1}, 1")
    a(f"v_lshlrev_b32 v{t2}, 7, v1")
    a("v_mov_b32 v28, 2")
    a("s_waitcnt vmcnt(0)")
    stamp(a, opt)
    a("s_bitcmp1_b32 s65, 0")
    a("s_cbranch_scc0 L2C_noh")
    a("s_mov_b64 exec, " + opt.fmask)
    a(f"buffer_store_dword v28, v{t2}, s[36:39], s63 offen sc1")
    a.label("L2C_noh")
    a("s_bitcmp1_b32 s65, 1")
    a("s_cbranch_scc0 L2C_noz")
    a("s_mov_b64 exec, 1")
    a(f"ds_add_rtn_u32 v{VFD}, v{t0}, v{t1}")
    a("s_and_b32 s42, s22, 1")
    a("s_lshl4_add_u32 s42, s42, s21")
    a(f"s_mul_i32 s42, s42, {opt.rl*128}")
    a("s_lshr_b32 s43, s22, 1")
    a("s_lshl_b32 s43, s43, 7")
    a("s_add_u32 s42, s42, s43")
    a("s_waitcnt lgkmcnt(0)")
    a(f"v_cmp_ne_u32 vcc, 3, v{VFD}")
    a("s_cbranch_vccnz L2C_noz")
    a(f"buffer_store_dword v28, v{t2}, s[36:39], s42 offen offset:256 sc1")
    a.label("L2C_noz")
    a("s_mov_b64 exec, -1")
    if opt.lateb9:
        a("s_bitcmp1_b32 s65, 1")
        a("s_cbranch_scc0 L2C_nob9")
        a("s_barrier")
        a.label("L2C_nob9")
    a(f"v_and_b32 v{VFD}, 15, v1")
    a(f"v_min_u32 v{VFD}, 10, v{VFD}")
    a(f"v_and_or_b32 v{VFD}, v1, 16, v{VFD}")
    a(f"s_mov_b32 s43, {RH}")
    a(f"v_lshl_add_u32 v{t0}, v{VFD}, 2, s43")
    a("v_min_u32 v28, 47, v1")
    a(f"s_mov_b32 s43, {RZ}")
    a("v_lshl_add_u32 v28, v28, 2, s43")
    a(f"s_mul_i32 s42, s54, {opt.rl}")
    a(f"s_and_b32 s43, s{2 if opt.map84 else 51}, {opt.cmask}")
    a("s_add_u32 s42, s42, s43")
    a("s_lshl_b32 s42, s42, 7")
    a(f"v_lshl_add_u32 v{t2}, v1, 4, s42")
    a(f"s_mov_b32 m0, {RH}")

    def hpoll():
        a("s_mov_b64 exec, 0xff")
        a(f"buffer_load_dwordx4 v{t2}, s[36:39], 0 offen sc1 lds")
        a("s_mov_b64 exec, -1")

    def zpoll():
        a("s_mov_b32 exec_hi, 0xffff")
        a(f"buffer_load_dword v{t2}, s[36:39], 0 offen sc1 lds")
        a("s_mov_b64 exec, -1")

    a("s_cmp_lg_u32 s45, 0")
    a("s_cbranch_scc1 L2C_rest")
    a.label("L2C_wh")
    hpoll()
    a(f"s_waitcnt vmcnt({opt.pq})")
    if opt.psleep:
        a(f"s_sleep {opt.psleep}")
    a(f"ds_read_b32 v{VFD}, v{t0}")
    a("s_waitcnt lgkmcnt(0)")
    a(f"v_cmp_ne_u32 vcc, 2, v{VFD}")
    a("s_cbranch_vccnz L2C_wh")
    a(f"v_and_b32 v{t2}, 31, v1")
    a(f"v_mul_u32_u24 v{t2}, {opt.rl*128}, v{t2}")
    a(f"v_lshrrev_b32 v{VFD}, 5, v1")
    a(f"v_lshl_add_u32 v{t2}, v{VFD}, 7, v{t2}")
    a(f"s_mov_b32 m0, {RZ}")
    a(f"v_add_u32 v{t2}, 0x100, v{t2}")
    zpoll()
    a.label("L2C_rest")
    trig(0)
    trig(1)
    a("s_bitcmp1_b32 s65, 1")
    a("s_cbranch_scc0 L2C_t23d")
    trig(2)
    trig(3)
    a.label("L2C_t23d")
    srd(a, 32, 78, 79, Z_SIZE, Z_OFF)
    srd(a, 24, 78, 79, G_SIZE, G_OFF)
    srd(a, 28, 18, 19, 2048 * 1024)
    a("s_barrier")
    a("s_branch L2C_wz1")
    a.label("L2C_wz")
    a("s_cmp_lg_u32 s45, 0")
    a("s_cbranch_scc1 L2C_wz1")
    a("s_waitcnt vmcnt(0)")
    zpoll()
    a(f"s_sleep {opt.zsleep}")
    a.label("L2C_wz1")
    a(f"ds_read_b32 v{VFD}, v28")
    a("s_waitcnt lgkmcnt(0)")
    a(f"v_cmp_ne_u32 vcc, 2, v{VFD}")
    a("s_cbranch_vccnz L2C_wz")

    def zloads():
        stamp(a, opt)
        a(f"buffer_load_dword v10, v{VG}, s[24:27], 0 offen sc1")
        for ks in range(8):
            if not opt.noz:
                a(f"buffer_load_dwordx4 {vr(ZF+4*ks,4)}, v{VZ}, s[32:35], s64 offen sc1")
            if ks < 7:
                a(f"s_add_u32 s64, s64, {EP*16}")

    zloads()
    a(f"v_lshlrev_b32 v{t0}, 4, v1")
    a("s_lshl_b32 s42, s45, 14")
    a(f"v_add_u32 v{t0}, s42, v{t0}")
    for ks in range(8):
        a(f"s_waitcnt vmcnt({7-ks})")
        acc = vr(ACY, 16)
        a(f"{MF32} {acc}, {vr(ZF+4*ks,4)}, {vr(BF+4*ks,4)}, {'0' if ks == 0 else acc}")
    a("v_sub_f32 v11, 1.0, v10")
    a("v_cvt_pk_bf16_f32 v11, v11, v11")
    a("v_and_b32 v12, 0xffff0000, v11")
    a("v_and_b32 v13, 0xffff0000, v11")
    a("s_nop 7")
    a("s_nop 1")
    for rg in range(16):
        a(f"v_mul_f32 v{ACY+rg}, v10, v{ACY+rg}")
    stamp(a, opt)
    a("s_barrier")
    for hf in range(2):
        for w in range(4):
            for q in (2 * hf, 2 * hf + 1):
                if hf == 1 and w == 3 and q == 3:
                    a("s_waitcnt lgkmcnt(7)")
                a(f"ds_read_b128 {vr(PT+16*w+4*q,4)}, v{t0} offset:{w*2048 + (q>>1)*8192 + (q&1)*1024}")
    for hf in range(2):
        if hf:
            a("s_waitcnt lgkmcnt(0)")
        rr = range(8 * hf, 8 * hf + 8, 2)
        for rg in rr:
            a(f"v_pk_add_f32 {vr(PT+rg,2)}, {vr(PT+rg,2)}, {vr(PT+16+rg,2)}")
        for rg in rr:
            a(f"v_pk_add_f32 {vr(PT+32+rg,2)}, {vr(PT+32+rg,2)}, {vr(PT+48+rg,2)}")
        for rg in rr:
            a(f"v_pk_add_f32 {vr(PT+rg,2)}, {vr(PT+rg,2)}, {vr(PT+32+rg,2)}")
        for rg in rr:
            a(f"v_pk_fma_f32 {vr(ACY+rg,2)}, {vr(PT+rg,2)}, v[12:13], {vr(ACY+rg,2)}")
        for i in range(4 * hf, 4 * hf + 4):
            a(f"v_cvt_pk_bf16_f32 v{32+i}, v{ACY+2*i}, v{ACY+2*i+1}")
        a(f"buffer_store_dwordx4 {vr(32+4*hf,4)}, v{VO}, s[28:31], 0 offen offset:{16*hf} {opt.ofl}")
    stamp(a, opt)
    stamp_flush(a, opt, "C")
    a("s_endpgm")


def compute_prologue(a, opt):
    t0, t1, t2 = C_T0, C_T1, C_T2
    if opt.pf:
        a(f"s_cmp_eq_u32 s46, {K_SPEC}")
        a("s_mov_b32 s47, 2752")
        a("s_cselect_b32 s47, 1024, s47")
        a("s_cmp_eq_u32 s22, 10")
        a("s_movk_i32 s40, 252")
        a("s_cselect_b32 s40, 188, s40")
        a(f"v_lshrrev_b32 v{t2}, 5, v1")
        a(f"v_bfe_u32 v{t0}, v1, 2, 3")
        a(f"v_lshl_add_u32 v{t0}, v{t2}, 7, v{t0}")
        a("s_lshl_b32 s44, s42, 3")
        a("s_add_u32 s44, s44, s55")
        a("s_lshl_b32 s44, s44, 3")
        a(f"v_add_u32 v{t0}, s44, v{t0}")
        a(f"v_mul_u32_u24 v{t0}, s47, v{t0}")
        a(f"v_and_b32 v{t1}, 3, v1")
        a(f"v_lshlrev_b32 v{t1}, 7, v{t1}")
        a(f"v_min_u32 v{t1}, s40, v{t1}")
        a("s_lshl_b32 s44, s22, 8")
        a(f"v_add3_u32 v{t0}, v{t0}, v{t1}, s44")
        a(f"v_and_b32 v{t1}, 31, v1")
        a(f"v_lshlrev_b32 v{t1}, 16, v{t1}")
        a(f"v_mul_u32_u24 v{t2}, 384, v{t2}")
        a("s_lshl_b32 s44, s23, 3")
        a("s_lshr_b32 s41, s2, 6")
        a("s_add_u32 s44, s44, s41")
        a("s_lshl_b32 s44, s44, 7")
        a(f"v_add3_u32 v{t1}, v{t1}, v{t2}, s44")
        a("s_lshl_b32 s40, s47, 6")
        a("s_mul_i32 s41, s40, 5")
        a("s_lshl_b32 s30, s47, 9")
        a("s_mov_b32 s31, 0x20000")
        a("s_waitcnt lgkmcnt(0)")
        srd(a, 24, 4, 5, 2048 * 1024)
        a(f"s_cmp_eq_u32 s46, {K_SPEC}")
        a("s_cselect_b64 s[12:13], s[8:9], s[12:13]")
        a("s_cselect_b64 s[14:15], s[10:11], s[14:15]")
        a("s_cmp_ge_u32 s45, 2")
        a("s_cselect_b64 s[28:29], s[14:15], s[12:13]")
        a(f"buffer_load_dword v29, v{t0}, s[28:31], s40 offen")
        a(f"buffer_load_dword v30, v{t1}, s[24:27], 0 offen offset:128")
        a(f"buffer_load_dword v31, v{t0}, s[28:31], s41 offen")
    a(f"v_lshlrev_b32 v{t0}, 3, v1")
    a(f"v_add_u32 v{t0}, {FLG}, v{t0}")
    a("v_mov_b32 v2, 0")
    a("v_mov_b32 v3, 0")
    a(f"ds_write_b64 v{t0}, v[2:3]")
    a("s_waitcnt lgkmcnt(0)")
    stamp(a, opt)
    a("s_and_b32 s63, s23, 31")
    a(f"s_mul_i32 s63, s63, {opt.rl*32}")
    a("s_lshr_b32 s44, s23, 5")
    a("s_lshl_b32 s44, s44, 4")
    a("s_add_u32 s63, s63, s44")
    a("s_add_u32 s63, s63, s22")
    a("s_lshl_b32 s63, s63, 2")
    a(f"s_cmp_eq_u32 s46, {K_IDLE}")
    a("s_cbranch_scc1 L1C_idle")
    a(f"v_bfe_u32 v{t0}, v1, 2, 2")
    a(f"v_lshrrev_b32 v{t1}, 4, v1")
    a(f"v_lshl_add_u32 v{t1}, v{t1}, 3, v{t0}")
    a(f"v_lshlrev_b32 v{t1}, 8, v{t1}")
    a(f"v_bfe_u32 v{t0}, v1, 2, 3")
    a(f"v_lshl_add_u32 v{t1}, v{t0}, 5, v{t1}")
    a(f"v_and_b32 v{t0}, 3, v1")
    a(f"v_lshl_add_u32 v{C_VB}, v{t0}, 3, v{t1}")
    a(f"v_and_b32 v{t0}, 15, v1")
    a(f"v_lshrrev_b32 v{t1}, 1, v{t0}")
    a(f"v_lshrrev_b32 v{t2}, 4, v1")
    a(f"v_xor_b32 v{t1}, v{t1}, v{t2}")
    a(f"v_lshlrev_b32 v{t1}, 4, v{t1}")
    a(f"v_lshl_add_u32 v{t0}, v{t0}, 7, v{t1}")
    a(f"v_add_u32 v{C_VX}, s48, v{t0}")
    a(f"v_xor_b32 v{C_VX+1}, 64, v{C_VX}")
    a(f"v_xor_b32 v{C_VX+2}, 0x2000, v{C_VX}")
    a(f"v_xor_b32 v{C_VX+3}, 0x2040, v{C_VX}")
    if opt.pp:
        a.l.append("@@DISPATCH@@")
    a("s_mov_b32 s65, 1")
    a(f"s_cmp_eq_u32 s46, {K_6G}")
    a("s_cbranch_scc1 L1C_ffn6")
    a("s_cmp_lg_u32 s46, 0")
    a("s_cbranch_scc1 L1C_specs")


def idle_compute(a, opt):
    t0, t1, t2 = C_T0, C_T1, C_T2
    a.label("L1C_idle")
    a("s_mov_b32 s65, 0")
    srd(a, 24, 76, 77, 256)
    a(f"v_mov_b32 v{t1}, 0")
    a("s_cmp_lg_u32 s55, 4")
    a("s_cbranch_scc1 L1_noinit")
    srd(a, 36, 78, 79, F_SIZE, F_OFF)
    for i in range(4):
        a(f"v_mov_b32 v{32+i}, 0")
    a(f"v_lshlrev_b32 v{t0}, 4, v1")
    a("s_and_b32 s42, s2, 7")
    a("s_lshl_b32 s42, s42, 2")
    a("s_add_u32 s42, s42, s45")
    a(f"s_mul_i32 s42, s42, {opt.rl*128}")
    a(f"buffer_store_dwordx4 v[32:35], v{t0}, s[36:39], s42 offen sc1")
    a(f"v_mov_b32 v{t2}, 1")
    a.label("L1_noinit")
    if opt.tlb:
        srd(a, 32, 78, 79, 0x800000)
        srd(a, 28, 18, 19, 2048 * 1024)
        a(f"v_mul_u32_u24 v{t0}, {HS*1024}, v1")
        a(f"s_mov_b32 s42, {86*1024}")
        a(f"buffer_load_dword v249, v{t0}, s[32:35], s42 offen")
        a(f"v_min_u32 v{t0}, 36, v1")
        a(f"v_mul_u32_u24 v{t0}, {ZR_B}, v{t0}")
        a(f"v_cmp_gt_u32 vcc, 32, v1")
        a(f"v_mov_b32 v248, {0x7C0000 - (Z_OFF + ZR_B - 128)}")
        a(f"s_mov_b32 s42, {Z_OFF + ZR_B - 128}")
        a(f"v_cndmask_b32 v{t0}, v248, v{t0}, vcc")
        a(f"buffer_load_dword v248, v{t0}, s[32:35], s42 offen")
        a(f"v_lshlrev_b32 v{t0}, 15, v1")
        a(f"buffer_load_dword v247, v{t0}, s[28:31], 0 offen")
    if opt.codepf:
        a("s_getpc_b64 s[40:41]")
        a.label("L_pcref")
        a(f"s_sub_u32 s40, s40, L_pcref-{NAME}_kernel")
        a("s_subb_u32 s41, s41, 0")
        a("s_lshl2_add_u32 s42, s55, s45")
        a("s_and_b32 s42, s42, 7")
        a("s_mul_i32 s42, s42, 6400")
        a(f"v_lshl_add_u32 v{t0}, v1, 7, s42")
        a(f"v_min_u32 v{t0}, L_exit-{NAME}_kernel, v{t0}")
        a("v_mov_b32 v37, s41")
        a(f"v_add_co_u32 v36, vcc, s40, v{t0}")
        a("s_nop 1")
        a("v_addc_co_u32 v37, vcc, 0, v37, vcc")
        a("global_load_dword v250, v[36:37], off")
    a("s_waitcnt vmcnt(0)")
    a("s_cmp_lg_u32 s55, 4")
    a("s_cbranch_scc1 L1_noinit2")
    a("s_mov_b64 exec, 1")
    a(f"buffer_atomic_add v{t2}, v{t1}, s[24:27], 0 offen sc1")
    a("s_mov_b64 exec, -1")
    a.label("L1_noinit2")
    if opt.irel == 0:
        a("s_barrier")
    a("s_barrier")
    a("s_cmp_lg_u32 s45, 0")
    a("s_cbranch_scc1 L2C")
    a.label("L1C_idle_go")
    a(f"buffer_load_dword v{t2}, v{t1}, s[24:27], 0 offen sc1")
    a("s_waitcnt vmcnt(0)")
    a(f"v_cmp_gt_u32 vcc, 32, v{t2}")
    a("s_cbranch_vccz L2C")
    a("s_sleep 8")
    a("s_branch L1C_idle_go")


def decode_rest(a, opt, lab):
    a("s_cmp_eq_u32 s44, 3")
    a(f"s_cbranch_scc1 {lab}_3")
    a("s_mul_i32 s22, s42, 3")
    a("s_min_u32 s22, s22, 8")
    a("s_add_u32 s22, s22, s44")
    a("s_and_b32 s46, s42, s44")
    a("s_lshr_b32 s46, s46, 1")
    a(f"s_cbranch_scc0 {lab}_d")
    a("s_and_b32 s22, s42, 1")
    a(f"s_branch {lab}_d")
    a.label(f"{lab}_3")
    a("s_cmp_lt_u32 s55, 2")
    a("s_cselect_b32 s22, 10, 2")
    a("s_lshr_b32 s46, s55, 1")
    a("s_add_u32 s46, s46, 2")
    a(f"s_min_u32 s46, s46, {K_IDLE}")
    a.label(f"{lab}_d")


def kernel(a, opt):
    a.label(NAME + "_kernel")
    if opt.stamps:
        a("v_mov_b32 v255, 0")
        a("v_mov_b32 v253, 0")
        a("s_mov_b32 s89, 0")
        stamp(a, opt)
    a("s_load_dwordx2 s[24:25], s[0:1], 0")
    a("s_load_dwordx16 s[4:19], s[0:1], 24")
    a("s_load_dwordx4 s[76:79], s[0:1], 88")
    a("v_lshrrev_b32 v2, 6, v0")
    a("v_and_b32 v1, 63, v0")
    a("v_readfirstlane_b32 s20, v2")
    a("s_cmp_ge_u32 s2, 256")
    a("s_cbranch_scc1 L_exit")
    a("s_bfe_u32 s55, s2, 0x30003")
    a("s_bfe_u32 s42, s2, 0x20001")
    a("s_lshr_b32 s44, s2, 6")
    a("s_and_b32 s43, s55, 1")
    a("s_lshl1_add_u32 s43, s42, s43")
    a("s_cmp_eq_u32 s44, 3")
    a("s_cselect_b32 s21, s43, s55")
    if opt.q3:
        if opt.rmul:
            a(f"s_mul_i32 s40, s44, {opt.rmul}")
            a("s_mul_i32 s43, s42, 2")
            a("s_add_u32 s40, s40, s43")
            a("s_cmp_eq_u32 s44, 3")
        else:
            a(f"s_mul_i32 s40, s42, {opt.q3}")
    else:
        a(f"s_mul_i32 s40, s44, {opt.rmul}")
    a("s_mul_i32 s43, s55, 3")
    a("s_cselect_b32 s43, s43, s40")
    if opt.r3:
        a("s_addc_u32 s49, s43, s21")
    else:
        a("s_add_u32 s49, s40, s21")
    if opt.qmul == 1:
        a("s_add_u32 s49, s49, s42")
    if opt.qmul == 2:
        a("s_lshl1_add_u32 s49, s42, s49")
    if opt.pirot:
        a("s_add_u32 s43, s55, s42")
        a("s_and_b32 s40, s2, 1")
        a("s_lshl1_add_u32 s43, s43, s40")
        a("s_cmp_eq_u32 s44, 3")
        a("s_cselect_b32 s49, s49, s43")
    a(f"s_and_b32 s49, s49, {opt.rotmask}")
    if opt.pairord:
        a(f"s_and_b32 s50, s49, {opt.pairord}")
    a("s_and_b32 s43, s2, 1")
    a("s_lshl3_add_u32 s21, s43, s21")
    a("s_and_b32 s45, s20, 3")
    a("s_and_b32 s40, s45, 1")
    a("s_lshr_b32 s41, s45, 1")
    a("s_lshl1_add_u32 s23, s21, s40")
    a("s_lshl_b32 s43, s41, 5")
    a("s_add_u32 s23, s23, s43")
    a("s_lshl_b32 s48, s45, 12")
    a("s_bitset1_b32 s48, 15")
    a("s_cmp_ge_u32 s20, 4")
    a("s_cbranch_scc1 L1_compw")
    t0, t1, t2, VX, VD = L_T0, L_T1, L_T2, L_VX, L_VD
    a(f"v_lshrrev_b32 v{t0}, 3, v1")
    a("s_lshl_b32 s43, s23, 10")
    a(f"v_lshl_add_u32 v{t0}, v{t0}, 16, s43")
    a(f"v_lshrrev_b32 v{t1}, 4, v1")
    a(f"v_and_b32 v{t2}, 7, v1")
    a(f"v_xor_b32 v{t2}, v{t1}, v{t2}")
    a(f"v_lshl_add_u32 v{VX}, v{t2}, 4, v{t0}")
    a(f"v_xor_b32 v{VX+1}, {8*65536+64:#x}, v{VX}")
    a(f"v_xor_b32 v{VX+2}, {16*65536:#x}, v{VX}")
    a(f"v_xor_b32 v{VX+3}, {24*65536+64:#x}, v{VX}")
    a("s_mov_b32 s26, 0x200000")
    a("s_mov_b32 s27, 0x20000")
    a("s_lshl_b32 s47, s49, 7")
    a("s_mov_b32 m0, s48")
    a("s_cmp_ge_u32 s2, 224")
    if opt.epf:
        a("s_cbranch_scc1 L_epf")
        a("s_waitcnt lgkmcnt(0)")
    else:
        a("s_waitcnt lgkmcnt(0)")
        a("s_cbranch_scc1 L_nox")
    for i in range(4):
        a(f"buffer_load_dwordx4 v{VX+i}, s[24:27], s47 offen {opt.xfl} lds")
        if i < 3:
            a("s_add_u32 m0, m0, 1024")
            a("s_nop 0")
    a.label("L_nox")
    stamp(a, opt)
    decode_rest(a, opt, "L_dl")
    a("s_cmp_eq_u32 s46, 0")
    a("s_cselect_b32 s43, 15, 11")
    a(f"s_cmp_eq_u32 s46, {K_S4G}")
    a("s_cselect_b32 s43, 7, s43")
    a("s_cselect_b32 s80, 0, -1")
    a("s_bitcmp1_b32 s46, 0")
    a("s_cselect_b64 s[10:11], s[4:5], s[10:11]")
    a("s_cselect_b64 s[12:13], s[6:7], s[12:13]")
    a("s_movk_i32 s47, 2752")
    a("s_cselect_b32 s47, 1024, s47")
    a("s_movk_i32 s82, 256")
    a("s_cselect_b32 s82, 192, s82")
    a("s_cmp_eq_u32 s41, 1")
    a("s_cselect_b64 s[28:29], s[12:13], s[10:11]")
    a(f"v_lshl_add_u32 v{t0}, s40, 2, v{t1}")
    a("s_mul_i32 s82, s22, s82")
    a(f"v_mul_u32_u24 v{t0}, s47, v{t0}")
    a(f"v_and_b32 v{t2}, 15, v1")
    a(f"v_add_u32 v{t0}, s82, v{t0}")
    a(f"v_lshlrev_b32 v{t1}, 1, v{t1}")
    a(f"v_xor_b32 v{t1}, v{t1}, v{t2}")
    a(f"v_xor_b32 v{t2}, 8, v{t1}")
    a(f"v_min_u32 v{t1}, s43, v{t1}")
    a(f"v_min_u32 v{t2}, s43, v{t2}")
    a(f"v_lshl_add_u32 v{VD}, v{t1}, 4, v{t0}")
    a(f"v_lshl_add_u32 v{VD+1}, v{t2}, 4, v{t0}")
    a("s_lshl_b32 s41, s41, 14")
    a("s_lshl_b32 s40, s40, 10")
    a("s_add_u32 s41, s41, s40")
    a("s_lshl_b32 s44, s47, 3")
    a("s_lshl_b32 s30, s47, 9")
    a("s_mov_b32 s31, 0x20000")
    a("s_mov_b32 s66, 0")
    a("s_mov_b32 s67, 0")
    a("s_mul_i32 s40, s49, s44")
    if opt.sdelay:
        a("s_bitcmp1_b32 s46, 0")
        a("s_cbranch_scc0 L_nosd")
        a("s_barrier")
        a.label("L_nosd")
    a(f"s_cmp_lg_u32 s46, {K_IDLE}")
    a("s_cbranch_scc1 L1L_w")
    if opt.epf:
        a("s_branch L_idl2")
        a.label("L_epf")
        a("s_getpc_b64 s[72:73]")
        a.label("L_pcref0")
        a(f"s_sub_u32 s72, s72, L_pcref0-{NAME}_kernel")
        a("s_subb_u32 s73, s73, 0")
        a("s_lshl2_add_u32 s43, s55, s45")
        a("s_and_b32 s43, s43, 7")
        a("s_mul_i32 s43, s43, 6400")
        a("v_lshl_add_u32 v36, v1, 7, s43")
        a(f"v_min_u32 v36, L_exit-{NAME}_kernel, v36")
        a("v_mov_b32 v37, s73")
        a("v_add_co_u32 v36, vcc, s72, v36")
        a("s_nop 1")
        a("v_addc_co_u32 v37, vcc, 0, v37, vcc")
        a("global_load_dword v250, v[36:37], off")
        if opt.xt:
            a("s_lshl2_add_u32 s43, s55, s45")
            a("s_bfe_u32 s72, s43, 0x30001")
            a("s_and_b32 s43, s43, 1")
            a("s_and_b32 s73, s2, 1")
            a("s_lshl3_add_u32 s73, s73, s72")
            a("s_lshl4_add_u32 s73, s43, s73")
            a("s_lshl_b32 s73, s73, 11")
            a("s_lshl1_add_u32 s72, s42, s72")
            a("v_and_b32 v38, 31, v1")
            a("v_lshlrev_b32 v38, 16, v38")
            a("v_lshrrev_b32 v39, 5, v1")
            a("v_lshl_add_u32 v38, v39, 10, v38")
            a("s_waitcnt lgkmcnt(0)")
            for k in range(opt.xt):
                a("s_add_u32 s72, s72, 1")
                a("s_and_b32 s72, s72, 7")
                a("s_lshl_b32 s74, s72, 7")
                a("s_add_u32 s74, s74, s73")
                a(f"buffer_load_dword v{249-k}, v38, s[24:27], s74 offen")
        a("s_waitcnt lgkmcnt(0)")
        a("s_branch L_nox")
        a.label("L_idl2")
    a("v_mov_b32 v14, 0")
    a("v_mov_b32 v15, 0")
    srd(a, 68, 76, 77, 256)
    p2_setup(a, opt)
    if opt.irel == 0:
        a("s_barrier")
    elif opt.irel == 1:
        a("s_waitcnt vmcnt(0)")
    a("s_branch L2W")
    p1_loader(a, opt)
    p2_worker(a, opt)
    if opt.al:
        a.l.append(f".p2align {opt.al}")
    a.label("L1_compw")
    for _ in range(opt.ph):
        a("s_nop 0")
    if opt.prio:
        a(f"s_setprio {opt.prio}")
    decode_rest(a, opt, "L_dc")
    p2_ids(a, opt)
    compute_prologue(a, opt)
    p1_compute(a, opt, "ffn8")
    p2_combine(a, opt)
    a.label("L1C_specs")
    a("s_mov_b32 s65, 2")
    dft32_consts(a)
    if opt.sdelay:
        a("s_barrier")
    a(f"s_cmp_eq_u32 s46, {K_S4G}")
    a("s_cbranch_scc1 L1C_spec4g")
    p1_compute(a, opt, "spec6")
    p1_compute(a, opt, "spec4g")
    p1_compute(a, opt, "ffn6")
    idle_compute(a, opt)
    a.label("L_exit")
    a("s_endpgm")


def page_pads(out, opt):
    import subprocess
    regions = {"ffn8": ("L1C_ffn8", "L2C"), "L2C": ("L2C", "L1C_specs"), "spec6": ("L1C_spec6", "L1C_spec4g"),
               "spec4g": ("L1C_spec4g", "L1C_ffn6"), "ffn6": ("L1C_ffn6", "L1C_idle")}
    NPK = 4

    def dispatch(pads):
        d = ["    s_mov_b64 exec, 0"]
        for kd, nm in ((0, "ffn8"), (K_SPEC, "spec6"), (K_6G, "ffn6"), (K_S4G, "spec4g")):
            lst = (pads.get(nm, []) + pads.get("L2C", []))
            assert len(lst) <= NPK, lst
            lst = lst + ["L_hopret"] * (NPK - len(lst))
            d += [f"    s_cmp_lg_u32 s46, {kd}", f"    s_cbranch_scc1 L_pp{kd}"]
            for w, p in enumerate(lst[:3]):
                d += [f"    s_cmp_eq_u32 s45, {w}", f"    s_cbranch_scc1 {p}"]
            d += [f"    s_branch {lst[3]}", f"L_pp{kd}:"]
        d += ["L_hopret:", "    s_mov_b64 exec, -1"]
        return "\n".join(d)

    lines = out.split("\n")
    pads = {}
    done = set()
    while True:
        txt = "\n".join(lines).replace("@@DISPATCH@@", dispatch(pads))
        open("pp.s", "w").write(txt)
        subprocess.check_call(["clang", "-x", "assembler", "-target", "amdgcn-amd-amdhsa", "-mcpu=gfx950", "-c", "pp.s", "-o", "pp.o"])
        dis = subprocess.check_output(["llvm-objdump", "-d", "--mcpu=gfx950", "pp.o"], text=True).split("\n")
        i0 = next(i for i, l in enumerate(dis) if l.endswith("<L1C_ffn8>:"))
        addrs = [int(l.split("// ")[1].split(":")[0], 16) for l in dis[i0:] if "// " in l]
        j0 = lines.index("L1C_ffn8:")
        idx = [j for j in range(j0, len(lines)) if lines[j].startswith("    ")]
        new = None
        for n in range(1, min(len(idx), len(addrs))):
            pg = addrs[n] >> 12
            if pg != addrs[n - 1] >> 12 and pg not in done:
                new = (idx[n], pg)
                break
        if new is None:
            return txt
        j, pg = new
        done.add(pg)
        for nm, (b, e) in regions.items():
            if lines.index(b + ":") < j < lines.index(e + ":"):
                pads.setdefault(nm, []).append(f"L_pg{pg}")
                lines[j:j] = [f"L_pg{pg}:", "    s_cbranch_execz L_hopret"]


def main():
    ap = argparse.ArgumentParser()
    ap.add_argument("-o", default=f"cdna_kernels/{NAME}.s")
    ap.add_argument("--stamps", action="store_true")
    ap.add_argument("--fine", action="store_true")
    ap.add_argument("--fine2", action="store_true")
    ap.add_argument("--q", type=int, default=8)
    ap.add_argument("--rotmask", type=int, default=7)
    ap.add_argument("--hr", type=int, default=7)
    ap.add_argument("--la", type=int, default=5)
    ap.add_argument("--psleep", type=int, default=4)
    ap.add_argument("--tail", type=int, default=0)
    ap.add_argument("--fpg", type=int, default=6)
    ap.add_argument("--codepf", type=int, default=0)
    ap.add_argument("--pad", type=int, default=-1)
    ap.add_argument("--padrole", default="C")
    ap.add_argument("--prio", type=int, default=0)
    ap.add_argument("--bpos", type=int, default=3)
    ap.add_argument("--nb", type=int, default=5)
    ap.add_argument("--pairord", type=int, default=0)
    ap.add_argument("--qmul", type=int, default=0)
    ap.add_argument("--q3", type=int, default=2)
    ap.add_argument("--al", type=int, default=12)
    ap.add_argument("--ph", type=int, default=0)
    ap.add_argument("--pp", type=int, default=0)
    ap.add_argument("--alw", type=int, default=1)
    ap.add_argument("--rt3", type=int, default=0)
    ap.add_argument("--rowtouch", type=int, default=0)
    ap.add_argument("--cbx", type=int, default=0)
    ap.add_argument("--xfl", default="")
    ap.add_argument("--sw3", type=int, default=0)
    ap.add_argument("--goit", type=int, default=7)
    ap.add_argument("--gosleep", type=int, default=100)
    ap.add_argument("--pirot", type=int, default=0)
    ap.add_argument("--xt", type=int, default=1)
    ap.add_argument("--skip3", type=int, default=1)
    ap.add_argument("--map84", type=int, default=0)
    ap.add_argument("--pre", type=int, default=0)
    ap.add_argument("--rl", type=int, default=8)
    ap.add_argument("--irel", type=int, default=0)
    ap.add_argument("--cmid", type=int, default=1)
    ap.add_argument("--epf", type=int, default=1)
    ap.add_argument("--sdelay", type=int, default=0)
    ap.add_argument("--mord", type=int, default=2)
    ap.add_argument("--tm", type=int, default=0)
    ap.add_argument("--r3", type=int, default=1)
    ap.add_argument("--rmul", type=int, default=0)
    ap.add_argument("--codepf2", type=int, default=0)
    ap.add_argument("--tlb", type=int, default=0)
    ap.add_argument("--padx", type=int, default=-1)
    ap.add_argument("--zlate", type=int, default=1)
    ap.add_argument("--mir", type=int, default=1)
    ap.add_argument("--zbar", type=int, default=20)
    ap.add_argument("--lateb9", type=int, default=1)
    ap.add_argument("--zsleep", type=int, default=4)
    ap.add_argument("--noz", action="store_true")
    ap.add_argument("--ofl", default="")
    ap.add_argument("--ssleep", type=int, default=0)
    ap.add_argument("--split0", type=int, default=1)
    ap.add_argument("--fmask", default="3")
    ap.add_argument("--cmask", type=int, default=1)
    ap.add_argument("--half", type=int, default=0)
    ap.add_argument("--hp", type=int, default=6)
    ap.add_argument("--wpoll", type=int, default=0)
    ap.add_argument("--spr", type=int, default=6)
    ap.add_argument("--fine4", action="store_true")
    ap.add_argument("--nost", action="store_true")
    ap.add_argument("--idledelay", type=int, default=0)
    ap.add_argument("--xrot", type=int, default=1)
    ap.add_argument("--tcb", type=int, default=2)
    ap.add_argument("--wtouch", type=int, default=1)
    ap.add_argument("--pf", type=int, default=0)
    ap.add_argument("--pq", type=int, default=1)
    ap.add_argument("--idlego", type=int, default=0)
    ap.add_argument("--nc", type=int, default=6)
    ap.add_argument("--stag", type=int, default=1)
    ap.add_argument("--thrz", type=int, default=0)
    ap.add_argument("--pace", type=int, default=0)
    ap.add_argument("--thr", type=int, default=0)
    ap.add_argument("--thr2", type=int, default=4)
    ap.add_argument("--early", type=int, default=0)
    ap.add_argument("--nowait", action="store_true")
    ap.add_argument("--fine3", action="store_true")
    ap.add_argument("--nomfma", action="store_true")
    ap.add_argument("--noidle", action="store_true")
    ap.add_argument("--fsleep", type=int, default=0)
    ap.add_argument("--noreads", action="store_true")
    ap.add_argument("--npk", type=int, default=0)
    ap.add_argument("--lr", type=int, default=3)
    ap.add_argument("--hs", type=int, default=87)
    ap.add_argument("--zpad", type=int, default=128)
    ap.add_argument("--foff", type=lambda x: int(x, 0), default=0x800000)
    opt = ap.parse_args()
    global HS, H_SIZE, ZR_B, Z_SIZE, F_OFF, F_SIZE
    HS = opt.hs
    H_SIZE = 64 * HS * 1024
    assert H_SIZE <= Z_OFF
    ZR_B = 16 * EP * 16 + opt.zpad
    Z_SIZE = 32 * ZR_B
    F_OFF = opt.foff
    F_SIZE = 32 * 128 * opt.rl
    global NPK
    NPK = opt.npk
    global FSLEEP
    FSLEEP = opt.fsleep
    hdr = open(f"cdna_kernels/{NAME}.s.ref").read().split("; Override launch")[0]
    out = hdr
    out += f"; @launch grid=(256,1,1) block=(512,1,1) lds={LDS_SIZE}\n"
    out += DOC
    out += '.amdgcn_target "amdgcn-amd-amdhsa--gfx950"\n.text\n'
    a = Asm()
    kernel(a, opt)
    nm = NAME + "_kernel"
    out += f".globl {nm}\n.p2align 8\n.type {nm},@function\n" + a.text()
    out += f""".section .rodata,"a"
.p2align 6
.amdhsa_kernel {nm}
  .amdhsa_next_free_vgpr 256
  .amdhsa_next_free_sgpr 102
  .amdhsa_accum_offset 256
  .amdhsa_group_segment_fixed_size 0
  .amdhsa_kernarg_size 104
  .amdhsa_user_sgpr_count 2
  .amdhsa_user_sgpr_kernarg_segment_ptr 1
  .amdhsa_system_sgpr_workgroup_id_x 1
.end_amdhsa_kernel
"""
    if opt.pp:
        out = page_pads(out, opt)
    open(opt.o, "w").write(out)


if __name__ == "__main__":
    main()
```

```python
import struct, sys, argparse, re

NAME = "gated_mix__spectral_fnet__geglu_ffn__prompt"
H_OFF = 0
HS = 87
H_SIZE = 64 * HS * 1024
Z_OFF = 0x580000
EP = 264
ZR_B = 16 * EP * 16 + 128
Z_SIZE = 32 * ZR_B
G_OFF = 0x7A0000
G_SIZE = 2048 * 4
F_OFF = 0x7B0000
F_SIZE = 32768
T_OFF = 0xA00000
MF16 = "v_mfma_f32_16x16x32_bf16"
MF32 = "v_mfma_f32_32x32x16_bf16"


DOC = """; ---------------------------------------------------------------------------------------------
;    spectral groups: hidden DFT a,b = x Cd, x Sd for e = 0..256 (Hermitian half), then the 32-point
; ---------------------------------------------------------------------------------------------
"""


def f2u(f):
    return struct.unpack("<I", struct.pack("<f", f))[0]


class Asm:
    def __init__(self):
        self.l = []
        self.ds = []
        self.vm = []
        self.n = 0
        self.ub = 0

    def __call__(self, s):
        if s.startswith("ds_"):
            if self.ub >= 15:
                self("s_waitcnt lgkmcnt(10)")
            self.ub += 1
        m = re.search(r"lgkmcnt\((\d+)\)", s)
        if m:
            self.ub = min(self.ub, int(m.group(1)))
        self.l.append("    " + s)
        self.n += 1

    def label(self, s):
        self.l.append(s + ":")

    def dsop(self, s, tag):
        self(s)
        self.ds.append(tag)

    def dswait(self, tag):
        idx = max(i for i, t in enumerate(self.ds) if t == tag)
        n = len(self.ds) - 1 - idx
        assert n <= 15, n
        self(f"s_waitcnt lgkmcnt({n})")

    def vmop(self, s, tag):
        self(s)
        self.vm.append(tag)

    def vmwait(self, tag):
        idx = max(i for i, t in enumerate(self.vm) if t == tag)
        n = len(self.vm) - 1 - idx
        assert n <= 63, n
        self(f"s_waitcnt vmcnt({n})")

    def text(self):
        return "\n".join(self.l) + "\n"


def vr(b, n):
    return f"v[{b}:{b+n-1}]"


def srd(a, d, lo, hi, size, add=0):
    if add:
        a(f"s_add_u32 s{d}, s{lo}, {add:#x}")
        a(f"s_addc_u32 s{d+1}, s{hi}, 0")
    else:
        a(f"s_mov_b32 s{d}, s{lo}")
        a(f"s_mov_b32 s{d+1}, s{hi}")
    a(f"s_mov_b32 s{d+2}, {size:#x}")
    a(f"s_mov_b32 s{d+3}, 0x20000")


def stamp(a, opt):
    if not opt.stamps:
        return
    a("s_memrealtime s[90:91]")
    a("s_memtime s[86:87]")
    a("s_mov_b32 s88, m0")
    a("s_waitcnt lgkmcnt(0)")
    a("s_mov_b32 m0, s89")
    a("s_add_u32 s89, s89, 1")
    a("v_writelane_b32 v255, s90, m0")
    a("v_writelane_b32 v253, s86, m0")
    a("s_mov_b32 m0, s88")


def stamp_flush(a, opt, role):
    if not opt.stamps:
        return
    if opt.pad >= 0:
        if role == opt.padrole:
            a("s_cmp_lg_u32 s46, 0")
            a("s_cbranch_scc1 Lpad_end")
            if opt.padx >= 0:
                a("s_and_b32 s92, s2, 7")
                a(f"s_cmp_lg_u32 s92, {opt.padx}")
                a("s_cbranch_scc1 Lpad_end")
            a("s_nop 4")
            a(f"v_readlane_b32 s92, v255, {opt.pad}")
            a("s_nop 4")
            a("s_add_u32 s92, s92, 4000")
            a.label("Lpad")
            a("s_memrealtime s[90:91]")
            a("s_waitcnt lgkmcnt(0)")
            a("s_sub_u32 s93, s92, s90")
            a("s_cmp_gt_i32 s93, 0")
            a("s_cbranch_scc1 Lpad")
            a.label("Lpad_end")
        return
    a("s_waitcnt vmcnt(0)")
    stamp(a, opt)
    srd(a, 92, 78, 79, 0x200000, T_OFF)
    a("s_lshl_b32 s96, s2, 3")
    a("s_add_u32 s96, s96, s20")
    a("s_lshl_b32 s96, s96, 8")
    a("v_lshlrev_b32 v254, 2, v1")
    a("buffer_store_dword v255, v254, s[92:95], s96 offen")
    a("s_add_u32 s96, s96, 0x100000")
    a("buffer_store_dword v253, v254, s[92:95], s96 offen")


C1 = -2.0 * 0.7978845608028654 * 1.4426950408889634
C2 = C1 * 0.044715
NB = 3
SSZ = 49152
FLG = 78 * 2048
RH = FLG + 256
RZ = FLG + 64
GW_LDS = FLG + 512
LDS_SIZE = 163840
assert GW_LDS + 2048 <= LDS_SIZE
K_FFN, K_SPEC, K_6G, K_IDLE, K_S4G = 0, 1, 2, 4, 3

L_VD, L_VX, L_T0, L_T1, L_T2, L_VF, L_VA = 2, 10, 16, 17, 18, 20, 21


FSLEEP = 0


def free_wait(a, lab, val):
    if FSLEEP:
        a(f"s_branch {lab}_c")
    a.label(lab)
    if FSLEEP:
        a(f"s_sleep {FSLEEP}")
        a.label(lab + "_c")
    a(f"ds_read_b32 v{L_T0}, v{L_VA}")
    a("s_waitcnt lgkmcnt(0)")
    a(f"v_cmp_ge_u32 vcc, {val}, v{L_T0}")
    a(f"s_cbranch_vccnz {lab}")


def p2_ids(a, opt):
    if opt.map84:
        a("s_lshr_b32 s52, s2, 5")
        a("s_and_b32 s53, s55, 3")
        a("s_lshl1_add_u32 s56, s53, s52")
        a("s_lshl_b32 s53, s53, 2")
        a("s_bitcmp1_b32 s2, 0")
        a("s_mov_b32 s51, 0x7610")
        a("s_cselect_b32 s51, 0x5432, s51")
        a("s_lshr_b32 s51, s51, s53")
        a("s_and_b32 s51, s51, 7")
        a("s_bfe_u32 s54, s2, 0x20001")
        a("s_and_b32 s53, s52, 3")
        a("s_lshl2_add_u32 s54, s54, s53")
        a("s_add_u32 s54, s54, 1")
        a("s_sub_u32 s53, 32, s54")
        a("s_cmp_eq_u32 s53, 16")
        a("s_cselect_b32 s53, 0, s53")
        a("s_cmp_ge_u32 s52, 4")
        a("s_cselect_b32 s54, s53, s54")
        return
    a("s_lshr_b32 s52, s2, 6")
    a("s_mov_b32 s51, s55")
    if opt.sw3:
        a("s_add_u32 s53, s52, 4")
        a("s_cmp_eq_u32 s55, 3")
        a("s_cselect_b32 s51, s53, s51")
        a("s_cselect_b32 s52, 3, s52")
        a("s_and_b32 s53, s55, 3")
        a("s_cmp_ge_u32 s2, 224")
        a("s_cselect_b32 s51, 3, s51")
        a("s_cselect_b32 s52, s53, s52")
    a("s_lshl1_add_u32 s56, s52, s51")
    a("s_and_b32 s54, s2, 7")
    a("s_and_b32 s53, s52, 1")
    a("s_lshl1_add_u32 s54, s54, s53")
    a("s_add_u32 s54, s54, 1")
    a("s_sub_u32 s53, 32, s54")
    a("s_cmp_eq_u32 s53, 16")
    a("s_cselect_b32 s53, 0, s53")
    a("s_cmp_ge_u32 s52, 2")
    a("s_cselect_b32 s54, s53, s54")


def p2_setup(a, opt):
    t0, t1, t2 = L_T0, L_T1, L_T2
    VW0, VW1 = 28, 29
    VH0, VH1 = 4, 5
    VRH = 7
    VRB = 22
    p2_ids(a, opt)
    a(f"s_cmp_eq_u32 s46, {K_IDLE}")
    a("s_cselect_b32 s83, 1, 0")
    if opt.xrot:
        a("s_add_u32 s56, s56, s2")
    a("s_and_b32 s56, s56, 7")
    a("s_mul_i32 s56, s56, 5")
    a("s_lshr_b32 s56, s56, 2")
    a(f"v_bfe_u32 v{t0}, v1, 4, 1")
    a(f"v_lshlrev_b32 v{t0}, 2, v{t0}")
    a(f"v_and_b32 v{t1}, 7, v1")
    a(f"v_xor_b32 v{t0}, v{t0}, v{t1}")
    a(f"v_lshrrev_b32 v{t1}, 3, v1")
    a(f"v_lshlrev_b32 v{t1}, 10, v{t1}")
    a(f"v_lshl_add_u32 v{VW0}, v{t0}, 4, v{t1}")
    a("s_lshl_b32 s42, s51, 7")
    a("s_lshl_b32 s43, s45, 14")
    a("s_add_u32 s42, s42, s43")
    a(f"v_add_u32 v{VW0}, s42, v{VW0}")
    a(f"v_add_u32 v{VW1}, 0x2000, v{VW0}")
    a("s_lshl_b32 s59, s45, 11")
    a("s_cmp_lt_u32 s45, 2")
    a("s_cselect_b32 s57, 11, 10")
    a(f"v_lshrrev_b32 v{t2}, 5, v1")
    a(f"v_bfe_u32 v{t0}, v1, 2, 2")
    a(f"v_lshl_add_u32 v{t0}, v{t2}, 3, v{t0}")
    a(f"v_lshlrev_b32 v{t0}, 7, v{t0}")
    a(f"v_bfe_u32 v{t1}, v1, 1, 1")
    a(f"v_lshl_add_u32 v{t0}, v{t1}, 3, v{t0}")
    a(f"v_and_b32 v{t1}, 1, v1")
    a(f"v_lshl_add_u32 v{t0}, v{t1}, 5, v{t0}")
    a(f"v_bfe_u32 v{t1}, v1, 4, 1")
    a(f"v_lshl_add_u32 v{t0}, v{t1}, 4, v{t0}")
    a(f"v_bfe_u32 v{t1}, v1, 3, 1")
    a(f"v_lshl_add_u32 v{t0}, v{t1}, 6, v{t0}")
    a(f"v_add_u32 v{VRB}, s59, v{t0}")
    a(f"v_xor_b32 v{VRB+1}, 64, v{VRB}")
    for k in (1, 2):
        a(f"v_add_u32 v{VRB+2*k}, {k*65536}, v{VRB}")
        a(f"v_add_u32 v{VRB+2*k+1}, {k*65536}, v{VRB+1}")
    a(f"v_lshlrev_b32 v{t0}, 4, v1")
    a(f"s_mul_i32 s42, s54, {HS*1024}")
    a("s_lshl_b32 s43, s45, 10")
    a("s_add_u32 s42, s42, s43")
    a(f"v_add_u32 v{VH0}, s42, v{t0}")
    a(f"v_add_u32 v{VH1}, {32*HS*1024}, v{VH0}")
    srd(a, 32, 78, 79, H_SIZE, H_OFF)
    a("v_cmp_gt_u32 vcc, 11, v1")
    a(f"v_subrev_u32 v{t0}, 11, v1")
    a(f"v_mov_b32 v{t1}, s57")
    a(f"v_cndmask_b32 v{t0}, v{t0}, v1, vcc")
    a(f"v_cndmask_b32 v{t1}, v{t1}, 11, vcc")
    a(f"v_cndmask_b32 v6, 2, {1 if opt.half else 2}, vcc")
    a(f"v_add_u32 v{t0}, s56, v{t0}")
    a(f"v_sub_u32 v{t1}, v{t0}, v{t1}")
    a(f"v_min_u32 v{t0}, v{t0}, v{t1}")
    a(f"v_min_u32 v{t0}, 10, v{t0}")
    a(f"v_lshlrev_b32 v{t0}, 2, v{t0}")
    a(f"v_add_u32 v{VRH}, {RH}, v{t0}")
    srd(a, 36, 78, 79, F_SIZE, F_OFF)
    a(f"s_mul_i32 s62, s54, {opt.rl}")
    a(f"s_and_b32 s43, s{2 if opt.map84 else 51}, {opt.cmask}")
    a("s_add_u32 s62, s62, s43")
    a("s_lshl_b32 s62, s62, 7")
    a("v_lshlrev_b32 v8, 4, v1")
    a("s_or_b32 s61, s45, s83")
    a("s_mov_b32 s60, 0")


def p1_loader(a, opt):
    VD, VX, t0 = L_VD, L_VX, L_T0
    Q = opt.q
    a.label("L1L_loop")
    a("s_lshl_b32 s47, s49, 7")
    a("s_add_u32 m0, s48, s67")
    a("s_mul_i32 s40, s49, s44")
    n = 0

    def after():
        nonlocal n
        n += 1
        if n == Q:
            a("s_cmp_eq_u32 s66, 0")
            a("s_cbranch_scc1 L1L_nobar")
            a(f"s_waitcnt vmcnt({Q})")
            if opt.fine:
                stamp(a, opt)
            a("s_barrier")
            a.label("L1L_nobar")

    for i in range(4):
        a(f"buffer_load_dwordx4 v{VX+i}, s[24:27], s47 offen {opt.xfl} lds")
        if i < 3:
            a("s_add_u32 m0, m0, 1024")
            a("s_nop 0")
        else:
            a.label("L1L_w")
            a("s_add_u32 m0, s41, s67")
            a("s_lshl_b32 s40, s40, 3")
        if opt.split0 and i == opt.split0 - 1:
            a("s_cmp_lg_u32 s66, 1")
            a("s_cbranch_scc1 L1L_nosp")
            a(f"s_waitcnt vmcnt({4 + opt.split0})")
            a("s_barrier")
            a.label("L1L_nosp")
        after()
    for u in range(8):
        a(f"buffer_load_dwordx4 v{VD+(u&1)}, s[28:31], s40 offen lds")
        if u < 7:
            a("s_add_u32 m0, m0, 2048")
            a("s_add_u32 s40, s40, s44")
        after()
    a("s_cmp_lg_u32 s66, 0")
    a("s_cbranch_scc1 L1L_next")
    a("v_mov_b32 v14, 0")
    a("v_mov_b32 v15, 0")
    srd(a, 68, 76, 77, 256)
    a("s_cmp_eq_u32 s66, s80")
    a("s_cbranch_scc0 L1L_next")
    srd(a, 36, 16, 17, 1024)
    a(f"s_mov_b32 m0, {GW_LDS}")
    a(f"v_lshlrev_b32 v{t0}, 4, v1")
    a(f"buffer_load_dwordx4 v{t0}, s[36:39], 0 offen lds")
    srd(a, 36, 4, 5, 1024, 256 * 1024)
    a(f"s_mov_b32 m0, {GW_LDS+1024}")
    a("s_nop 0")
    a(f"buffer_load_dwordx4 v{t0}, s[36:39], 0 offen lds")
    a.label("L1L_next")
    a("s_cmp_lg_u32 s66, 0")
    a("s_cbranch_scc1 L1L_next3")
    p2_setup(a, opt)
    a.label("L1L_next3")
    if opt.pairord:
        a("s_xor_b32 s49, s49, s50")
    a("s_add_u32 s49, s49, 1")
    a("s_and_b32 s49, s49, 7")
    if opt.pairord:
        a("s_xor_b32 s49, s49, s50")
    a(f"s_add_u32 s67, s67, {SSZ}")
    a(f"s_cmp_eq_u32 s67, {3*SSZ}")
    a("s_cselect_b32 s67, 0, s67")
    a("s_add_u32 s66, s66, 1")
    a("s_cmp_lt_u32 s66, 8")
    a("s_cbranch_scc1 L1L_loop")


NI_ = 22


def p2_worker(a, opt):
    HR = opt.hr
    LA = opt.la
    t0, t1, t2 = L_T0, L_T1, L_T2
    VW0, VW1 = 28, 29
    VH0, VH1 = 4, 5
    VRH = 7
    VRB = 22
    WF, ACB, HF = 32, 64, 128
    WR = 4
    assert HF + 8 * HR <= 252 and LA < HR
    a.vm, a.ds = [], []
    a.label("L2W")
    srd(a, 28, 14, 15, 1376 * 1024)
    rows = [18, 18] + list(range(12, 18)) + [18, 0, 1, 19] + list(range(2, 12))
    OPT = 11
    clsC = [i for i in range(NI_) if rows[i] < 6]
    clsD = [i for i in range(NI_) if 6 <= rows[i] < 12]
    NI = 22
    assert len(rows) == NI

    def prod(i, dst, sh):
        if i < 11:
            a(f"s_add_u32 s{dst}, s56, {i}")
            a(f"s_sub_u32 s43, s{dst}, 11")
        else:
            a(f"s_add_u32 s{dst}, s56, {i-11}")
            a(f"s_sub_u32 s43, s{dst}, s57")
        a(f"s_cselect_b32 s{dst}, s{dst}, s43")
        a(f"s_lshl_b32 s{dst}, s{dst}, {sh+1}")
        if i >= 11:
            a(f"s_add_u32 s{dst}, s{dst}, {1 << sh}")

    def wload(i):
        a(f"s_add_u32 m0, s59, {rows[i]*8192}")
        prod(i, 40, 16)
        a.vmop(f"buffer_load_dwordx4 v{VW0}, s[28:31], s40 offen lds", ("w", i))
        a("s_add_u32 m0, m0, 1024")
        a("s_nop 0")
        a.vmop(f"buffer_load_dwordx4 v{VW1}, s[28:31], s40 offen lds", ("w", i))

    def wreads(i):
        f = WF + 8 * (i % WR)
        b = VRB + 2 * (rows[i] // 8)
        o = (rows[i] % 8) * 8192
        for ln in range(2):
            a.dsop(f"ds_read_b64_tr_b16 {vr(f+4*ln,2)}, v{b+ln} offset:{o}", ("r", i))
            a.dsop(f"ds_read_b64_tr_b16 {vr(f+4*ln+2,2)}, v{b+ln} offset:{o+512}", ("r", i))

    if opt.rowtouch:
        a("s_cmp_eq_u32 s83, 0")
        a("s_cbranch_scc1 L2W_nort")
        a("s_lshl2_add_u32 s42, s55, s45")
        a("s_and_b32 s42, s42, 15")
        a("s_and_b32 s43, s2, 7")
        a("s_mul_i32 s43, s43, 22")
        a("s_add_u32 s42, s42, s43")
        a(f"v_lshlrev_b32 v{t0}, 7, v1")
        if opt.sw3 and opt.skip3:
            a("s_mov_b32 exec_lo, 0xf7f7f7f7")
            a("s_mov_b32 exec_hi, 0xf7f7f7f7")
        for k in range(11):
            a("s_sub_u32 s43, s42, 176")
            a("s_cselect_b32 s42, s42, s43")
            a("s_lshl_b32 s43, s42, 13")
            a(f"buffer_load_dword v250, v{t0}, s[28:31], s43 offen")
            a("s_add_u32 s42, s42, 16")
        a("s_mov_b64 exec, -1")
        a.label("L2W_nort")
    wload(0)
    for i in range(2, 2 + opt.nb):
        wload(i)
    a(f"s_waitcnt vmcnt({len(a.vm)})")
    stamp(a, opt)
    a("s_cmp_lg_u32 s83, 0")
    a("s_cbranch_scc1 L2W_nob6")
    a("s_barrier")
    a("s_cmp_lg_u32 s45, 0")
    a("s_cbranch_scc1 L2W_nob6")
    a("buffer_load_dword v14, v15, s[68:71], 0 offen sc1")
    a.label("L2W_nob6")
    ngo = len(a.vm)
    a.vmwait(("w", 0))
    wreads(0)
    a("s_waitcnt lgkmcnt(0)")
    wload(1)
    for i in range(2 + opt.nb, 8):
        wload(i)
    if opt.tail == 2:
        a("s_and_b32 s42, s46, 5")
        a("s_cbranch_scc1 L2W_t2")
        a("s_barrier")
        a.label("L2W_t2")
    a("s_bitcmp1_b32 s46, 0")
    a("s_cbranch_scc0 L2W_c")
    a("s_barrier")
    if not opt.cmid:
        a("s_barrier")
        a("s_barrier")
    a.label("L2W_c")
    for i in clsC[:opt.nc]:
        wload(i)
    a("s_or_b32 s42, s45, s83")
    a("s_cbranch_scc1 L2W_gook")
    a(f"s_waitcnt vmcnt({len(a.vm) - ngo})")
    a("v_cmp_le_u32 vcc, 32, v14")
    a("s_cbranch_vccnz L2W_gook")
    a.label("L2W_go")
    a("s_sleep 4")
    a("buffer_load_dword v14, v15, s[68:71], 0 offen sc1")
    a("s_waitcnt vmcnt(0)")
    a("v_cmp_gt_u32 vcc, 32, v14")
    a("s_cbranch_vccnz L2W_go")
    a.label("L2W_gook")
    assert opt.cmid
    if opt.cmid:
        a("s_cmp_lg_u32 s83, 0")
        a("s_cbranch_scc1 L2W_nob7")
        a("s_barrier")
        a("s_bitcmp1_b32 s46, 0")
        a("s_cbranch_scc0 L2W_nob7")
        a("s_barrier")
    else:
        a("s_and_b32 s42, s46, 5")
        a("s_cbranch_scc1 L2W_nob7")
        a("s_barrier")
    a.label("L2W_nob7")
    a.vmwait(("w", 1))
    wreads(1)
    a("s_waitcnt lgkmcnt(0)")
    for i in [8] + clsC[opt.nc:] + clsD:
        wload(i)
        if opt.thr2:
            a("s_and_b32 s42, s46, 5")
            a(f"s_cbranch_scc1 L2W_nt{i}")
            a(f"s_waitcnt vmcnt({opt.thr2})")
            a.label(f"L2W_nt{i}")
    a("s_cmp_ge_u32 s45, 2")
    a("s_cbranch_scc1 L2W_no19")
    wload(OPT)
    a.label("L2W_no19")
    a(f"s_cmp_lg_u32 s46, {K_IDLE}")
    a("s_cbranch_scc1 L2W_nopf")
    a("s_sub_u32 s42, s55, 4")
    a("s_lshl_b32 s42, s42, 2")
    a("s_add_u32 s42, s42, s45")
    if opt.xrot:
        a("s_lshl_b32 s43, s2, 1")
        a("s_add_u32 s42, s42, s43")
        a("s_and_b32 s42, s42, 15")
    a(f"s_mul_i32 s42, s42, {96*1024}")
    a(f"v_lshrrev_b32 v{t0}, 1, v1")
    a(f"v_lshlrev_b32 v{t0}, 10, v{t0}")
    a(f"v_and_b32 v{t1}, 1, v1")
    a(f"v_lshl_add_u32 v{t0}, v{t1}, 7, v{t0}")
    for k in range(0 if (opt.rowtouch or opt.map84) else 3):
        for c in range(opt.tcb):
            a(f"buffer_load_dword v250, v{t0}, s[28:31], s42 offen offset:{256*c + (512 if opt.cbx & 4 else 0)}")
        a("s_add_u32 s42, s42, 0x8000")
    for rep in range(opt.rt3):
        a("s_waitcnt vmcnt(0)")
        a(f"s_sub_u32 s43, s42, {3*0x8000}")
        a(f"v_lshlrev_b32 v{t0}, 10, v1")
        a(f"buffer_load_dword v250, v{t0}, s[28:31], s43 offen offset:384 sc1")
        a("s_add_u32 s43, s43, 0x8000")
        a(f"buffer_load_dword v250, v{t0}, s[28:31], s43 offen offset:384 sc1")
    if opt.codepf2:
        a("s_waitcnt vmcnt(0)")
        a("s_getpc_b64 s[72:73]")
        a.label("L_pcref2")
        a(f"s_sub_u32 s72, s72, L_pcref2-{NAME}_kernel")
        a("s_subb_u32 s73, s73, 0")
        a(f"s_mov_b32 s74, L_exit-{NAME}_kernel")
        a("s_mov_b32 s75, 0x20000")
        a("s_lshl2_add_u32 s42, s55, s45")
        a("s_and_b32 s42, s42, 7")
        a("s_mul_i32 s42, s42, 6400")
        a(f"v_lshlrev_b32 v{t0}, 7, v1")
        a(f"buffer_load_dword v250, v{t0}, s[72:75], s42 offen sc1")
    a("s_waitcnt vmcnt(0)")
    a("s_barrier")
    a.label("L2W_nopf")
    stamp(a, opt)
    a.vm = []

    spins = []

    def issue1(i):
        h = HF + 8 * (i % HR)
        a(f"s_bitcmp1_b32 s60, {i}")
        a(f"s_cbranch_scc0 L2W_i{i}_spin")
        a.label(f"L2W_i{i}_ok")
        spins.append(i)
        prod(i, 40, 12)
        a.vmop(f"buffer_load_dwordx4 {vr(h,4)}, v{VH0}, s[32:35], s40 offen sc1", ("h", i))

    def issue2(i):
        h = HF + 8 * (i % HR)
        a.vmop(f"buffer_load_dwordx4 {vr(h+4,4)}, v{VH1}, s[32:35], s40 offen sc1", ("h", i))

    if opt.alw:
        a("s_branch L2W_al")
        a.l.append(".p2align 12")
        a.label("L2W_al")
    a("s_waitcnt vmcnt(0)")
    a(f"s_mov_b32 m0, {RH}")
    wreads(2)
    for i in range(LA):
        issue1(i)
        issue2(i)
        if i == 0:
            stamp(a, opt)
    TM = opt.tm
    for i in range(NI - TM):
        a.vmwait(("h", i))
        if i == 0:
            stamp(a, opt)
        if i >= 2:
            a.dswait(("r", i))
        f = WF + 8 * (i % WR)
        h = HF + 8 * (i % HR)
        for L in range(4):
            lt, ln = L & 1, L >> 1
            acc = vr(ACB + 16 * L, 16)
            if i == OPT:
                a("s_cmp_ge_u32 s45, 2")
                a(f"s_cbranch_scc1 L2W_skip{L}")
            a(f"{MF32} {acc}, {vr(f+4*ln,4)}, {vr(h+4*lt,4)}, {'0' if i == 0 else acc}")
            if i == OPT:
                a.label(f"L2W_skip{L}")
            if L == 0 and i + 3 < NI:
                wreads(i + 3)
            if L == 1 and i + LA < NI:
                issue1(i + LA)
            if L == 2 and i + LA < NI:
                issue2(i + LA)
                if i + LA == opt.zbar:
                    a("s_barrier")
        if opt.fine2 and i % 4 == 3:
            stamp(a, opt)
    assert TM <= 4 and TM <= LA
    if TM == 4:
        wreads(NI - 1)
    a(f"v_lshlrev_b32 v{t0}, 4, v1")
    a(f"v_add_u32 v{t0}, s59, v{t0}")

    def pw(L):
        for q in range(4):
            p = 4 * L + q
            a(f"ds_write_b128 v{t0}, {vr(ACB+16*L+4*q,4)} offset:{(p>>1)*8192 + (p&1)*1024}")

    for L in range(4):
        lt, ln = L & 1, L >> 1
        acc = vr(ACB + 16 * L, 16)
        for k, i in enumerate(range(NI - TM, NI)):
            if L == 0:
                a.vmwait(("h", i))
                a.dswait(("r", i))
            f = WF + 8 * (i % WR)
            h = HF + 8 * (i % HR)
            a(f"{MF32} {acc}, {vr(f+4*ln,4)}, {vr(h+4*lt,4)}, {acc}")
            if L > 0 and k == 1:
                a("s_nop 9")
                pw(L - 1)
    stamp(a, opt)
    a("s_nop 7")
    a("s_nop 3")
    if TM >= 2:
        pw(3)
    else:
        for L in range(4):
            pw(L)
    a("s_waitcnt lgkmcnt(0)")
    a("s_barrier")
    stamp_flush(a, opt, "L")
    a("s_endpgm")
    for i in spins:
        a.label(f"L2W_i{i}_spin")
        a(f"ds_read2_b32 {vr(t0,2)}, v{VRH} offset0:0 offset1:16")
        a("s_waitcnt lgkmcnt(0)")
        a(f"v_min_u32 v{t0}, v{t0}, v{t1}")
        a(f"v_cmp_ge_u32 vcc, v{t0}, v6")
        a("s_mov_b32 s60, vcc_lo")
        a(f"s_bitcmp1_b32 s60, {i}")
        a(f"s_cbranch_scc1 L2W_i{i}_ok")
        if opt.wpoll and i < LA:
            a("s_cmp_lg_u32 s61, 0")
            a(f"s_cbranch_scc1 L2W_i{i}_spin")
            a("s_mov_b64 exec, 0xff")
            a("buffer_load_dwordx4 v8, s[36:39], s62 offen sc1 lds")
            a("s_mov_b64 exec, -1")
            a("s_waitcnt vmcnt(0)")
        if opt.ssleep:
            a(f"s_sleep {opt.ssleep}")
        a(f"s_branch L2W_i{i}_spin")


C_VA, C_VX, C_VB, C_VST, C_VGW, C_VFD = 2, 6, 10, 14, 15, 19
C_T0, C_T1, C_T2 = 20, 21, 22
C_K1, C_K2 = 24, 26
C_WF, C_XF, C_ACC, C_TT, C_TT2, C_CF, C_SF = 28, 52, 116, 88, 100, 212, 220


def dft32_consts(a):
    t0, t1, t2 = C_T0, C_T1, C_T2
    tc, ts = 96, 112
    a(f"v_and_b32 v{t0}, 15, v1")
    a(f"v_cvt_f32_u32 v{t0}, v{t0}")
    a(f"v_mul_f32 v{t0}, {f2u(1.0/32):#x}, v{t0}")
    a(f"v_lshrrev_b32 v{t1}, 4, v1")
    a(f"v_cvt_f32_u32 v{t1}, v{t1}")
    a(f"v_mul_f32 v{t1}, 4.0, v{t1}")
    for rho in range(2):
        if rho:
            a(f"v_add_f32 v{t0}, 0.5, v{t0}")
        a(f"v_mul_f32 v{t2}, v{t0}, v{t1}")
        for sg in range(8):
            s1c = 16 * (sg >> 2) + (sg & 3)
            a(f"v_fmamk_f32 v{tc+8*rho+sg}, v{t0}, {f2u(float(s1c)):#x}, v{t2}")
    for i in range(16):
        a(f"v_fract_f32 v{tc+i}, v{tc+i}")
    for i in range(16):
        a(f"v_sin_f32 v{ts+i}, v{tc+i}")
    for i in range(16):
        a(f"v_cos_f32 v{tc+i}, v{tc+i}")
    a("s_nop 0")
    for i in range(8):
        a(f"v_cvt_pk_bf16_f32 v{C_CF+i}, v{tc+2*i}, v{tc+2*i+1}")
        a(f"v_cvt_pk_bf16_f32 v{C_SF+i}, v{ts+2*i}, v{ts+2*i+1}")


NPK = 0


def ffn_epi(p):
    A, TT = C_ACC + 16 * p, 244
    r = []
    if p < NPK:
        r += [f"v_mul_f32 v{TT+v}, v{A+v}, v{A+v}" for v in range(8)]
        r += [f"v_fma_f32 v{TT+v}, v{TT+v}, v{C_K2}, v{C_K1}" for v in range(8)]
        r += [f"v_mul_f32 v{TT+v}, v{TT+v}, v{A+v}" for v in range(8)]
        r += [f"v_exp_f32 v{TT+v}, v{TT+v}" for v in range(8)]
        r += [f"v_mul_f32 v{A+8+v}, v{A+v}, v{A+8+v}" for v in range(8)]
        r += [f"v_add_f32 v{TT+v}, 1.0, v{TT+v}" for v in range(8)]
        r += [f"v_rcp_f32 v{TT+v}, v{TT+v}" for v in range(8)]
        r += [f"v_mul_f32 v{A+8+v}, v{A+8+v}, v{TT+v}" for v in range(8)]
        for i in (0, 2, 1, 3):
            r.append(f"v_cvt_pk_bf16_f32 v{A+i}, v{A+8+2*i}, v{A+8+2*i+1}")
        r.append(f"v_permlane16_swap_b32 v{A}, v{A+2}")
        r.append("s_nop 0")
        r.append(f"v_permlane16_swap_b32 v{A+1}, v{A+3}")
        so = "s43" if p & 1 else "s42"
        r.append(f"buffer_store_dwordx4 {vr(A,4)}, v{C_VST}, s[32:35], {so} offen offset:{(p>>1)*1024} sc1")
        return r
    for v in range(0, 8, 2):
        r.append(f"v_pk_mul_f32 {vr(TT+v,2)}, {vr(A+v,2)}, {vr(A+v,2)}")
    for v in range(0, 8, 2):
        r.append(f"v_pk_fma_f32 {vr(TT+v,2)}, {vr(TT+v,2)}, {vr(C_K2,2)}, {vr(C_K1,2)}")
    for v in range(0, 8, 2):
        r.append(f"v_pk_mul_f32 {vr(TT+v,2)}, {vr(TT+v,2)}, {vr(A+v,2)}")
    for v in range(8):
        r.append(f"v_exp_f32 v{TT+v}, v{TT+v}")
    for v in range(0, 8, 2):
        r.append(f"v_pk_mul_f32 {vr(A+8+v,2)}, {vr(A+v,2)}, {vr(A+8+v,2)}")
    for v in range(0, 8, 2):
        r.append(f"v_pk_add_f32 {vr(TT+v,2)}, {vr(TT+v,2)}, 1.0 op_sel_hi:[1,0]")
    for v in range(8):
        r.append(f"v_rcp_f32 v{TT+v}, v{TT+v}")
    for v in range(0, 8, 2):
        r.append(f"v_pk_mul_f32 {vr(A+8+v,2)}, {vr(A+8+v,2)}, {vr(TT+v,2)}")
    for i in (0, 2, 1, 3):
        r.append(f"v_cvt_pk_bf16_f32 v{A+i}, v{A+8+2*i}, v{A+8+2*i+1}")
    r.append(f"v_permlane16_swap_b32 v{A}, v{A+2}")
    r.append("s_nop 0")
    r.append(f"v_permlane16_swap_b32 v{A+1}, v{A+3}")
    so = "s43" if p & 1 else "s42"
    r.append(f"buffer_store_dwordx4 {vr(A,4)}, v{C_VST}, s[32:35], {so} offen offset:{(p>>1)*1024} sc1")
    return r


def spec_epi(p):
    A, TT = C_ACC + 16 * p, (C_TT if p & 1 else C_TT2)
    r = []
    for i in range(8):
        r.append(f"v_cvt_pk_bf16_f32 v{TT+i}, v{A+2*i}, v{A+2*i+1}")
    for i in range(4):
        r.append(f"v_cvt_pk_bf16_f32 v{TT+8+i}, -v{A+8+2*i}, -v{A+8+2*i+1}")
    pa, pb, pn = vr(TT, 4), vr(TT + 4, 4), vr(TT + 8, 4)
    for rho in range(2):
        zr = vr(A + 4 * rho, 4)
        r.append(f"{MF16} {zr}, {vr(C_CF+4*rho,4)}, {pa}, 0")
        r.append(f"{MF16} {zr}, {vr(C_SF+4*rho,4)}, {pb}, {zr}")
    for rho in range(2):
        zm = vr(A + 8 + 4 * rho, 4)
        r.append(f"{MF16} {zm}, {vr(C_SF+4*rho,4)}, {pa}, 0")
        r.append(f"{MF16} {zm}, {vr(C_CF+4*rho,4)}, {pn}, {zm}")
    return r


def spec_pack(p):
    A = C_ACC + 16 * p
    r = [f"v_cvt_pk_bf16_f32 v{A+rg}, v{A+rg}, v{A+8+rg}" for rg in range(8)]
    r += [f"ds_write_b128 v{2+(p&1)}, {vr(A+4*rho,4)} offset:{(2*(p>>1)+rho)*4096}" for rho in range(2)]
    return r


def p1_compute(a, opt, kind):
    T = {"ffn6": 6, "spec6": 6, "spec4g": 4, "ffn8": 8}[kind]
    hasg = kind == "spec4g"
    lab_kind = kind
    kind = "spec" if kind.startswith("spec") else kind
    a.ds = []
    VA, VX, VST, VGW, VFD = C_VA, C_VX, C_VST, C_VGW, C_VFD
    P = T // 2
    t0, t1, t2 = C_T0, C_T1, C_T2
    WF, XF, ACC = C_WF, C_XF, C_ACC
    GACC = ACC + 64
    a.label(f"L1C_{lab_kind}")
    a(f"s_mul_i32 s41, s41, {P}")
    for pl in range(P):
        a(f"s_add_u32 s42, s41, {pl}")
        a("s_lshl_b32 s42, s42, 5")
        a(f"v_xor_b32 v{VA+pl}, s42, v{C_VB}")
    if kind == "spec":
        a(f"v_lshrrev_b32 v{t1}, 4, v1")
        a(f"v_mul_u32_u24 v{t1}, {4*ZR_B}, v{t1}")
        a(f"v_and_b32 v{t0}, 15, v1")
        a(f"v_lshl_add_u32 v{VST}, v{t0}, 4, v{t1}")
        if hasg:
            a(f"v_lshrrev_b32 v{t0}, 4, v1")
            a(f"v_lshlrev_b32 v{t0}, 4, v{t0}")
            a(f"v_and_b32 v{t1}, 1, v1")
            a(f"v_lshl_add_u32 v{t0}, v{t1}, 10, v{t0}")
            a(f"v_add_u32 v{t2}, {GW_LDS}, v{t0}")
        srd(a, 32, 78, 79, Z_SIZE, Z_OFF)
        a("s_mul_i32 s42, s22, 96")
        a(f"s_mul_i32 s43, s21, {EP}")
        a("s_add_u32 s42, s42, s43")
        a("s_lshr_b32 s43, s45, 1")
        a("s_lshl_b32 s43, s43, 4")
        a("s_add_u32 s42, s42, s43")
        a("s_lshl_b32 s42, s42, 4")
        a("s_and_b32 s43, s45, 1")
        a(f"s_mul_i32 s43, s43, {16*ZR_B}")
        a("s_add_u32 s42, s42, s43")
    else:
        for i in range(2):
            a(f"v_mov_b32 v{C_K1+i}, {f2u(C1):#x}")
            a(f"v_mov_b32 v{C_K2+i}, {f2u(C2):#x}")
        a(f"v_lshlrev_b32 v{VST}, 4, v1")
        srd(a, 32, 78, 79, H_SIZE, H_OFF)
        a("s_lshl3_add_u32 s44, s22, s41")
        a(f"s_mul_i32 s42, s23, {HS}")
        a("s_add_u32 s42, s42, s44")
        a("s_lshl_b32 s42, s42, 10")
        a("s_xor_b32 s43, s23, 32")
        a(f"s_mul_i32 s43, s43, {HS}")
        a("s_add_u32 s43, s43, s44")
        a("s_lshl_b32 s43, s43, 10")
        if opt.pre:
            a(f"v_mov_b32 v{t0}, s42")
            a(f"v_mov_b32 v{t1}, s43")
            a("v_cmp_gt_u32 vcc, 32, v1")
            a("v_and_b32 v11, 31, v1")
            a(f"v_min_u32 v11, {8*P-1}, v11")
            a(f"v_cndmask_b32 v{t0}, v{t1}, v{t0}, vcc")
            a(f"v_lshl_add_u32 v11, v11, 7, v{t0}")
    stamp(a, opt)

    tail = 0 if kind == "spec" else opt.tail
    units = []
    for s in range(8):
        us = []
        if tail == 2 and s == 7:
            continue
        if tail == 2 and s == 6:
            for p in range(P):
                for s_ in (6, 7):
                    us += [dict(s=s_, p=p, frags=[(0, 0), (0, 1)]), dict(s=s_, p=p, frags=[(1, 0), (1, 1)], upd=True)]
            us[2]["open"] = True
            us[2]["bar"] = True
            us[0]["open"] = True
            us[0]["bar"] = True
            units += us
            continue
        if s == 0 and opt.split0:
            us += [dict(s=s, p=p, frags=[(0, 0), (1, 0)]) for p in range(P)]
            us += [dict(s=s, p=p, frags=[(0, 1), (1, 1)], upd=True, bar=(p == 0)) for p in range(P)]
            if hasg:
                us.append(dict(s=s, p=None))
        else:
            if hasg:
                us.append(dict(s=s, p=None))
            for p in range(P):
                us += [dict(s=s, p=p, frags=[(0, 0), (0, 1)]), dict(s=s, p=p, frags=[(1, 0), (1, 1)], upd=True)]
        us[0]["open"] = True
        us[0]["bar"] = True
        units += us
    N = len(units)
    LA = 2

    def delta(s):
        return SSZ if (s % NB) < 2 else -2 * SSZ

    def upd(reg, s):
        d = delta(s)
        return f"v_add_u32 v{reg}, {d}, v{reg}" if d > 0 else f"v_subrev_u32 v{reg}, {-d}, v{reg}"

    def side_ops(n):
        U = units[n]
        s = U["s"]
        f = WF + 8 * (n % 3)
        ops = []
        if U.get("open"):
            xb = XF + 32 * (s & 1)
            for g in range(2):
                for rt in range(2):
                    for ks in range(2):
                        ops.append((f"ds_read_b128 {vr(xb+16*g+8*rt+4*ks,4)}, v{VX+2*g+ks} offset:{rt*2048}", ("x", s)))
        if U["p"] is None:
            ops.append(("s_lshl_b32 s44, s49, 7", None))
            ops.append((f"v_add_u32 v{VGW}, s44, v{t2}", None))
            ops.append((f"ds_read_b128 {vr(f,4)}, v{VGW}", ("u", n)))
            ops.append((f"ds_read_b128 {vr(f+4,4)}, v{VGW} offset:64", ("u", n)))
            if opt.pairord:
                ops.append(("s_xor_b32 s49, s49, s50", None))
            ops.append(("s_add_u32 s49, s49, 1", None))
            ops.append(("s_and_b32 s49, s49, 7", None))
            if opt.pairord:
                ops.append(("s_xor_b32 s49, s49, s50", None))
        else:
            for k, (m, ks) in enumerate(U["frags"]):
                off = m * 16384 + ks * 8192
                ops.append((f"ds_read_b64_tr_b16 {vr(f+4*k,2)}, v{VA+U['p']} offset:{off}", ("u", n)))
                ops.append((f"ds_read_b64_tr_b16 {vr(f+4*k+2,2)}, v{VA+U['p']} offset:{off+1024}", ("u", n)))
        if U.get("open") and s < 7:
            ops += [(upd(VX + ks, s), None) for ks in range(4)]
        if U.get("upd") and s < 7:
            ops.append((upd(VA + U["p"], s), None))
        if opt.pre and kind != "spec" and s == opt.pre and U.get("upd") and U["p"] == P - 1:
            ops.append(("buffer_load_dword v12, v11, s[32:35], 0 offen", None))
        return ops

    def emit(op):
        if op[1] is None:
            a(op[0])
        else:
            a.dsop(op[0], op[1])

    epi = spec_epi if kind == "spec" else ffn_epi
    fill = []
    a("s_barrier")
    stamp(a, opt)
    for n in range(LA):
        for op in side_ops(n):
            emit(op)
    pend = []
    for n in range(N):
        U = units[n]
        s = U["s"]
        boundary = n + LA == N or (n + LA < N and units[n + LA].get("bar"))
        carry = len(pend)
        if boundary and carry:
            for _ in range(carry):
                emit(pend.pop(0))
            carry = 0
        if n + LA < N:
            pend += side_ops(n + LA)
        a.dswait(("u", n))
        f = WF + 8 * (n % 3)
        xb = XF + 32 * (s & 1)
        frags = U.get("frags", [(0, 0), (0, 1)])
        NM = 4 if U["p"] is None else 8
        bpos = min(opt.bpos, NM - 2)
        for j in range(NM):
            g, rt, k = j >> 2, (j >> 1) & 1, j & 1
            if opt.mord == 1 and NM == 8:
                g, rt, k = (j >> 1) & 1, j & 1, j >> 2
            if opt.mord == 2 and NM == 8:
                k = k ^ (rt & 1) if not (s == 0) else k
            m, ks = frags[k]
            if U["p"] is None:
                acc = vr(GACC + 4 * rt, 4)
            else:
                acc = vr(ACC + 16 * (2 * U["p"] + g) + 8 * m + 4 * rt, 4)
            w_, x_ = vr(f + 4 * k, 4), vr(xb + 16 * g + 8 * rt + 4 * ks, 4)
            srcc = "0" if (s == 0 and ks == 0) else acc
            if kind == "spec":
                a(f"{MF16} {acc}, {x_}, {w_}, {srcc}")
            else:
                a(f"{MF16} {acc}, {w_}, {x_}, {srcc}")
            if boundary:
                if j < bpos:
                    cnt = -(-carry // (bpos - j)) if carry else 0
                    carry -= cnt
                else:
                    cnt = 2
                if j == bpos:
                    a("s_waitcnt lgkmcnt(0)")
                    a("s_barrier")
                    if opt.fine:
                        stamp(a, opt)
            else:
                cnt = max(-(-len(pend) // (NM - j)), 1)
            cnt = min(cnt, len(pend))
            for _ in range(min(cnt, len(pend))):
                emit(pend.pop(0))
            k_ = min(cnt, 2) if opt.npk else 0
            while fill and k_ < opt.fpg and fill[0][0] <= a.n and not (opt.npk and fill[0][1].startswith("v_pk")):
                ins_ = fill.pop(0)[1]
                a(ins_)
                k_ += 2 if ins_.startswith(("v_exp", "v_rcp")) else 1
            if tail and s == 7 and U.get("upd") and j in (3, 7):
                fill += [(a.n + 9, i_) for i_ in epi(2 * U["p"] + (j >> 2))]
    assert not pend
    stamp(a, opt)
    if tail:
        while fill:
            at, ins = fill.pop(0)
            if at > a.n:
                a(f"s_nop {min(at - a.n - 1, 15)}")
                a.n = at
            a(ins)
    else:
        a("s_nop 7")
        if kind != "spec":
            hp = min(opt.hp, T - 1)
            for p in range(T):
                for ins in epi(p):
                    a(ins)
                if opt.half and p == 0:
                    srd(a, 36, 78, 79, F_SIZE, F_OFF)
                    a(f"v_mov_b32 v{t1}, 1")
                    a(f"v_lshlrev_b32 v{t2}, 7, v1")
                if opt.half and p == hp:
                    a(f"s_waitcnt vmcnt({hp - 3})")
                    a("s_mov_b64 exec, " + opt.fmask)
                    a(f"buffer_store_dword v{t1}, v{t2}, s[36:39], s63 offen sc1")
                    a("s_mov_b64 exec, -1")
        else:
            a(f"v_lshlrev_b32 v{t1}, 4, v1")
            a("s_lshl_b32 s43, s45, 10")
            a(f"s_add_u32 s43, s43, {SSZ}")
            a(f"v_add_u32 v{t0}, s43, v{t1}")
            a("s_lshl_b32 s43, s41, 13")
            a(f"v_add_u32 v2, s43, v{t0}")
            a("v_xor_b32 v3, 0x800, v2")
            a("s_lshl_b32 s43, s45, 12")
            a(f"s_add_u32 s43, s43, {SSZ}")
            a(f"v_add_u32 v{t1}, s43, v{t1}")
            if hasg:
                A, TT, ZR = GACC, C_TT, GACC + 8
                for i in range(4):
                    a(f"v_cvt_pk_bf16_f32 v{TT+i}, v{A+2*i}, v{A+2*i+1}")
                srd(a, 36, 78, 79, G_SIZE, G_OFF)
                for rho in range(2):
                    a(f"{MF16} {vr(ZR+4*rho,4)}, {vr(C_CF+4*rho,4)}, {vr(TT,4)}, 0")
                    a(f"{MF16} {vr(ZR+8+4*rho,4)}, {vr(C_SF+4*rho,4)}, {vr(TT,4)}, 0")
                for i in range(4):
                    a(f"v_lshlrev_b32 v{A+2*i}, 16, v{TT+i}")
                    a(f"v_and_b32 v{A+2*i+1}, 0xffff0000, v{TT+i}")
                for i in range(8):
                    a(f"v_mul_f32 v{A+i}, {f2u(-1.4426950408889634):#x}, v{A+i}")
                for i in range(8):
                    a(f"v_exp_f32 v{A+i}, v{A+i}")
                for i in range(8):
                    a(f"v_add_f32 v{A+i}, 1.0, v{A+i}")
                for i in range(8):
                    a(f"v_rcp_f32 v{A+i}, v{A+i}")
                for rg in range(8):
                    a(f"v_cvt_pk_bf16_f32 v{ZR+rg}, v{ZR+rg}, v{ZR+8+rg}")
                for rho in range(2):
                    a(f"ds_write_b128 v{t0}, {vr(ZR+4*rho,4)} offset:{(2*T+rho)*4096}")
                for i in range(4):
                    a(f"v_cvt_pk_bf16_f32 v{TT+i}, v{A+2*i}, v{A+2*i+1}")
                for i in range(4):
                    a(f"v_lshlrev_b32 v{A+2*i}, 16, v{TT+i}")
                    a(f"v_and_b32 v{A+2*i+1}, 0xffff0000, v{TT+i}")
                a("s_lshl_b32 s43, s23, 7")
                a("s_mov_b32 exec_lo, 0x00010001")
                a("s_mov_b32 exec_hi, 0x00010001")
                a(f"buffer_store_dwordx4 {vr(A,4)}, v1, s[36:39], s43 offen sc1")
                a(f"buffer_store_dwordx4 {vr(A+4,4)}, v1, s[36:39], s43 offen offset:64 sc1")
                a("s_mov_b64 exec, -1")
            cv = [[x for x in epi(p) if not x.startswith("v_mfma")] for p in range(T)]
            mf = [[x for x in epi(p) if x.startswith("v_mfma")] for p in range(T)]
            for ins in cv[0]:
                a(ins)
            for p in range(T):
                side = (cv[p + 1] if p + 1 < T else ["s_nop 3", "s_nop 3", "s_nop 3"]) + (spec_pack(p - 1) if p > 0 else [])
                for i, ins in enumerate(mf[p]):
                    a(ins)
                    for _ in range(-(-len(side) // (8 - i))):
                        a(side.pop(0))
            if opt.fine4:
                stamp(a, opt)
            a("s_nop 7")
            for ins in spec_pack(T - 1):
                a(ins)
            if opt.fine4:
                stamp(a, opt)
            a("s_waitcnt lgkmcnt(0)")
            a("s_barrier")
            if opt.fine4:
                stamp(a, opt)
            NG = T // 2 + (1 if hasg else 0)
            for k in range(NG):
                for w in range(4):
                    a(f"ds_read_b128 {vr(WF+16*k+4*w,4)}, v{t1} offset:{k*16384 + w*1024}")
            for k in range(NG):
                R = WF + 16 * k
                a(f"s_waitcnt lgkmcnt({4*(NG-1-k)})")
                for i in range(4):
                    for j in range(i + 1, 4):
                        a(f"v_swap_b32 v{R+4*i+j}, v{R+4*j+i}")
                if opt.fine4:
                    stamp(a, opt)
                off = 512 * k
                if hasg and k == NG - 1:
                    a("s_cmp_ge_u32 s45, 2")
                    a("s_cbranch_scc1 L1C_no256")
                    a("s_mov_b32 exec_lo, 0x00020002")
                    a("s_mov_b32 exec_hi, 0x00020002")
                    off -= 16
                for b in range(4):
                    a(f"s_add_u32 s43, s42, {b*ZR_B}")
                    a(f"buffer_store_dwordx4 {vr(R+4*b,4)}, v{VST}, s[32:35], s43 offen offset:{off} sc1")
            if hasg:
                a("s_mov_b64 exec, -1")
                a.label("L1C_no256")
            if opt.fine4:
                stamp(a, opt)
            if not opt.lateb9:
                a("s_barrier")

    stamp(a, opt)
    a("s_branch L2C")


def p2_combine(a, opt):
    VFD = C_VFD
    t0, t1, t2 = C_T0, C_T1, C_T2
    VZ, VO, VG = 23, 24, 25
    ZF, ACY, PT, BF, TR = 160, 192, 96, 208, 2
    a.label("L2C")
    a("s_and_b32 s42, s45, 1")
    a("s_lshl_b32 s42, s42, 5")
    a("s_add_u32 s42, s42, s54")
    a("s_lshr_b32 s43, s45, 1")
    a("s_lshl_b32 s43, s43, 5")
    a("s_lshl_b32 s44, s51, 6")
    a("s_add_u32 s43, s43, s44")
    a(f"v_bfe_u32 v{t0}, v1, 2, 1")
    a(f"v_lshlrev_b32 v{t0}, 4, v{t0}")
    a(f"v_and_or_b32 v{t0}, v1, 3, v{t0}")
    a(f"v_bfe_u32 v{t1}, v1, 3, 2")
    a(f"v_lshlrev_b32 v{t1}, 2, v{t1}")
    a(f"v_add3_u32 v{t0}, v{t0}, v{t1}, s43")
    a(f"v_and_b32 v{t1}, 31, v1")
    a("s_lshl_b32 s44, s42, 7")
    a(f"v_lshl_add_u32 v{VG}, v{t1}, 2, s44")
    a(f"v_lshl_add_u32 v{t1}, v{t1}, 6, s42")
    a(f"v_lshrrev_b32 v{t2}, 5, v1")
    a(f"v_lshlrev_b32 v{VO}, 10, v{t1}")
    a(f"v_lshl_add_u32 v{VO}, v{t2}, 5, v{VO}")
    a("s_lshl_b32 s44, s43, 1")
    a(f"v_add_u32 v{VO}, s44, v{VO}")
    a("s_mov_b32 s64, s54")
    a("s_cmp_lt_u32 s51, 4")
    a("s_cbranch_scc1 L2C_nomirror")
    a(f"v_sub_u32 v{t0}, 0x200, v{t0}")
    a(f"v_sub_u32 v{t1}, 0x800, v{t1}")
    a(f"v_and_b32 v{t1}, 0x7ff, v{t1}")
    a("s_sub_u32 s64, 32, s54")
    a("s_and_b32 s64, s64, 31")
    a.label("L2C_nomirror")
    a(f"v_mul_u32_u24 v{VZ}, {8*EP*16}, v{t2}")
    a(f"v_lshl_add_u32 v{VZ}, v{t0}, 4, v{VZ}")
    a(f"s_mul_i32 s64, s64, {ZR_B}")
    a(f"v_cvt_f32_u32 v26, v{t1}")
    a(f"v_mul_f32 v26, {f2u(-1.0/2048):#x}, v26")
    a(f"v_cvt_f32_u32 v27, v{t2}")
    a(f"v_mul_f32 v27, {f2u(16.0):#x}, v27")
    a("v_mul_f32 v27, v26, v27")

    def trig(o):
        for q in range(8):
            ks_, qq = (8 * o + q) >> 2, q & 3
            a(f"v_fmamk_f32 v{TR+q}, v26, {f2u(float(2*ks_ + (qq&1) + 32*(qq>>1))):#x}, v27")
        for q in range(8):
            a(f"v_fract_f32 v{TR+q}, v{TR+q}")
        for q in range(8):
            a(f"v_sin_f32 v{TR+8+q}, v{TR+q}")
        for q in range(8):
            a(f"v_cos_f32 v{TR+q}, v{TR+q}")
        a("s_nop 0")
        for q in range(8):
            a(f"v_cvt_pk_bf16_f32 v{BF+8*o+q}, v{TR+q}, v{TR+8+q}")

    a("s_bitcmp1_b32 s65, 1")
    a("s_cbranch_scc1 L2C_t23s")
    trig(2)
    trig(3)
    a.label("L2C_t23s")
    srd(a, 36, 78, 79, F_SIZE, F_OFF)
    a(f"v_mov_b32 v{t0}, {FLG}")
    a(f"v_mov_b32 v{t1}, 1")
    a(f"v_lshlrev_b32 v{t2}, 7, v1")
    a("v_mov_b32 v28, 2")
    a("s_waitcnt vmcnt(0)")
    stamp(a, opt)
    a("s_bitcmp1_b32 s65, 0")
    a("s_cbranch_scc0 L2C_noh")
    a("s_mov_b64 exec, " + opt.fmask)
    a(f"buffer_store_dword v28, v{t2}, s[36:39], s63 offen sc1")
    a.label("L2C_noh")
    a("s_bitcmp1_b32 s65, 1")
    a("s_cbranch_scc0 L2C_noz")
    a("s_mov_b64 exec, 1")
    a(f"ds_add_rtn_u32 v{VFD}, v{t0}, v{t1}")
    a("s_and_b32 s42, s22, 1")
    a("s_lshl4_add_u32 s42, s42, s21")
    a(f"s_mul_i32 s42, s42, {opt.rl*128}")
    a("s_lshr_b32 s43, s22, 1")
    a("s_lshl_b32 s43, s43, 7")
    a("s_add_u32 s42, s42, s43")
    a("s_waitcnt lgkmcnt(0)")
    a(f"v_cmp_ne_u32 vcc, 3, v{VFD}")
    a("s_cbranch_vccnz L2C_noz")
    a(f"buffer_store_dword v28, v{t2}, s[36:39], s42 offen offset:256 sc1")
    a.label("L2C_noz")
    a("s_mov_b64 exec, -1")
    if opt.lateb9:
        a("s_bitcmp1_b32 s65, 1")
        a("s_cbranch_scc0 L2C_nob9")
        a("s_barrier")
        a.label("L2C_nob9")
    a(f"v_and_b32 v{VFD}, 15, v1")
    a(f"v_min_u32 v{VFD}, 10, v{VFD}")
    a(f"v_and_or_b32 v{VFD}, v1, 16, v{VFD}")
    a(f"s_mov_b32 s43, {RH}")
    a(f"v_lshl_add_u32 v{t0}, v{VFD}, 2, s43")
    a("v_min_u32 v28, 47, v1")
    a(f"s_mov_b32 s43, {RZ}")
    a("v_lshl_add_u32 v28, v28, 2, s43")
    a(f"s_mul_i32 s42, s54, {opt.rl}")
    a(f"s_and_b32 s43, s{2 if opt.map84 else 51}, {opt.cmask}")
    a("s_add_u32 s42, s42, s43")
    a("s_lshl_b32 s42, s42, 7")
    a(f"v_lshl_add_u32 v{t2}, v1, 4, s42")
    a(f"s_mov_b32 m0, {RH}")

    def hpoll():
        a("s_mov_b64 exec, 0xff")
        a(f"buffer_load_dwordx4 v{t2}, s[36:39], 0 offen sc1 lds")
        a("s_mov_b64 exec, -1")

    def zpoll():
        a("s_mov_b32 exec_hi, 0xffff")
        a(f"buffer_load_dword v{t2}, s[36:39], 0 offen sc1 lds")
        a("s_mov_b64 exec, -1")

    a("s_cmp_lg_u32 s45, 0")
    a("s_cbranch_scc1 L2C_rest")
    a.label("L2C_wh")
    hpoll()
    a(f"s_waitcnt vmcnt({opt.pq})")
    if opt.psleep:
        a(f"s_sleep {opt.psleep}")
    a(f"ds_read_b32 v{VFD}, v{t0}")
    a("s_waitcnt lgkmcnt(0)")
    a(f"v_cmp_ne_u32 vcc, 2, v{VFD}")
    a("s_cbranch_vccnz L2C_wh")
    a(f"v_and_b32 v{t2}, 31, v1")
    a(f"v_mul_u32_u24 v{t2}, {opt.rl*128}, v{t2}")
    a(f"v_lshrrev_b32 v{VFD}, 5, v1")
    a(f"v_lshl_add_u32 v{t2}, v{VFD}, 7, v{t2}")
    a(f"s_mov_b32 m0, {RZ}")
    a(f"v_add_u32 v{t2}, 0x100, v{t2}")
    zpoll()
    a.label("L2C_rest")
    trig(0)
    trig(1)
    a("s_bitcmp1_b32 s65, 1")
    a("s_cbranch_scc0 L2C_t23d")
    trig(2)
    trig(3)
    a.label("L2C_t23d")
    srd(a, 32, 78, 79, Z_SIZE, Z_OFF)
    srd(a, 24, 78, 79, G_SIZE, G_OFF)
    srd(a, 28, 18, 19, 2048 * 1024)
    a("s_barrier")
    a("s_branch L2C_wz1")
    a.label("L2C_wz")
    a("s_cmp_lg_u32 s45, 0")
    a("s_cbranch_scc1 L2C_wz1")
    a("s_waitcnt vmcnt(0)")
    zpoll()
    a(f"s_sleep {opt.zsleep}")
    a.label("L2C_wz1")
    a(f"ds_read_b32 v{VFD}, v28")
    a("s_waitcnt lgkmcnt(0)")
    a(f"v_cmp_ne_u32 vcc, 2, v{VFD}")
    a("s_cbranch_vccnz L2C_wz")

    def zloads():
        stamp(a, opt)
        a(f"buffer_load_dword v10, v{VG}, s[24:27], 0 offen sc1")
        for ks in range(8):
            if not opt.noz:
                a(f"buffer_load_dwordx4 {vr(ZF+4*ks,4)}, v{VZ}, s[32:35], s64 offen sc1")
            if ks < 7:
                a(f"s_add_u32 s64, s64, {EP*16}")

    zloads()
    a(f"v_lshlrev_b32 v{t0}, 4, v1")
    a("s_lshl_b32 s42, s45, 14")
    a(f"v_add_u32 v{t0}, s42, v{t0}")
    for ks in range(8):
        a(f"s_waitcnt vmcnt({7-ks})")
        acc = vr(ACY, 16)
        a(f"{MF32} {acc}, {vr(ZF+4*ks,4)}, {vr(BF+4*ks,4)}, {'0' if ks == 0 else acc}")
    a("v_sub_f32 v11, 1.0, v10")
    a("v_cvt_pk_bf16_f32 v11, v11, v11")
    a("v_and_b32 v12, 0xffff0000, v11")
    a("v_and_b32 v13, 0xffff0000, v11")
    a("s_nop 7")
    a("s_nop 1")
    for rg in range(16):
        a(f"v_mul_f32 v{ACY+rg}, v10, v{ACY+rg}")
    stamp(a, opt)
    a("s_barrier")
    for hf in range(2):
        for w in range(4):
            for q in (2 * hf, 2 * hf + 1):
                if hf == 1 and w == 3 and q == 3:
                    a("s_waitcnt lgkmcnt(7)")
                a(f"ds_read_b128 {vr(PT+16*w+4*q,4)}, v{t0} offset:{w*2048 + (q>>1)*8192 + (q&1)*1024}")
    for hf in range(2):
        if hf:
            a("s_waitcnt lgkmcnt(0)")
        rr = range(8 * hf, 8 * hf + 8, 2)
        for rg in rr:
            a(f"v_pk_add_f32 {vr(PT+rg,2)}, {vr(PT+rg,2)}, {vr(PT+16+rg,2)}")
        for rg in rr:
            a(f"v_pk_add_f32 {vr(PT+32+rg,2)}, {vr(PT+32+rg,2)}, {vr(PT+48+rg,2)}")
        for rg in rr:
            a(f"v_pk_add_f32 {vr(PT+rg,2)}, {vr(PT+rg,2)}, {vr(PT+32+rg,2)}")
        for rg in rr:
            a(f"v_pk_fma_f32 {vr(ACY+rg,2)}, {vr(PT+rg,2)}, v[12:13], {vr(ACY+rg,2)}")
        for i in range(4 * hf, 4 * hf + 4):
            a(f"v_cvt_pk_bf16_f32 v{32+i}, v{ACY+2*i}, v{ACY+2*i+1}")
        a(f"buffer_store_dwordx4 {vr(32+4*hf,4)}, v{VO}, s[28:31], 0 offen offset:{16*hf} {opt.ofl}")
    stamp(a, opt)
    stamp_flush(a, opt, "C")
    a("s_endpgm")


def compute_prologue(a, opt):
    t0, t1, t2 = C_T0, C_T1, C_T2
    if opt.pf:
        a(f"s_cmp_eq_u32 s46, {K_SPEC}")
        a("s_mov_b32 s47, 2752")
        a("s_cselect_b32 s47, 1024, s47")
        a("s_cmp_eq_u32 s22, 10")
        a("s_movk_i32 s40, 252")
        a("s_cselect_b32 s40, 188, s40")
        a(f"v_lshrrev_b32 v{t2}, 5, v1")
        a(f"v_bfe_u32 v{t0}, v1, 2, 3")
        a(f"v_lshl_add_u32 v{t0}, v{t2}, 7, v{t0}")
        a("s_lshl_b32 s44, s42, 3")
        a("s_add_u32 s44, s44, s55")
        a("s_lshl_b32 s44, s44, 3")
        a(f"v_add_u32 v{t0}, s44, v{t0}")
        a(f"v_mul_u32_u24 v{t0}, s47, v{t0}")
        a(f"v_and_b32 v{t1}, 3, v1")
        a(f"v_lshlrev_b32 v{t1}, 7, v{t1}")
        a(f"v_min_u32 v{t1}, s40, v{t1}")
        a("s_lshl_b32 s44, s22, 8")
        a(f"v_add3_u32 v{t0}, v{t0}, v{t1}, s44")
        a(f"v_and_b32 v{t1}, 31, v1")
        a(f"v_lshlrev_b32 v{t1}, 16, v{t1}")
        a(f"v_mul_u32_u24 v{t2}, 384, v{t2}")
        a("s_lshl_b32 s44, s23, 3")
        a("s_lshr_b32 s41, s2, 6")
        a("s_add_u32 s44, s44, s41")
        a("s_lshl_b32 s44, s44, 7")
        a(f"v_add3_u32 v{t1}, v{t1}, v{t2}, s44")
        a("s_lshl_b32 s40, s47, 6")
        a("s_mul_i32 s41, s40, 5")
        a("s_lshl_b32 s30, s47, 9")
        a("s_mov_b32 s31, 0x20000")
        a("s_waitcnt lgkmcnt(0)")
        srd(a, 24, 4, 5, 2048 * 1024)
        a(f"s_cmp_eq_u32 s46, {K_SPEC}")
        a("s_cselect_b64 s[12:13], s[8:9], s[12:13]")
        a("s_cselect_b64 s[14:15], s[10:11], s[14:15]")
        a("s_cmp_ge_u32 s45, 2")
        a("s_cselect_b64 s[28:29], s[14:15], s[12:13]")
        a(f"buffer_load_dword v29, v{t0}, s[28:31], s40 offen")
        a(f"buffer_load_dword v30, v{t1}, s[24:27], 0 offen offset:128")
        a(f"buffer_load_dword v31, v{t0}, s[28:31], s41 offen")
    a(f"v_lshlrev_b32 v{t0}, 3, v1")
    a(f"v_add_u32 v{t0}, {FLG}, v{t0}")
    a("v_mov_b32 v2, 0")
    a("v_mov_b32 v3, 0")
    a(f"ds_write_b64 v{t0}, v[2:3]")
    a("s_waitcnt lgkmcnt(0)")
    stamp(a, opt)
    a("s_and_b32 s63, s23, 31")
    a(f"s_mul_i32 s63, s63, {opt.rl*32}")
    a("s_lshr_b32 s44, s23, 5")
    a("s_lshl_b32 s44, s44, 4")
    a("s_add_u32 s63, s63, s44")
    a("s_add_u32 s63, s63, s22")
    a("s_lshl_b32 s63, s63, 2")
    a(f"s_cmp_eq_u32 s46, {K_IDLE}")
    a("s_cbranch_scc1 L1C_idle")
    a(f"v_bfe_u32 v{t0}, v1, 2, 2")
    a(f"v_lshrrev_b32 v{t1}, 4, v1")
    a(f"v_lshl_add_u32 v{t1}, v{t1}, 3, v{t0}")
    a(f"v_lshlrev_b32 v{t1}, 8, v{t1}")
    a(f"v_bfe_u32 v{t0}, v1, 2, 3")
    a(f"v_lshl_add_u32 v{t1}, v{t0}, 5, v{t1}")
    a(f"v_and_b32 v{t0}, 3, v1")
    a(f"v_lshl_add_u32 v{C_VB}, v{t0}, 3, v{t1}")
    a(f"v_and_b32 v{t0}, 15, v1")
    a(f"v_lshrrev_b32 v{t1}, 1, v{t0}")
    a(f"v_lshrrev_b32 v{t2}, 4, v1")
    a(f"v_xor_b32 v{t1}, v{t1}, v{t2}")
    a(f"v_lshlrev_b32 v{t1}, 4, v{t1}")
    a(f"v_lshl_add_u32 v{t0}, v{t0}, 7, v{t1}")
    a(f"v_add_u32 v{C_VX}, s48, v{t0}")
    a(f"v_xor_b32 v{C_VX+1}, 64, v{C_VX}")
    a(f"v_xor_b32 v{C_VX+2}, 0x2000, v{C_VX}")
    a(f"v_xor_b32 v{C_VX+3}, 0x2040, v{C_VX}")
    if opt.pp:
        a.l.append("@@DISPATCH@@")
    a("s_mov_b32 s65, 1")
    a(f"s_cmp_eq_u32 s46, {K_6G}")
    a("s_cbranch_scc1 L1C_ffn6")
    a("s_cmp_lg_u32 s46, 0")
    a("s_cbranch_scc1 L1C_specs")


def idle_compute(a, opt):
    t0, t1, t2 = C_T0, C_T1, C_T2
    a.label("L1C_idle")
    a("s_mov_b32 s65, 0")
    srd(a, 24, 76, 77, 256)
    a(f"v_mov_b32 v{t1}, 0")
    a("s_cmp_lg_u32 s55, 4")
    a("s_cbranch_scc1 L1_noinit")
    srd(a, 36, 78, 79, F_SIZE, F_OFF)
    for i in range(4):
        a(f"v_mov_b32 v{32+i}, 0")
    a(f"v_lshlrev_b32 v{t0}, 4, v1")
    a("s_and_b32 s42, s2, 7")
    a("s_lshl_b32 s42, s42, 2")
    a("s_add_u32 s42, s42, s45")
    a(f"s_mul_i32 s42, s42, {opt.rl*128}")
    a(f"buffer_store_dwordx4 v[32:35], v{t0}, s[36:39], s42 offen sc1")
    a(f"v_mov_b32 v{t2}, 1")
    a.label("L1_noinit")
    if opt.tlb:
        a("s_lshl2_add_u32 s42, s55, s45")
        a("s_cmp_lg_u32 s42, 20")
        a("s_cbranch_scc1 L1_notlb")
        srd(a, 32, 78, 79, 0x810000)
        srd(a, 28, 18, 19, 2048 * 1024)
        a(f"v_mul_u32_u24 v{t0}, {HS*1024}, v1")
        a(f"s_mov_b32 s42, {86*1024}")
        a(f"buffer_load_dword v249, v{t0}, s[32:35], s42 offen")
        a(f"v_min_u32 v{t0}, 36, v1")
        a(f"v_mul_u32_u24 v{t0}, {ZR_B}, v{t0}")
        a(f"v_cmp_gt_u32 vcc, 32, v1")
        a(f"v_mov_b32 v248, {0x80F000 - (Z_OFF + ZR_B - 128)}")
        a(f"s_mov_b32 s42, {Z_OFF + ZR_B - 128}")
        a(f"v_cndmask_b32 v{t0}, v248, v{t0}, vcc")
        a(f"buffer_load_dword v248, v{t0}, s[32:35], s42 offen")
        a(f"v_lshlrev_b32 v{t0}, 15, v1")
        a(f"buffer_load_dword v247, v{t0}, s[28:31], 0 offen")
        a.label("L1_notlb")
    if opt.codepf:
        a("s_getpc_b64 s[40:41]")
        a.label("L_pcref")
        a(f"s_sub_u32 s40, s40, L_pcref-{NAME}_kernel")
        a("s_subb_u32 s41, s41, 0")
        a("s_lshl2_add_u32 s42, s55, s45")
        a("s_and_b32 s42, s42, 7")
        a("s_mul_i32 s42, s42, 6400")
        a(f"v_lshl_add_u32 v{t0}, v1, 7, s42")
        a(f"v_min_u32 v{t0}, L_exit-{NAME}_kernel, v{t0}")
        a("v_mov_b32 v37, s41")
        a(f"v_add_co_u32 v36, vcc, s40, v{t0}")
        a("s_nop 1")
        a("v_addc_co_u32 v37, vcc, 0, v37, vcc")
        a("global_load_dword v250, v[36:37], off")
    a("s_waitcnt vmcnt(0)")
    a("s_cmp_lg_u32 s55, 4")
    a("s_cbranch_scc1 L1_noinit2")
    a("s_mov_b64 exec, 1")
    a(f"buffer_atomic_add v{t2}, v{t1}, s[24:27], 0 offen sc1")
    a("s_mov_b64 exec, -1")
    a.label("L1_noinit2")
    if opt.irel == 0:
        a("s_barrier")
    a("s_barrier")
    a("s_cmp_lg_u32 s45, 0")
    a("s_cbranch_scc1 L2C")
    a.label("L1C_idle_go")
    a(f"buffer_load_dword v{t2}, v{t1}, s[24:27], 0 offen sc1")
    a("s_waitcnt vmcnt(0)")
    a(f"v_cmp_gt_u32 vcc, 32, v{t2}")
    a("s_cbranch_vccz L2C")
    a("s_sleep 8")
    a("s_branch L1C_idle_go")


def decode_rest(a, opt, lab):
    a("s_cmp_eq_u32 s44, 3")
    a(f"s_cbranch_scc1 {lab}_3")
    a("s_mul_i32 s22, s42, 3")
    a("s_min_u32 s22, s22, 8")
    a("s_add_u32 s22, s22, s44")
    a("s_and_b32 s46, s42, s44")
    a("s_lshr_b32 s46, s46, 1")
    a(f"s_cbranch_scc0 {lab}_d")
    a("s_and_b32 s22, s42, 1")
    a(f"s_branch {lab}_d")
    a.label(f"{lab}_3")
    a("s_cmp_lt_u32 s55, 2")
    a("s_cselect_b32 s22, 10, 2")
    a("s_lshr_b32 s46, s55, 1")
    a("s_add_u32 s46, s46, 2")
    a(f"s_min_u32 s46, s46, {K_IDLE}")
    a.label(f"{lab}_d")


def kernel(a, opt):
    a.label(NAME + "_kernel")
    if opt.stamps:
        a("v_mov_b32 v255, 0")
        a("v_mov_b32 v253, 0")
        a("s_mov_b32 s89, 0")
        stamp(a, opt)
    a("s_load_dwordx2 s[24:25], s[0:1], 0")
    a("s_load_dwordx16 s[4:19], s[0:1], 24")
    a("s_load_dwordx4 s[76:79], s[0:1], 88")
    a("v_lshrrev_b32 v2, 6, v0")
    a("v_and_b32 v1, 63, v0")
    a("v_readfirstlane_b32 s20, v2")
    a("s_cmp_ge_u32 s2, 256")
    a("s_cbranch_scc1 L_exit")
    a("s_bfe_u32 s55, s2, 0x30003")
    a("s_bfe_u32 s42, s2, 0x20001")
    a("s_lshr_b32 s44, s2, 6")
    a("s_and_b32 s43, s55, 1")
    a("s_lshl1_add_u32 s43, s42, s43")
    a("s_cmp_eq_u32 s44, 3")
    a("s_cselect_b32 s21, s43, s55")
    if opt.q3:
        if opt.rmul:
            a(f"s_mul_i32 s40, s44, {opt.rmul}")
            a("s_mul_i32 s43, s42, 2")
            a("s_add_u32 s40, s40, s43")
            a("s_cmp_eq_u32 s44, 3")
        else:
            a(f"s_mul_i32 s40, s42, {opt.q3}")
    else:
        a(f"s_mul_i32 s40, s44, {opt.rmul}")
    a("s_mul_i32 s43, s55, 3")
    a("s_cselect_b32 s43, s43, s40")
    if opt.r3:
        a("s_addc_u32 s49, s43, s21")
    else:
        a("s_add_u32 s49, s40, s21")
    if opt.qmul == 1:
        a("s_add_u32 s49, s49, s42")
    if opt.qmul == 2:
        a("s_lshl1_add_u32 s49, s42, s49")
    if opt.pirot:
        a("s_add_u32 s43, s55, s42")
        a("s_and_b32 s40, s2, 1")
        a("s_lshl1_add_u32 s43, s43, s40")
        a("s_cmp_eq_u32 s44, 3")
        a("s_cselect_b32 s49, s49, s43")
    a(f"s_and_b32 s49, s49, {opt.rotmask}")
    if opt.pairord:
        a(f"s_and_b32 s50, s49, {opt.pairord}")
    a("s_and_b32 s43, s2, 1")
    a("s_lshl3_add_u32 s21, s43, s21")
    a("s_and_b32 s45, s20, 3")
    a("s_and_b32 s40, s45, 1")
    a("s_lshr_b32 s41, s45, 1")
    a("s_lshl1_add_u32 s23, s21, s40")
    a("s_lshl_b32 s43, s41, 5")
    a("s_add_u32 s23, s23, s43")
    a("s_lshl_b32 s48, s45, 12")
    a("s_bitset1_b32 s48, 15")
    a("s_cmp_ge_u32 s20, 4")
    a("s_cbranch_scc1 L1_compw")
    t0, t1, t2, VX, VD = L_T0, L_T1, L_T2, L_VX, L_VD
    a(f"v_lshrrev_b32 v{t0}, 3, v1")
    a("s_lshl_b32 s43, s23, 10")
    a(f"v_lshl_add_u32 v{t0}, v{t0}, 16, s43")
    a(f"v_lshrrev_b32 v{t1}, 4, v1")
    a(f"v_and_b32 v{t2}, 7, v1")
    a(f"v_xor_b32 v{t2}, v{t1}, v{t2}")
    a(f"v_lshl_add_u32 v{VX}, v{t2}, 4, v{t0}")
    a(f"v_xor_b32 v{VX+1}, {8*65536+64:#x}, v{VX}")
    a(f"v_xor_b32 v{VX+2}, {16*65536:#x}, v{VX}")
    a(f"v_xor_b32 v{VX+3}, {24*65536+64:#x}, v{VX}")
    a("s_mov_b32 s26, 0x200000")
    a("s_mov_b32 s27, 0x20000")
    a("s_lshl_b32 s47, s49, 7")
    a("s_mov_b32 m0, s48")
    a("s_cmp_ge_u32 s2, 224")
    if opt.epf:
        a("s_cbranch_scc1 L_epf")
        a("s_waitcnt lgkmcnt(0)")
    else:
        a("s_waitcnt lgkmcnt(0)")
        a("s_cbranch_scc1 L_nox")
    for i in range(4):
        a(f"buffer_load_dwordx4 v{VX+i}, s[24:27], s47 offen {opt.xfl} lds")
        if i < 3:
            a("s_add_u32 m0, m0, 1024")
            a("s_nop 0")
    a.label("L_nox")
    stamp(a, opt)
    decode_rest(a, opt, "L_dl")
    a("s_cmp_eq_u32 s46, 0")
    a("s_cselect_b32 s43, 15, 11")
    a(f"s_cmp_eq_u32 s46, {K_S4G}")
    a("s_cselect_b32 s43, 7, s43")
    a("s_cselect_b32 s80, 0, -1")
    a("s_bitcmp1_b32 s46, 0")
    a("s_cselect_b64 s[10:11], s[4:5], s[10:11]")
    a("s_cselect_b64 s[12:13], s[6:7], s[12:13]")
    a("s_movk_i32 s47, 2752")
    a("s_cselect_b32 s47, 1024, s47")
    a("s_movk_i32 s82, 256")
    a("s_cselect_b32 s82, 192, s82")
    a("s_cmp_eq_u32 s41, 1")
    a("s_cselect_b64 s[28:29], s[12:13], s[10:11]")
    a(f"v_lshl_add_u32 v{t0}, s40, 2, v{t1}")
    a("s_mul_i32 s82, s22, s82")
    a(f"v_mul_u32_u24 v{t0}, s47, v{t0}")
    a(f"v_and_b32 v{t2}, 15, v1")
    a(f"v_add_u32 v{t0}, s82, v{t0}")
    a(f"v_lshlrev_b32 v{t1}, 1, v{t1}")
    a(f"v_xor_b32 v{t1}, v{t1}, v{t2}")
    a(f"v_xor_b32 v{t2}, 8, v{t1}")
    a(f"v_min_u32 v{t1}, s43, v{t1}")
    a(f"v_min_u32 v{t2}, s43, v{t2}")
    a(f"v_lshl_add_u32 v{VD}, v{t1}, 4, v{t0}")
    a(f"v_lshl_add_u32 v{VD+1}, v{t2}, 4, v{t0}")
    a("s_lshl_b32 s41, s41, 14")
    a("s_lshl_b32 s40, s40, 10")
    a("s_add_u32 s41, s41, s40")
    a("s_lshl_b32 s44, s47, 3")
    a("s_lshl_b32 s30, s47, 9")
    a("s_mov_b32 s31, 0x20000")
    a("s_mov_b32 s66, 0")
    a("s_mov_b32 s67, 0")
    a("s_mul_i32 s40, s49, s44")
    if opt.sdelay:
        a("s_bitcmp1_b32 s46, 0")
        a("s_cbranch_scc0 L_nosd")
        a("s_barrier")
        a.label("L_nosd")
    a(f"s_cmp_lg_u32 s46, {K_IDLE}")
    a("s_cbranch_scc1 L1L_w")
    if opt.epf:
        a("s_branch L_idl2")
        a.label("L_epf")
        a("s_getpc_b64 s[72:73]")
        a.label("L_pcref0")
        a(f"s_sub_u32 s72, s72, L_pcref0-{NAME}_kernel")
        a("s_subb_u32 s73, s73, 0")
        a("s_lshl2_add_u32 s43, s55, s45")
        a("s_and_b32 s43, s43, 7")
        a("s_mul_i32 s43, s43, 6400")
        a("v_lshl_add_u32 v36, v1, 7, s43")
        a(f"v_min_u32 v36, L_exit-{NAME}_kernel, v36")
        a("v_mov_b32 v37, s73")
        a("v_add_co_u32 v36, vcc, s72, v36")
        a("s_nop 1")
        a("v_addc_co_u32 v37, vcc, 0, v37, vcc")
        a("global_load_dword v250, v[36:37], off")
        if opt.xt:
            a("s_lshl2_add_u32 s43, s55, s45")
            a("s_bfe_u32 s72, s43, 0x30001")
            a("s_and_b32 s43, s43, 1")
            a("s_and_b32 s73, s2, 1")
            a("s_lshl3_add_u32 s73, s73, s72")
            a("s_lshl4_add_u32 s73, s43, s73")
            a("s_lshl_b32 s73, s73, 11")
            a("s_lshl1_add_u32 s72, s42, s72")
            a("v_and_b32 v38, 31, v1")
            a("v_lshlrev_b32 v38, 16, v38")
            a("v_lshrrev_b32 v39, 5, v1")
            a("v_lshl_add_u32 v38, v39, 10, v38")
            a("s_waitcnt lgkmcnt(0)")
            for k in range(opt.xt):
                a("s_add_u32 s72, s72, 1")
                a("s_and_b32 s72, s72, 7")
                a("s_lshl_b32 s74, s72, 7")
                a("s_add_u32 s74, s74, s73")
                a(f"buffer_load_dword v{249-k}, v38, s[24:27], s74 offen")
        a("s_waitcnt lgkmcnt(0)")
        a("s_branch L_nox")
        a.label("L_idl2")
    a("v_mov_b32 v14, 0")
    a("v_mov_b32 v15, 0")
    srd(a, 68, 76, 77, 256)
    p2_setup(a, opt)
    if opt.irel == 0:
        a("s_barrier")
    elif opt.irel == 1:
        a("s_waitcnt vmcnt(0)")
    a("s_branch L2W")
    p1_loader(a, opt)
    p2_worker(a, opt)
    if opt.al:
        a.l.append(f".p2align {opt.al}")
    a.label("L1_compw")
    for _ in range(opt.ph):
        a("s_nop 0")
    if opt.prio:
        a(f"s_setprio {opt.prio}")
    decode_rest(a, opt, "L_dc")
    p2_ids(a, opt)
    compute_prologue(a, opt)
    p1_compute(a, opt, "ffn8")
    p2_combine(a, opt)
    a.label("L1C_specs")
    a("s_mov_b32 s65, 2")
    dft32_consts(a)
    if opt.sdelay:
        a("s_barrier")
    a(f"s_cmp_eq_u32 s46, {K_S4G}")
    a("s_cbranch_scc1 L1C_spec4g")
    p1_compute(a, opt, "spec6")
    p1_compute(a, opt, "spec4g")
    p1_compute(a, opt, "ffn6")
    idle_compute(a, opt)
    a.label("L_exit")
    a("s_endpgm")


def page_pads(out, opt):
    import subprocess
    regions = {"ffn8": ("L1C_ffn8", "L2C"), "L2C": ("L2C", "L1C_specs"), "spec6": ("L1C_spec6", "L1C_spec4g"),
               "spec4g": ("L1C_spec4g", "L1C_ffn6"), "ffn6": ("L1C_ffn6", "L1C_idle")}
    NPK = 4

    def dispatch(pads):
        d = ["    s_mov_b64 exec, 0"]
        for kd, nm in ((0, "ffn8"), (K_SPEC, "spec6"), (K_6G, "ffn6"), (K_S4G, "spec4g")):
            lst = (pads.get(nm, []) + pads.get("L2C", []))
            assert len(lst) <= NPK, lst
            lst = lst + ["L_hopret"] * (NPK - len(lst))
            d += [f"    s_cmp_lg_u32 s46, {kd}", f"    s_cbranch_scc1 L_pp{kd}"]
            for w, p in enumerate(lst[:3]):
                d += [f"    s_cmp_eq_u32 s45, {w}", f"    s_cbranch_scc1 {p}"]
            d += [f"    s_branch {lst[3]}", f"L_pp{kd}:"]
        d += ["L_hopret:", "    s_mov_b64 exec, -1"]
        return "\n".join(d)

    lines = out.split("\n")
    pads = {}
    done = set()
    while True:
        txt = "\n".join(lines).replace("@@DISPATCH@@", dispatch(pads))
        open("pp.s", "w").write(txt)
        subprocess.check_call(["clang", "-x", "assembler", "-target", "amdgcn-amd-amdhsa", "-mcpu=gfx950", "-c", "pp.s", "-o", "pp.o"])
        dis = subprocess.check_output(["llvm-objdump", "-d", "--mcpu=gfx950", "pp.o"], text=True).split("\n")
        i0 = next(i for i, l in enumerate(dis) if l.endswith("<L1C_ffn8>:"))
        addrs = [int(l.split("// ")[1].split(":")[0], 16) for l in dis[i0:] if "// " in l]
        j0 = lines.index("L1C_ffn8:")
        idx = [j for j in range(j0, len(lines)) if lines[j].startswith("    ")]
        new = None
        for n in range(1, min(len(idx), len(addrs))):
            pg = addrs[n] >> 12
            if pg != addrs[n - 1] >> 12 and pg not in done:
                new = (idx[n], pg)
                break
        if new is None:
            return txt
        j, pg = new
        done.add(pg)
        for nm, (b, e) in regions.items():
            if lines.index(b + ":") < j < lines.index(e + ":"):
                pads.setdefault(nm, []).append(f"L_pg{pg}")
                lines[j:j] = [f"L_pg{pg}:", "    s_cbranch_execz L_hopret"]


def main():
    ap = argparse.ArgumentParser()
    ap.add_argument("-o", default=f"cdna_kernels/{NAME}.s")
    ap.add_argument("--stamps", action="store_true")
    ap.add_argument("--fine", action="store_true")
    ap.add_argument("--fine2", action="store_true")
    ap.add_argument("--q", type=int, default=8)
    ap.add_argument("--rotmask", type=int, default=7)
    ap.add_argument("--hr", type=int, default=7)
    ap.add_argument("--la", type=int, default=5)
    ap.add_argument("--psleep", type=int, default=4)
    ap.add_argument("--tail", type=int, default=0)
    ap.add_argument("--fpg", type=int, default=6)
    ap.add_argument("--codepf", type=int, default=0)
    ap.add_argument("--pad", type=int, default=-1)
    ap.add_argument("--padrole", default="C")
    ap.add_argument("--prio", type=int, default=0)
    ap.add_argument("--bpos", type=int, default=3)
    ap.add_argument("--nb", type=int, default=5)
    ap.add_argument("--pairord", type=int, default=0)
    ap.add_argument("--qmul", type=int, default=0)
    ap.add_argument("--q3", type=int, default=2)
    ap.add_argument("--al", type=int, default=12)
    ap.add_argument("--ph", type=int, default=0)
    ap.add_argument("--pp", type=int, default=0)
    ap.add_argument("--alw", type=int, default=1)
    ap.add_argument("--rt3", type=int, default=0)
    ap.add_argument("--rowtouch", type=int, default=0)
    ap.add_argument("--cbx", type=int, default=0)
    ap.add_argument("--xfl", default="")
    ap.add_argument("--sw3", type=int, default=0)
    ap.add_argument("--goit", type=int, default=7)
    ap.add_argument("--gosleep", type=int, default=100)
    ap.add_argument("--pirot", type=int, default=0)
    ap.add_argument("--xt", type=int, default=1)
    ap.add_argument("--skip3", type=int, default=1)
    ap.add_argument("--map84", type=int, default=0)
    ap.add_argument("--pre", type=int, default=0)
    ap.add_argument("--rl", type=int, default=8)
    ap.add_argument("--irel", type=int, default=0)
    ap.add_argument("--cmid", type=int, default=1)
    ap.add_argument("--epf", type=int, default=1)
    ap.add_argument("--sdelay", type=int, default=0)
    ap.add_argument("--mord", type=int, default=2)
    ap.add_argument("--tm", type=int, default=0)
    ap.add_argument("--r3", type=int, default=1)
    ap.add_argument("--rmul", type=int, default=0)
    ap.add_argument("--codepf2", type=int, default=0)
    ap.add_argument("--tlb", type=int, default=0)
    ap.add_argument("--padx", type=int, default=-1)
    ap.add_argument("--zlate", type=int, default=1)
    ap.add_argument("--mir", type=int, default=1)
    ap.add_argument("--zbar", type=int, default=20)
    ap.add_argument("--lateb9", type=int, default=1)
    ap.add_argument("--zsleep", type=int, default=4)
    ap.add_argument("--noz", action="store_true")
    ap.add_argument("--ofl", default="")
    ap.add_argument("--ssleep", type=int, default=0)
    ap.add_argument("--split0", type=int, default=1)
    ap.add_argument("--fmask", default="3")
    ap.add_argument("--cmask", type=int, default=1)
    ap.add_argument("--half", type=int, default=0)
    ap.add_argument("--hp", type=int, default=6)
    ap.add_argument("--wpoll", type=int, default=0)
    ap.add_argument("--spr", type=int, default=6)
    ap.add_argument("--fine4", action="store_true")
    ap.add_argument("--nost", action="store_true")
    ap.add_argument("--idledelay", type=int, default=0)
    ap.add_argument("--xrot", type=int, default=1)
    ap.add_argument("--tcb", type=int, default=2)
    ap.add_argument("--wtouch", type=int, default=1)
    ap.add_argument("--pf", type=int, default=0)
    ap.add_argument("--pq", type=int, default=1)
    ap.add_argument("--idlego", type=int, default=0)
    ap.add_argument("--nc", type=int, default=6)
    ap.add_argument("--stag", type=int, default=1)
    ap.add_argument("--thrz", type=int, default=0)
    ap.add_argument("--pace", type=int, default=0)
    ap.add_argument("--thr", type=int, default=0)
    ap.add_argument("--thr2", type=int, default=4)
    ap.add_argument("--early", type=int, default=0)
    ap.add_argument("--nowait", action="store_true")
    ap.add_argument("--fine3", action="store_true")
    ap.add_argument("--nomfma", action="store_true")
    ap.add_argument("--noidle", action="store_true")
    ap.add_argument("--fsleep", type=int, default=0)
    ap.add_argument("--noreads", action="store_true")
    ap.add_argument("--npk", type=int, default=0)
    ap.add_argument("--lr", type=int, default=3)
    ap.add_argument("--hs", type=int, default=87)
    ap.add_argument("--zpad", type=int, default=128)
    ap.add_argument("--foff", type=lambda x: int(x, 0), default=0x800000)
    opt = ap.parse_args()
    global HS, H_SIZE, ZR_B, Z_SIZE, F_OFF, F_SIZE
    HS = opt.hs
    H_SIZE = 64 * HS * 1024
    assert H_SIZE <= Z_OFF
    ZR_B = 16 * EP * 16 + opt.zpad
    Z_SIZE = 32 * ZR_B
    F_OFF = opt.foff
    F_SIZE = 32 * 128 * opt.rl
    global NPK
    NPK = opt.npk
    global FSLEEP
    FSLEEP = opt.fsleep
    hdr = open(f"cdna_kernels/{NAME}.s.ref").read().split("; Override launch")[0]
    out = hdr
    out += f"; @launch grid=(256,1,1) block=(512,1,1) lds={LDS_SIZE}\n"
    out += DOC
    out += '.amdgcn_target "amdgcn-amd-amdhsa--gfx950"\n.text\n'
    a = Asm()
    kernel(a, opt)
    nm = NAME + "_kernel"
    out += f".globl {nm}\n.p2align 8\n.type {nm},@function\n" + a.text()
    out += f""".section .rodata,"a"
.p2align 6
.amdhsa_kernel {nm}
  .amdhsa_next_free_vgpr 256
  .amdhsa_next_free_sgpr 102
  .amdhsa_accum_offset 256
  .amdhsa_group_segment_fixed_size 0
  .amdhsa_kernarg_size 104
  .amdhsa_user_sgpr_count 2
  .amdhsa_user_sgpr_kernarg_segment_ptr 1
  .amdhsa_system_sgpr_workgroup_id_x 1
.end_amdhsa_kernel
"""
    if opt.pp:
        out = page_pads(out, opt)
    open(opt.o, "w").write(out)


if __name__ == "__main__":
    main()
```
